```python
import torch

def _softmax(x, axis=-1):
    return torch.softmax(x, dim=axis)
def _gelu(x):
    return torch.nn.functional.gelu(x, approximate="tanh")
def _silu(x):
    return torch.nn.functional.silu(x)
def _sigmoid(x):
    return torch.sigmoid(x)
def _layernorm(x, axis=-1, eps=1e-5):
    m = x.mean(dim=axis, keepdim=True)
    v = x.var(dim=axis, keepdim=True, unbiased=False)
    return (x - m) / torch.sqrt(v + eps)
def _scatter_add(tgt, idx, src, axis=0):
    return tgt.clone().index_add_(axis, idx, src)
def _segment_sum(src, seg, n):
    out = torch.zeros((n,) + src.shape[1:], dtype=src.dtype)
    return out.index_add_(0, seg, src)
def _pad(x, pw):
    flat = tuple(v for pair in reversed(pw) for v in pair)
    return torch.nn.functional.pad(x, flat)

kernel_name = 'recurrent_scan__linear_attn_block__geglu_ffn__prompt'

def setup_inputs():

    _w = (lambda a: (lambda t: t.to(torch.bfloat16) if t.is_floating_point() else t)(torch.as_tensor(a)))
    def _A_setup():
        B, S, D = 1, 2048, 1024
        return {
            "x": _w((lambda *s: torch.randn(*s, dtype=torch.bfloat16) * 0.05)(B, S, D)),
            "wqkv": _w((lambda *s: torch.randn(*s, dtype=torch.bfloat16) * 0.05)(D, 3 * D)),
            "wo": _w((lambda *s: torch.randn(*s, dtype=torch.bfloat16) * 0.05)(D, D)),
        }
    _A_in = _A_setup()

    def _B_setup():
        B, S, D, F = 1, 2048, 1024, 3584
        return {
            "x": _w((lambda *s: torch.randn(*s, dtype=torch.bfloat16) * 0.05)(B, S, D)),
            "w_gate": _w((lambda *s: torch.randn(*s, dtype=torch.bfloat16) * 0.05)(D, F)),
            "w_up": _w((lambda *s: torch.randn(*s, dtype=torch.bfloat16) * 0.05)(D, F)),
            "w_down": _w((lambda *s: torch.randn(*s, dtype=torch.bfloat16) * 0.05)(F, D)),
        }
    _B_in = _B_setup()

    return {
        "A_x": _A_in["x"],
        "A_wqkv": _A_in["wqkv"],
        "A_wo": _A_in["wo"],
        "B_x": _B_in["x"],
        "B_w_gate": _B_in["w_gate"],
        "B_w_up": _B_in["w_up"],
        "B_w_down": _B_in["w_down"],
    }

def reference(A_x, A_wqkv, A_wo, B_x, B_w_gate, B_w_up, B_w_down):
    def _A_ref(x, wqkv, wo):
        B, S, D = x.shape
        H = 32; Dh = D // H
        qkv = (lambda x, *d: x.permute(*d))((x @ wqkv).reshape(B, S, 3, H, Dh), 2, 0, 3, 1, 4)
        q, k, v = qkv[0], qkv[1], qkv[2]
        phi = lambda t: torch.where(t > 0, t + 1, torch.exp(t)) + 1e-6
        pq, pk = phi(q), phi(k)
        kv = torch.einsum("bhsd,bhse->bhde", pk, v)
        z = torch.einsum("bhsd->bhd", pk)
        num = torch.einsum("bhqd,bhde->bhqe", pq, kv)
        den = torch.einsum("bhqd,bhd->bhq", pq, z)[..., None] + 1e-6
        o = num / den
        return (lambda x, *d: x.permute(*d))(o, 0, 2, 1, 3).reshape(B, S, D) @ wo

    def _B_ref(x, w_gate, w_up, w_down):
        return (_gelu(x @ w_gate) * (x @ w_up)) @ w_down

    x = A_x
    xn = _layernorm(x, axis=-1)
    s = _A_ref(xn, A_wqkv, A_wo)
    g = _silu(_B_ref(xn, B_w_gate, B_w_up, B_w_down))
    return x + s * g
```

```python
NAME = "recurrent_scan__linear_attn_block__geglu_ffn__prompt"
STAMP_OFF = 0x0F000000

class Asm:
    def __init__(self):
        self.lines = []
    def __call__(self, s):
        for l in s.split("\n"):
            l = l.strip()
            if l:
                self.lines.append(l if l.endswith(":") else "    " + l)
    def label(self, l):
        self.lines.append(l + ":")
    def extend(self, lst):
        for l in lst:
            self(l)
    def text(self):
        return "\n".join(self.lines) + "\n"

def vr(b, n=1, p="v"):
    return f"{p}{b}" if n == 1 else f"{p}[{b}:{b+n-1}]"
def ar(b, n=1):
    return vr(b, n, "a")
def sr(b, n=1):
    return vr(b, n, "s")

def interleave(mfmas, fillers, start=0, per=1, every=1):
    out = []
    f = list(fillers)
    for i, m in enumerate(mfmas):
        out.append(m)
        if i >= start and (i - start) % every == 0:
            for _ in range(per):
                if f:
                    out.append(f.pop(0))
    out.extend(f)
    return out

def place(mfmas, slots):
    out = list(slots.get(-1, []))
    for i, m in enumerate(mfmas):
        out.append(m)
        out.extend(slots.get(i, []))
    return out

def kernel_desc(name, vgpr, agpr, sgpr=102):
    acc_off = (vgpr + 3) // 4 * 4
    nfv = acc_off + agpr if agpr else vgpr
    return f""".amdhsa_kernel {name}
  .amdhsa_next_free_vgpr {nfv}
  .amdhsa_next_free_sgpr {sgpr}
  .amdhsa_accum_offset {acc_off}
  .amdhsa_group_segment_fixed_size 0
  .amdhsa_kernarg_size 80
  .amdhsa_user_sgpr_count 2
  .amdhsa_user_sgpr_kernarg_segment_ptr 1
  .amdhsa_system_sgpr_workgroup_id_x 1
  .amdhsa_float_denorm_mode_32 3
.end_amdhsa_kernel
"""

def file_text(kernels):
    s = ""
    for k in kernels:
        s += f"; @launch kernel={k['name']} grid=({k['grid']},1,1) block=({k['block']},1,1) lds={k['lds']}\n"
    s += '.amdgcn_target "amdgcn-amd-amdhsa--gfx950"\n.text\n'
    seen = set()
    for k in kernels:
        if k['name'] in seen: continue
        seen.add(k['name'])
        s += f".globl {k['name']}\n.p2align 8\n.type {k['name']},@function\n{k['name']}:\n"
        s += k['body'].text()
    s += '.section .rodata,"a"\n'
    seen = set()
    for k in kernels:
        if k['name'] in seen: continue
        seen.add(k['name'])
        s += ".p2align 6\n" + kernel_desc(k['name'], k['vgpr'], k['agpr'], k.get('sgpr', 102))
    return s

class Stamps:
    def __init__(self, on, sbase, kidx=0):
        self.on = on; self.sbase = sbase; self.n = 0; self.kidx = kidx
    def stamp(self, a):
        if not self.on: return
        b = self.sbase + 4 * self.n
        a(f"s_memtime s[{b}:{b+1}]\ns_memrealtime s[{b+2}:{b+3}]")
        self.n += 1
    def flush(self, a, s_ws, s_wg, vtmp):
        if not self.on: return
        a("s_waitcnt lgkmcnt(0)")
        a(f"s_mov_b64 exec, 1")
        a(f"s_lshl_b32 s0, s{s_wg}, 7")
        a(f"s_add_u32 s0, s0, {STAMP_OFF + self.kidx*0x20000}")
        a(f"v_mov_b32 v{vtmp}, s0")
        for i in range(self.n):
            b = self.sbase + 4 * i
            a(f"v_mov_b32 v{vtmp+2}, s{b}\nv_mov_b32 v{vtmp+3}, s{b+2}")
            a(f"global_store_dwordx2 v{vtmp}, v[{vtmp+2}:{vtmp+3}], s[{s_ws}:{s_ws+1}] offset:{8*i}")
            a("s_waitcnt vmcnt(0)")
        a("s_mov_b64 exec, -1")
```

```python
import re
TRANS = ("v_exp_", "v_log_", "v_rcp_", "v_rsq_", "v_sqrt_", "v_sin_", "v_cos_")
def regs(op):
    op = op.strip()
    op = op.lstrip("-")
    if op.startswith("abs(") or op.startswith("|"):
        op = op.replace("abs(", "").replace(")", "").replace("|", "")
    m = re.fullmatch(r"([vas])(\d+)", op)
    if m: return {(m.group(1), int(m.group(2)))}
    m = re.fullmatch(r"([vas])\[(\d+):(\d+)\]", op)
    if m: return {(m.group(1), i) for i in range(int(m.group(2)), int(m.group(3)) + 1)}
    if op == "vcc": return {("s", "vcc")}
    if op == "m0": return {("s", "m0")}
    if op == "exec": return {("s", "exec")}
    return set()
class I:
    def __init__(self, line):
        self.line = line
        t = line.split(";")[0].strip()
        self.name = t.split()[0] if t else ""
        rest = t[len(self.name):].strip()
        ops = [o.strip() for o in re.split(r",(?![^\[]*\])", rest)] if rest else []
        if ops:
            last = ops[-1].split()
            self.mods = last[1:]
            ops[-1] = last[0] if last else ""
        else: self.mods = []
        self.ops = ops
        n = self.name
        R = [regs(o) for o in ops]
        U = lambda l: set().union(*l) if l else set()
        self.kind = "other"; self.defs = set(); self.uses = set(); self.srcc = set(); self.data = set()
        self.states = 1
        if n == "s_nop": self.states = int(ops[0], 0) + 1
        if n.startswith("v_mfma"):
            self.kind = "mfma"; self.defs = R[0]; self.ab = R[1] | R[2]; self.srcc = R[3]; self.uses = self.ab | self.srcc
            self.passes = 8 if "32x32" in n else 4
        elif n.startswith("v_"):
            self.kind = "valu"
            self.defs = set(R[0]); self.uses = U(R[1:])
            if "_swap" in n: self.defs = R[0] | R[1]; self.uses = R[0] | R[1]
            if n.startswith(("v_fmac", "v_dot2c", "v_writelane")): self.uses |= R[0]
            if "_co_" in n: self.defs |= R[1]; self.uses = U(R[2:])
            if n.startswith("v_cmpx"): self.defs.add(("s", "exec"))
            self.trans = n.startswith(TRANS)
            self.dpp = any(m.startswith(("row_", "quad_perm", "wave_")) for m in self.mods)
        elif n.startswith("ds_"):
            self.kind = "mem"
            if n.startswith(("ds_read", "ds_bpermute", "ds_swizzle", "ds_permute")): self.defs = R[0]; self.uses = U(R[1:])
            else: self.uses = U(R)
        elif n.startswith(("buffer_", "global_")):
            self.kind = "mem"; self.vmem = True
            lds = "lds" in self.mods or "_lds_" in n
            if "load" in n and not lds: self.defs = R[0]; self.uses = U(R[1:])
            elif "atomic" in n and "sc0" in self.mods and n.startswith("global"): self.defs = R[0]; self.uses = U(R[1:])
            else: self.uses = U(R)
            if lds: self.uses.add(("s", "m0")); self.ldsdma = True
            if "store" in n and ("x4" in n or "x3" in n):
                self.data = R[0] if n.startswith("buffer") else R[1]
        elif n.startswith("s_"):
            self.kind = "salu"
            if ops and not n.startswith(("s_cmp", "s_cbranch", "s_branch", "s_waitcnt", "s_nop", "s_barrier", "s_sleep", "s_setprio", "s_endpgm")):
                self.defs = R[0]; self.uses = U(R[1:])
def need(p, c):
    w = 0
    vdef = {r for r in p.defs if r[0] in "va"}; sdef = {r for r in p.defs if r[0] == "s"}
    if p.kind == "valu":
        if c.kind == "mfma" and vdef & c.uses: w = max(w, 2)
        if c.kind == "mfma" and ("s", "exec") in sdef: w = max(w, 4)
        if c.kind == "valu":
            if p.trans and not c.trans and vdef & c.uses: w = max(w, 1)
            if c.name.startswith("v_permlane") and vdef & c.uses: w = max(w, 2)
            if c.dpp and vdef & c.uses: w = max(w, 2)
            if c.name.startswith(("v_readlane", "v_readfirstlane")) and vdef & c.uses: w = max(w, 1)
            if sdef & c.uses: w = max(w, 4 if c.name.startswith(("v_readlane", "v_writelane")) else 2)
        if p.trans and c.kind == "mem" and vdef & c.uses: w = max(w, 1)
        if p.name.startswith("v_dot") and vdef & (c.uses | c.defs):
            same_c = c.name == p.name and not (vdef & (regs(c.ops[1]) | regs(c.ops[2])))
            if not same_c: w = max(w, 3)
        if getattr(c, "vmem", False) and sdef & c.uses: w = max(w, 5)
        if c.kind == "salu" and sdef & c.uses: w = max(w, 1)
    if p.kind == "mfma":
        big = p.passes == 8
        if c.kind == "mfma":
            if p.defs & c.ab: w = max(w, 12 if big else 8)
            if p.defs & c.srcc and not (p.defs == c.srcc and p.passes == c.passes): w = max(w, 10 if big else 6)
            elif p.defs & c.defs and not (p.defs & c.srcc): w = max(w, 12 if big else 8)
        elif c.kind in ("valu", "mem"):
            if p.defs & (c.uses | c.defs): w = max(w, 12 if big else 8)
            if c.kind == "valu" and p.srcc & c.defs: w = max(w, 7 if big else 3)
    if p.data and c.defs & p.data: w = max(w, 2)
    if p.kind == "salu" and ("s", "m0") in p.defs and getattr(c, "ldsdma", False): w = max(w, 1)
    return w
def fix(lines, verbose=False):
    out = []; hist = []
    nins = 0
    for l in lines:
        s = l.strip()
        if s.endswith(":") or s.startswith(".") or s.startswith(";") or not s:
            out.append(l); continue
        c = I(s)
        dist = 0; pad = 0
        for p in reversed(hist[-24:]):
            w = need(p, c)
            if w > dist: pad = max(pad, w - dist)
            dist += p.states
            if dist >= 12: break
        if pad:
            nop = I(f"s_nop {pad-1}")
            out.append(f"    s_nop {pad-1}"); hist.append(nop); nins += 1
            if verbose: print("pad", pad, "before", s)
        out.append(l); hist.append(c)
    return out, nins
```

```python
import sys, struct, math
from asmlib import *
import hazard

WS_A, WS_XN, WS_KVP, WS_F1, WS_F2, WS_XB = 0, 0x1400000, 0x1800000, 0x1A00000, 0x1A10000, 0x1C00000
A_BYTES = 64*144*2048
def f2u(x): return struct.unpack("<I", struct.pack("<f", x))[0]
LOG2E = 1.4426950408889634
GA1 = -2.0*LOG2E*math.sqrt(2.0/math.pi); GA3 = GA1*0.044715

def srd(a, d, base, off, size):
    if off:
        a(f"s_add_u32 s{d}, s{base}, {off}\ns_addc_u32 s{d+1}, s{base+1}, 0")
    elif d != base:
        a(f"s_mov_b32 s{d}, s{base}\ns_mov_b32 s{d+1}, s{base+1}")
    a(f"s_mov_b32 s{d+2}, {size}\ns_mov_b32 s{d+3}, 0x20000")

def wave_sum(a, r, t):
    for sh in (8, 4, 2, 1):
        a(f"v_add_f32_dpp v{r}, v{r}, v{r} row_ror:{sh} row_mask:0xf bank_mask:0xf")
    a(f"v_mov_b32 v{t}, v{r}\nv_permlane16_swap_b32 v{r}, v{t}\nv_add_f32 v{r}, v{r}, v{t}")
    a(f"v_mov_b32 v{t}, v{r}\nv_permlane32_swap_b32 v{r}, v{t}\nv_add_f32 v{r}, v{r}, v{t}")

def gen_k0(o):
    a = Asm(); st = Stamps(o["stamps"], 60, 0)
    a("s_cmp_ge_u32 s2, 256\ns_cbranch_scc1 L0_end")
    st.stamp(a)
    a("s_load_dwordx2 s[8:9], s[0:1], 0\ns_load_dwordx2 s[28:29], s[0:1], 72")
    a("v_lshrrev_b32 v1, 6, v0\nv_and_b32 v2, 63, v0\nv_readfirstlane_b32 s3, v1")
    a("v_lshlrev_b32 v3, 4, v2\ns_lshl_b32 s4, s2, 14\ns_lshl_b32 s5, s3, 12\ns_add_u32 s4, s4, s5")
    a("s_waitcnt lgkmcnt(0)")
    srd(a, 8, 8, 0, 2048*1024*2)
    for i in range(4):
        a(f"buffer_load_dwordx4 v[{8+4*i}:{11+4*i}], v3, s[8:11], s4 offen offset:{1024*i}")
    srd(a, 12, 28, WS_XN, 2048*1024*2)
    srd(a, 16, 28, WS_F1, 0x20000)
    a("v_mov_b32 v4, 0\nv_lshlrev_b32 v5, 2, v2\nv_and_b32 v5, 127, v5\ns_lshl_b32 s5, s2, 7")
    a("s_cmp_eq_u32 s3, 0\ns_cbranch_scc0 L0_a")
    a(f"s_add_u32 s6, s5, {WS_F2-WS_F1}\nbuffer_store_dword v4, v5, s[16:19], s6 offen sc1\nbuffer_store_dword v4, v5, s[16:19], s5 offen sc1\ns_waitcnt vmcnt(2)")
    a("L0_a:\ns_waitcnt vmcnt(2)")
    a("s_cmp_eq_u32 s3, 0\ns_cbranch_scc1 L0_b\ns_waitcnt vmcnt(0)\nL0_b:")
    st.stamp(a)
    for r in range(2):
        src = 8 + 8*r; F = 24 + 16*r; S = 56 + 4*r
        for i in range(8):
            a(f"v_lshlrev_b32 v{F+2*i}, 16, v{src+i}\nv_and_b32 v{F+2*i+1}, 0xffff0000, v{src+i}")
        a(f"v_pk_add_f32 v[{S}:{S+1}], v[{F}:{F+1}], v[{F+2}:{F+3}]")
        for i in range(2, 8): a(f"v_pk_add_f32 v[{S}:{S+1}], v[{S}:{S+1}], v[{F+2*i}:{F+2*i+1}]")
        a(f"v_add_f32 v{S}, v{S}, v{S+1}")
        wave_sum(a, S, S+1)
        a(f"v_mul_f32 v{S}, {hex(f2u(-1.0/1024))}, v{S}")
        for i in range(8): a(f"v_pk_add_f32 v[{F+2*i}:{F+2*i+1}], v[{F+2*i}:{F+2*i+1}], v[{S}:{S+1}] op_sel_hi:[1,0]")
        a(f"v_pk_mul_f32 v[{S}:{S+1}], v[{F}:{F+1}], v[{F}:{F+1}]")
        for i in range(1, 8): a(f"v_pk_fma_f32 v[{S}:{S+1}], v[{F+2*i}:{F+2*i+1}], v[{F+2*i}:{F+2*i+1}], v[{S}:{S+1}]")
        a(f"v_add_f32 v{S}, v{S}, v{S+1}")
        wave_sum(a, S, S+1)
        a(f"v_mov_b32 v{S+1}, {hex(f2u(1e-5))}\nv_fmac_f32 v{S+1}, {hex(f2u(1.0/1024))}, v{S}\nv_rsq_f32 v{S}, v{S+1}")
        for i in range(8): a(f"v_pk_mul_f32 v[{F+2*i}:{F+2*i+1}], v[{F+2*i}:{F+2*i+1}], v[{S}:{S+1}] op_sel_hi:[1,0]")
        for i in range(8): a(f"v_cvt_pk_bf16_f32 v{src+i}, v{F+2*i}, v{F+2*i+1}")
        for i in range(2):
            a(f"buffer_store_dwordx4 v[{src+4*i}:{src+4*i+3}], v3, s[12:15], s4 offen offset:{2048*r+1024*i} sc1")
    if o["stamps"]:
        a("s_waitcnt vmcnt(0)")
        for _ in range(o["nst"] - 2): st.stamp(a)
        a("s_cmp_lg_u32 s3, 0\ns_cbranch_scc1 L0_end")
        st.flush(a, 28, 2, 4)
    a("L0_end:\ns_endpgm")
    return dict(name="ln_kernel", grid=256, block=256, lds=0, body=a, vgpr=64, agpr=0)

A_OFF, QKV_OFF, G_OFF = 0, 32768, 32768 + 12288
U_OFF = G_OFF + 14336
STAGE = 73728
EPI_LDS = 2*STAGE
def gen_k1(o):
    a = Asm(); st = Stamps(o["stamps"], 64, 1)
    V_XV, V_QV, V_GV, V_XR, V_GR, V_QR, V_PF = 8, 16, 19, 26, 30, 34, 38
    V_ACC = 48; A_X = 0; A_W = 64; A_ACC = 144
    order = [(cb, tb) for cb in range(10) for tb in range(8)]
    def accb(tb, cb):
        i = cb*8 + tb
        return ("v", V_ACC + 4*i) if i < 52 else ("a", A_ACC + 4*(i-52))
    def acc(tb, cb):
        p, b = accb(tb, cb); return vr(b, 4, p)
    def xf(tb, ks): return ar(A_X + (tb*2+ks)*4, 4)
    def wfb(cb, ks): return A_W + (cb*2+ks)*4
    a("s_cmp_ge_u32 s2, 256\ns_cbranch_scc1 L1_end")
    st.stamp(a)
    a("s_load_dwordx2 s[12:13], s[0:1], 8\ns_load_dwordx4 s[24:27], s[0:1], 32\ns_load_dwordx2 s[28:29], s[0:1], 72")
    a("v_lshrrev_b32 v1, 6, v0\nv_and_b32 v2, 63, v0\nv_readfirstlane_b32 s3, v1")
    a("s_and_b32 s4, s2, 7\ns_lshr_b32 s5, s2, 3\ns_lshr_b32 s6, s5, 3\ns_and_b32 s5, s5, 7\ns_lshl_b32 s4, s4, 2\ns_add_u32 s4, s4, s6")
    a("s_lshr_b32 s30, s3, 1\ns_and_b32 s31, s3, 1")
    a("v_lshlrev_b32 v1, 4, v2")
    a("s_lshl_b32 s6, s5, 8\ns_lshl_b32 s7, s3, 6\ns_add_u32 s6, s6, s7")
    a("v_lshrrev_b32 v3, 3, v2\nv_add_u32 v3, s6, v3\nv_lshlrev_b32 v3, 11, v3")
    a("v_lshrrev_b32 v4, 4, v2\nv_and_b32 v5, 7, v2")
    for c in range(2):
        a(f"v_add_u32 v6, {4*c}, v4\nv_xor_b32 v6, v6, v5\nv_lshl_add_u32 v6, v6, 4, v3")
        for cc in range(c, 8, 2): a(f"v_add_u32 v{V_XV+cc}, {cc*8*2048}, v6")
    def perm(r, t1, t2):
        a(f"v_bfe_u32 v{t1}, v{r}, 2, 2\nv_bfe_u32 v{t2}, v{r}, 4, 1\nv_and_b32 v{r}, 0xffffffe3, v{r}")
        a(f"v_lshl_or_b32 v{r}, v{t1}, 3, v{r}\nv_lshl_or_b32 v{r}, v{t2}, 2, v{r}")
    a("s_lshl_b32 s6, s3, 4\ns_lshl_b32 s7, s4, 6\ns_movk_i32 s32, 6144")
    for c in range(3):
        a(f"v_add_u32 v3, {64*c}, v2\nv_mul_u32_u24 v4, 5462, v3\nv_lshrrev_b32 v4, 16, v4")
        a("v_mul_u32_u24 v5, 12, v4\nv_sub_u32 v5, v3, v5\nv_add_u32 v4, s6, v4")
        a("v_bfe_u32 v6, v4, 2, 1\nv_lshlrev_b32 v6, 1, v6\nv_xor_b32 v5, v5, v6")
        perm(4, 6, 7)
        a("v_lshrrev_b32 v6, 2, v5\nv_and_b32 v5, 3, v5\nv_lshlrev_b32 v5, 4, v5\nv_lshl_add_u32 v5, v6, 11, v5\nv_add_u32 v5, s7, v5")
        a(f"v_mad_u32_u24 v{V_QV+c}, v4, s32, v5")
    a("s_lshl_b32 s6, s31, 5\ns_mul_i32 s7, s4, 224\ns_movk_i32 s32, 7168")
    for c in range(7):
        a(f"v_add_u32 v3, {64*c}, v2\nv_mul_u32_u24 v4, 4682, v3\nv_lshrrev_b32 v4, 16, v4")
        a("v_mul_u32_u24 v5, 14, v4\nv_sub_u32 v5, v3, v5\nv_add_u32 v4, s6, v4")
        perm(4, 6, 7)
        a(f"v_lshl_add_u32 v5, v5, 4, s7\nv_mad_u32_u24 v{V_GV+c}, v4, s32, v5")
    a(f"s_lshl_b32 s33, s3, 13\ns_mul_i32 s34, s3, 3072\ns_add_u32 s34, s34, {QKV_OFF}")
    a(f"s_mul_i32 s35, s3, 7168\ns_add_u32 s35, s35, {G_OFF}")
    a("s_waitcnt lgkmcnt(0)")
    srd(a, 8, 28, WS_XN, 2048*1024*2)
    srd(a, 12, 12, 0, 1024*3072*2)
    a("s_cmp_eq_u32 s30, 0\ns_cselect_b32 s16, s24, s26\ns_cselect_b32 s17, s25, s27")
    srd(a, 16, 16, 0, 1024*3584*2)
    a("s_mov_b32 s20, 0\ns_mov_b32 s21, 0\ns_mov_b32 s22, 0")
    def dma_list(stage):
        xs = [(f"s_add_u32 m0, s33, {stage*STAGE + A_OFF + c*1024}", f"buffer_load_dwordx4 v{V_XV+c}, s[8:11], s20 offen lds") for c in range(8)]
        qs = [(f"s_add_u32 m0, s34, {stage*STAGE + c*1024}", f"buffer_load_dwordx4 v{V_QV+c}, s[12:15], s21 offen lds") for c in range(3)]
        gs = [(f"s_add_u32 m0, s35, {stage*STAGE + c*1024}", f"buffer_load_dwordx4 v{V_GV+c}, s[16:19], s22 offen lds") for c in range(7)]
        return gs + qs + xs
    adv = ["s_add_u32 s20, s20, 128", f"s_add_u32 s21, s21, {64*6144}", f"s_add_u32 s22, s22, {64*7168}"]
    EV, ST0 = o["ev"], o["dst"]
    dpos = [ST0 + EV*i for i in range(18)]
    n3 = sum(1 for p in dpos if p < 80)
    for m, d in dma_list(0): a(m + "\n" + d)
    a.extend(adv)
    for m, d in dma_list(1)[:n3]: a(m + "\n" + d)
    pf = o["pf"]
    a("s_lshr_b32 s50, s2, 3\ns_and_b32 s51, s2, 7")
    a("s_cmp_eq_u32 s3, 0\ns_cbranch_scc1 L1_pf0\ns_cmp_eq_u32 s3, 1\ns_cbranch_scc1 L1_pf1")
    a("s_cmp_eq_u32 s3, 2\ns_cselect_b32 s44, s24, s26\ns_cselect_b32 s45, s25, s27")
    a(f"s_mov_b32 s46, {1024*3584*2}\ns_mov_b32 s49, {64*7168}")
    a("v_min_u32 v3, 13, v2\nv_cmp_le_u32 vcc, 7, v3\nv_cndmask_b32 v4, 0, 1, vcc\nv_mul_u32_u24 v5, 7, v4\nv_sub_u32 v5, v3, v5")
    a("s_lshl_b32 s6, s50, 1\nv_add_u32 v4, s6, v4\ns_mul_i32 s7, s51, 896\nv_lshl_add_u32 v5, v5, 7, s7\ns_movk_i32 s32, 7168")
    a(f"v_mad_u32_u24 v{V_PF}, v4, s32, v5\ns_branch L1_pfd")
    a("L1_pf1:")
    a(f"s_mov_b32 s44, s12\ns_mov_b32 s45, s13\ns_mov_b32 s46, {1024*3072*2}\ns_mov_b32 s49, {64*6144}")
    a("v_min_u32 v3, 11, v2\nv_cmp_le_u32 vcc, 6, v3\nv_cndmask_b32 v4, 0, 1, vcc\nv_mul_u32_u24 v5, 6, v4\nv_sub_u32 v5, v3, v5")
    a("s_lshl_b32 s6, s50, 1\nv_add_u32 v4, s6, v4\ns_lshl_b32 s7, s51, 8\nv_lshrrev_b32 v6, 1, v5\nv_and_b32 v5, 1, v5\nv_lshl_add_u32 v5, v5, 7, s7\nv_lshl_add_u32 v5, v6, 11, v5\ns_movk_i32 s32, 6144")
    a(f"v_mad_u32_u24 v{V_PF}, v4, s32, v5\ns_branch L1_pfd")
    a("L1_pf0:")
    a(f"s_mov_b32 s44, s8\ns_mov_b32 s45, s9\ns_mov_b32 s46, {2048*1024*2}\ns_mov_b32 s49, 128")
    a(f"s_lshl_b32 s6, s50, 6\nv_add_u32 v4, s6, v2\nv_lshlrev_b32 v{V_PF}, 11, v4")
    a("L1_pfd:")
    a("s_mov_b32 s47, 0x20000\ns_lshl_b32 s48, s49, 1")
    PFI = [f"buffer_load_dword v0, v{V_PF}, s[44:47], s48 offen", "s_add_u32 s48, s48, s49"]
    for i in range(pf): a.extend(PFI)
    a("v_and_b32 v3, 15, v2\nv_lshrrev_b32 v4, 4, v2")
    a("v_bfe_u32 v5, v3, 1, 3\ns_lshl_b32 s6, s31, 7\nv_add_u32 v3, s6, v3\nv_lshlrev_b32 v3, 7, v3")
    for ks in range(2):
        a(f"v_add_u32 v6, {ks*4}, v4\nv_xor_b32 v6, v6, v5\nv_lshl_add_u32 v{V_XR+ks}, v6, 4, v3\nv_add_u32 v{V_XR+2+ks}, {STAGE}, v{V_XR+ks}")
    a("v_and_b32 v3, 3, v2\nv_lshlrev_b32 v3, 3, v3\nv_lshrrev_b32 v4, 2, v2\nv_bfe_u32 v5, v2, 4, 1")
    a("s_and_b32 s52, s4, 1\ns_mul_i32 s6, s52, 3\ns_sub_u32 s7, 4, s6\ns_cmp_eq_u32 s30, 0\ns_cselect_b32 s53, s7, s6\ns_mul_i32 s54, s52, 6\ns_sub_u32 s54, 6, s54")
    a(f"s_lshl_b32 s6, s53, 5\ns_add_u32 s6, s6, {G_OFF}\ns_lshl_b32 s7, s54, 5\ns_add_u32 s7, s7, {G_OFF}")
    a(f"v_mul_u32_u24 v6, 224, v4\nv_add_u32 v6, v6, v3\nv_add_u32 v{V_GR}, s6, v6\nv_add_u32 v{V_GR+2}, s7, v6")
    a(f"v_mul_u32_u24 v6, 192, v4\nv_add_u32 v6, v6, v3\nv_add_u32 v6, {QKV_OFF}, v6")
    a(f"v_lshl_add_u32 v{V_QR}, v5, 5, v6\nv_xor_b32 v5, 1, v5\nv_lshl_add_u32 v{V_QR+2}, v5, 5, v6")
    for r in (V_GR, V_GR+2, V_QR, V_QR+2): a(f"v_add_u32 v{r+1}, {STAGE}, v{r}")
    for i in range(208): a(f"v_mov_b32 v{V_ACC+i}, 0")
    for i in range(112): a(f"v_accvgpr_write_b32 a{A_ACC+i}, 0")
    a(f"s_waitcnt vmcnt({n3+pf})\ns_barrier")
    st.stamp(a)
    if o["stamps"]: a("s_waitcnt lgkmcnt(0)")
    BL = [[("k", 0), ("k", 1), ("v", 0), ("v", 1), ("G", 0), ("U", 0), ("g", 0), ("u", 0), ("g", 1), ("u", 1)],
          [("q", 0), ("q", 1)] + [(t, i) for i in range(4) for t in "gu"]]
    def xread(stage, tb, ks): return f"ds_read_b128 {xf(tb, ks)}, v{V_XR + stage*2 + ks} offset:{tb*2048}"
    def wread(wc, stage, cb):
        t, i = BL[wc][cb]; L = []
        for ks in range(2):
            for rd in range(2):
                row = 32*ks + 16*rd
                if t in "qkv": reg, off = V_QR + stage + 2*i, row*192 + "qkv".index(t)*64
                else: reg, off = V_GR + stage + (2 if t in "GU" else 0), row*224 + i*32 + (U_OFF-G_OFF if t in "uU" else 0)
                L.append(f"ds_read_b64_tr_b16 {ar(wfb(cb, ks)+2*rd, 2)}, v{reg} offset:{off}")
        return L
    def mfmas(wc, half):
        L = []
        for cb, (t, i) in enumerate(BL[wc]):
            for n, tb in enumerate(range(4*half, 4*half+4)):
                for ks in ((0, 1) if n % 2 == 0 else (1, 0)):
                    x, w = xf(tb, ks), ar(wfb(cb, ks), 4)
                    A, B = (x, w) if t in "kv" else (w, x)
                    L.append(f"v_mfma_f32_16x16x32_bf16 {acc(tb, cb)}, {A}, {B}, {acc(tb, cb)}")
        return L
    a("s_mov_b32 s37, 0\ns_cmp_eq_u32 s30, 1\ns_cbranch_scc1 L1_w1")
    for wc in range(2):
        a.label(f"L1_w{wc}")
        for tb in range(4):
            for ks in range(2): a(xread(0, tb, ks))
        for cb in range(9): a.extend(wread(wc, 0, cb))
        a(".p2align 6")
        a.label(f"L1_loop{wc}")
        for stage in range(2):
            slots = {i: [] for i in range(-1, 80)}
            slots[-1].append("s_waitcnt lgkmcnt(4)")
            rl = wread(wc, stage, 9) + [xread(stage, tb, ks) for tb in range(4, 8) for ks in range(2)]
            for i, r in enumerate(rl): slots[1 + 3*i].append(r)
            slots[63].append("s_waitcnt lgkmcnt(0)")
            for (m, d), p in zip(dma_list(stage ^ 1)[n3:], dpos[n3:]):
                slots[p-80-1].append(m); slots[p-80].append(d)
            a.extend(place(mfmas(wc, 0), slots))
            slots = {i: [] for i in range(-1, 80)}
            slots[0].extend(["s_waitcnt vmcnt(0)", "s_barrier"])
            slots[1].extend(adv[:2]); slots[2].extend(adv[2:])
            if stage == 0:
                slots[-1].extend(["s_cmp_eq_u32 s37, 7", "s_cselect_b32 s10, 0, s10", "s_cselect_b32 s14, 0, s14", "s_cselect_b32 s18, 0, s18"])
            if pf: slots[2].append(PFI[0]); slots[3].append(PFI[1])
            xr = [xread(stage ^ 1, tb, ks) for tb in range(4) for ks in range(2)]
            for i, p in enumerate([4, 6, 14, 22, 30, 38, 46, 54]): slots[p].append(xr[i])
            for cb in range(9):
                for i, r in enumerate(wread(wc, stage ^ 1, cb)): slots[8*(cb+1) + [1, 3, 5, 7][i]].append(r)
            for (m, d), p in zip(dma_list(stage)[:n3], dpos[:n3]):
                slots[p-1].append(m); slots[p].append(d)
            a.extend(place(mfmas(wc, 1), slots))
        a(f"s_add_u32 s37, s37, 1\ns_cmp_lt_u32 s37, 8\ns_cbranch_scc1 L1_loop{wc}")
        st2 = st.n
        st.stamp(a)
        a("s_waitcnt lgkmcnt(0)")
        srd(a, 8, 28, WS_A, A_BYTES)
        a(f"s_mov_b32 s12, {hex(f2u(LOG2E))}\ns_mov_b32 s14, {hex(f2u(1e-6))}\ns_mov_b32 s16, {hex(f2u(GA3))}\nv_mov_b32 v2, {hex(f2u(GA1))}")
        a(f"s_lshl_b32 s20, s5, 3\ns_lshl_b32 s21, s31, 2\ns_add_u32 s20, s20, s21\ns_mul_i32 s20, s20, {144*2048}")
        a("s_mul_i32 s6, s4, 7\ns_add_u32 s7, s6, s53\ns_lshr_b32 s7, s7, 1\ns_add_u32 s7, s7, 32\ns_lshl_b32 s7, s7, 11")
        if wc == 0:
            a("s_add_u32 s6, s6, s54\ns_lshr_b32 s6, s6, 1\ns_add_u32 s6, s6, 32\ns_lshl_b32 s6, s6, 11\ns_lshl_b32 s21, s52, 3\ns_add_u32 s6, s6, s21")
        else:
            a("s_lshl_b32 s6, s4, 11")
        for i in range(4):
            a(f"s_add_u32 s{36+i}, s20, s7\ns_add_u32 s{40+i}, s20, s6\ns_add_u32 s20, s20, {144*2048}")
        a("s_nop 4")
        T = 8
        def getv(tb, cb, tmp):
            p, b = accb(tb, cb)
            if p == "v": return b
            for i in range(4): a(f"v_accvgpr_read_b32 v{tmp+i}, a{b+i}")
            return tmp
        def pairs(bases): return [b + i for b in bases for i in (0, 2)]
        def P(r): return f"v[{r}:{r+1}]"
        def phi(b0, b1, t):
            ps = pairs([b0, b1]); ts = pairs([t, t+4])
            for p, q in zip(ps, ts): a(f"v_pk_mul_f32 {P(q)}, {P(p)}, s[12:13] op_sel_hi:[1,0]")
            for i in range(8): a(f"v_exp_f32_e64 v{t+i}, v{t+i} clamp")
            for p in ps: a(f"v_max_f32 v{p}, 0, v{p}\nv_max_f32 v{p+1}, 0, v{p+1}")
            for p in ps: a(f"v_pk_add_f32 {P(p)}, {P(p)}, s[14:15] op_sel_hi:[1,0]")
            for p, q in zip(ps, ts): a(f"v_pk_add_f32 {P(p)}, {P(p)}, {P(q)}")
            pack(b0, ps)
        def pack(d, ps):
            for i, p in enumerate(ps): a(f"v_cvt_pk_bf16_f32 v{d+i}, v{p}, v{p+1}")
        def geglu(gs, us, t, d):
            ps = pairs(gs); qs = pairs(us); ts = [t + 2*i for i in range(len(ps))]
            for p, q in zip(ps, ts): a(f"v_pk_mul_f32 {P(q)}, {P(p)}, {P(p)}")
            for q in ts: a(f"v_pk_fma_f32 {P(q)}, {P(q)}, s[16:17], v[2:3] op_sel_hi:[1,0,0]")
            for p, q in zip(ps, ts): a(f"v_pk_mul_f32 {P(q)}, {P(q)}, {P(p)}")
            for i in range(2*len(ps)): a(f"v_exp_f32 v{t+i}, v{t+i}")
            for q in ts: a(f"v_pk_add_f32 {P(q)}, {P(q)}, 1.0 op_sel_hi:[1,0]")
            for i in range(2*len(ps)): a(f"v_rcp_f32 v{t+i}, v{t+i}")
            for p, u in zip(ps, qs): a(f"v_pk_mul_f32 {P(u)}, {P(u)}, {P(p)}")
            for u, q in zip(qs, ts): a(f"v_pk_mul_f32 {P(u)}, {P(u)}, {P(q)}")
            pack(d, qs)
        def frag(tb, cbs, dk, n, ta=T):
            g0 = getv(tb, cbs, ta+8); u0 = getv(tb, cbs+1, ta+12); g1 = getv(tb, cbs+2, ta+16); u1 = getv(tb, cbs+3, ta+20)
            d = ta + 24 + 4*(n & 1)
            geglu([g0, g1], [u0, u1], ta, d)
            a(f"buffer_store_dwordx4 v[{d}:{d+3}], v1, s[8:11], s{36+(tb>>1)} offen offset:{(tb&1)*1024 + dk*2048} sc1")
        if wc == 0:
            KV = 8
            for i in range(4): a(f"v_mov_b32 v{32+i}, 0x3f803f80")
            for tp in range(4):
                for eb in range(2):
                    b0, b1 = accb(2*tp, 2+eb)[1], accb(2*tp+1, 2+eb)[1]
                    pack(b0, pairs([b0, b1]))
                for db in range(2):
                    phi(accb(2*tp, db)[1], accb(2*tp+1, db)[1], 36)
                for db in range(2):
                    for eb in range(3):
                        d = vr(KV + (db*3+eb)*4, 4)
                        B = acc(2*tp, 2+eb) if eb < 2 else "v[32:35]"
                        a(f"v_mfma_f32_16x16x32_bf16 {d}, {acc(2*tp, db)}, {B}, {d if tp else 0}")
            a(f"s_mul_i32 s6, s31, 3072\ns_add_u32 s7, s6, {EPI_LDS}\nv_add_u32 v4, s7, v1\ns_sub_u32 s7, {EPI_LDS+3072}, s6\nv_add_u32 v5, s7, v1")
            a("s_cmp_eq_u32 s31, 0\ns_nop 7\ns_cbranch_scc1 L1_kv0")
            for eb in range(3): a(f"ds_write_b128 v5, v[{KV+eb*4}:{KV+eb*4+3}] offset:{eb*1024}")
            a("s_waitcnt lgkmcnt(0)")
            for i in range(12): a(f"v_mov_b32 v{KV+i}, v{KV+12+i}")
            a("s_branch L1_kv1\nL1_kv0:")
            for eb in range(3): a(f"ds_write_b128 v5, v[{KV+12+eb*4}:{KV+12+eb*4+3}] offset:{eb*1024}")
            a("L1_kv1:\ns_waitcnt lgkmcnt(0)\ns_barrier")
            for eb in range(3): a(f"ds_read_b128 v[{KV+12+eb*4}:{KV+12+eb*4+3}], v4 offset:{eb*1024}")
            srd(a, 24, 28, WS_KVP, 0x200000 + 0x10000)
            a("s_lshl_b32 s6, s4, 1\ns_add_u32 s6, s6, s31\ns_mul_i32 s44, s6, 24576\ns_mul_i32 s7, s5, 3072\ns_add_u32 s45, s44, s7")
            a(f"s_lshl_b32 s46, s6, 7\ns_add_u32 s46, s46, {WS_F1-WS_KVP}\ns_lshl_b32 s47, s5, 2\ns_add_u32 s47, s47, s46")
            a("s_waitcnt lgkmcnt(0)")
            for i in range(6): a(f"v_pk_add_f32 {P(KV+2*i)}, {P(KV+2*i)}, {P(KV+12+2*i)}")
            for eb in range(3): a(f"buffer_store_dwordx4 v[{KV+eb*4}:{KV+eb*4+3}], v1, s[24:27], s45 offen offset:{eb*1024} sc1")
            for tp in range(4):
                gs = [accb(2*tp, 4)[1], accb(2*tp+1, 4)[1]]; us = [accb(2*tp, 5)[1], accb(2*tp+1, 5)[1]]
                d = 32 + 4*(tp & 1)
                geglu(gs, us, 24, d)
                for h in range(2):
                    a(f"buffer_store_dwordx2 v[{d+2*h}:{d+2*h+1}], v1, s[8:11], s{40+tp} offen offset:{h*1024} sc1")
            a("v_mov_b32 v4, 0\nv_mov_b32 v5, 1\ns_waitcnt vmcnt(8)\ns_mov_b64 exec, 1\nbuffer_store_dword v5, v4, s[24:27], s47 offen sc1\ns_mov_b64 exec, -1")
            for tb in range(4): frag(tb, 6, 0, tb)
            a("v_lshrrev_b32 v4, 2, v1\nv_and_b32 v4, 28, v4")
            a("buffer_load_dword v5, v4, s[24:27], s46 offen sc1")
            for tb in range(4, 6): frag(tb, 6, 0, tb)
            a("s_mov_b32 s55, 0\ns_waitcnt vmcnt(2)\nL1_poll:\nv_cmp_ne_u32 vcc, 1, v5\ns_add_u32 s55, s55, 1\ns_cmp_ge_u32 s55, 0x40000\ns_cbranch_scc1 L1_polld\ns_nop 2\ns_cbranch_vccz L1_polld")
            a("s_sleep 2\nbuffer_load_dword v5, v4, s[24:27], s46 offen sc1\ns_waitcnt vmcnt(0)\ns_branch L1_poll\nL1_polld:")
            LD = V_ACC
            for r in range(8):
                for eb in range(3):
                    a(f"buffer_load_dwordx4 v[{LD+(r*3+eb)*4}:{LD+(r*3+eb)*4+3}], v1, s[24:27], s44 offen offset:{eb*1024} sc1")
                a("s_add_u32 s44, s44, 3072")
            for tb in range(6, 8): frag(tb, 6, 0, tb)
            a("s_waitcnt vmcnt(2)")
            for stp in (48, 24, 12):
                for i in range(0, stp, 2): a(f"v_pk_add_f32 {P(LD+i)}, {P(LD+i)}, {P(LD+stp+i)}")
            pack(LD, [LD + 2*i for i in range(6)])
            a(f"s_lshl_b32 s6, s31, 3\ns_add_u32 s6, s6, {EPI_LDS+6144}\nv_add_u32 v4, s6, v1")
            for eb in range(3): a(f"ds_write_b64 v4, v[{LD+2*eb}:{LD+2*eb+1}] offset:{eb*1024}")
            a("s_waitcnt lgkmcnt(0)\ns_barrier")
        else:
            for tb in range(8): phi(accb(tb, 0)[1], accb(tb, 1)[1], T)
            n = 0
            for dk in range(2):
                for tb in range(8):
                    frag(tb, 2 + 4*dk, dk, n); n += 1
                    if n == o["bar1"]: a("s_barrier")
            a(f"v_add_u32 v4, {EPI_LDS+6144}, v1\ns_barrier")
            for eb in range(3): a(f"ds_read_b128 v[{8+4*eb}:{11+4*eb}], v4 offset:{eb*1024}")
            a("s_waitcnt lgkmcnt(0)")
            OB = accb(0, 2)[1]
            for tb in range(8):
                for eb in (2, 0, 1):
                    a(f"v_mfma_f32_16x16x32_bf16 {vr(OB+(tb*3+eb)*4, 4)}, v[{8+4*eb}:{11+4*eb}], {acc(tb, 0)}, 0")
            for tb in range(8):
                b = OB + tb*12
                a(f"v_add_f32 v{b+8}, s14, v{b+8}\nv_rcp_f32 v{b+8}, v{b+8}")
                for i in range(4): a(f"v_pk_mul_f32 {P(b+2*i)}, {P(b+2*i)}, {P(b+8)} op_sel_hi:[1,0]")
                pack(b, [b + 2*i for i in range(4)])
                a(f"buffer_store_dwordx4 v[{b}:{b+3}], v1, s[8:11], s{40+(tb>>1)} offen offset:{(tb&1)*1024} sc1")
        if o["stamps"]:
            st.stamp(a)
            a("s_waitcnt vmcnt(0)")
            for _ in range(o["nst"] - st.n): st.stamp(a)
            a(f"s_cmp_lg_u32 s3, {o['stw']}\ns_cbranch_scc1 L1_end")
            st.flush(a, 28, 2, 4)
            st.n = st2
        a("s_endpgm")
    a("L1_end:\ns_endpgm")
    return dict(name="g1_kernel", grid=256, block=256, lds=163840, body=a, vgpr=256, agpr=256)

def gen_k2(o):
    a = Asm(); st = Stamps(o["stamps"], 64, 2)
    D = 3; R = NS = 4; nf, ns = 28, 8; T = nf + ns
    V_AV, V_BR, V_BV, V_XO = 4, 8, 12, 16
    V_BF, V_ACC = 24, 152
    A_PX = 128
    def af(slot, i): return ar(slot*32 + i*4, 4)
    def bf(p, u, cb): return V_BF + p*64 + (u*4+cb)*4
    a("s_cmp_ge_u32 s2, 256\ns_cbranch_scc1 L2_end")
    st.stamp(a)
    a("s_load_dwordx2 s[12:13], s[0:1], 48\ns_load_dwordx2 s[16:17], s[0:1], 16\ns_load_dwordx2 s[28:29], s[0:1], 72")
    a("s_load_dwordx2 s[40:41], s[0:1], 0\ns_load_dwordx2 s[44:45], s[0:1], 56")
    a("v_lshrrev_b32 v1, 6, v0\nv_and_b32 v2, 63, v0\nv_readfirstlane_b32 s3, v1")
    a("s_and_b32 s4, s2, 1\ns_lshr_b32 s5, s2, 3\ns_bfe_u32 s6, s2, 0x20001\ns_lshl_b32 s6, s6, 2\ns_lshr_b32 s7, s5, 3\ns_add_u32 s6, s6, s7\ns_and_b32 s7, s5, 7")
    a(f"s_lshl_b32 s33, s6, 2\ns_add_u32 s33, s33, s3\ns_mul_i32 s30, s33, {144*2048}")
    a(f"s_mul_i32 s20, s4, {56*2048}\ns_add_u32 s20, s20, {32*2048}\ns_add_u32 s20, s20, s30")
    a(f"v_lshlrev_b32 v{V_AV}, 4, v2\nv_add_u32 v{V_AV+1}, 4096, v{V_AV}")
    a(f"s_mul_i32 s21, s4, 1792\ns_lshr_b32 s22, s3, 1\ns_lshl_b32 s22, s22, 5\ns_add_u32 s21, s21, s22\ns_lshl_b32 s21, s21, 11")
    a("s_lshl_b32 s22, s7, 8\ns_add_u32 s21, s21, s22\ns_xor_b32 s31, s3, s4\ns_and_b32 s31, s31, 1\ns_lshl_b32 s31, s31, 7\ns_add_u32 s21, s21, s31")
    a("s_lshl_b32 s32, s4, 7\ns_add_u32 s32, s32, s22\ns_lshl_b32 s31, s3, 16\ns_add_u32 s31, s31, s32")
    a("s_lshl_b32 s33, s33, 16\ns_add_u32 s33, s33, s32")
    a("v_lshrrev_b32 v3, 3, v2\nv_bfe_u32 v6, v2, 4, 2\nv_lshlrev_b32 v6, 1, v6\nv_and_b32 v7, 7, v2\nv_xor_b32 v7, v7, v6")
    a(f"v_lshlrev_b32 v7, 4, v7\nv_lshl_add_u32 v{V_BV}, v3, 11, v7")
    for c in range(1, 4): a(f"v_add_u32 v{V_BV+c}, {16384*c}, v{V_BV}")
    a("s_lshl_b32 s23, s3, 12")
    a("s_waitcnt lgkmcnt(0)")
    srd(a, 8, 28, WS_A, A_BYTES); srd(a, 12, 12, 0, 3584*1024*2); srd(a, 16, 16, 0, 1024*1024*2)
    def bl(slot, ph):
        L = []
        s_, so, stp = ("s[12:15]", 21, 64*2048) if ph == "f" else ("s[16:19]", 31, 128*2048)
        for c in range(4):
            L.append([f"s_add_u32 m0, s23, {slot*16384 + c*1024}"])
            L.append([f"buffer_load_dwordx4 v{V_BV+c}, {s_}, s{so} offen lds"])
        L.append([f"s_add_u32 s{so}, s{so}, {stp}"])
        return L
    def al(slot, ph):
        n, so = (4, 20) if ph == "f" else (8, 30)
        L = [[f"buffer_load_dwordx4 {af(slot, i)}, v{V_AV + (i>>2)}, s[8:11], s{so} offen offset:{(i&3)*1024}"] for i in range(n)]
        L.append([f"s_add_u32 s{so}, s{so}, {n*1024}"])
        return L
    def rl(slot, p, ph):
        od = [(ks*2+ch, cb) for ch in range(2) for cb in range(4) for ks in range(2)] if ph == "f" else [(u, cb) for cb in range(4) for u in range(4)]
        return [f"ds_read_b64_tr_b16 {vr(bf(p, u, cb) + rd*2, 2)}, v{V_BR + cb} offset:{slot*16384 + u*4096 + rd*2048}" for u, cb in od for rd in range(2)]
    def facc(ch, cb, tb): return V_ACC + ((ch*4+cb)*2+tb)*4
    def ml(slot, p, ph):
        L = []
        if ph == "f":
            for ch in range(2):
                for cb in range(4):
                    for tb in range(2):
                        for ks in ((0, 1) if tb == 0 else (1, 0)):
                            c = vr(facc(ch, cb, tb), 4)
                            L.append(f"v_mfma_f32_16x16x32_bf16 {c}, {vr(bf(p, ks*2+ch, cb), 4)}, {af(slot, ks*2+tb)}, {c}")
        else:
            for cb in range(4):
                for tb in range(2):
                    for ks in (range(4) if tb == 0 else (3, 2, 1, 0)):
                        c = vr(facc(2, cb, tb), 4)
                        L.append(f"v_mfma_f32_16x16x32_bf16 {c}, {vr(bf(p, ks, cb), 4)}, {af(slot, ks*2+tb)}, {c}")
        return L
    def ph(t): return "f" if t < nf else ("s" if t < T else None)
    extra = {nf: 8, nf+3: 1, nf+5: 5, nf+6: 8}
    def nops(t): return (4 if ph(t+D+1) else 0) + {"f": 4, "s": 8, None: 0}[ph(t+D)] + extra.get(t, 0)
    for x in bl(0, "f"): a("\n".join(x))
    for t in range(-D, 0):
        for x in bl(t+D+1, "f"): a("\n".join(x))
        for x in al(t+D, "f"): a("\n".join(x))
    a("v_lshrrev_b32 v3, 2, v2\nv_lshlrev_b32 v3, 7, v3\nv_and_b32 v6, 3, v2\nv_lshl_add_u32 v3, v6, 3, v3\nv_bfe_u32 v6, v2, 3, 2")
    for cb in range(4): a(f"v_xor_b32 v7, {cb}, v6\nv_lshl_add_u32 v{V_BR+cb}, v7, 5, v3")
    a(f"v_and_b32 v3, 15, v2\nv_lshlrev_b32 v3, 11, v3\nv_bfe_u32 v6, v2, 4, 1\nv_lshl_add_u32 v3, v6, 5, v3\nv_lshrrev_b32 v6, 5, v2\nv_lshl_add_u32 v{V_XO}, v6, 4, v3\nv_add_u32 v{V_XO+1}, 32768, v{V_XO}")
    srd(a, 40, 40, 0, 2048*1024*2); srd(a, 44, 44, 0, 2048*1024*2)
    srd(a, 24, 28, WS_F2, WS_XB - WS_F2 + 256*32768)
    a(f"s_lshl_b32 s34, s2, 15\ns_lshl_b32 s35, s3, 13\ns_add_u32 s34, s34, s35\ns_xor_b32 s35, s34, 32768\ns_add_u32 s34, s34, {WS_XB-WS_F2}\ns_add_u32 s35, s35, {WS_XB-WS_F2}")
    a("s_lshl_b32 s36, s2, 7\ns_lshl_b32 s38, s3, 2\ns_add_u32 s36, s36, s38\ns_xor_b32 s38, s36, 128")
    a(f"s_mov_b32 s48, {hex(f2u(-LOG2E))}\nv_mov_b32 v18, 0\nv_mov_b32 v19, 1")
    for i in range(96): a(f"v_mov_b32 v{V_ACC+i}, 0")
    a(f"s_waitcnt vmcnt({8*D})\ns_barrier")
    st.stamp(a)
    if o["stamps"]: a("s_waitcnt lgkmcnt(0)")
    a.extend(rl(0, 0, "f"))
    A_XL = 128
    def stage(t):
        p = t & 1
        ms = ml(t % R, p, ph(t))
        slots = {i: [] for i in range(-1, 32)}
        n = sum(nops(u) for u in range(t-D+1, t))
        if t == nf+6: n = 0
        if t == nf+7: n = 8
        slots[-1].append(f"s_waitcnt vmcnt({n}) lgkmcnt(0)")
        if ph(t+1): slots[0].append("s_barrier")
        if ph(t+1):
            rr = rl((t+1) % NS, p ^ 1, ph(t+1))
            for i, r in enumerate(rr): slots[(i*28)//32].append(r)
        ld = (bl((t+D+1) % NS, ph(t+D+1)) if ph(t+D+1) else []) + (al((t+D) % R, ph(t+D)) if ph(t+D) else [])
        if t == nf:
            ld = ld + [[f"buffer_store_dwordx4 {vr(facc(1, i>>1, i&1), 4)}, v{V_AV + (i>>2)}, s[24:27], s34 offen offset:{(i&3)*1024} sc1"] for i in range(8)]
        if t == nf+3:
            ld = [["s_mov_b64 exec, 1", "buffer_store_dword v19, v18, s[24:27], s36 offen sc1", "s_mov_b64 exec, -1"]] + ld
        if t == nf+5:
            ld = [[f"buffer_load_dwordx4 {ar(A_XL + 4*i, 4)}, v{V_XO + (i>>1)}, s[40:43], s33 offen offset:{(i&1)*64}"] for i in range(4)] + [["buffer_load_dword v20, v18, s[24:27], s38 offen sc1"]]
        if t == nf+6:
            slots[-1].extend(["s_mov_b32 s55, 0", "L2_poll:", "v_cmp_ne_u32 vcc, 1, v20", "s_add_u32 s55, s55, 1", "s_cmp_ge_u32 s55, 0x40000", "s_cbranch_scc1 L2_polld", "s_nop 2", "s_cbranch_vccz L2_polld", "s_sleep 2",
                              "buffer_load_dword v20, v18, s[24:27], s38 offen sc1", "s_waitcnt vmcnt(0)", "s_branch L2_poll", "L2_polld:"])
            ld = [[f"buffer_load_dwordx4 {vr(facc(1, i>>1, i&1), 4)}, v{V_AV + (i>>2)}, s[24:27], s35 offen offset:{(i&3)*1024} sc1"] for i in range(8)]
            for i, x in enumerate(ld): slots[i].extend(x)
            ld = []
        for i, x in enumerate(ld): slots[1 + (i*30)//max(len(ld), 1)].extend(x)
        a.extend(place(ms, slots))
    nloop = 6
    a("s_mov_b32 s37, 0\n.p2align 6\nL2_loop:")
    for t in range(R): stage(t + R)
    a(f"s_add_u32 s37, s37, 1\ns_cmp_lt_u32 s37, {nloop}\ns_cbranch_scc1 L2_loop")
    for t in range(nloop*R, T):
        if t == nf: st.stamp(a)
        stage(t)
    st.stamp(a)
    def P(r): return f"v[{r}:{r+1}]"
    for i in range(16): a(f"v_accvgpr_read_b32 v{24+i}, a{A_XL+i}")
    for q in range(4):
        b = 24 + 4*q
        a(f"v_permlane16_swap_b32 v{b}, v{b+2}\nv_permlane16_swap_b32 v{b+1}, v{b+3}")
    for i in range(16): a(f"v_lshlrev_b32 v{40+2*i}, 16, v{24+i}\nv_and_b32 v{41+2*i}, 0xffff0000, v{24+i}")
    a("s_waitcnt vmcnt(0)")
    F, Q, S = facc(0, 0, 0), facc(1, 0, 0), facc(2, 0, 0)
    for i in range(0, 32, 2): a(f"v_pk_add_f32 {P(F+i)}, {P(F+i)}, {P(Q+i)}")
    for i in range(0, 32, 2): a(f"v_pk_mul_f32 {P(Q+i)}, {P(F+i)}, s[48:49] op_sel_hi:[1,0]")
    for i in range(32): a(f"v_exp_f32 v{Q+i}, v{Q+i}")
    for i in range(0, 32, 2): a(f"v_pk_add_f32 {P(Q+i)}, {P(Q+i)}, 1.0 op_sel_hi:[1,0]")
    for i in range(32): a(f"v_rcp_f32 v{Q+i}, v{Q+i}")
    for i in range(0, 32, 2): a(f"v_pk_mul_f32 {P(F+i)}, {P(F+i)}, {P(Q+i)}")
    for tb in range(2):
        for p in range(2):
            d = 24 + (tb*2+p)*4
            for e in range(2):
                cb = 2*p + e; off = (cb*2+tb)*4; xb = 40 + ((tb*2+p)*4 + 2*e)*2
                for h in range(2):
                    a(f"v_pk_fma_f32 {P(S+off+2*h)}, {P(S+off+2*h)}, {P(F+off+2*h)}, {P(xb+2*h)}")
                for h in range(2):
                    a(f"v_cvt_pk_bf16_f32 v{d+2*e+h}, v{S+off+2*h}, v{S+off+2*h+1}")
            a(f"v_permlane16_swap_b32 v{d}, v{d+2}\nv_permlane16_swap_b32 v{d+1}, v{d+3}")
            a(f"buffer_store_dwordx4 v[{d}:{d+3}], v{V_XO+tb}, s[44:47], s33 offen offset:{p*64}{o['outpol']}")
    if o["stamps"]:
        a("s_waitcnt vmcnt(0)")
        for _ in range(o["nst"] - st.n): st.stamp(a)
        a("s_cmp_lg_u32 s3, 0\ns_cbranch_scc1 L2_end")
        st.flush(a, 28, 2, 4)
    a("L2_end:\ns_endpgm")
    return dict(name="g2_kernel", grid=256, block=256, lds=90112, body=a, vgpr=256, agpr=144)

HEADER = open("cdna_kernels/" + NAME + ".s.ref").read().split("; Override launch")[0] if __import__("os").path.exists("cdna_kernels/" + NAME + ".s.ref") else ""
def gen(**kw):
    o = dict(stamps=0, nst=5, stw=2, ev=8, dst=4, pf=1, bar1=2, outsc=0)
    o.update(kw)
    o["outpol"] = ["", " sc1", " nt"][o["outsc"]]
    ks = [gen_k0(o), gen_k1(o), gen_k2(o)]
    for k in ks:
        k["body"].lines, n = hazard.fix(k["body"].lines, verbose=o.get("hv", 0))
    return HEADER + file_text(ks)
if __name__ == "__main__":
    kw = {}
    for x in sys.argv[2:]:
        k, v = x.split("="); kw[k] = int(v)
    open(sys.argv[1], "w").write(gen(**kw))
```

```python
import sys, struct, math
from asmlib import *
import hazard

WS_A, WS_XN, WS_KVP, WS_F1, WS_F2, WS_XB = 0, 0x1400000, 0x1800000, 0x1A00000, 0x1A10000, 0x1C00000
A_BYTES = 64*144*2048
def f2u(x): return struct.unpack("<I", struct.pack("<f", x))[0]
LOG2E = 1.4426950408889634
GA1 = -2.0*LOG2E*math.sqrt(2.0/math.pi); GA3 = GA1*0.044715

def srd(a, d, base, off, size):
    if off:
        a(f"s_add_u32 s{d}, s{base}, {off}\ns_addc_u32 s{d+1}, s{base+1}, 0")
    elif d != base:
        a(f"s_mov_b32 s{d}, s{base}\ns_mov_b32 s{d+1}, s{base+1}")
    a(f"s_mov_b32 s{d+2}, {size}\ns_mov_b32 s{d+3}, 0x20000")

def wave_sum(a, r, t):
    for sh in (8, 4, 2, 1):
        a(f"v_add_f32_dpp v{r}, v{r}, v{r} row_ror:{sh} row_mask:0xf bank_mask:0xf")
    a(f"v_mov_b32 v{t}, v{r}\nv_permlane16_swap_b32 v{r}, v{t}\nv_add_f32 v{r}, v{r}, v{t}")
    a(f"v_mov_b32 v{t}, v{r}\nv_permlane32_swap_b32 v{r}, v{t}\nv_add_f32 v{r}, v{r}, v{t}")

def gen_k0(o):
    a = Asm(); st = Stamps(o["stamps"], 60, 0)
    a("s_cmp_ge_u32 s2, 256\ns_cbranch_scc1 L0_end")
    st.stamp(a)
    a("s_load_dwordx2 s[8:9], s[0:1], 0\ns_load_dwordx2 s[28:29], s[0:1], 72")
    a("v_lshrrev_b32 v1, 6, v0\nv_and_b32 v2, 63, v0\nv_readfirstlane_b32 s3, v1")
    a("v_lshlrev_b32 v3, 4, v2\ns_lshl_b32 s4, s2, 14\ns_lshl_b32 s5, s3, 12\ns_add_u32 s4, s4, s5")
    a("s_waitcnt lgkmcnt(0)")
    srd(a, 8, 8, 0, 2048*1024*2)
    for i in range(4):
        a(f"buffer_load_dwordx4 v[{8+4*i}:{11+4*i}], v3, s[8:11], s4 offen offset:{1024*i}")
    srd(a, 12, 28, WS_XN, 2048*1024*2)
    srd(a, 16, 28, WS_F1, 0x20000)
    a("v_mov_b32 v4, 0\nv_lshlrev_b32 v5, 2, v2\nv_and_b32 v5, 127, v5\ns_lshl_b32 s5, s2, 7")
    a("s_cmp_eq_u32 s3, 0\ns_cbranch_scc0 L0_a")
    a(f"s_add_u32 s6, s5, {WS_F2-WS_F1}\nbuffer_store_dword v4, v5, s[16:19], s6 offen sc1\nbuffer_store_dword v4, v5, s[16:19], s5 offen sc1\ns_waitcnt vmcnt(2)")
    a("L0_a:\ns_waitcnt vmcnt(2)")
    a("s_cmp_eq_u32 s3, 0\ns_cbranch_scc1 L0_b\ns_waitcnt vmcnt(0)\nL0_b:")
    st.stamp(a)
    for r in range(2):
        src = 8 + 8*r; F = 24 + 16*r; S = 56 + 4*r
        for i in range(8):
            a(f"v_lshlrev_b32 v{F+2*i}, 16, v{src+i}\nv_and_b32 v{F+2*i+1}, 0xffff0000, v{src+i}")
        a(f"v_pk_add_f32 v[{S}:{S+1}], v[{F}:{F+1}], v[{F+2}:{F+3}]")
        for i in range(2, 8): a(f"v_pk_add_f32 v[{S}:{S+1}], v[{S}:{S+1}], v[{F+2*i}:{F+2*i+1}]")
        a(f"v_add_f32 v{S}, v{S}, v{S+1}")
        wave_sum(a, S, S+1)
        a(f"v_mul_f32 v{S}, {hex(f2u(-1.0/1024))}, v{S}")
        for i in range(8): a(f"v_pk_add_f32 v[{F+2*i}:{F+2*i+1}], v[{F+2*i}:{F+2*i+1}], v[{S}:{S+1}] op_sel_hi:[1,0]")
        a(f"v_pk_mul_f32 v[{S}:{S+1}], v[{F}:{F+1}], v[{F}:{F+1}]")
        for i in range(1, 8): a(f"v_pk_fma_f32 v[{S}:{S+1}], v[{F+2*i}:{F+2*i+1}], v[{F+2*i}:{F+2*i+1}], v[{S}:{S+1}]")
        a(f"v_add_f32 v{S}, v{S}, v{S+1}")
        wave_sum(a, S, S+1)
        a(f"v_mov_b32 v{S+1}, {hex(f2u(1e-5))}\nv_fmac_f32 v{S+1}, {hex(f2u(1.0/1024))}, v{S}\nv_rsq_f32 v{S}, v{S+1}")
        for i in range(8): a(f"v_pk_mul_f32 v[{F+2*i}:{F+2*i+1}], v[{F+2*i}:{F+2*i+1}], v[{S}:{S+1}] op_sel_hi:[1,0]")
        for i in range(8): a(f"v_cvt_pk_bf16_f32 v{src+i}, v{F+2*i}, v{F+2*i+1}")
        for i in range(2):
            a(f"buffer_store_dwordx4 v[{src+4*i}:{src+4*i+3}], v3, s[12:15], s4 offen offset:{2048*r+1024*i} sc1")
    if o["stamps"]:
        a("s_waitcnt vmcnt(0)")
        for _ in range(o["nst"] - 2): st.stamp(a)
        a("s_cmp_lg_u32 s3, 0\ns_cbranch_scc1 L0_end")
        st.flush(a, 28, 2, 4)
    a("L0_end:\ns_endpgm")
    return dict(name="ln_kernel", grid=256, block=256, lds=0, body=a, vgpr=64, agpr=0)

A_OFF, QKV_OFF, G_OFF = 0, 32768, 32768 + 12288
U_OFF = G_OFF + 14336
STAGE = 73728
EPI_LDS = 2*STAGE
def gen_k1(o):
    a = Asm(); st = Stamps(o["stamps"], 64, 1)
    V_XV, V_QV, V_GV, V_XR, V_GR, V_QR, V_PF = 8, 16, 19, 26, 30, 34, 38
    V_ACC = 48; A_X = 0; A_W = 64; A_ACC = 144
    order = [(cb, tb) for cb in range(10) for tb in range(8)]
    def accb(tb, cb):
        i = cb*8 + tb
        return ("v", V_ACC + 4*i) if i < 52 else ("a", A_ACC + 4*(i-52))
    def acc(tb, cb):
        p, b = accb(tb, cb); return vr(b, 4, p)
    def xf(tb, ks): return ar(A_X + (tb*2+ks)*4, 4)
    def wfb(cb, ks): return A_W + (cb*2+ks)*4
    a("s_cmp_ge_u32 s2, 256\ns_cbranch_scc1 L1_end")
    st.stamp(a)
    a("s_load_dwordx2 s[12:13], s[0:1], 8\ns_load_dwordx4 s[24:27], s[0:1], 32\ns_load_dwordx2 s[28:29], s[0:1], 72")
    a("v_lshrrev_b32 v1, 6, v0\nv_and_b32 v2, 63, v0\nv_readfirstlane_b32 s3, v1")
    a("s_and_b32 s4, s2, 7\ns_lshr_b32 s5, s2, 3\ns_lshr_b32 s6, s5, 3\ns_and_b32 s5, s5, 7\ns_lshl_b32 s4, s4, 2\ns_add_u32 s4, s4, s6")
    a("s_lshr_b32 s30, s3, 1\ns_and_b32 s31, s3, 1")
    a("v_lshlrev_b32 v1, 4, v2")
    a("s_lshl_b32 s6, s5, 8\ns_lshl_b32 s7, s3, 6\ns_add_u32 s6, s6, s7")
    a("v_lshrrev_b32 v3, 3, v2\nv_add_u32 v3, s6, v3\nv_lshlrev_b32 v3, 11, v3")
    a("v_lshrrev_b32 v4, 4, v2\nv_and_b32 v5, 7, v2")
    for c in range(2):
        a(f"v_add_u32 v6, {4*c}, v4\nv_xor_b32 v6, v6, v5\nv_lshl_add_u32 v6, v6, 4, v3")
        for cc in range(c, 8, 2): a(f"v_add_u32 v{V_XV+cc}, {cc*8*2048}, v6")
    def perm(r, t1, t2):
        a(f"v_bfe_u32 v{t1}, v{r}, 2, 2\nv_bfe_u32 v{t2}, v{r}, 4, 1\nv_and_b32 v{r}, 0xffffffe3, v{r}")
        a(f"v_lshl_or_b32 v{r}, v{t1}, 3, v{r}\nv_lshl_or_b32 v{r}, v{t2}, 2, v{r}")
    a("s_lshl_b32 s6, s3, 4\ns_lshl_b32 s7, s4, 6\ns_movk_i32 s32, 6144")
    for c in range(3):
        a(f"v_add_u32 v3, {64*c}, v2\nv_mul_u32_u24 v4, 5462, v3\nv_lshrrev_b32 v4, 16, v4")
        a("v_mul_u32_u24 v5, 12, v4\nv_sub_u32 v5, v3, v5\nv_add_u32 v4, s6, v4")
        a("v_bfe_u32 v6, v4, 2, 1\nv_lshlrev_b32 v6, 1, v6\nv_xor_b32 v5, v5, v6")
        perm(4, 6, 7)
        a("v_lshrrev_b32 v6, 2, v5\nv_and_b32 v5, 3, v5\nv_lshlrev_b32 v5, 4, v5\nv_lshl_add_u32 v5, v6, 11, v5\nv_add_u32 v5, s7, v5")
        a(f"v_mad_u32_u24 v{V_QV+c}, v4, s32, v5")
    a("s_lshl_b32 s6, s31, 5\ns_mul_i32 s7, s4, 224\ns_movk_i32 s32, 7168")
    for c in range(7):
        a(f"v_add_u32 v3, {64*c}, v2\nv_mul_u32_u24 v4, 4682, v3\nv_lshrrev_b32 v4, 16, v4")
        a("v_mul_u32_u24 v5, 14, v4\nv_sub_u32 v5, v3, v5\nv_add_u32 v4, s6, v4")
        perm(4, 6, 7)
        a(f"v_lshl_add_u32 v5, v5, 4, s7\nv_mad_u32_u24 v{V_GV+c}, v4, s32, v5")
    a(f"s_lshl_b32 s33, s3, 13\ns_mul_i32 s34, s3, 3072\ns_add_u32 s34, s34, {QKV_OFF}")
    a(f"s_mul_i32 s35, s3, 7168\ns_add_u32 s35, s35, {G_OFF}")
    a("s_waitcnt lgkmcnt(0)")
    srd(a, 8, 28, WS_XN, 2048*1024*2)
    srd(a, 12, 12, 0, 1024*3072*2)
    a("s_cmp_eq_u32 s30, 0\ns_cselect_b32 s16, s24, s26\ns_cselect_b32 s17, s25, s27")
    srd(a, 16, 16, 0, 1024*3584*2)
    a("s_mov_b32 s20, 0\ns_mov_b32 s21, 0\ns_mov_b32 s22, 0")
    def dma_list(stage):
        xs = [(f"s_add_u32 m0, s33, {stage*STAGE + A_OFF + c*1024}", f"buffer_load_dwordx4 v{V_XV+c}, s[8:11], s20 offen lds") for c in range(8)]
        qs = [(f"s_add_u32 m0, s34, {stage*STAGE + c*1024}", f"buffer_load_dwordx4 v{V_QV+c}, s[12:15], s21 offen lds") for c in range(3)]
        gs = [(f"s_add_u32 m0, s35, {stage*STAGE + c*1024}", f"buffer_load_dwordx4 v{V_GV+c}, s[16:19], s22 offen lds") for c in range(7)]
        return gs + qs + xs
    adv = ["s_add_u32 s20, s20, 128", f"s_add_u32 s21, s21, {64*6144}", f"s_add_u32 s22, s22, {64*7168}"]
    EV, ST0 = o["ev"], o["dst"]
    dpos = [ST0 + EV*i for i in range(18)]
    n3 = sum(1 for p in dpos if p < 80)
    for m, d in dma_list(0): a(m + "\n" + d)
    a.extend(adv)
    for m, d in dma_list(1)[:n3]: a(m + "\n" + d)
    pf = o["pf"]
    a("s_lshr_b32 s50, s2, 3\ns_and_b32 s51, s2, 7")
    a("s_cmp_eq_u32 s3, 0\ns_cbranch_scc1 L1_pf0\ns_cmp_eq_u32 s3, 1\ns_cbranch_scc1 L1_pf1")
    a("s_cmp_eq_u32 s3, 2\ns_cselect_b32 s44, s24, s26\ns_cselect_b32 s45, s25, s27")
    a(f"s_mov_b32 s46, {1024*3584*2}\ns_mov_b32 s49, {64*7168}")
    a("v_min_u32 v3, 13, v2\nv_cmp_le_u32 vcc, 7, v3\nv_cndmask_b32 v4, 0, 1, vcc\nv_mul_u32_u24 v5, 7, v4\nv_sub_u32 v5, v3, v5")
    a("s_lshl_b32 s6, s50, 1\nv_add_u32 v4, s6, v4\ns_mul_i32 s7, s51, 896\nv_lshl_add_u32 v5, v5, 7, s7\ns_movk_i32 s32, 7168")
    a(f"v_mad_u32_u24 v{V_PF}, v4, s32, v5\ns_branch L1_pfd")
    a("L1_pf1:")
    a(f"s_mov_b32 s44, s12\ns_mov_b32 s45, s13\ns_mov_b32 s46, {1024*3072*2}\ns_mov_b32 s49, {64*6144}")
    a("v_min_u32 v3, 11, v2\nv_cmp_le_u32 vcc, 6, v3\nv_cndmask_b32 v4, 0, 1, vcc\nv_mul_u32_u24 v5, 6, v4\nv_sub_u32 v5, v3, v5")
    a("s_lshl_b32 s6, s50, 1\nv_add_u32 v4, s6, v4\ns_lshl_b32 s7, s51, 8\nv_lshrrev_b32 v6, 1, v5\nv_and_b32 v5, 1, v5\nv_lshl_add_u32 v5, v5, 7, s7\nv_lshl_add_u32 v5, v6, 11, v5\ns_movk_i32 s32, 6144")
    a(f"v_mad_u32_u24 v{V_PF}, v4, s32, v5\ns_branch L1_pfd")
    a("L1_pf0:")
    a(f"s_mov_b32 s44, s8\ns_mov_b32 s45, s9\ns_mov_b32 s46, {2048*1024*2}\ns_mov_b32 s49, 128")
    a(f"s_lshl_b32 s6, s50, 6\nv_add_u32 v4, s6, v2\nv_lshlrev_b32 v{V_PF}, 11, v4")
    a("L1_pfd:")
    a("s_mov_b32 s47, 0x20000\ns_lshl_b32 s48, s49, 1")
    PFI = [f"buffer_load_dword v0, v{V_PF}, s[44:47], s48 offen", "s_add_u32 s48, s48, s49"]
    for i in range(pf): a.extend(PFI)
    a("v_and_b32 v3, 15, v2\nv_lshrrev_b32 v4, 4, v2")
    a("v_bfe_u32 v5, v3, 1, 3\ns_lshl_b32 s6, s31, 7\nv_add_u32 v3, s6, v3\nv_lshlrev_b32 v3, 7, v3")
    for ks in range(2):
        a(f"v_add_u32 v6, {ks*4}, v4\nv_xor_b32 v6, v6, v5\nv_lshl_add_u32 v{V_XR+ks}, v6, 4, v3\nv_add_u32 v{V_XR+2+ks}, {STAGE}, v{V_XR+ks}")
    a("v_and_b32 v3, 3, v2\nv_lshlrev_b32 v3, 3, v3\nv_lshrrev_b32 v4, 2, v2\nv_bfe_u32 v5, v2, 4, 1")
    a("s_and_b32 s52, s4, 1\ns_mul_i32 s6, s52, 3\ns_sub_u32 s7, 4, s6\ns_cmp_eq_u32 s30, 0\ns_cselect_b32 s53, s7, s6\ns_mul_i32 s54, s52, 6\ns_sub_u32 s54, 6, s54")
    a(f"s_lshl_b32 s6, s53, 5\ns_add_u32 s6, s6, {G_OFF}\ns_lshl_b32 s7, s54, 5\ns_add_u32 s7, s7, {G_OFF}")
    a(f"v_mul_u32_u24 v6, 224, v4\nv_add_u32 v6, v6, v3\nv_add_u32 v{V_GR}, s6, v6\nv_add_u32 v{V_GR+2}, s7, v6")
    a(f"v_mul_u32_u24 v6, 192, v4\nv_add_u32 v6, v6, v3\nv_add_u32 v6, {QKV_OFF}, v6")
    a(f"v_lshl_add_u32 v{V_QR}, v5, 5, v6\nv_xor_b32 v5, 1, v5\nv_lshl_add_u32 v{V_QR+2}, v5, 5, v6")
    for r in (V_GR, V_GR+2, V_QR, V_QR+2): a(f"v_add_u32 v{r+1}, {STAGE}, v{r}")
    for i in range(208): a(f"v_mov_b32 v{V_ACC+i}, 0")
    for i in range(112): a(f"v_accvgpr_write_b32 a{A_ACC+i}, 0")
    a(f"s_waitcnt vmcnt({n3+pf})\ns_barrier")
    st.stamp(a)
    if o["stamps"]: a("s_waitcnt lgkmcnt(0)")
    BL = [[("k", 0), ("k", 1), ("v", 0), ("v", 1), ("G", 0), ("U", 0), ("g", 0), ("u", 0), ("g", 1), ("u", 1)],
          [("q", 0), ("q", 1)] + [(t, i) for i in range(4) for t in "gu"]]
    def xread(stage, tb, ks): return f"ds_read_b128 {xf(tb, ks)}, v{V_XR + stage*2 + ks} offset:{tb*2048}"
    def wread(wc, stage, cb):
        t, i = BL[wc][cb]; L = []
        for ks in range(2):
            for rd in range(2):
                row = 32*ks + 16*rd
                if t in "qkv": reg, off = V_QR + stage + 2*i, row*192 + "qkv".index(t)*64
                else: reg, off = V_GR + stage + (2 if t in "GU" else 0), row*224 + i*32 + (U_OFF-G_OFF if t in "uU" else 0)
                L.append(f"ds_read_b64_tr_b16 {ar(wfb(cb, ks)+2*rd, 2)}, v{reg} offset:{off}")
        return L
    def mfmas(wc, half):
        L = []
        for cb, (t, i) in enumerate(BL[wc]):
            for n, tb in enumerate(range(4*half, 4*half+4)):
                for ks in ((0, 1) if n % 2 == 0 else (1, 0)):
                    x, w = xf(tb, ks), ar(wfb(cb, ks), 4)
                    A, B = (x, w) if t in "kv" else (w, x)
                    L.append(f"v_mfma_f32_16x16x32_bf16 {acc(tb, cb)}, {A}, {B}, {acc(tb, cb)}")
        return L
    a("s_mov_b32 s37, 0\ns_cmp_eq_u32 s30, 1\ns_cbranch_scc1 L1_w1")
    for wc in range(2):
        a.label(f"L1_w{wc}")
        for tb in range(4):
            for ks in range(2): a(xread(0, tb, ks))
        for cb in range(9): a.extend(wread(wc, 0, cb))
        a(".p2align 6")
        a.label(f"L1_loop{wc}")
        for stage in range(2):
            slots = {i: [] for i in range(-1, 80)}
            slots[-1].append("s_waitcnt lgkmcnt(4)")
            rl = wread(wc, stage, 9) + [xread(stage, tb, ks) for tb in range(4, 8) for ks in range(2)]
            for i, r in enumerate(rl): slots[1 + 3*i].append(r)
            slots[63].append("s_waitcnt lgkmcnt(0)")
            for (m, d), p in zip(dma_list(stage ^ 1)[n3:], dpos[n3:]):
                slots[p-80-1].append(m); slots[p-80].append(d)
            a.extend(place(mfmas(wc, 0), slots))
            slots = {i: [] for i in range(-1, 80)}
            slots[0].extend(["s_waitcnt vmcnt(0)", "s_barrier"])
            slots[1].extend(adv[:2]); slots[2].extend(adv[2:])
            if stage == 0:
                slots[-1].extend(["s_cmp_eq_u32 s37, 7", "s_cselect_b32 s10, 0, s10", "s_cselect_b32 s14, 0, s14", "s_cselect_b32 s18, 0, s18"])
            if pf: slots[2].append(PFI[0]); slots[3].append(PFI[1])
            xr = [xread(stage ^ 1, tb, ks) for tb in range(4) for ks in range(2)]
            for i, p in enumerate([4, 6, 14, 22, 30, 38, 46, 54]): slots[p].append(xr[i])
            for cb in range(9):
                for i, r in enumerate(wread(wc, stage ^ 1, cb)): slots[8*(cb+1) + [1, 3, 5, 7][i]].append(r)
            for (m, d), p in zip(dma_list(stage)[:n3], dpos[:n3]):
                slots[p-1].append(m); slots[p].append(d)
            a.extend(place(mfmas(wc, 1), slots))
        a(f"s_add_u32 s37, s37, 1\ns_cmp_lt_u32 s37, 8\ns_cbranch_scc1 L1_loop{wc}")
        st2 = st.n
        st.stamp(a)
        a("s_waitcnt lgkmcnt(0)")
        srd(a, 8, 28, WS_A, A_BYTES)
        a(f"s_mov_b32 s12, {hex(f2u(LOG2E))}\ns_mov_b32 s14, {hex(f2u(1e-6))}\ns_mov_b32 s16, {hex(f2u(GA3))}\nv_mov_b32 v2, {hex(f2u(GA1))}")
        a(f"s_lshl_b32 s20, s5, 3\ns_lshl_b32 s21, s31, 2\ns_add_u32 s20, s20, s21\ns_mul_i32 s20, s20, {144*2048}")
        a("s_mul_i32 s6, s4, 7\ns_add_u32 s7, s6, s53\ns_lshr_b32 s7, s7, 1\ns_add_u32 s7, s7, 32\ns_lshl_b32 s7, s7, 11")
        if wc == 0:
            a("s_add_u32 s6, s6, s54\ns_lshr_b32 s6, s6, 1\ns_add_u32 s6, s6, 32\ns_lshl_b32 s6, s6, 11\ns_lshl_b32 s21, s52, 3\ns_add_u32 s6, s6, s21")
        else:
            a("s_lshl_b32 s6, s4, 11")
        for i in range(4):
            a(f"s_add_u32 s{36+i}, s20, s7\ns_add_u32 s{40+i}, s20, s6\ns_add_u32 s20, s20, {144*2048}")
        a("s_nop 4")
        T = 8
        def getv(tb, cb, tmp):
            p, b = accb(tb, cb)
            if p == "v": return b
            for i in range(4): a(f"v_accvgpr_read_b32 v{tmp+i}, a{b+i}")
            return tmp
        def pairs(bases): return [b + i for b in bases for i in (0, 2)]
        def P(r): return f"v[{r}:{r+1}]"
        def phi(b0, b1, t):
            ps = pairs([b0, b1]); ts = pairs([t, t+4])
            for p, q in zip(ps, ts): a(f"v_pk_mul_f32 {P(q)}, {P(p)}, s[12:13] op_sel_hi:[1,0]")
            for i in range(8): a(f"v_exp_f32_e64 v{t+i}, v{t+i} clamp")
            for p in ps: a(f"v_max_f32 v{p}, 0, v{p}\nv_max_f32 v{p+1}, 0, v{p+1}")
            for p in ps: a(f"v_pk_add_f32 {P(p)}, {P(p)}, s[14:15] op_sel_hi:[1,0]")
            for p, q in zip(ps, ts): a(f"v_pk_add_f32 {P(p)}, {P(p)}, {P(q)}")
            pack(b0, ps)
        def pack(d, ps):
            for i, p in enumerate(ps): a(f"v_cvt_pk_bf16_f32 v{d+i}, v{p}, v{p+1}")
        def geglu(gs, us, t, d):
            ps = pairs(gs); qs = pairs(us); ts = [t + 2*i for i in range(len(ps))]
            for p, q in zip(ps, ts): a(f"v_pk_mul_f32 {P(q)}, {P(p)}, {P(p)}")
            for q in ts: a(f"v_pk_fma_f32 {P(q)}, {P(q)}, s[16:17], v[2:3] op_sel_hi:[1,0,0]")
            for p, q in zip(ps, ts): a(f"v_pk_mul_f32 {P(q)}, {P(q)}, {P(p)}")
            for i in range(2*len(ps)): a(f"v_exp_f32 v{t+i}, v{t+i}")
            for q in ts: a(f"v_pk_add_f32 {P(q)}, {P(q)}, 1.0 op_sel_hi:[1,0]")
            for i in range(2*len(ps)): a(f"v_rcp_f32 v{t+i}, v{t+i}")
            for p, u in zip(ps, qs): a(f"v_pk_mul_f32 {P(u)}, {P(u)}, {P(p)}")
            for u, q in zip(qs, ts): a(f"v_pk_mul_f32 {P(u)}, {P(u)}, {P(q)}")
            pack(d, qs)
        def frag(tb, cbs, dk, n, ta=T):
            g0 = getv(tb, cbs, ta+8); u0 = getv(tb, cbs+1, ta+12); g1 = getv(tb, cbs+2, ta+16); u1 = getv(tb, cbs+3, ta+20)
            d = ta + 24 + 4*(n & 1)
            geglu([g0, g1], [u0, u1], ta, d)
            a(f"buffer_store_dwordx4 v[{d}:{d+3}], v1, s[8:11], s{36+(tb>>1)} offen offset:{(tb&1)*1024 + dk*2048} sc1")
        if wc == 0:
            KV = 8
            for i in range(4): a(f"v_mov_b32 v{32+i}, 0x3f803f80")
            for tp in range(4):
                for eb in range(2):
                    b0, b1 = accb(2*tp, 2+eb)[1], accb(2*tp+1, 2+eb)[1]
                    pack(b0, pairs([b0, b1]))
                for db in range(2):
                    phi(accb(2*tp, db)[1], accb(2*tp+1, db)[1], 36)
                for db in range(2):
                    for eb in range(3):
                        d = vr(KV + (db*3+eb)*4, 4)
                        B = acc(2*tp, 2+eb) if eb < 2 else "v[32:35]"
                        a(f"v_mfma_f32_16x16x32_bf16 {d}, {acc(2*tp, db)}, {B}, {d if tp else 0}")
            a(f"s_mul_i32 s6, s31, 3072\ns_add_u32 s7, s6, {EPI_LDS}\nv_add_u32 v4, s7, v1\ns_sub_u32 s7, {EPI_LDS+3072}, s6\nv_add_u32 v5, s7, v1")
            a("s_cmp_eq_u32 s31, 0\ns_nop 7\ns_cbranch_scc1 L1_kv0")
            for eb in range(3): a(f"ds_write_b128 v5, v[{KV+eb*4}:{KV+eb*4+3}] offset:{eb*1024}")
            a("s_waitcnt lgkmcnt(0)")
            for i in range(12): a(f"v_mov_b32 v{KV+i}, v{KV+12+i}")
            a("s_branch L1_kv1\nL1_kv0:")
            for eb in range(3): a(f"ds_write_b128 v5, v[{KV+12+eb*4}:{KV+12+eb*4+3}] offset:{eb*1024}")
            a("L1_kv1:\ns_waitcnt lgkmcnt(0)\ns_barrier")
            for eb in range(3): a(f"ds_read_b128 v[{KV+12+eb*4}:{KV+12+eb*4+3}], v4 offset:{eb*1024}")
            srd(a, 24, 28, WS_KVP, 0x200000 + 0x10000)
            a("s_lshl_b32 s6, s4, 1\ns_add_u32 s6, s6, s31\ns_mul_i32 s44, s6, 24576\ns_mul_i32 s7, s5, 3072\ns_add_u32 s45, s44, s7")
            a(f"s_lshl_b32 s46, s6, 7\ns_add_u32 s46, s46, {WS_F1-WS_KVP}\ns_lshl_b32 s47, s5, 2\ns_add_u32 s47, s47, s46")
            a("s_waitcnt lgkmcnt(0)")
            for i in range(6): a(f"v_pk_add_f32 {P(KV+2*i)}, {P(KV+2*i)}, {P(KV+12+2*i)}")
            for eb in range(3): a(f"buffer_store_dwordx4 v[{KV+eb*4}:{KV+eb*4+3}], v1, s[24:27], s45 offen offset:{eb*1024} sc1")
            for tp in range(4):
                gs = [accb(2*tp, 4)[1], accb(2*tp+1, 4)[1]]; us = [accb(2*tp, 5)[1], accb(2*tp+1, 5)[1]]
                d = 32 + 4*(tp & 1)
                geglu(gs, us, 24, d)
                for h in range(2):
                    a(f"buffer_store_dwordx2 v[{d+2*h}:{d+2*h+1}], v1, s[8:11], s{40+tp} offen offset:{h*1024} sc1")
            a("v_mov_b32 v4, 0\nv_mov_b32 v5, 1\ns_waitcnt vmcnt(8)\ns_mov_b64 exec, 1\nbuffer_store_dword v5, v4, s[24:27], s47 offen sc1\ns_mov_b64 exec, -1")
            for tb in range(4): frag(tb, 6, 0, tb)
            a("v_lshrrev_b32 v4, 2, v1\nv_and_b32 v4, 28, v4")
            a("buffer_load_dword v5, v4, s[24:27], s46 offen sc1")
            for tb in range(4, 6): frag(tb, 6, 0, tb)
            a("s_mov_b32 s55, 0\ns_waitcnt vmcnt(2)\nL1_poll:\nv_cmp_ne_u32 vcc, 1, v5\ns_add_u32 s55, s55, 1\ns_cmp_ge_u32 s55, 0x40000\ns_cbranch_scc1 L1_polld\ns_nop 2\ns_cbranch_vccz L1_polld")
            a("s_sleep 2\nbuffer_load_dword v5, v4, s[24:27], s46 offen sc1\ns_waitcnt vmcnt(0)\ns_branch L1_poll\nL1_polld:")
            LD = V_ACC
            for r in range(8):
                for eb in range(3):
                    a(f"buffer_load_dwordx4 v[{LD+(r*3+eb)*4}:{LD+(r*3+eb)*4+3}], v1, s[24:27], s44 offen offset:{eb*1024} sc1")
                a("s_add_u32 s44, s44, 3072")
            for tb in range(6, 8): frag(tb, 6, 0, tb)
            a("s_waitcnt vmcnt(2)")
            for stp in (48, 24, 12):
                for i in range(0, stp, 2): a(f"v_pk_add_f32 {P(LD+i)}, {P(LD+i)}, {P(LD+stp+i)}")
            pack(LD, [LD + 2*i for i in range(6)])
            a(f"s_lshl_b32 s6, s31, 3\ns_add_u32 s6, s6, {EPI_LDS+6144}\nv_add_u32 v4, s6, v1")
            for eb in range(3): a(f"ds_write_b64 v4, v[{LD+2*eb}:{LD+2*eb+1}] offset:{eb*1024}")
            a("s_waitcnt lgkmcnt(0)\ns_barrier")
        else:
            for tb in range(8): phi(accb(tb, 0)[1], accb(tb, 1)[1], T)
            n = 0
            for dk in range(2):
                for tb in range(8):
                    frag(tb, 2 + 4*dk, dk, n); n += 1
                    if n == o["bar1"]: a("s_barrier")
            a(f"v_add_u32 v4, {EPI_LDS+6144}, v1\ns_barrier")
            for eb in range(3): a(f"ds_read_b128 v[{8+4*eb}:{11+4*eb}], v4 offset:{eb*1024}")
            a("s_waitcnt lgkmcnt(0)")
            OB = accb(0, 2)[1]
            for tb in range(8):
                for eb in (2, 0, 1):
                    a(f"v_mfma_f32_16x16x32_bf16 {vr(OB+(tb*3+eb)*4, 4)}, v[{8+4*eb}:{11+4*eb}], {acc(tb, 0)}, 0")
            for tb in range(8):
                b = OB + tb*12
                a(f"v_add_f32 v{b+8}, s14, v{b+8}\nv_rcp_f32 v{b+8}, v{b+8}")
                for i in range(4): a(f"v_pk_mul_f32 {P(b+2*i)}, {P(b+2*i)}, {P(b+8)} op_sel_hi:[1,0]")
                pack(b, [b + 2*i for i in range(4)])
                a(f"buffer_store_dwordx4 v[{b}:{b+3}], v1, s[8:11], s{40+(tb>>1)} offen offset:{(tb&1)*1024} sc1")
        if o["stamps"]:
            st.stamp(a)
            a("s_waitcnt vmcnt(0)")
            for _ in range(o["nst"] - st.n): st.stamp(a)
            a(f"s_cmp_lg_u32 s3, {o['stw']}\ns_cbranch_scc1 L1_end")
            st.flush(a, 28, 2, 4)
            st.n = st2
        a("s_endpgm")
    a("L1_end:\ns_endpgm")
    return dict(name="g1_kernel", grid=256, block=256, lds=163840, body=a, vgpr=256, agpr=256)

def gen_k2(o):
    a = Asm(); st = Stamps(o["stamps"], 64, 2)
    D = 3; R = NS = 4; nf, ns = 28, 8; T = nf + ns
    V_AV, V_BR, V_BV, V_XO = 4, 8, 12, 16
    V_BF, V_ACC = 24, 152
    A_PX = 128
    def af(slot, i): return ar(slot*32 + i*4, 4)
    def bf(p, u, cb): return V_BF + p*64 + (u*4+cb)*4
    a("s_cmp_ge_u32 s2, 256\ns_cbranch_scc1 L2_end")
    st.stamp(a)
    a("s_load_dwordx2 s[12:13], s[0:1], 48\ns_load_dwordx2 s[16:17], s[0:1], 16\ns_load_dwordx2 s[28:29], s[0:1], 72")
    a("s_load_dwordx2 s[40:41], s[0:1], 0\ns_load_dwordx2 s[44:45], s[0:1], 56")
    a("v_lshrrev_b32 v1, 6, v0\nv_and_b32 v2, 63, v0\nv_readfirstlane_b32 s3, v1")
    a("s_and_b32 s4, s2, 1\ns_lshr_b32 s5, s2, 3\ns_bfe_u32 s6, s2, 0x20001\ns_lshl_b32 s6, s6, 2\ns_lshr_b32 s7, s5, 3\ns_add_u32 s6, s6, s7\ns_and_b32 s7, s5, 7")
    a(f"s_lshl_b32 s33, s6, 2\ns_add_u32 s33, s33, s3\ns_mul_i32 s30, s33, {144*2048}")
    a(f"s_mul_i32 s20, s4, {56*2048}\ns_add_u32 s20, s20, {32*2048}\ns_add_u32 s20, s20, s30")
    a(f"v_lshlrev_b32 v{V_AV}, 4, v2\nv_add_u32 v{V_AV+1}, 4096, v{V_AV}")
    a(f"s_mul_i32 s21, s4, 1792\ns_lshr_b32 s22, s3, 1\ns_lshl_b32 s22, s22, 5\ns_add_u32 s21, s21, s22\ns_lshl_b32 s21, s21, 11")
    a("s_lshl_b32 s22, s7, 8\ns_add_u32 s21, s21, s22\ns_xor_b32 s31, s3, s4\ns_and_b32 s31, s31, 1\ns_lshl_b32 s31, s31, 7\ns_add_u32 s21, s21, s31")
    a("s_lshl_b32 s32, s4, 7\ns_add_u32 s32, s32, s22\ns_lshl_b32 s31, s3, 16\ns_add_u32 s31, s31, s32")
    a("s_lshl_b32 s33, s33, 16\ns_add_u32 s33, s33, s32")
    a("v_lshrrev_b32 v3, 3, v2\nv_bfe_u32 v6, v2, 4, 2\nv_lshlrev_b32 v6, 1, v6\nv_and_b32 v7, 7, v2\nv_xor_b32 v7, v7, v6")
    a(f"v_lshlrev_b32 v7, 4, v7\nv_lshl_add_u32 v{V_BV}, v3, 11, v7")
    for c in range(1, 4): a(f"v_add_u32 v{V_BV+c}, {16384*c}, v{V_BV}")
    a("s_lshl_b32 s23, s3, 12")
    a("s_waitcnt lgkmcnt(0)")
    srd(a, 8, 28, WS_A, A_BYTES); srd(a, 12, 12, 0, 3584*1024*2); srd(a, 16, 16, 0, 1024*1024*2)
    def bl(slot, ph):
        L = []
        s_, so, stp = ("s[12:15]", 21, 64*2048) if ph == "f" else ("s[16:19]", 31, 128*2048)
        for c in range(4):
            L.append([f"s_add_u32 m0, s23, {slot*16384 + c*1024}"])
            L.append([f"buffer_load_dwordx4 v{V_BV+c}, {s_}, s{so} offen lds"])
        L.append([f"s_add_u32 s{so}, s{so}, {stp}"])
        return L
    def al(slot, ph):
        n, so = (4, 20) if ph == "f" else (8, 30)
        L = [[f"buffer_load_dwordx4 {af(slot, i)}, v{V_AV + (i>>2)}, s[8:11], s{so} offen offset:{(i&3)*1024}"] for i in range(n)]
        L.append([f"s_add_u32 s{so}, s{so}, {n*1024}"])
        return L
    def rl(slot, p, ph):
        od = [(ks*2+ch, cb) for ch in range(2) for cb in range(4) for ks in range(2)] if ph == "f" else [(u, cb) for cb in range(4) for u in range(4)]
        return [f"ds_read_b64_tr_b16 {vr(bf(p, u, cb) + rd*2, 2)}, v{V_BR + cb} offset:{slot*16384 + u*4096 + rd*2048}" for u, cb in od for rd in range(2)]
    def facc(ch, cb, tb): return V_ACC + ((ch*4+cb)*2+tb)*4
    def ml(slot, p, ph):
        L = []
        if ph == "f":
            for ch in range(2):
                for cb in range(4):
                    for tb in range(2):
                        for ks in ((0, 1) if tb == 0 else (1, 0)):
                            c = vr(facc(ch, cb, tb), 4)
                            L.append(f"v_mfma_f32_16x16x32_bf16 {c}, {vr(bf(p, ks*2+ch, cb), 4)}, {af(slot, ks*2+tb)}, {c}")
        else:
            for cb in range(4):
                for tb in range(2):
                    for ks in (range(4) if tb == 0 else (3, 2, 1, 0)):
                        c = vr(facc(2, cb, tb), 4)
                        L.append(f"v_mfma_f32_16x16x32_bf16 {c}, {vr(bf(p, ks, cb), 4)}, {af(slot, ks*2+tb)}, {c}")
        return L
    def ph(t): return "f" if t < nf else ("s" if t < T else None)
    extra = {nf: 8, nf+3: 1, nf+5: 5, nf+6: 8}
    def nops(t): return (4 if ph(t+D+1) else 0) + {"f": 4, "s": 8, None: 0}[ph(t+D)] + extra.get(t, 0)
    for x in bl(0, "f"): a("\n".join(x))
    for t in range(-D, 0):
        for x in bl(t+D+1, "f"): a("\n".join(x))
        for x in al(t+D, "f"): a("\n".join(x))
    a("v_lshrrev_b32 v3, 2, v2\nv_lshlrev_b32 v3, 7, v3\nv_and_b32 v6, 3, v2\nv_lshl_add_u32 v3, v6, 3, v3\nv_bfe_u32 v6, v2, 3, 2")
    for cb in range(4): a(f"v_xor_b32 v7, {cb}, v6\nv_lshl_add_u32 v{V_BR+cb}, v7, 5, v3")
    a(f"v_and_b32 v3, 15, v2\nv_lshlrev_b32 v3, 11, v3\nv_bfe_u32 v6, v2, 4, 1\nv_lshl_add_u32 v3, v6, 5, v3\nv_lshrrev_b32 v6, 5, v2\nv_lshl_add_u32 v{V_XO}, v6, 4, v3\nv_add_u32 v{V_XO+1}, 32768, v{V_XO}")
    srd(a, 40, 40, 0, 2048*1024*2); srd(a, 44, 44, 0, 2048*1024*2)
    srd(a, 24, 28, WS_F2, WS_XB - WS_F2 + 256*32768)
    a(f"s_lshl_b32 s34, s2, 15\ns_lshl_b32 s35, s3, 13\ns_add_u32 s34, s34, s35\ns_xor_b32 s35, s34, 32768\ns_add_u32 s34, s34, {WS_XB-WS_F2}\ns_add_u32 s35, s35, {WS_XB-WS_F2}")
    a("s_lshl_b32 s36, s2, 7\ns_lshl_b32 s38, s3, 2\ns_add_u32 s36, s36, s38\ns_xor_b32 s38, s36, 128")
    a(f"s_mov_b32 s48, {hex(f2u(-LOG2E))}\nv_mov_b32 v18, 0\nv_mov_b32 v19, 1")
    for i in range(96): a(f"v_mov_b32 v{V_ACC+i}, 0")
    a(f"s_waitcnt vmcnt({8*D})\ns_barrier")
    st.stamp(a)
    if o["stamps"]: a("s_waitcnt lgkmcnt(0)")
    a.extend(rl(0, 0, "f"))
    A_XL = 128
    def stage(t):
        p = t & 1
        ms = ml(t % R, p, ph(t))
        slots = {i: [] for i in range(-1, 32)}
        n = sum(nops(u) for u in range(t-D+1, t))
        if t == nf+6: n = 0
        if t == nf+7: n = 8
        slots[-1].append(f"s_waitcnt vmcnt({n}) lgkmcnt(0)")
        if ph(t+1): slots[0].append("s_barrier")
        if ph(t+1):
            rr = rl((t+1) % NS, p ^ 1, ph(t+1))
            for i, r in enumerate(rr): slots[(i*28)//32].append(r)
        ld = (bl((t+D+1) % NS, ph(t+D+1)) if ph(t+D+1) else []) + (al((t+D) % R, ph(t+D)) if ph(t+D) else [])
        if t == nf:
            ld = ld + [[f"buffer_store_dwordx4 {vr(facc(1, i>>1, i&1), 4)}, v{V_AV + (i>>2)}, s[24:27], s34 offen offset:{(i&3)*1024} sc1"] for i in range(8)]
        if t == nf+3:
            ld = [["s_mov_b64 exec, 1", "buffer_store_dword v19, v18, s[24:27], s36 offen sc1", "s_mov_b64 exec, -1"]] + ld
        if t == nf+5:
            ld = [[f"buffer_load_dwordx4 {ar(A_XL + 4*i, 4)}, v{V_XO + (i>>1)}, s[40:43], s33 offen offset:{(i&1)*64}"] for i in range(4)] + [["buffer_load_dword v20, v18, s[24:27], s38 offen sc1"]]
        if t == nf+6:
            slots[-1].extend(["s_mov_b32 s55, 0", "L2_poll:", "v_cmp_ne_u32 vcc, 1, v20", "s_add_u32 s55, s55, 1", "s_cmp_ge_u32 s55, 0x40000", "s_cbranch_scc1 L2_polld", "s_nop 2", "s_cbranch_vccz L2_polld", "s_sleep 2",
                              "buffer_load_dword v20, v18, s[24:27], s38 offen sc1", "s_waitcnt vmcnt(0)", "s_branch L2_poll", "L2_polld:"])
            ld = [[f"buffer_load_dwordx4 {vr(facc(1, i>>1, i&1), 4)}, v{V_AV + (i>>2)}, s[24:27], s35 offen offset:{(i&3)*1024} sc1"] for i in range(8)]
            for i, x in enumerate(ld): slots[i].extend(x)
            ld = []
        for i, x in enumerate(ld): slots[1 + (i*30)//max(len(ld), 1)].extend(x)
        a.extend(place(ms, slots))
    nloop = 6
    a("s_mov_b32 s37, 0\n.p2align 6\nL2_loop:")
    for t in range(R): stage(t + R)
    a(f"s_add_u32 s37, s37, 1\ns_cmp_lt_u32 s37, {nloop}\ns_cbranch_scc1 L2_loop")
    for t in range(nloop*R, T):
        if t == nf: st.stamp(a)
        stage(t)
    st.stamp(a)
    def P(r): return f"v[{r}:{r+1}]"
    for i in range(16): a(f"v_accvgpr_read_b32 v{24+i}, a{A_XL+i}")
    for q in range(4):
        b = 24 + 4*q
        a(f"v_permlane16_swap_b32 v{b}, v{b+2}\nv_permlane16_swap_b32 v{b+1}, v{b+3}")
    for i in range(16): a(f"v_lshlrev_b32 v{40+2*i}, 16, v{24+i}\nv_and_b32 v{41+2*i}, 0xffff0000, v{24+i}")
    a("s_waitcnt vmcnt(0)")
    F, Q, S = facc(0, 0, 0), facc(1, 0, 0), facc(2, 0, 0)
    for i in range(0, 32, 2): a(f"v_pk_add_f32 {P(F+i)}, {P(F+i)}, {P(Q+i)}")
    for i in range(0, 32, 2): a(f"v_pk_mul_f32 {P(Q+i)}, {P(F+i)}, s[48:49] op_sel_hi:[1,0]")
    for i in range(32): a(f"v_exp_f32 v{Q+i}, v{Q+i}")
    for i in range(0, 32, 2): a(f"v_pk_add_f32 {P(Q+i)}, {P(Q+i)}, 1.0 op_sel_hi:[1,0]")
    for i in range(32): a(f"v_rcp_f32 v{Q+i}, v{Q+i}")
    for i in range(0, 32, 2): a(f"v_pk_mul_f32 {P(F+i)}, {P(F+i)}, {P(Q+i)}")
    for tb in range(2):
        for p in range(2):
            d = 24 + (tb*2+p)*4
            for e in range(2):
                cb = 2*p + e; off = (cb*2+tb)*4; xb = 40 + ((tb*2+p)*4 + 2*e)*2
                for h in range(2):
                    a(f"v_pk_fma_f32 {P(S+off+2*h)}, {P(S+off+2*h)}, {P(F+off+2*h)}, {P(xb+2*h)}")
                for h in range(2):
                    a(f"v_cvt_pk_bf16_f32 v{d+2*e+h}, v{S+off+2*h}, v{S+off+2*h+1}")
            a(f"v_permlane16_swap_b32 v{d}, v{d+2}\nv_permlane16_swap_b32 v{d+1}, v{d+3}")
            a(f"buffer_store_dwordx4 v[{d}:{d+3}], v{V_XO+tb}, s[44:47], s33 offen offset:{p*64}{o['outpol']}")
    if o["stamps"]:
        a("s_waitcnt vmcnt(0)")
        for _ in range(o["nst"] - st.n): st.stamp(a)
        a("s_cmp_lg_u32 s3, 0\ns_cbranch_scc1 L2_end")
        st.flush(a, 28, 2, 4)
    a("L2_end:\ns_endpgm")
    return dict(name="g2_kernel", grid=256, block=256, lds=90112, body=a, vgpr=256, agpr=144)

HEADER = open("cdna_kernels/" + NAME + ".s.ref").read().split("; Override launch")[0] if __import__("os").path.exists("cdna_kernels/" + NAME + ".s.ref") else ""
def gen(**kw):
    o = dict(stamps=0, nst=5, stw=2, ev=8, dst=4, pf=1, bar1=2, outsc=0)
    o.update(kw)
    o["outpol"] = ["", " sc1", " nt"][o["outsc"]]
    ks = [gen_k0(o), gen_k1(o), gen_k2(o)]
    e = Asm(); e("s_endpgm")
    emp = dict(name="nop_kernel", grid=256, block=256, lds=0, body=e, vgpr=8, agpr=0)
    for k in ks:
        k["body"].lines, n = hazard.fix(k["body"].lines, verbose=o.get("hv", 0))
    seq = o.get("seq", 123)
    ks = [{"1": ks[0], "2": ks[1], "3": ks[2], "9": emp}[c] for c in str(seq)]
    return HEADER + file_text(ks)
if __name__ == "__main__":
    kw = {}
    for x in sys.argv[2:]:
        k, v = x.split("="); kw[k] = int(v)
    open(sys.argv[1], "w").write(gen(**kw))
```

```python
import sys, struct, math
from asmlib import *
import hazard

WS_A, WS_XN, WS_KVP, WS_F1, WS_F2, WS_XB = 0, 0x1400000, 0x1800000, 0x1A00000, 0x1A10000, 0x1C00000
A_BYTES = 64*144*2048
def f2u(x): return struct.unpack("<I", struct.pack("<f", x))[0]
LOG2E = 1.4426950408889634
GA1 = -2.0*LOG2E*math.sqrt(2.0/math.pi); GA3 = GA1*0.044715

def srd(a, d, base, off, size):
    if off:
        a(f"s_add_u32 s{d}, s{base}, {off}\ns_addc_u32 s{d+1}, s{base+1}, 0")
    elif d != base:
        a(f"s_mov_b32 s{d}, s{base}\ns_mov_b32 s{d+1}, s{base+1}")
    a(f"s_mov_b32 s{d+2}, {size}\ns_mov_b32 s{d+3}, 0x20000")

def wave_sum(a, r, t):
    for sh in (8, 4, 2, 1):
        a(f"v_add_f32_dpp v{r}, v{r}, v{r} row_ror:{sh} row_mask:0xf bank_mask:0xf")
    a(f"v_mov_b32 v{t}, v{r}\nv_permlane16_swap_b32 v{r}, v{t}\nv_add_f32 v{r}, v{r}, v{t}")
    a(f"v_mov_b32 v{t}, v{r}\nv_permlane32_swap_b32 v{r}, v{t}\nv_add_f32 v{r}, v{r}, v{t}")

def gen_k0(o):
    a = Asm(); st = Stamps(o["stamps"], 60, 0)
    a("s_cmp_ge_u32 s2, 256\ns_cbranch_scc1 L0_end")
    st.stamp(a)
    a("s_load_dwordx2 s[8:9], s[0:1], 0\ns_load_dwordx2 s[28:29], s[0:1], 72")
    a("v_lshrrev_b32 v1, 6, v0\nv_and_b32 v2, 63, v0\nv_readfirstlane_b32 s3, v1")
    a("v_lshlrev_b32 v3, 4, v2\ns_lshl_b32 s4, s2, 14\ns_lshl_b32 s5, s3, 12\ns_add_u32 s4, s4, s5")
    a("s_waitcnt lgkmcnt(0)")
    srd(a, 8, 8, 0, 2048*1024*2)
    for i in range(4):
        a(f"buffer_load_dwordx4 v[{8+4*i}:{11+4*i}], v3, s[8:11], s4 offen offset:{1024*i}")
    srd(a, 12, 28, WS_XN, 2048*1024*2)
    srd(a, 16, 28, WS_F1, 0x20000)
    a("v_mov_b32 v4, 0\nv_lshlrev_b32 v5, 2, v2\nv_and_b32 v5, 127, v5\ns_lshl_b32 s5, s2, 7")
    a("s_cmp_eq_u32 s3, 0\ns_cbranch_scc0 L0_a")
    a(f"s_add_u32 s6, s5, {WS_F2-WS_F1}\nbuffer_store_dword v4, v5, s[16:19], s6 offen sc1\nbuffer_store_dword v4, v5, s[16:19], s5 offen sc1\ns_waitcnt vmcnt(2)")
    a("L0_a:\ns_waitcnt vmcnt(2)")
    a("s_cmp_eq_u32 s3, 0\ns_cbranch_scc1 L0_b\ns_waitcnt vmcnt(0)\nL0_b:")
    st.stamp(a)
    for r in range(2):
        src = 8 + 8*r; F = 24 + 16*r; S = 56 + 4*r
        for i in range(8):
            a(f"v_lshlrev_b32 v{F+2*i}, 16, v{src+i}\nv_and_b32 v{F+2*i+1}, 0xffff0000, v{src+i}")
        a(f"v_pk_add_f32 v[{S}:{S+1}], v[{F}:{F+1}], v[{F+2}:{F+3}]")
        for i in range(2, 8): a(f"v_pk_add_f32 v[{S}:{S+1}], v[{S}:{S+1}], v[{F+2*i}:{F+2*i+1}]")
        a(f"v_add_f32 v{S}, v{S}, v{S+1}")
        wave_sum(a, S, S+1)
        a(f"v_mul_f32 v{S}, {hex(f2u(-1.0/1024))}, v{S}")
        for i in range(8): a(f"v_pk_add_f32 v[{F+2*i}:{F+2*i+1}], v[{F+2*i}:{F+2*i+1}], v[{S}:{S+1}] op_sel_hi:[1,0]")
        a(f"v_pk_mul_f32 v[{S}:{S+1}], v[{F}:{F+1}], v[{F}:{F+1}]")
        for i in range(1, 8): a(f"v_pk_fma_f32 v[{S}:{S+1}], v[{F+2*i}:{F+2*i+1}], v[{F+2*i}:{F+2*i+1}], v[{S}:{S+1}]")
        a(f"v_add_f32 v{S}, v{S}, v{S+1}")
        wave_sum(a, S, S+1)
        a(f"v_mov_b32 v{S+1}, {hex(f2u(1e-5))}\nv_fmac_f32 v{S+1}, {hex(f2u(1.0/1024))}, v{S}\nv_rsq_f32 v{S}, v{S+1}")
        for i in range(8): a(f"v_pk_mul_f32 v[{F+2*i}:{F+2*i+1}], v[{F+2*i}:{F+2*i+1}], v[{S}:{S+1}] op_sel_hi:[1,0]")
        for i in range(8): a(f"v_cvt_pk_bf16_f32 v{src+i}, v{F+2*i}, v{F+2*i+1}")
        for i in range(2):
            a(f"buffer_store_dwordx4 v[{src+4*i}:{src+4*i+3}], v3, s[12:15], s4 offen offset:{2048*r+1024*i} sc1")
    if o["stamps"]:
        a("s_waitcnt vmcnt(0)")
        for _ in range(o["nst"] - 2): st.stamp(a)
        a("s_cmp_lg_u32 s3, 0\ns_cbranch_scc1 L0_end")
        st.flush(a, 28, 2, 4)
    a("L0_end:\ns_endpgm")
    return dict(name="ln_kernel", grid=256, block=256, lds=0, body=a, vgpr=64, agpr=0)

A_OFF, QKV_OFF, G_OFF = 0, 32768, 32768 + 12288
U_OFF = G_OFF + 14336
STAGE = 73728
EPI_LDS = 2*STAGE
def gen_k1(o):
    a = Asm(); st = Stamps(o["stamps"], 64, 1)
    V_XV, V_QV, V_GV, V_XR, V_GR, V_QR, V_PF = 8, 16, 19, 26, 30, 34, 38
    V_ACC = 48; A_X = 0; A_W = 64; A_ACC = 144
    order = [(cb, tb) for cb in range(10) for tb in range(8)]
    def accb(tb, cb):
        i = cb*8 + tb
        return ("v", V_ACC + 4*i) if i < 52 else ("a", A_ACC + 4*(i-52))
    def acc(tb, cb):
        p, b = accb(tb, cb); return vr(b, 4, p)
    def xf(tb, ks): return ar(A_X + (tb*2+ks)*4, 4)
    def wfb(cb, ks): return A_W + (cb*2+ks)*4
    a("s_cmp_ge_u32 s2, 256\ns_cbranch_scc1 L1_end")
    st.stamp(a)
    a("s_load_dwordx2 s[12:13], s[0:1], 8\ns_load_dwordx4 s[24:27], s[0:1], 32\ns_load_dwordx2 s[28:29], s[0:1], 72")
    a("v_lshrrev_b32 v1, 6, v0\nv_and_b32 v2, 63, v0\nv_readfirstlane_b32 s3, v1")
    a("s_and_b32 s4, s2, 7\ns_lshr_b32 s5, s2, 3\ns_lshr_b32 s6, s5, 3\ns_and_b32 s5, s5, 7\ns_lshl_b32 s4, s4, 2\ns_add_u32 s4, s4, s6")
    a("s_lshr_b32 s30, s3, 1\ns_and_b32 s31, s3, 1")
    a("v_lshlrev_b32 v1, 4, v2")
    a("s_lshl_b32 s6, s5, 8\ns_lshl_b32 s7, s3, 6\ns_add_u32 s6, s6, s7")
    a("v_lshrrev_b32 v3, 3, v2\nv_add_u32 v3, s6, v3\nv_lshlrev_b32 v3, 11, v3")
    a("v_lshrrev_b32 v4, 4, v2\nv_and_b32 v5, 7, v2")
    for c in range(2):
        a(f"v_add_u32 v6, {4*c}, v4\nv_xor_b32 v6, v6, v5\nv_lshl_add_u32 v6, v6, 4, v3")
        for cc in range(c, 8, 2): a(f"v_add_u32 v{V_XV+cc}, {cc*8*2048}, v6")
    def perm(r, t1, t2):
        a(f"v_bfe_u32 v{t1}, v{r}, 2, 2\nv_bfe_u32 v{t2}, v{r}, 4, 1\nv_and_b32 v{r}, 0xffffffe3, v{r}")
        a(f"v_lshl_or_b32 v{r}, v{t1}, 3, v{r}\nv_lshl_or_b32 v{r}, v{t2}, 2, v{r}")
    a("s_lshl_b32 s6, s3, 4\ns_lshl_b32 s7, s4, 6\ns_movk_i32 s32, 6144")
    for c in range(3):
        a(f"v_add_u32 v3, {64*c}, v2\nv_mul_u32_u24 v4, 5462, v3\nv_lshrrev_b32 v4, 16, v4")
        a("v_mul_u32_u24 v5, 12, v4\nv_sub_u32 v5, v3, v5\nv_add_u32 v4, s6, v4")
        a("v_bfe_u32 v6, v4, 2, 1\nv_lshlrev_b32 v6, 1, v6\nv_xor_b32 v5, v5, v6")
        perm(4, 6, 7)
        a("v_lshrrev_b32 v6, 2, v5\nv_and_b32 v5, 3, v5\nv_lshlrev_b32 v5, 4, v5\nv_lshl_add_u32 v5, v6, 11, v5\nv_add_u32 v5, s7, v5")
        a(f"v_mad_u32_u24 v{V_QV+c}, v4, s32, v5")
    a("s_lshl_b32 s6, s31, 5\ns_mul_i32 s7, s4, 224\ns_movk_i32 s32, 7168")
    for c in range(7):
        a(f"v_add_u32 v3, {64*c}, v2\nv_mul_u32_u24 v4, 4682, v3\nv_lshrrev_b32 v4, 16, v4")
        a("v_mul_u32_u24 v5, 14, v4\nv_sub_u32 v5, v3, v5\nv_add_u32 v4, s6, v4")
        perm(4, 6, 7)
        a(f"v_lshl_add_u32 v5, v5, 4, s7\nv_mad_u32_u24 v{V_GV+c}, v4, s32, v5")
    a(f"s_lshl_b32 s33, s3, 13\ns_mul_i32 s34, s3, 3072\ns_add_u32 s34, s34, {QKV_OFF}")
    a(f"s_mul_i32 s35, s3, 7168\ns_add_u32 s35, s35, {G_OFF}")
    a("s_waitcnt lgkmcnt(0)")
    srd(a, 8, 28, WS_XN, 2048*1024*2)
    srd(a, 12, 12, 0, 1024*3072*2)
    a("s_cmp_eq_u32 s30, 0\ns_cselect_b32 s16, s24, s26\ns_cselect_b32 s17, s25, s27")
    srd(a, 16, 16, 0, 1024*3584*2)
    a("s_mov_b32 s20, 0\ns_mov_b32 s21, 0\ns_mov_b32 s22, 0")
    def dma_list(stage):
        xs = [(f"s_add_u32 m0, s33, {stage*STAGE + A_OFF + c*1024}", f"buffer_load_dwordx4 v{V_XV+c}, s[8:11], s20 offen lds") for c in range(8)]
        qs = [(f"s_add_u32 m0, s34, {stage*STAGE + c*1024}", f"buffer_load_dwordx4 v{V_QV+c}, s[12:15], s21 offen lds") for c in range(3)]
        gs = [(f"s_add_u32 m0, s35, {stage*STAGE + c*1024}", f"buffer_load_dwordx4 v{V_GV+c}, s[16:19], s22 offen lds") for c in range(7)]
        return gs + qs + xs
    adv = ["s_add_u32 s20, s20, 128", f"s_add_u32 s21, s21, {64*6144}", f"s_add_u32 s22, s22, {64*7168}"]
    EV, ST0 = o["ev"], o["dst"]
    dpos = [ST0 + EV*i for i in range(18)]
    n3 = sum(1 for p in dpos if p < 80)
    for m, d in dma_list(0): a(m + "\n" + d)
    a.extend(adv)
    for m, d in dma_list(1)[:n3]: a(m + "\n" + d)
    pf = o["pf"]
    a("s_lshr_b32 s50, s2, 3\ns_and_b32 s51, s2, 7")
    a("s_cmp_eq_u32 s3, 0\ns_cbranch_scc1 L1_pf0\ns_cmp_eq_u32 s3, 1\ns_cbranch_scc1 L1_pf1")
    a("s_cmp_eq_u32 s3, 2\ns_cselect_b32 s44, s24, s26\ns_cselect_b32 s45, s25, s27")
    a(f"s_mov_b32 s46, {1024*3584*2}\ns_mov_b32 s49, {64*7168}")
    a("v_min_u32 v3, 13, v2\nv_cmp_le_u32 vcc, 7, v3\nv_cndmask_b32 v4, 0, 1, vcc\nv_mul_u32_u24 v5, 7, v4\nv_sub_u32 v5, v3, v5")
    a("s_lshl_b32 s6, s50, 1\nv_add_u32 v4, s6, v4\ns_mul_i32 s7, s51, 896\nv_lshl_add_u32 v5, v5, 7, s7\ns_movk_i32 s32, 7168")
    a(f"v_mad_u32_u24 v{V_PF}, v4, s32, v5\ns_branch L1_pfd")
    a("L1_pf1:")
    a(f"s_mov_b32 s44, s12\ns_mov_b32 s45, s13\ns_mov_b32 s46, {1024*3072*2}\ns_mov_b32 s49, {64*6144}")
    a("v_min_u32 v3, 11, v2\nv_cmp_le_u32 vcc, 6, v3\nv_cndmask_b32 v4, 0, 1, vcc\nv_mul_u32_u24 v5, 6, v4\nv_sub_u32 v5, v3, v5")
    a("s_lshl_b32 s6, s50, 1\nv_add_u32 v4, s6, v4\ns_lshl_b32 s7, s51, 8\nv_lshrrev_b32 v6, 1, v5\nv_and_b32 v5, 1, v5\nv_lshl_add_u32 v5, v5, 7, s7\nv_lshl_add_u32 v5, v6, 11, v5\ns_movk_i32 s32, 6144")
    a(f"v_mad_u32_u24 v{V_PF}, v4, s32, v5\ns_branch L1_pfd")
    a("L1_pf0:")
    a(f"s_mov_b32 s44, s8\ns_mov_b32 s45, s9\ns_mov_b32 s46, {2048*1024*2}\ns_mov_b32 s49, 128")
    a(f"s_lshl_b32 s6, s50, 6\nv_add_u32 v4, s6, v2\nv_lshlrev_b32 v{V_PF}, 11, v4")
    a("L1_pfd:")
    a("s_mov_b32 s47, 0x20000\ns_lshl_b32 s48, s49, 1")
    PFI = [f"buffer_load_dword v0, v{V_PF}, s[44:47], s48 offen", "s_add_u32 s48, s48, s49"]
    for i in range(pf): a.extend(PFI)
    a("v_and_b32 v3, 15, v2\nv_lshrrev_b32 v4, 4, v2")
    a("v_bfe_u32 v5, v3, 1, 3\ns_lshl_b32 s6, s31, 7\nv_add_u32 v3, s6, v3\nv_lshlrev_b32 v3, 7, v3")
    for ks in range(2):
        a(f"v_add_u32 v6, {ks*4}, v4\nv_xor_b32 v6, v6, v5\nv_lshl_add_u32 v{V_XR+ks}, v6, 4, v3\nv_add_u32 v{V_XR+2+ks}, {STAGE}, v{V_XR+ks}")
    a("v_and_b32 v3, 3, v2\nv_lshlrev_b32 v3, 3, v3\nv_lshrrev_b32 v4, 2, v2\nv_bfe_u32 v5, v2, 4, 1")
    a("s_and_b32 s52, s4, 1\ns_mul_i32 s6, s52, 3\ns_sub_u32 s7, 4, s6\ns_cmp_eq_u32 s30, 0\ns_cselect_b32 s53, s7, s6\ns_mul_i32 s54, s52, 6\ns_sub_u32 s54, 6, s54")
    a(f"s_lshl_b32 s6, s53, 5\ns_add_u32 s6, s6, {G_OFF}\ns_lshl_b32 s7, s54, 5\ns_add_u32 s7, s7, {G_OFF}")
    a(f"v_mul_u32_u24 v6, 224, v4\nv_add_u32 v6, v6, v3\nv_add_u32 v{V_GR}, s6, v6\nv_add_u32 v{V_GR+2}, s7, v6")
    a(f"v_mul_u32_u24 v6, 192, v4\nv_add_u32 v6, v6, v3\nv_add_u32 v6, {QKV_OFF}, v6")
    a(f"v_lshl_add_u32 v{V_QR}, v5, 5, v6\nv_xor_b32 v5, 1, v5\nv_lshl_add_u32 v{V_QR+2}, v5, 5, v6")
    for r in (V_GR, V_GR+2, V_QR, V_QR+2): a(f"v_add_u32 v{r+1}, {STAGE}, v{r}")
    for i in range(208): a(f"v_mov_b32 v{V_ACC+i}, 0")
    for i in range(112): a(f"v_accvgpr_write_b32 a{A_ACC+i}, 0")
    a(f"s_waitcnt vmcnt({n3+pf})\ns_barrier")
    st.stamp(a)
    if o["stamps"]: a("s_waitcnt lgkmcnt(0)")
    BL = [[("k", 0), ("k", 1), ("v", 0), ("v", 1), ("G", 0), ("U", 0), ("g", 0), ("u", 0), ("g", 1), ("u", 1)],
          [("q", 0), ("q", 1)] + [(t, i) for i in range(4) for t in "gu"]]
    def xread(stage, tb, ks): return f"ds_read_b128 {xf(tb, ks)}, v{V_XR + stage*2 + ks} offset:{tb*2048}"
    def wread(wc, stage, cb):
        t, i = BL[wc][cb]; L = []
        for ks in range(2):
            for rd in range(2):
                row = 32*ks + 16*rd
                if t in "qkv": reg, off = V_QR + stage + 2*i, row*192 + "qkv".index(t)*64
                else: reg, off = V_GR + stage + (2 if t in "GU" else 0), row*224 + i*32 + (U_OFF-G_OFF if t in "uU" else 0)
                L.append(f"ds_read_b64_tr_b16 {ar(wfb(cb, ks)+2*rd, 2)}, v{reg} offset:{off}")
        return L
    def mfmas(wc, half):
        L = []
        for cb, (t, i) in enumerate(BL[wc]):
            for n, tb in enumerate(range(4*half, 4*half+4)):
                for ks in ((0, 1) if n % 2 == 0 else (1, 0)):
                    x, w = xf(tb, ks), ar(wfb(cb, ks), 4)
                    A, B = (x, w) if t in "kv" else (w, x)
                    L.append(f"v_mfma_f32_16x16x32_bf16 {acc(tb, cb)}, {A}, {B}, {acc(tb, cb)}")
        return L
    a("s_mov_b32 s37, 0\ns_cmp_eq_u32 s30, 1\ns_cbranch_scc1 L1_w1")
    for wc in range(2):
        a.label(f"L1_w{wc}")
        for tb in range(4):
            for ks in range(2): a(xread(0, tb, ks))
        for cb in range(9): a.extend(wread(wc, 0, cb))
        a(".p2align 6")
        a.label(f"L1_loop{wc}")
        for stage in range(2):
            slots = {i: [] for i in range(-1, 80)}
            slots[-1].append("s_waitcnt lgkmcnt(4)")
            rl = wread(wc, stage, 9) + [xread(stage, tb, ks) for tb in range(4, 8) for ks in range(2)]
            for i, r in enumerate(rl): slots[1 + 3*i].append(r)
            slots[63].append("s_waitcnt lgkmcnt(0)")
            for (m, d), p in zip(dma_list(stage ^ 1)[n3:], dpos[n3:]):
                slots[p-80-1].append(m); slots[p-80].append(d)
            a.extend(place(mfmas(wc, 0), slots))
            slots = {i: [] for i in range(-1, 80)}
            slots[0].extend(["s_waitcnt vmcnt(0)", "s_barrier"])
            slots[1].extend(adv[:2]); slots[2].extend(adv[2:])
            if stage == 0:
                slots[-1].extend(["s_cmp_eq_u32 s37, 7", "s_cselect_b32 s10, 0, s10", "s_cselect_b32 s14, 0, s14", "s_cselect_b32 s18, 0, s18"])
            if pf: slots[2].append(PFI[0]); slots[3].append(PFI[1])
            xr = [xread(stage ^ 1, tb, ks) for tb in range(4) for ks in range(2)]
            for i, p in enumerate([4, 6, 14, 22, 30, 38, 46, 54]): slots[p].append(xr[i])
            for cb in range(9):
                for i, r in enumerate(wread(wc, stage ^ 1, cb)): slots[8*(cb+1) + [1, 3, 5, 7][i]].append(r)
            for (m, d), p in zip(dma_list(stage)[:n3], dpos[:n3]):
                slots[p-1].append(m); slots[p].append(d)
            a.extend(place(mfmas(wc, 1), slots))
        a(f"s_add_u32 s37, s37, 1\ns_cmp_lt_u32 s37, 8\ns_cbranch_scc1 L1_loop{wc}")
        st2 = st.n
        st.stamp(a)
        a("s_waitcnt lgkmcnt(0)")
        srd(a, 8, 28, WS_A, A_BYTES)
        a(f"s_mov_b32 s12, {hex(f2u(LOG2E))}\ns_mov_b32 s14, {hex(f2u(1e-6))}\ns_mov_b32 s16, {hex(f2u(GA3))}\nv_mov_b32 v2, {hex(f2u(GA1))}")
        a(f"s_lshl_b32 s20, s5, 3\ns_lshl_b32 s21, s31, 2\ns_add_u32 s20, s20, s21\ns_mul_i32 s20, s20, {144*2048}")
        a("s_mul_i32 s6, s4, 7\ns_add_u32 s7, s6, s53\ns_lshr_b32 s7, s7, 1\ns_add_u32 s7, s7, 32\ns_lshl_b32 s7, s7, 11")
        if wc == 0:
            a("s_add_u32 s6, s6, s54\ns_lshr_b32 s6, s6, 1\ns_add_u32 s6, s6, 32\ns_lshl_b32 s6, s6, 11\ns_lshl_b32 s21, s52, 3\ns_add_u32 s6, s6, s21")
        else:
            a("s_lshl_b32 s6, s4, 11")
        for i in range(4):
            a(f"s_add_u32 s{36+i}, s20, s7\ns_add_u32 s{40+i}, s20, s6\ns_add_u32 s20, s20, {144*2048}")
        a("s_nop 4")
        T = 8
        def getv(tb, cb, tmp):
            p, b = accb(tb, cb)
            if p == "v": return b
            for i in range(4): a(f"v_accvgpr_read_b32 v{tmp+i}, a{b+i}")
            return tmp
        def pairs(bases): return [b + i for b in bases for i in (0, 2)]
        def P(r): return f"v[{r}:{r+1}]"
        def phi(b0, b1, t):
            ps = pairs([b0, b1]); ts = pairs([t, t+4])
            for p, q in zip(ps, ts): a(f"v_pk_mul_f32 {P(q)}, {P(p)}, s[12:13] op_sel_hi:[1,0]")
            for i in range(8): a(f"v_exp_f32_e64 v{t+i}, v{t+i} clamp")
            for p in ps: a(f"v_max_f32 v{p}, 0, v{p}\nv_max_f32 v{p+1}, 0, v{p+1}")
            for p in ps: a(f"v_pk_add_f32 {P(p)}, {P(p)}, s[14:15] op_sel_hi:[1,0]")
            for p, q in zip(ps, ts): a(f"v_pk_add_f32 {P(p)}, {P(p)}, {P(q)}")
            pack(b0, ps)
        def pack(d, ps):
            for i, p in enumerate(ps): a(f"v_cvt_pk_bf16_f32 v{d+i}, v{p}, v{p+1}")
        def geglu(gs, us, t, d):
            ps = pairs(gs); qs = pairs(us); ts = [t + 2*i for i in range(len(ps))]
            for p, q in zip(ps, ts): a(f"v_pk_mul_f32 {P(q)}, {P(p)}, {P(p)}")
            for q in ts: a(f"v_pk_fma_f32 {P(q)}, {P(q)}, s[16:17], v[2:3] op_sel_hi:[1,0,0]")
            for p, q in zip(ps, ts): a(f"v_pk_mul_f32 {P(q)}, {P(q)}, {P(p)}")
            for i in range(2*len(ps)): a(f"v_exp_f32 v{t+i}, v{t+i}")
            for q in ts: a(f"v_pk_add_f32 {P(q)}, {P(q)}, 1.0 op_sel_hi:[1,0]")
            for i in range(2*len(ps)): a(f"v_rcp_f32 v{t+i}, v{t+i}")
            for p, u in zip(ps, qs): a(f"v_pk_mul_f32 {P(u)}, {P(u)}, {P(p)}")
            for u, q in zip(qs, ts): a(f"v_pk_mul_f32 {P(u)}, {P(u)}, {P(q)}")
            pack(d, qs)
        def frag(tb, cbs, dk, n, ta=T):
            g0 = getv(tb, cbs, ta+8); u0 = getv(tb, cbs+1, ta+12); g1 = getv(tb, cbs+2, ta+16); u1 = getv(tb, cbs+3, ta+20)
            d = ta + 24 + 4*(n & 1)
            geglu([g0, g1], [u0, u1], ta, d)
            a(f"buffer_store_dwordx4 v[{d}:{d+3}], v1, s[8:11], s{36+(tb>>1)} offen offset:{(tb&1)*1024 + dk*2048} sc1")
        if wc == 0:
            KV = 8
            for i in range(4): a(f"v_mov_b32 v{32+i}, 0x3f803f80")
            for tp in range(4):
                for eb in range(2):
                    b0, b1 = accb(2*tp, 2+eb)[1], accb(2*tp+1, 2+eb)[1]
                    pack(b0, pairs([b0, b1]))
                for db in range(2):
                    phi(accb(2*tp, db)[1], accb(2*tp+1, db)[1], 36)
                for db in range(2):
                    for eb in range(3):
                        d = vr(KV + (db*3+eb)*4, 4)
                        B = acc(2*tp, 2+eb) if eb < 2 else "v[32:35]"
                        a(f"v_mfma_f32_16x16x32_bf16 {d}, {acc(2*tp, db)}, {B}, {d if tp else 0}")
            a(f"s_mul_i32 s6, s31, 3072\ns_add_u32 s7, s6, {EPI_LDS}\nv_add_u32 v4, s7, v1\ns_sub_u32 s7, {EPI_LDS+3072}, s6\nv_add_u32 v5, s7, v1")
            a("s_cmp_eq_u32 s31, 0\ns_nop 7\ns_cbranch_scc1 L1_kv0")
            for eb in range(3): a(f"ds_write_b128 v5, v[{KV+eb*4}:{KV+eb*4+3}] offset:{eb*1024}")
            a("s_waitcnt lgkmcnt(0)")
            for i in range(12): a(f"v_mov_b32 v{KV+i}, v{KV+12+i}")
            a("s_branch L1_kv1\nL1_kv0:")
            for eb in range(3): a(f"ds_write_b128 v5, v[{KV+12+eb*4}:{KV+12+eb*4+3}] offset:{eb*1024}")
            a("L1_kv1:\ns_waitcnt lgkmcnt(0)\ns_barrier")
            for eb in range(3): a(f"ds_read_b128 v[{KV+12+eb*4}:{KV+12+eb*4+3}], v4 offset:{eb*1024}")
            srd(a, 24, 28, WS_KVP, 0x200000 + 0x10000)
            a("s_lshl_b32 s6, s4, 1\ns_add_u32 s6, s6, s31\ns_mul_i32 s44, s6, 24576\ns_mul_i32 s7, s5, 3072\ns_add_u32 s45, s44, s7")
            a(f"s_lshl_b32 s46, s6, 7\ns_add_u32 s46, s46, {WS_F1-WS_KVP}\ns_lshl_b32 s47, s5, 2\ns_add_u32 s47, s47, s46")
            a("s_waitcnt lgkmcnt(0)")
            for i in range(6): a(f"v_pk_add_f32 {P(KV+2*i)}, {P(KV+2*i)}, {P(KV+12+2*i)}")
            for eb in range(3): a(f"buffer_store_dwordx4 v[{KV+eb*4}:{KV+eb*4+3}], v1, s[24:27], s45 offen offset:{eb*1024} sc1")
            for tp in range(4):
                gs = [accb(2*tp, 4)[1], accb(2*tp+1, 4)[1]]; us = [accb(2*tp, 5)[1], accb(2*tp+1, 5)[1]]
                d = 32 + 4*(tp & 1)
                geglu(gs, us, 24, d)
                for h in range(2):
                    a(f"buffer_store_dwordx2 v[{d+2*h}:{d+2*h+1}], v1, s[8:11], s{40+tp} offen offset:{h*1024} sc1")
            a("v_mov_b32 v4, 0\nv_mov_b32 v5, 1\ns_waitcnt vmcnt(8)\ns_mov_b64 exec, 1\nbuffer_store_dword v5, v4, s[24:27], s47 offen sc1\ns_mov_b64 exec, -1")
            for tb in range(4): frag(tb, 6, 0, tb)
            a("v_lshrrev_b32 v4, 2, v1\nv_and_b32 v4, 28, v4")
            a("buffer_load_dword v5, v4, s[24:27], s46 offen sc1")
            for tb in range(4, 6): frag(tb, 6, 0, tb)
            a("s_mov_b32 s55, 0\ns_waitcnt vmcnt(2)\nL1_poll:\nv_cmp_ne_u32 vcc, 1, v5\ns_add_u32 s55, s55, 1\ns_cmp_ge_u32 s55, 0x40000\ns_cbranch_scc1 L1_polld\ns_nop 2\ns_cbranch_vccz L1_polld")
            a("s_sleep 2\nbuffer_load_dword v5, v4, s[24:27], s46 offen sc1\ns_waitcnt vmcnt(0)\ns_branch L1_poll\nL1_polld:")
            LD = V_ACC
            for r in range(8):
                for eb in range(3):
                    a(f"buffer_load_dwordx4 v[{LD+(r*3+eb)*4}:{LD+(r*3+eb)*4+3}], v1, s[24:27], s44 offen offset:{eb*1024} sc1")
                a("s_add_u32 s44, s44, 3072")
            for tb in range(6, 8): frag(tb, 6, 0, tb)
            a("s_waitcnt vmcnt(2)")
            for stp in (48, 24, 12):
                for i in range(0, stp, 2): a(f"v_pk_add_f32 {P(LD+i)}, {P(LD+i)}, {P(LD+stp+i)}")
            pack(LD, [LD + 2*i for i in range(6)])
            a(f"s_lshl_b32 s6, s31, 3\ns_add_u32 s6, s6, {EPI_LDS+6144}\nv_add_u32 v4, s6, v1")
            for eb in range(3): a(f"ds_write_b64 v4, v[{LD+2*eb}:{LD+2*eb+1}] offset:{eb*1024}")
            a("s_waitcnt lgkmcnt(0)\ns_barrier")
        else:
            for tb in range(8): phi(accb(tb, 0)[1], accb(tb, 1)[1], T)
            n = 0
            for dk in range(2):
                for tb in range(8):
                    frag(tb, 2 + 4*dk, dk, n); n += 1
                    if n == o["bar1"]: a("s_barrier")
            a(f"v_add_u32 v4, {EPI_LDS+6144}, v1\ns_barrier")
            for eb in range(3): a(f"ds_read_b128 v[{8+4*eb}:{11+4*eb}], v4 offset:{eb*1024}")
            a("s_waitcnt lgkmcnt(0)")
            OB = accb(0, 2)[1]
            for tb in range(8):
                for eb in (2, 0, 1):
                    a(f"v_mfma_f32_16x16x32_bf16 {vr(OB+(tb*3+eb)*4, 4)}, v[{8+4*eb}:{11+4*eb}], {acc(tb, 0)}, 0")
            for tb in range(8):
                b = OB + tb*12
                a(f"v_add_f32 v{b+8}, s14, v{b+8}\nv_rcp_f32 v{b+8}, v{b+8}")
                for i in range(4): a(f"v_pk_mul_f32 {P(b+2*i)}, {P(b+2*i)}, {P(b+8)} op_sel_hi:[1,0]")
                pack(b, [b + 2*i for i in range(4)])
                a(f"buffer_store_dwordx4 v[{b}:{b+3}], v1, s[8:11], s{40+(tb>>1)} offen offset:{(tb&1)*1024} sc1")
        if o["stamps"]:
            st.stamp(a)
            a("s_waitcnt vmcnt(0)")
            for _ in range(o["nst"] - st.n): st.stamp(a)
            a(f"s_cmp_lg_u32 s3, {o['stw']}\ns_cbranch_scc1 L1_end")
            st.flush(a, 28, 2, 4)
            st.n = st2
        a("s_endpgm")
    a("L1_end:\ns_endpgm")
    return dict(name="g1_kernel", grid=256, block=256, lds=163840, body=a, vgpr=256, agpr=256)

def gen_k2(o):
    a = Asm(); st = Stamps(o["stamps"], 64, 2)
    D = 3; R = NS = 4; nf, ns = 28, 8; T = nf + ns
    V_AV, V_BR, V_BV, V_XO = 4, 8, 12, 16
    V_BF, V_ACC = 24, 152
    A_PX = 128
    def af(slot, i): return ar(slot*32 + i*4, 4)
    def bf(p, u, cb): return V_BF + p*64 + (u*4+cb)*4
    a("s_cmp_ge_u32 s2, 256\ns_cbranch_scc1 L2_end")
    st.stamp(a)
    a("s_load_dwordx2 s[12:13], s[0:1], 48\ns_load_dwordx2 s[16:17], s[0:1], 16\ns_load_dwordx2 s[28:29], s[0:1], 72")
    a("s_load_dwordx2 s[40:41], s[0:1], 0\ns_load_dwordx2 s[44:45], s[0:1], 56")
    a("v_lshrrev_b32 v1, 6, v0\nv_and_b32 v2, 63, v0\nv_readfirstlane_b32 s3, v1")
    a("s_and_b32 s4, s2, 1\ns_lshr_b32 s5, s2, 3\ns_bfe_u32 s6, s2, 0x20001\ns_lshl_b32 s6, s6, 2\ns_lshr_b32 s7, s5, 3\ns_add_u32 s6, s6, s7\ns_and_b32 s7, s5, 7")
    a(f"s_lshl_b32 s33, s6, 2\ns_add_u32 s33, s33, s3\ns_mul_i32 s30, s33, {144*2048}")
    a(f"s_mul_i32 s20, s4, {56*2048}\ns_add_u32 s20, s20, {32*2048}\ns_add_u32 s20, s20, s30")
    a(f"v_lshlrev_b32 v{V_AV}, 4, v2\nv_add_u32 v{V_AV+1}, 4096, v{V_AV}")
    a(f"s_mul_i32 s21, s4, 1792\ns_lshr_b32 s22, s3, 1\ns_lshl_b32 s22, s22, 5\ns_add_u32 s21, s21, s22\ns_lshl_b32 s21, s21, 11")
    a("s_lshl_b32 s22, s7, 8\ns_add_u32 s21, s21, s22\ns_xor_b32 s31, s3, s4\ns_and_b32 s31, s31, 1\ns_lshl_b32 s31, s31, 7\ns_add_u32 s21, s21, s31")
    a("s_lshl_b32 s32, s4, 7\ns_add_u32 s32, s32, s22\ns_lshl_b32 s31, s3, 16\ns_add_u32 s31, s31, s32")
    a("s_lshl_b32 s33, s33, 16\ns_add_u32 s33, s33, s32")
    a("v_lshrrev_b32 v3, 3, v2\nv_bfe_u32 v6, v2, 4, 2\nv_lshlrev_b32 v6, 1, v6\nv_and_b32 v7, 7, v2\nv_xor_b32 v7, v7, v6")
    a(f"v_lshlrev_b32 v7, 4, v7\nv_lshl_add_u32 v{V_BV}, v3, 11, v7")
    for c in range(1, 4): a(f"v_add_u32 v{V_BV+c}, {16384*c}, v{V_BV}")
    a("s_lshl_b32 s23, s3, 12")
    a("s_waitcnt lgkmcnt(0)")
    srd(a, 8, 28, WS_A, A_BYTES); srd(a, 12, 12, 0, 3584*1024*2); srd(a, 16, 16, 0, 1024*1024*2)
    def bl(slot, ph):
        L = []
        s_, so, stp = ("s[12:15]", 21, 64*2048) if ph == "f" else ("s[16:19]", 31, 128*2048)
        for c in range(4):
            L.append([f"s_add_u32 m0, s23, {slot*16384 + c*1024}"])
            L.append([f"buffer_load_dwordx4 v{V_BV+c}, {s_}, s{so} offen lds"])
        L.append([f"s_add_u32 s{so}, s{so}, {stp}"])
        return L
    def al(slot, ph):
        n, so = (4, 20) if ph == "f" else (8, 30)
        L = [[f"buffer_load_dwordx4 {af(slot, i)}, v{V_AV + (i>>2)}, s[8:11], s{so} offen offset:{(i&3)*1024}"] for i in range(n)]
        L.append([f"s_add_u32 s{so}, s{so}, {n*1024}"])
        return L
    def rl(slot, p, ph):
        od = [(ks*2+ch, cb) for ch in range(2) for cb in range(4) for ks in range(2)] if ph == "f" else [(u, cb) for cb in range(4) for u in range(4)]
        return [f"ds_read_b64_tr_b16 {vr(bf(p, u, cb) + rd*2, 2)}, v{V_BR + cb} offset:{slot*16384 + u*4096 + rd*2048}" for u, cb in od for rd in range(2)]
    def facc(ch, cb, tb): return V_ACC + ((ch*4+cb)*2+tb)*4
    def ml(slot, p, ph):
        L = []
        if ph == "f":
            for ch in range(2):
                for cb in range(4):
                    for tb in range(2):
                        for ks in ((0, 1) if tb == 0 else (1, 0)):
                            c = vr(facc(ch, cb, tb), 4)
                            L.append(f"v_mfma_f32_16x16x32_bf16 {c}, {vr(bf(p, ks*2+ch, cb), 4)}, {af(slot, ks*2+tb)}, {c}")
        else:
            for cb in range(4):
                for tb in range(2):
                    for ks in (range(4) if tb == 0 else (3, 2, 1, 0)):
                        c = vr(facc(2, cb, tb), 4)
                        L.append(f"v_mfma_f32_16x16x32_bf16 {c}, {vr(bf(p, ks, cb), 4)}, {af(slot, ks*2+tb)}, {c}")
        return L
    def ph(t): return "f" if t < nf else ("s" if t < T else None)
    extra = {nf: 8, nf+3: 1, nf+5: 5, nf+6: 8}
    def nops(t): return (4 if ph(t+D+1) else 0) + {"f": 4, "s": 8, None: 0}[ph(t+D)] + extra.get(t, 0)
    for x in bl(0, "f"): a("\n".join(x))
    for t in range(-D, 0):
        for x in bl(t+D+1, "f"): a("\n".join(x))
        for x in al(t+D, "f"): a("\n".join(x))
    a("v_lshrrev_b32 v3, 2, v2\nv_lshlrev_b32 v3, 7, v3\nv_and_b32 v6, 3, v2\nv_lshl_add_u32 v3, v6, 3, v3\nv_bfe_u32 v6, v2, 3, 2")
    for cb in range(4): a(f"v_xor_b32 v7, {cb}, v6\nv_lshl_add_u32 v{V_BR+cb}, v7, 5, v3")
    a(f"v_and_b32 v3, 15, v2\nv_lshlrev_b32 v3, 11, v3\nv_bfe_u32 v6, v2, 4, 1\nv_lshl_add_u32 v3, v6, 5, v3\nv_lshrrev_b32 v6, 5, v2\nv_lshl_add_u32 v{V_XO}, v6, 4, v3\nv_add_u32 v{V_XO+1}, 32768, v{V_XO}")
    srd(a, 40, 40, 0, 2048*1024*2); srd(a, 44, 44, 0, 2048*1024*2)
    srd(a, 24, 28, WS_F2, WS_XB - WS_F2 + 256*32768)
    a(f"s_lshl_b32 s34, s2, 15\ns_lshl_b32 s35, s3, 13\ns_add_u32 s34, s34, s35\ns_xor_b32 s35, s34, 32768\ns_add_u32 s34, s34, {WS_XB-WS_F2}\ns_add_u32 s35, s35, {WS_XB-WS_F2}")
    a("s_lshl_b32 s36, s2, 7\ns_lshl_b32 s38, s3, 2\ns_add_u32 s36, s36, s38\ns_xor_b32 s38, s36, 128")
    a(f"s_mov_b32 s48, {hex(f2u(-LOG2E))}\nv_mov_b32 v18, 0\nv_mov_b32 v19, 1")
    for i in range(96): a(f"v_mov_b32 v{V_ACC+i}, 0")
    a(f"s_waitcnt vmcnt({8*D})\ns_barrier")
    st.stamp(a)
    if o["stamps"]: a("s_waitcnt lgkmcnt(0)")
    a.extend(rl(0, 0, "f"))
    A_XL = 128
    def stage(t):
        p = t & 1
        ms = ml(t % R, p, ph(t))
        slots = {i: [] for i in range(-1, 32)}
        n = sum(nops(u) for u in range(t-D+1, t))
        if t == nf+6: n = 0
        if t == nf+7: n = 8
        slots[-1].append(f"s_waitcnt vmcnt({n}) lgkmcnt(0)")
        if ph(t+1): slots[0].append("s_barrier")
        if ph(t+1):
            rr = rl((t+1) % NS, p ^ 1, ph(t+1))
            for i, r in enumerate(rr): slots[(i*28)//32].append(r)
        ld = (bl((t+D+1) % NS, ph(t+D+1)) if ph(t+D+1) else []) + (al((t+D) % R, ph(t+D)) if ph(t+D) else [])
        if t == nf:
            ld = ld + [[f"buffer_store_dwordx4 {vr(facc(1, i>>1, i&1), 4)}, v{V_AV + (i>>2)}, s[24:27], s34 offen offset:{(i&3)*1024} sc1"] for i in range(8)]
        if t == nf+3:
            ld = [["s_mov_b64 exec, 1", "buffer_store_dword v19, v18, s[24:27], s36 offen sc1", "s_mov_b64 exec, -1"]] + ld
        if t == nf+5:
            ld = [[f"buffer_load_dwordx4 {ar(A_XL + 4*i, 4)}, v{V_XO + (i>>1)}, s[40:43], s33 offen offset:{(i&1)*64}"] for i in range(4)] + [["buffer_load_dword v20, v18, s[24:27], s38 offen sc1"]]
        if t == nf+6:
            slots[-1].extend(["s_mov_b32 s55, 0", "L2_poll:", "v_cmp_ne_u32 vcc, 1, v20", "s_add_u32 s55, s55, 1", "s_cmp_ge_u32 s55, 0x40000", "s_cbranch_scc1 L2_polld", "s_nop 2", "s_cbranch_vccz L2_polld", "s_sleep 2",
                              "buffer_load_dword v20, v18, s[24:27], s38 offen sc1", "s_waitcnt vmcnt(0)", "s_branch L2_poll", "L2_polld:"])
            ld = [[f"buffer_load_dwordx4 {vr(facc(1, i>>1, i&1), 4)}, v{V_AV + (i>>2)}, s[24:27], s35 offen offset:{(i&3)*1024} sc1"] for i in range(8)]
            for i, x in enumerate(ld): slots[i].extend(x)
            ld = []
        for i, x in enumerate(ld): slots[1 + (i*30)//max(len(ld), 1)].extend(x)
        a.extend(place(ms, slots))
    nloop = 6
    a("s_mov_b32 s37, 0\n.p2align 6\nL2_loop:")
    for t in range(R): stage(t + R)
    a(f"s_add_u32 s37, s37, 1\ns_cmp_lt_u32 s37, {nloop}\ns_cbranch_scc1 L2_loop")
    for t in range(nloop*R, T):
        if t == nf: st.stamp(a)
        stage(t)
    st.stamp(a)
    def P(r): return f"v[{r}:{r+1}]"
    for i in range(16): a(f"v_accvgpr_read_b32 v{24+i}, a{A_XL+i}")
    for q in range(4):
        b = 24 + 4*q
        a(f"v_permlane16_swap_b32 v{b}, v{b+2}\nv_permlane16_swap_b32 v{b+1}, v{b+3}")
    for i in range(16): a(f"v_lshlrev_b32 v{40+2*i}, 16, v{24+i}\nv_and_b32 v{41+2*i}, 0xffff0000, v{24+i}")
    a("s_waitcnt vmcnt(0)")
    F, Q, S = facc(0, 0, 0), facc(1, 0, 0), facc(2, 0, 0)
    for i in range(0, 32, 2): a(f"v_pk_add_f32 {P(F+i)}, {P(F+i)}, {P(Q+i)}")
    for i in range(0, 32, 2): a(f"v_pk_mul_f32 {P(Q+i)}, {P(F+i)}, s[48:49] op_sel_hi:[1,0]")
    for i in range(32): a(f"v_exp_f32 v{Q+i}, v{Q+i}")
    for i in range(0, 32, 2): a(f"v_pk_add_f32 {P(Q+i)}, {P(Q+i)}, 1.0 op_sel_hi:[1,0]")
    for i in range(32): a(f"v_rcp_f32 v{Q+i}, v{Q+i}")
    for i in range(0, 32, 2): a(f"v_pk_mul_f32 {P(F+i)}, {P(F+i)}, {P(Q+i)}")
    for tb in range(2):
        for p in range(2):
            d = 24 + (tb*2+p)*4
            for e in range(2):
                cb = 2*p + e; off = (cb*2+tb)*4; xb = 40 + ((tb*2+p)*4 + 2*e)*2
                for h in range(2):
                    a(f"v_pk_fma_f32 {P(S+off+2*h)}, {P(S+off+2*h)}, {P(F+off+2*h)}, {P(xb+2*h)}")
                for h in range(2):
                    a(f"v_cvt_pk_bf16_f32 v{d+2*e+h}, v{S+off+2*h}, v{S+off+2*h+1}")
            a(f"v_permlane16_swap_b32 v{d}, v{d+2}\nv_permlane16_swap_b32 v{d+1}, v{d+3}")
            a(f"buffer_store_dwordx4 v[{d}:{d+3}], v{V_XO+tb}, s[44:47], s33 offen offset:{p*64}{o['outpol']}")
    if o["stamps"]:
        a("s_waitcnt vmcnt(0)")
        for _ in range(o["nst"] - st.n): st.stamp(a)
        a("s_cmp_lg_u32 s3, 0\ns_cbranch_scc1 L2_end")
        st.flush(a, 28, 2, 4)
    a("L2_end:\ns_endpgm")
    return dict(name="g2_kernel", grid=256, block=256, lds=90112, body=a, vgpr=256, agpr=144)

HEADER = open("cdna_kernels/" + NAME + ".s.ref").read().split("; Override launch")[0] if __import__("os").path.exists("cdna_kernels/" + NAME + ".s.ref") else ""
def gen(**kw):
    o = dict(stamps=0, nst=5, stw=2, ev=8, dst=4, pf=1, bar1=2, outsc=0)
    o.update(kw)
    o["outpol"] = ["", " sc1", " nt"][o["outsc"]]
    ks = [gen_k0(o), gen_k1(o), gen_k2(o)]
    e = Asm(); e("s_endpgm")
    emp = dict(name="nop_kernel", grid=256, block=256, lds=0, body=e, vgpr=8, agpr=0)
    pr = Asm()
    pa, pb, M, pw = o.get("pa", 0), o.get("pb", 0), o.get("pm", 0), o.get("pw", 0)
    offA = STAMP_OFF + (pa//10)*0x20000 + pw*128 + (pa % 10)*8 + 4
    offB = STAMP_OFF + (pb//10)*0x20000 + pw*128 + (pb % 10)*8 + 4
    pr(f"""s_cmp_ge_u32 s2, 1
s_cbranch_scc1 Lp_end
s_load_dwordx2 s[4:5], s[0:1], 72
s_memrealtime s[8:9]
v_mov_b32 v1, {offA}
v_mov_b32 v2, {offB}
s_waitcnt lgkmcnt(0)
global_load_dword v3, v1, s[4:5]
global_load_dword v4, v2, s[4:5]
s_waitcnt vmcnt(0)
{"v_mov_b32 v4, s8" if pb == 99 else ""}
v_sub_u32 v3, v4, v3
s_nop 1
v_readfirstlane_b32 s6, v3
s_nop 3
s_min_u32 s6, s6, 20000
s_mul_i32 s6, s6, {M}
Lp_loop:
s_memrealtime s[10:11]
s_waitcnt lgkmcnt(0)
s_sub_u32 s12, s10, s8
s_cmp_lt_u32 s12, s6
s_cbranch_scc1 Lp_loop
Lp_end:
s_endpgm""")
    prb = dict(name="probe_kernel", grid=1, block=64, lds=0, body=pr, vgpr=8, agpr=0)
    for k in ks:
        k["body"].lines, n = hazard.fix(k["body"].lines, verbose=o.get("hv", 0))
    seq = o.get("seq", 123)
    ks = [{"1": ks[0], "2": ks[1], "3": ks[2], "9": emp, "8": prb}[c] for c in str(seq)]
    return HEADER + file_text(ks)
if __name__ == "__main__":
    kw = {}
    for x in sys.argv[2:]:
        k, v = x.split("="); kw[k] = int(v)
    open(sys.argv[1], "w").write(gen(**kw))
```

```python
import sys, struct, math
from asmlib import *
import hazard

WS_A, WS_XN, WS_KVP, WS_F1, WS_F2, WS_XB = 0, 0x1400000, 0x1800000, 0x1A00000, 0x1A10000, 0x1C00000
A_BYTES = 64*144*2048
def f2u(x): return struct.unpack("<I", struct.pack("<f", x))[0]
LOG2E = 1.4426950408889634
GA1 = -2.0*LOG2E*math.sqrt(2.0/math.pi); GA3 = GA1*0.044715

def srd(a, d, base, off, size):
    if off:
        a(f"s_add_u32 s{d}, s{base}, {off}\ns_addc_u32 s{d+1}, s{base+1}, 0")
    elif d != base:
        a(f"s_mov_b32 s{d}, s{base}\ns_mov_b32 s{d+1}, s{base+1}")
    a(f"s_mov_b32 s{d+2}, {size}\ns_mov_b32 s{d+3}, 0x20000")

def wave_sum(a, r, t):
    for sh in (8, 4, 2, 1):
        a(f"v_add_f32_dpp v{r}, v{r}, v{r} row_ror:{sh} row_mask:0xf bank_mask:0xf")
    a(f"v_mov_b32 v{t}, v{r}\nv_permlane16_swap_b32 v{r}, v{t}\nv_add_f32 v{r}, v{r}, v{t}")
    a(f"v_mov_b32 v{t}, v{r}\nv_permlane32_swap_b32 v{r}, v{t}\nv_add_f32 v{r}, v{r}, v{t}")

def gen_k0(o):
    a = Asm(); st = Stamps(o["stamps"], 60, 0)
    a("s_cmp_ge_u32 s2, 256\ns_cbranch_scc1 L0_end")
    st.stamp(a)
    a("s_load_dwordx2 s[8:9], s[0:1], 0\ns_load_dwordx2 s[28:29], s[0:1], 72")
    a("v_lshrrev_b32 v1, 6, v0\nv_and_b32 v2, 63, v0\nv_readfirstlane_b32 s3, v1")
    a("v_lshlrev_b32 v3, 4, v2\ns_lshl_b32 s4, s2, 14\ns_lshl_b32 s5, s3, 12\ns_add_u32 s4, s4, s5")
    a("s_waitcnt lgkmcnt(0)")
    srd(a, 8, 8, 0, 2048*1024*2)
    for i in range(4):
        a(f"buffer_load_dwordx4 v[{8+4*i}:{11+4*i}], v3, s[8:11], s4 offen offset:{1024*i}")
    srd(a, 12, 28, WS_XN, 2048*1024*2)
    srd(a, 16, 28, WS_F1, 0x20000)
    a("v_mov_b32 v4, 0\nv_lshlrev_b32 v5, 2, v2\nv_and_b32 v5, 127, v5\ns_lshl_b32 s5, s2, 7")
    a("s_cmp_eq_u32 s3, 0\ns_cbranch_scc0 L0_a")
    a(f"s_add_u32 s6, s5, {WS_F2-WS_F1}\nbuffer_store_dword v4, v5, s[16:19], s6 offen sc1\nbuffer_store_dword v4, v5, s[16:19], s5 offen sc1\ns_waitcnt vmcnt(2)")
    a("L0_a:\ns_waitcnt vmcnt(2)")
    a("s_cmp_eq_u32 s3, 0\ns_cbranch_scc1 L0_b\ns_waitcnt vmcnt(0)\nL0_b:")
    st.stamp(a)
    for r in range(2):
        src = 8 + 8*r; F = 24 + 16*r; S = 56 + 4*r
        for i in range(8):
            a(f"v_lshlrev_b32 v{F+2*i}, 16, v{src+i}\nv_and_b32 v{F+2*i+1}, 0xffff0000, v{src+i}")
        a(f"v_pk_add_f32 v[{S}:{S+1}], v[{F}:{F+1}], v[{F+2}:{F+3}]")
        for i in range(2, 8): a(f"v_pk_add_f32 v[{S}:{S+1}], v[{S}:{S+1}], v[{F+2*i}:{F+2*i+1}]")
        a(f"v_add_f32 v{S}, v{S}, v{S+1}")
        wave_sum(a, S, S+1)
        a(f"v_mul_f32 v{S}, {hex(f2u(-1.0/1024))}, v{S}")
        for i in range(8): a(f"v_pk_add_f32 v[{F+2*i}:{F+2*i+1}], v[{F+2*i}:{F+2*i+1}], v[{S}:{S+1}] op_sel_hi:[1,0]")
        a(f"v_pk_mul_f32 v[{S}:{S+1}], v[{F}:{F+1}], v[{F}:{F+1}]")
        for i in range(1, 8): a(f"v_pk_fma_f32 v[{S}:{S+1}], v[{F+2*i}:{F+2*i+1}], v[{F+2*i}:{F+2*i+1}], v[{S}:{S+1}]")
        a(f"v_add_f32 v{S}, v{S}, v{S+1}")
        wave_sum(a, S, S+1)
        a(f"v_mov_b32 v{S+1}, {hex(f2u(1e-5))}\nv_fmac_f32 v{S+1}, {hex(f2u(1.0/1024))}, v{S}\nv_rsq_f32 v{S}, v{S+1}")
        for i in range(8): a(f"v_pk_mul_f32 v[{F+2*i}:{F+2*i+1}], v[{F+2*i}:{F+2*i+1}], v[{S}:{S+1}] op_sel_hi:[1,0]")
        for i in range(8): a(f"v_cvt_pk_bf16_f32 v{src+i}, v{F+2*i}, v{F+2*i+1}")
        for i in range(2):
            a(f"buffer_store_dwordx4 v[{src+4*i}:{src+4*i+3}], v3, s[12:15], s4 offen offset:{2048*r+1024*i} sc1")
    if o["stamps"]:
        a("s_waitcnt vmcnt(0)")
        for _ in range(min(o["nst"], 9) - 2): st.stamp(a)
        a("s_cmp_lg_u32 s3, 0\ns_cbranch_scc1 L0_end")
        st.flush(a, 28, 2, 4)
    a("L0_end:\ns_endpgm")
    return dict(name="ln_kernel", grid=256, block=256, lds=0, body=a, vgpr=64, agpr=0)

A_OFF, QKV_OFF, G_OFF = 0, 32768, 32768 + 12288
U_OFF = G_OFF + 14336
STAGE = 73728
EPI_LDS = 2*STAGE
def gen_k1(o):
    a = Asm(); st = Stamps(o["stamps"], 66, 1)
    V_XV, V_QV, V_GV, V_XR, V_GR, V_QR, V_PF = 8, 16, 19, 26, 30, 34, 38
    V_ACC = 48; A_X = 0; A_W = 64; A_ACC = 144
    order = [(cb, tb) for cb in range(10) for tb in range(8)]
    def accb(tb, cb):
        i = cb*8 + tb
        return ("v", V_ACC + 4*i) if i < 52 else ("a", A_ACC + 4*(i-52))
    def acc(tb, cb):
        p, b = accb(tb, cb); return vr(b, 4, p)
    def xf(tb, ks): return ar(A_X + (tb*2+ks)*4, 4)
    def wfb(cb, ks): return A_W + (cb*2+ks)*4
    a("s_cmp_ge_u32 s2, 256\ns_cbranch_scc1 L1_end")
    st.stamp(a)
    a("s_load_dwordx2 s[12:13], s[0:1], 8\ns_load_dwordx4 s[24:27], s[0:1], 32\ns_load_dwordx2 s[28:29], s[0:1], 72")
    a("v_lshrrev_b32 v1, 6, v0\nv_and_b32 v2, 63, v0\nv_readfirstlane_b32 s3, v1")
    a("s_and_b32 s4, s2, 7\ns_lshr_b32 s5, s2, 3\ns_lshr_b32 s6, s5, 3\ns_and_b32 s5, s5, 7\ns_lshl_b32 s4, s4, 2\ns_add_u32 s4, s4, s6")
    a("s_lshr_b32 s30, s3, 1\ns_and_b32 s31, s3, 1")
    a("v_lshlrev_b32 v1, 4, v2")
    a("s_lshl_b32 s6, s5, 8\ns_lshl_b32 s7, s3, 6\ns_add_u32 s6, s6, s7")
    a("v_lshrrev_b32 v3, 3, v2\nv_add_u32 v3, s6, v3\nv_lshlrev_b32 v3, 11, v3")
    a("v_lshrrev_b32 v4, 4, v2\nv_and_b32 v5, 7, v2")
    for c in range(2):
        a(f"v_add_u32 v6, {4*c}, v4\nv_xor_b32 v6, v6, v5\nv_lshl_add_u32 v6, v6, 4, v3")
        for cc in range(c, 8, 2): a(f"v_add_u32 v{V_XV+cc}, {cc*8*2048}, v6")
    def perm(r, t1, t2):
        a(f"v_bfe_u32 v{t1}, v{r}, 2, 2\nv_bfe_u32 v{t2}, v{r}, 4, 1\nv_and_b32 v{r}, 0xffffffe3, v{r}")
        a(f"v_lshl_or_b32 v{r}, v{t1}, 3, v{r}\nv_lshl_or_b32 v{r}, v{t2}, 2, v{r}")
    a("s_lshl_b32 s6, s3, 4\ns_lshl_b32 s7, s4, 6\ns_movk_i32 s32, 6144")
    for c in range(3):
        a(f"v_add_u32 v3, {64*c}, v2\nv_mul_u32_u24 v4, 5462, v3\nv_lshrrev_b32 v4, 16, v4")
        a("v_mul_u32_u24 v5, 12, v4\nv_sub_u32 v5, v3, v5\nv_add_u32 v4, s6, v4")
        a("v_bfe_u32 v6, v4, 2, 1\nv_lshlrev_b32 v6, 1, v6\nv_xor_b32 v5, v5, v6")
        perm(4, 6, 7)
        a("v_lshrrev_b32 v6, 2, v5\nv_and_b32 v5, 3, v5\nv_lshlrev_b32 v5, 4, v5\nv_lshl_add_u32 v5, v6, 11, v5\nv_add_u32 v5, s7, v5")
        a(f"v_mad_u32_u24 v{V_QV+c}, v4, s32, v5")
    a("s_lshl_b32 s6, s31, 5\ns_mul_i32 s7, s4, 224\ns_movk_i32 s32, 7168")
    for c in range(7):
        a(f"v_add_u32 v3, {64*c}, v2\nv_mul_u32_u24 v4, 4682, v3\nv_lshrrev_b32 v4, 16, v4")
        a("v_mul_u32_u24 v5, 14, v4\nv_sub_u32 v5, v3, v5\nv_add_u32 v4, s6, v4")
        perm(4, 6, 7)
        a(f"v_lshl_add_u32 v5, v5, 4, s7\nv_mad_u32_u24 v{V_GV+c}, v4, s32, v5")
    a(f"s_lshl_b32 s33, s3, 13\ns_mul_i32 s34, s3, 3072\ns_add_u32 s34, s34, {QKV_OFF}")
    a(f"s_mul_i32 s35, s3, 7168\ns_add_u32 s35, s35, {G_OFF}")
    a("s_waitcnt lgkmcnt(0)")
    srd(a, 8, 28, WS_XN, 2048*1024*2)
    srd(a, 12, 12, 0, 1024*3072*2)
    a("s_cmp_eq_u32 s30, 0\ns_cselect_b32 s16, s24, s26\ns_cselect_b32 s17, s25, s27")
    srd(a, 16, 16, 0, 1024*3584*2)
    a("s_mov_b32 s20, 0\ns_mov_b32 s21, 0\ns_mov_b32 s22, 0")
    def dma_list(stage):
        xs = [(f"s_add_u32 m0, s33, {stage*STAGE + A_OFF + c*1024}", f"buffer_load_dwordx4 v{V_XV+c}, s[8:11], s20 offen lds") for c in range(8)]
        qs = [(f"s_add_u32 m0, s34, {stage*STAGE + c*1024}", f"buffer_load_dwordx4 v{V_QV+c}, s[12:15], s21 offen lds") for c in range(3)]
        gs = [(f"s_add_u32 m0, s35, {stage*STAGE + c*1024}", f"buffer_load_dwordx4 v{V_GV+c}, s[16:19], s22 offen lds") for c in range(7)]
        return gs + qs + xs
    adv = ["s_add_u32 s20, s20, 128", f"s_add_u32 s21, s21, {64*6144}", f"s_add_u32 s22, s22, {64*7168}"]
    EV, ST0 = o["ev"], o["dst"]
    dpos = [ST0 + EV*i for i in range(18)]
    n3 = sum(1 for p in dpos if p < 80)
    for m, d in dma_list(0): a(m + "\n" + d)
    a.extend(adv)
    for m, d in dma_list(1)[:n3]: a(m + "\n" + d)
    pf = o["pf"]
    a("s_lshr_b32 s50, s2, 3\ns_and_b32 s51, s2, 7")
    a("s_cmp_eq_u32 s3, 0\ns_cbranch_scc1 L1_pf0\ns_cmp_eq_u32 s3, 1\ns_cbranch_scc1 L1_pf1")
    a("s_cmp_eq_u32 s3, 2\ns_cselect_b32 s44, s24, s26\ns_cselect_b32 s45, s25, s27")
    a(f"s_mov_b32 s46, {1024*3584*2}\ns_mov_b32 s49, {64*7168}")
    a("v_min_u32 v3, 13, v2\nv_cmp_le_u32 vcc, 7, v3\nv_cndmask_b32 v4, 0, 1, vcc\nv_mul_u32_u24 v5, 7, v4\nv_sub_u32 v5, v3, v5")
    a("s_lshl_b32 s6, s50, 1\nv_add_u32 v4, s6, v4\ns_mul_i32 s7, s51, 896\nv_lshl_add_u32 v5, v5, 7, s7\ns_movk_i32 s32, 7168")
    a(f"v_mad_u32_u24 v{V_PF}, v4, s32, v5\ns_branch L1_pfd")
    a("L1_pf1:")
    a(f"s_mov_b32 s44, s12\ns_mov_b32 s45, s13\ns_mov_b32 s46, {1024*3072*2}\ns_mov_b32 s49, {64*6144}")
    a("v_min_u32 v3, 11, v2\nv_cmp_le_u32 vcc, 6, v3\nv_cndmask_b32 v4, 0, 1, vcc\nv_mul_u32_u24 v5, 6, v4\nv_sub_u32 v5, v3, v5")
    a("s_lshl_b32 s6, s50, 1\nv_add_u32 v4, s6, v4\ns_lshl_b32 s7, s51, 8\nv_lshrrev_b32 v6, 1, v5\nv_and_b32 v5, 1, v5\nv_lshl_add_u32 v5, v5, 7, s7\nv_lshl_add_u32 v5, v6, 11, v5\ns_movk_i32 s32, 6144")
    a(f"v_mad_u32_u24 v{V_PF}, v4, s32, v5\ns_branch L1_pfd")
    a("L1_pf0:")
    a(f"s_mov_b32 s44, s8\ns_mov_b32 s45, s9\ns_mov_b32 s46, {2048*1024*2}\ns_mov_b32 s49, 128")
    a(f"s_lshl_b32 s6, s50, 6\nv_add_u32 v4, s6, v2\nv_lshlrev_b32 v{V_PF}, 11, v4")
    a("L1_pfd:")
    a("s_mov_b32 s47, 0x20000\ns_lshl_b32 s48, s49, 1")
    PFI = [f"buffer_load_dword v0, v{V_PF}, s[44:47], s48 offen", "s_add_u32 s48, s48, s49"]
    for i in range(pf): a.extend(PFI)
    if o["wpf"]:
        a("s_load_dwordx2 s[56:57], s[0:1], 48\ns_load_dwordx2 s[60:61], s[0:1], 16")
        a(f"s_lshl_b32 s6, s2, 2\ns_add_u32 s6, s6, s3\nv_lshlrev_b32 v{V_PF+1}, 7, v2\ns_mul_i32 s7, s6, 7168\ns_lshl_b32 s6, s6, 11\ns_waitcnt lgkmcnt(0)")
        a("s_add_u32 s56, s56, s7\ns_addc_u32 s57, s57, 0\ns_mov_b32 s58, 7168\ns_mov_b32 s59, 0x20000")
        a("s_add_u32 s60, s60, s6\ns_addc_u32 s61, s61, 0\ns_mov_b32 s62, 2048\ns_mov_b32 s63, 0x20000")
    a("v_and_b32 v3, 15, v2\nv_lshrrev_b32 v4, 4, v2")
    a("v_bfe_u32 v5, v3, 1, 3\ns_lshl_b32 s6, s31, 7\nv_add_u32 v3, s6, v3\nv_lshlrev_b32 v3, 7, v3")
    for ks in range(2):
        a(f"v_add_u32 v6, {ks*4}, v4\nv_xor_b32 v6, v6, v5\nv_lshl_add_u32 v{V_XR+ks}, v6, 4, v3\nv_add_u32 v{V_XR+2+ks}, {STAGE}, v{V_XR+ks}")
    a("v_and_b32 v3, 3, v2\nv_lshlrev_b32 v3, 3, v3\nv_lshrrev_b32 v4, 2, v2\nv_bfe_u32 v5, v2, 4, 1")
    a("s_and_b32 s52, s4, 1\ns_mul_i32 s6, s52, 3\ns_sub_u32 s7, 4, s6\ns_cmp_eq_u32 s30, 0\ns_cselect_b32 s53, s7, s6\ns_mul_i32 s54, s52, 6\ns_sub_u32 s54, 6, s54")
    a(f"s_lshl_b32 s6, s53, 5\ns_add_u32 s6, s6, {G_OFF}\ns_lshl_b32 s7, s54, 5\ns_add_u32 s7, s7, {G_OFF}")
    a(f"v_mul_u32_u24 v6, 224, v4\nv_add_u32 v6, v6, v3\nv_add_u32 v{V_GR}, s6, v6\nv_add_u32 v{V_GR+2}, s7, v6")
    a(f"v_mul_u32_u24 v6, 192, v4\nv_add_u32 v6, v6, v3\nv_add_u32 v6, {QKV_OFF}, v6")
    a(f"v_lshl_add_u32 v{V_QR}, v5, 5, v6\nv_xor_b32 v5, 1, v5\nv_lshl_add_u32 v{V_QR+2}, v5, 5, v6")
    for r in (V_GR, V_GR+2, V_QR, V_QR+2): a(f"v_add_u32 v{r+1}, {STAGE}, v{r}")
    for i in range(208): a(f"v_mov_b32 v{V_ACC+i}, 0")
    for i in range(112): a(f"v_accvgpr_write_b32 a{A_ACC+i}, 0")
    a(f"s_waitcnt vmcnt({n3+pf})\ns_barrier")
    st.stamp(a)
    if o["stamps"]: a("s_waitcnt lgkmcnt(0)")
    BL = [[("k", 0), ("k", 1), ("v", 0), ("v", 1), ("G", 0), ("U", 0), ("g", 0), ("u", 0), ("g", 1), ("u", 1)],
          [("q", 0), ("q", 1)] + [(t, i) for i in range(4) for t in "gu"]]
    def xread(stage, tb, ks): return f"ds_read_b128 {xf(tb, ks)}, v{V_XR + stage*2 + ks} offset:{tb*2048}"
    def wread(wc, stage, cb):
        t, i = BL[wc][cb]; L = []
        for ks in range(2):
            for rd in range(2):
                row = 32*ks + 16*rd
                if t in "qkv": reg, off = V_QR + stage + 2*i, row*192 + "qkv".index(t)*64
                else: reg, off = V_GR + stage + (2 if t in "GU" else 0), row*224 + i*32 + (U_OFF-G_OFF if t in "uU" else 0)
                L.append(f"ds_read_b64_tr_b16 {ar(wfb(cb, ks)+2*rd, 2)}, v{reg} offset:{off}")
        return L
    def mfmas(wc, half):
        L = []
        for cb, (t, i) in enumerate(BL[wc]):
            for n, tb in enumerate(range(4*half, 4*half+4)):
                for ks in ((0, 1) if n % 2 == 0 else (1, 0)):
                    x, w = xf(tb, ks), ar(wfb(cb, ks), 4)
                    A, B = (x, w) if t in "kv" else (w, x)
                    L.append(f"v_mfma_f32_16x16x32_bf16 {acc(tb, cb)}, {A}, {B}, {acc(tb, cb)}")
        return L
    a("s_mov_b32 s37, 0\ns_cmp_eq_u32 s30, 1\ns_cbranch_scc1 L1_w1")
    for wc in range(2):
        a.label(f"L1_w{wc}")
        for tb in range(4):
            for ks in range(2): a(xread(0, tb, ks))
        for cb in range(9): a.extend(wread(wc, 0, cb))
        a(".p2align 6")
        a.label(f"L1_loop{wc}")
        for stage in range(2):
            slots = {i: [] for i in range(-1, 80)}
            slots[-1].append("s_waitcnt lgkmcnt(4)")
            rl = wread(wc, stage, 9) + [xread(stage, tb, ks) for tb in range(4, 8) for ks in range(2)]
            for i, r in enumerate(rl): slots[1 + 3*i].append(r)
            slots[63].append("s_waitcnt lgkmcnt(0)")
            for (m, d), p in zip(dma_list(stage ^ 1)[n3:], dpos[n3:]):
                slots[p-80-1].append(m); slots[p-80].append(d)
            a.extend(place(mfmas(wc, 0), slots))
            slots = {i: [] for i in range(-1, 80)}
            slots[0].extend(["s_waitcnt vmcnt(0)", "s_barrier"])
            slots[1].extend(adv[:2]); slots[2].extend(adv[2:])
            if stage == 0:
                slots[-1].extend(["s_cmp_eq_u32 s37, 7", "s_cselect_b32 s10, 0, s10", "s_cselect_b32 s14, 0, s14", "s_cselect_b32 s18, 0, s18"])
            if pf: slots[2].append(PFI[0]); slots[3].append(PFI[1])
            if o["wpf"]:
                slots[5].extend([f"s_cmp_eq_u32 s37, {o['wpf']}", f"s_cbranch_scc0 L1_nw{wc}{stage}",
                                 f"buffer_load_dword v0, v{V_PF+1}, s[{56+4*stage}:{59+4*stage}], 0 offen", f"L1_nw{wc}{stage}:"])
            xr = [xread(stage ^ 1, tb, ks) for tb in range(4) for ks in range(2)]
            for i, p in enumerate([4, 6, 14, 22, 30, 38, 46, 54]): slots[p].append(xr[i])
            for cb in range(9):
                for i, r in enumerate(wread(wc, stage ^ 1, cb)): slots[8*(cb+1) + [1, 3, 5, 7][i]].append(r)
            for (m, d), p in zip(dma_list(stage)[:n3], dpos[:n3]):
                slots[p-1].append(m); slots[p].append(d)
            a.extend(place(mfmas(wc, 1), slots))
        a(f"s_add_u32 s37, s37, 1\ns_cmp_lt_u32 s37, 8\ns_cbranch_scc1 L1_loop{wc}")
        st2 = st.n
        st.stamp(a)
        a("s_waitcnt lgkmcnt(0)")
        srd(a, 8, 28, WS_A, A_BYTES)
        a(f"s_mov_b32 s12, {hex(f2u(LOG2E))}\ns_mov_b32 s14, {hex(f2u(1e-6))}\ns_mov_b32 s16, {hex(f2u(GA3))}\nv_mov_b32 v2, {hex(f2u(GA1))}")
        a(f"s_lshl_b32 s20, s5, 3\ns_lshl_b32 s21, s31, 2\ns_add_u32 s20, s20, s21\ns_mul_i32 s20, s20, {144*2048}")
        a("s_mul_i32 s6, s4, 7\ns_add_u32 s7, s6, s53\ns_lshr_b32 s7, s7, 1\ns_add_u32 s7, s7, 32\ns_lshl_b32 s7, s7, 11")
        if wc == 0:
            a("s_add_u32 s6, s6, s54\ns_lshr_b32 s6, s6, 1\ns_add_u32 s6, s6, 32\ns_lshl_b32 s6, s6, 11\ns_lshl_b32 s21, s52, 3\ns_add_u32 s6, s6, s21")
        else:
            a("s_lshl_b32 s6, s4, 11")
        for i in range(4):
            a(f"s_add_u32 s{36+i}, s20, s7\ns_add_u32 s{40+i}, s20, s6\ns_add_u32 s20, s20, {144*2048}")
        a("s_nop 4")
        T = 8
        def getv(tb, cb, tmp):
            p, b = accb(tb, cb)
            if p == "v": return b
            for i in range(4): a(f"v_accvgpr_read_b32 v{tmp+i}, a{b+i}")
            return tmp
        def pairs(bases): return [b + i for b in bases for i in (0, 2)]
        def P(r): return f"v[{r}:{r+1}]"
        def phi(b0, b1, t):
            ps = pairs([b0, b1]); ts = pairs([t, t+4])
            for p, q in zip(ps, ts): a(f"v_pk_mul_f32 {P(q)}, {P(p)}, s[12:13] op_sel_hi:[1,0]")
            for i in range(8): a(f"v_exp_f32_e64 v{t+i}, v{t+i} clamp")
            for p in ps: a(f"v_max_f32 v{p}, 0, v{p}\nv_max_f32 v{p+1}, 0, v{p+1}")
            for p in ps: a(f"v_pk_add_f32 {P(p)}, {P(p)}, s[14:15] op_sel_hi:[1,0]")
            for p, q in zip(ps, ts): a(f"v_pk_add_f32 {P(p)}, {P(p)}, {P(q)}")
            pack(b0, ps)
        def pack(d, ps):
            for i, p in enumerate(ps): a(f"v_cvt_pk_bf16_f32 v{d+i}, v{p}, v{p+1}")
        def geglu(gs, us, t, d):
            ps = pairs(gs); qs = pairs(us); ts = [t + 2*i for i in range(len(ps))]
            for p, q in zip(ps, ts): a(f"v_pk_mul_f32 {P(q)}, {P(p)}, {P(p)}")
            for q in ts: a(f"v_pk_fma_f32 {P(q)}, {P(q)}, s[16:17], v[2:3] op_sel_hi:[1,0,0]")
            for p, q in zip(ps, ts): a(f"v_pk_mul_f32 {P(q)}, {P(q)}, {P(p)}")
            for i in range(2*len(ps)): a(f"v_exp_f32 v{t+i}, v{t+i}")
            for q in ts: a(f"v_pk_add_f32 {P(q)}, {P(q)}, 1.0 op_sel_hi:[1,0]")
            for i in range(2*len(ps)): a(f"v_rcp_f32 v{t+i}, v{t+i}")
            for p, u in zip(ps, qs): a(f"v_pk_mul_f32 {P(u)}, {P(u)}, {P(p)}")
            for u, q in zip(qs, ts): a(f"v_pk_mul_f32 {P(u)}, {P(u)}, {P(q)}")
            pack(d, qs)
        def frag(tb, cbs, dk, n, ta=T):
            g0 = getv(tb, cbs, ta+8); u0 = getv(tb, cbs+1, ta+12); g1 = getv(tb, cbs+2, ta+16); u1 = getv(tb, cbs+3, ta+20)
            d = ta + 24 + 4*(n & 1)
            geglu([g0, g1], [u0, u1], ta, d)
            a(f"buffer_store_dwordx4 v[{d}:{d+3}], v1, s[8:11], s{36+(tb>>1)} offen offset:{(tb&1)*1024 + dk*2048} sc1")
        if wc == 0:
            KV = 8
            for i in range(4): a(f"v_mov_b32 v{32+i}, 0x3f803f80")
            for tp in range(4):
                for eb in range(2):
                    b0, b1 = accb(2*tp, 2+eb)[1], accb(2*tp+1, 2+eb)[1]
                    pack(b0, pairs([b0, b1]))
                for db in range(2):
                    phi(accb(2*tp, db)[1], accb(2*tp+1, db)[1], 36)
                for db in range(2):
                    for eb in range(3):
                        d = vr(KV + (db*3+eb)*4, 4)
                        B = acc(2*tp, 2+eb) if eb < 2 else "v[32:35]"
                        a(f"v_mfma_f32_16x16x32_bf16 {d}, {acc(2*tp, db)}, {B}, {d if tp else 0}")
            a(f"s_mul_i32 s6, s31, 3072\ns_add_u32 s7, s6, {EPI_LDS}\nv_add_u32 v4, s7, v1\ns_sub_u32 s7, {EPI_LDS+3072}, s6\nv_add_u32 v5, s7, v1")
            a("s_cmp_eq_u32 s31, 0\ns_nop 7\ns_cbranch_scc1 L1_kv0")
            for eb in range(3): a(f"ds_write_b128 v5, v[{KV+eb*4}:{KV+eb*4+3}] offset:{eb*1024}")
            a("s_waitcnt lgkmcnt(0)")
            for i in range(12): a(f"v_mov_b32 v{KV+i}, v{KV+12+i}")
            a("s_branch L1_kv1\nL1_kv0:")
            for eb in range(3): a(f"ds_write_b128 v5, v[{KV+12+eb*4}:{KV+12+eb*4+3}] offset:{eb*1024}")
            a("L1_kv1:\ns_waitcnt lgkmcnt(0)\ns_barrier")
            for eb in range(3): a(f"ds_read_b128 v[{KV+12+eb*4}:{KV+12+eb*4+3}], v4 offset:{eb*1024}")
            srd(a, 24, 28, WS_KVP, 0x200000 + 0x10000)
            a("s_lshl_b32 s6, s4, 1\ns_add_u32 s6, s6, s31\ns_mul_i32 s44, s6, 24576\ns_mul_i32 s7, s5, 3072\ns_add_u32 s45, s44, s7")
            a(f"s_lshl_b32 s46, s6, 7\ns_add_u32 s46, s46, {WS_F1-WS_KVP}\ns_lshl_b32 s47, s5, 2\ns_add_u32 s47, s47, s46")
            a("s_waitcnt lgkmcnt(0)")
            for i in range(6): a(f"v_pk_add_f32 {P(KV+2*i)}, {P(KV+2*i)}, {P(KV+12+2*i)}")
            for eb in range(3): a(f"buffer_store_dwordx4 v[{KV+eb*4}:{KV+eb*4+3}], v1, s[24:27], s45 offen offset:{eb*1024} sc1")
            for tp in range(4):
                gs = [accb(2*tp, 4)[1], accb(2*tp+1, 4)[1]]; us = [accb(2*tp, 5)[1], accb(2*tp+1, 5)[1]]
                d = 32 + 4*(tp & 1)
                geglu(gs, us, 24, d)
                for h in range(2):
                    a(f"buffer_store_dwordx2 v[{d+2*h}:{d+2*h+1}], v1, s[8:11], s{40+tp} offen offset:{h*1024} sc1")
            a("v_mov_b32 v4, 0\nv_mov_b32 v5, 1\ns_waitcnt vmcnt(8)\ns_mov_b64 exec, 1\nbuffer_store_dword v5, v4, s[24:27], s47 offen sc1\ns_mov_b64 exec, -1")
            for tb in range(4): frag(tb, 6, 0, tb)
            a("v_lshrrev_b32 v4, 2, v1\nv_and_b32 v4, 28, v4")
            a("buffer_load_dword v5, v4, s[24:27], s46 offen sc1")
            for tb in range(4, 6): frag(tb, 6, 0, tb)
            a("s_mov_b32 s55, 0\ns_waitcnt vmcnt(2)\nL1_poll:\nv_cmp_ne_u32 vcc, 1, v5\ns_add_u32 s55, s55, 1\ns_cmp_ge_u32 s55, 0x40000\ns_cbranch_scc1 L1_polld\ns_nop 2\ns_cbranch_vccz L1_polld")
            a("s_sleep 2\nbuffer_load_dword v5, v4, s[24:27], s46 offen sc1\ns_waitcnt vmcnt(0)\ns_branch L1_poll\nL1_polld:")
            LD = V_ACC
            for r in range(8):
                for eb in range(3):
                    a(f"buffer_load_dwordx4 v[{LD+(r*3+eb)*4}:{LD+(r*3+eb)*4+3}], v1, s[24:27], s44 offen offset:{eb*1024} sc1")
                a("s_add_u32 s44, s44, 3072")
            for tb in range(6, 8): frag(tb, 6, 0, tb)
            a("s_waitcnt vmcnt(2)")
            for stp in (48, 24, 12):
                for i in range(0, stp, 2): a(f"v_pk_add_f32 {P(LD+i)}, {P(LD+i)}, {P(LD+stp+i)}")
            pack(LD, [LD + 2*i for i in range(6)])
            a(f"s_lshl_b32 s6, s31, 3\ns_add_u32 s6, s6, {EPI_LDS+6144}\nv_add_u32 v4, s6, v1")
            for eb in range(3): a(f"ds_write_b64 v4, v[{LD+2*eb}:{LD+2*eb+1}] offset:{eb*1024}")
            a("s_waitcnt lgkmcnt(0)\ns_barrier")
        else:
            for tb in range(8): phi(accb(tb, 0)[1], accb(tb, 1)[1], T)
            n = 0
            for dk in range(2):
                for tb in range(8):
                    frag(tb, 2 + 4*dk, dk, n); n += 1
                    if n == o["bar1"]: a("s_barrier")
            a(f"v_add_u32 v4, {EPI_LDS+6144}, v1\ns_barrier")
            for eb in range(3): a(f"ds_read_b128 v[{8+4*eb}:{11+4*eb}], v4 offset:{eb*1024}")
            a("s_waitcnt lgkmcnt(0)")
            OB = accb(0, 2)[1]
            for tb in range(8):
                for eb in (2, 0, 1):
                    a(f"v_mfma_f32_16x16x32_bf16 {vr(OB+(tb*3+eb)*4, 4)}, v[{8+4*eb}:{11+4*eb}], {acc(tb, 0)}, 0")
            for tb in range(8):
                b = OB + tb*12
                a(f"v_add_f32 v{b+8}, s14, v{b+8}\nv_rcp_f32 v{b+8}, v{b+8}")
                for i in range(4): a(f"v_pk_mul_f32 {P(b+2*i)}, {P(b+2*i)}, {P(b+8)} op_sel_hi:[1,0]")
                pack(b, [b + 2*i for i in range(4)])
                a(f"buffer_store_dwordx4 v[{b}:{b+3}], v1, s[8:11], s{40+(tb>>1)} offen offset:{(tb&1)*1024} sc1")
        if o["stamps"]:
            st.stamp(a)
            a("s_waitcnt vmcnt(0)")
            for _ in range(min(o["nst"], 9) - st.n): st.stamp(a)
            a(f"s_cmp_lg_u32 s3, {o['stw']}\ns_cbranch_scc1 L1_end")
            st.flush(a, 28, 2, 4)
            st.n = st2
        a("s_endpgm")
    a("L1_end:\ns_endpgm")
    return dict(name="g1_kernel", grid=256, block=256, lds=163840, body=a, vgpr=256, agpr=256)

def gen_k2(o):
    a = Asm(); st = Stamps(o["stamps"], 52, 2)
    D = 3; R = NS = 4; nf, ns = 28, 8; T = nf + ns
    V_AV, V_BR, V_BV, V_XO = 4, 8, 12, 16
    V_BF, V_ACC = 24, 152
    A_PX = 128
    def af(slot, i): return ar(slot*32 + i*4, 4)
    def bf(p, u, cb): return V_BF + p*64 + (u*4+cb)*4
    a("s_cmp_ge_u32 s2, 256\ns_cbranch_scc1 L2_end")
    st.stamp(a)
    a("s_load_dwordx2 s[12:13], s[0:1], 48\ns_load_dwordx2 s[16:17], s[0:1], 16\ns_load_dwordx2 s[28:29], s[0:1], 72")
    a("s_load_dwordx2 s[40:41], s[0:1], 0\ns_load_dwordx2 s[44:45], s[0:1], 56")
    a("v_lshrrev_b32 v1, 6, v0\nv_and_b32 v2, 63, v0\nv_readfirstlane_b32 s3, v1")
    a("s_and_b32 s4, s2, 1\ns_lshr_b32 s5, s2, 3\ns_bfe_u32 s6, s2, 0x20001\ns_lshl_b32 s6, s6, 2\ns_lshr_b32 s7, s5, 3\ns_add_u32 s6, s6, s7\ns_and_b32 s7, s5, 7")
    a(f"s_lshl_b32 s33, s6, 2\ns_add_u32 s33, s33, s3\ns_mul_i32 s30, s33, {144*2048}")
    a(f"s_mul_i32 s20, s4, {56*2048}\ns_add_u32 s20, s20, {32*2048}\ns_add_u32 s20, s20, s30")
    a(f"v_lshlrev_b32 v{V_AV}, 4, v2\nv_add_u32 v{V_AV+1}, 4096, v{V_AV}")
    a(f"s_mul_i32 s21, s4, 1792\ns_lshr_b32 s22, s3, 1\ns_lshl_b32 s22, s22, 5\ns_add_u32 s21, s21, s22\ns_lshl_b32 s21, s21, 11")
    a("s_lshl_b32 s22, s7, 8\ns_add_u32 s21, s21, s22\ns_xor_b32 s31, s3, s4\ns_and_b32 s31, s31, 1\ns_lshl_b32 s31, s31, 7\ns_add_u32 s21, s21, s31")
    a("s_lshl_b32 s32, s4, 7\ns_add_u32 s32, s32, s22\ns_lshl_b32 s31, s3, 16\ns_add_u32 s31, s31, s32")
    a("s_lshl_b32 s33, s33, 16\ns_add_u32 s33, s33, s32")
    a("v_lshrrev_b32 v3, 3, v2\nv_bfe_u32 v6, v2, 4, 2\nv_lshlrev_b32 v6, 1, v6\nv_and_b32 v7, 7, v2\nv_xor_b32 v7, v7, v6")
    a(f"v_lshlrev_b32 v7, 4, v7\nv_lshl_add_u32 v{V_BV}, v3, 11, v7")
    for c in range(1, 4): a(f"v_add_u32 v{V_BV+c}, {16384*c}, v{V_BV}")
    a("s_lshl_b32 s23, s3, 12")
    a("s_waitcnt lgkmcnt(0)")
    srd(a, 8, 28, WS_A, A_BYTES); srd(a, 12, 12, 0, 3584*1024*2); srd(a, 16, 16, 0, 1024*1024*2)
    def bl(slot, ph):
        L = []
        s_, so, stp = ("s[12:15]", 21, 64*2048) if ph == "f" else ("s[16:19]", 31, 128*2048)
        for c in range(4):
            L.append([f"s_add_u32 m0, s23, {slot*16384 + c*1024}"])
            L.append([f"buffer_load_dwordx4 v{V_BV+c}, {s_}, s{so} offen lds"])
        L.append([f"s_add_u32 s{so}, s{so}, {stp}"])
        return L
    def al(slot, ph):
        n, so = (4, 20) if ph == "f" else (8, 30)
        L = [[f"buffer_load_dwordx4 {af(slot, i)}, v{V_AV + (i>>2)}, s[8:11], s{so} offen offset:{(i&3)*1024}"] for i in range(n)]
        L.append([f"s_add_u32 s{so}, s{so}, {n*1024}"])
        return L
    def rl(slot, p, ph):
        od = [(ks*2+ch, cb) for ch in range(2) for cb in range(4) for ks in range(2)] if ph == "f" else [(u, cb) for cb in range(4) for u in range(4)]
        return [f"ds_read_b64_tr_b16 {vr(bf(p, u, cb) + rd*2, 2)}, v{V_BR + cb} offset:{slot*16384 + u*4096 + rd*2048}" for u, cb in od for rd in range(2)]
    def facc(ch, cb, tb): return V_ACC + ((ch*4+cb)*2+tb)*4
    def ml(slot, p, ph):
        L = []
        if ph == "f":
            for ch in range(2):
                for cb in range(4):
                    for tb in range(2):
                        for ks in ((0, 1) if tb == 0 else (1, 0)):
                            c = vr(facc(ch, cb, tb), 4)
                            L.append(f"v_mfma_f32_16x16x32_bf16 {c}, {vr(bf(p, ks*2+ch, cb), 4)}, {af(slot, ks*2+tb)}, {c}")
        else:
            for cb in range(4):
                for tb in range(2):
                    for ks in (range(4) if tb == 0 else (3, 2, 1, 0)):
                        c = vr(facc(2, cb, tb), 4)
                        L.append(f"v_mfma_f32_16x16x32_bf16 {c}, {vr(bf(p, ks, cb), 4)}, {af(slot, ks*2+tb)}, {c}")
        return L
    def ph(t): return "f" if t < nf else ("s" if t < T else None)
    extra = {nf: 8, nf+3: 1, nf+5: 5, nf+6: 8}
    def nops(t): return (4 if ph(t+D+1) else 0) + {"f": 4, "s": 8, None: 0}[ph(t+D)] + extra.get(t, 0)
    for x in bl(0, "f"): a("\n".join(x))
    for t in range(-D, 0):
        for x in bl(t+D+1, "f"): a("\n".join(x))
        for x in al(t+D, "f"): a("\n".join(x))
    a("v_lshrrev_b32 v3, 2, v2\nv_lshlrev_b32 v3, 7, v3\nv_and_b32 v6, 3, v2\nv_lshl_add_u32 v3, v6, 3, v3\nv_bfe_u32 v6, v2, 3, 2")
    for cb in range(4): a(f"v_xor_b32 v7, {cb}, v6\nv_lshl_add_u32 v{V_BR+cb}, v7, 5, v3")
    a(f"v_and_b32 v3, 15, v2\nv_lshlrev_b32 v3, 11, v3\nv_bfe_u32 v6, v2, 4, 1\nv_lshl_add_u32 v3, v6, 5, v3\nv_lshrrev_b32 v6, 5, v2\nv_lshl_add_u32 v{V_XO}, v6, 4, v3\nv_add_u32 v{V_XO+1}, 32768, v{V_XO}")
    srd(a, 40, 40, 0, 2048*1024*2); srd(a, 44, 44, 0, 2048*1024*2)
    srd(a, 24, 28, WS_F2, WS_XB - WS_F2 + 256*32768)
    a(f"s_lshl_b32 s34, s2, 15\ns_lshl_b32 s35, s3, 13\ns_add_u32 s34, s34, s35\ns_xor_b32 s35, s34, 32768\ns_add_u32 s34, s34, {WS_XB-WS_F2}\ns_add_u32 s35, s35, {WS_XB-WS_F2}")
    a("s_lshl_b32 s36, s2, 7\ns_lshl_b32 s38, s3, 2\ns_add_u32 s36, s36, s38\ns_xor_b32 s38, s36, 128")
    a(f"s_mov_b32 s48, {hex(f2u(-LOG2E))}\nv_mov_b32 v18, 0\nv_mov_b32 v19, 1")
    for i in range(96): a(f"v_mov_b32 v{V_ACC+i}, 0")
    a(f"s_waitcnt vmcnt({8*D})\ns_barrier")
    st.stamp(a)
    if o["stamps"]: a("s_waitcnt lgkmcnt(0)")
    a.extend(rl(0, 0, "f"))
    A_XL = 128
    def stage(t):
        p = t & 1
        ms = ml(t % R, p, ph(t))
        slots = {i: [] for i in range(-1, 32)}
        n = sum(nops(u) for u in range(t-D+1, t))
        if t == nf+6: n = 0
        if t == nf+7: n = 8
        slots[-1].append(f"s_waitcnt vmcnt({n}) lgkmcnt(0)")
        if ph(t+1): slots[0].append("s_barrier")
        if ph(t+1):
            rr = rl((t+1) % NS, p ^ 1, ph(t+1))
            for i, r in enumerate(rr): slots[(i*28)//32].append(r)
        ld = (bl((t+D+1) % NS, ph(t+D+1)) if ph(t+D+1) else []) + (al((t+D) % R, ph(t+D)) if ph(t+D) else [])
        if t == nf:
            ld = ld + [[f"buffer_store_dwordx4 {vr(facc(1, i>>1, i&1), 4)}, v{V_AV + (i>>2)}, s[24:27], s34 offen offset:{(i&3)*1024} sc1"] for i in range(8)]
        if t == nf+3:
            ld = [["s_mov_b64 exec, 1", "buffer_store_dword v19, v18, s[24:27], s36 offen sc1", "s_mov_b64 exec, -1"]] + ld
        if t == nf+5:
            ld = [[f"buffer_load_dwordx4 {ar(A_XL + 4*i, 4)}, v{V_XO + (i>>1)}, s[40:43], s33 offen offset:{(i&1)*64}"] for i in range(4)] + [["buffer_load_dword v20, v18, s[24:27], s38 offen sc1"]]
        if t == nf+6:
            slots[-1].extend(["s_mov_b32 s50, 0", "L2_poll:", "v_cmp_ne_u32 vcc, 1, v20", "s_add_u32 s50, s50, 1", "s_cmp_ge_u32 s50, 0x40000", "s_cbranch_scc1 L2_polld", "s_nop 2", "s_cbranch_vccz L2_polld", "s_sleep 2",
                              "buffer_load_dword v20, v18, s[24:27], s38 offen sc1", "s_waitcnt vmcnt(0)", "s_branch L2_poll", "L2_polld:"])
            ld = [[f"buffer_load_dwordx4 {vr(facc(1, i>>1, i&1), 4)}, v{V_AV + (i>>2)}, s[24:27], s35 offen offset:{(i&3)*1024} sc1"] for i in range(8)]
            for i, x in enumerate(ld): slots[i].extend(x)
            ld = []
        for i, x in enumerate(ld): slots[1 + (i*30)//max(len(ld), 1)].extend(x)
        a.extend(place(ms, slots))
    nloop = 6
    a("s_mov_b32 s37, 0\n.p2align 6\nL2_loop:")
    for t in range(R): stage(t + R)
    a(f"s_add_u32 s37, s37, 1\ns_cmp_lt_u32 s37, {nloop}\ns_cbranch_scc1 L2_loop")
    for t in range(nloop*R, T):
        if t == nf or (o.get("fine") and t > nf): st.stamp(a)
        stage(t)
    st.stamp(a)
    def P(r): return f"v[{r}:{r+1}]"
    for i in range(16): a(f"v_accvgpr_read_b32 v{24+i}, a{A_XL+i}")
    for q in range(4):
        b = 24 + 4*q
        a(f"v_permlane16_swap_b32 v{b}, v{b+2}\nv_permlane16_swap_b32 v{b+1}, v{b+3}")
    for i in range(16): a(f"v_lshlrev_b32 v{40+2*i}, 16, v{24+i}\nv_and_b32 v{41+2*i}, 0xffff0000, v{24+i}")
    a("s_waitcnt vmcnt(0)")
    F, Q, S = facc(0, 0, 0), facc(1, 0, 0), facc(2, 0, 0)
    for i in range(0, 32, 2): a(f"v_pk_add_f32 {P(F+i)}, {P(F+i)}, {P(Q+i)}")
    for i in range(0, 32, 2): a(f"v_pk_mul_f32 {P(Q+i)}, {P(F+i)}, s[48:49] op_sel_hi:[1,0]")
    for i in range(32): a(f"v_exp_f32 v{Q+i}, v{Q+i}")
    for i in range(0, 32, 2): a(f"v_pk_add_f32 {P(Q+i)}, {P(Q+i)}, 1.0 op_sel_hi:[1,0]")
    for i in range(32): a(f"v_rcp_f32 v{Q+i}, v{Q+i}")
    for i in range(0, 32, 2): a(f"v_pk_mul_f32 {P(F+i)}, {P(F+i)}, {P(Q+i)}")
    for tb in range(2):
        for p in range(2):
            d = 24 + (tb*2+p)*4
            for e in range(2):
                cb = 2*p + e; off = (cb*2+tb)*4; xb = 40 + ((tb*2+p)*4 + 2*e)*2
                for h in range(2):
                    a(f"v_pk_fma_f32 {P(S+off+2*h)}, {P(S+off+2*h)}, {P(F+off+2*h)}, {P(xb+2*h)}")
                for h in range(2):
                    a(f"v_cvt_pk_bf16_f32 v{d+2*e+h}, v{S+off+2*h}, v{S+off+2*h+1}")
            a(f"v_permlane16_swap_b32 v{d}, v{d+2}\nv_permlane16_swap_b32 v{d+1}, v{d+3}")
            a(f"buffer_store_dwordx4 v[{d}:{d+3}], v{V_XO+tb}, s[44:47], s33 offen offset:{p*64}{o['outpol']}")
    if o["stamps"]:
        a("s_waitcnt vmcnt(0)")
        for _ in range(o["nst"] - st.n): st.stamp(a)
        a("s_cmp_lg_u32 s3, 0\ns_cbranch_scc1 L2_end")
        st.flush(a, 28, 2, 4)
    a("L2_end:\ns_endpgm")
    return dict(name="g2_kernel", grid=256, block=256, lds=90112, body=a, vgpr=256, agpr=144)

HEADER = open("cdna_kernels/" + NAME + ".s.ref").read().split("; Override launch")[0] if __import__("os").path.exists("cdna_kernels/" + NAME + ".s.ref") else ""
def gen(**kw):
    o = dict(stamps=0, nst=5, stw=2, ev=8, dst=4, pf=1, bar1=2, outsc=0, wpf=5)
    o.update(kw)
    o["outpol"] = ["", " sc1", " nt"][o["outsc"]]
    ks = [gen_k0(o), gen_k1(o), gen_k2(o)]
    e = Asm(); e("s_endpgm")
    emp = dict(name="nop_kernel", grid=256, block=256, lds=0, body=e, vgpr=8, agpr=0)
    pr = Asm()
    pa, pb, M, pw = o.get("pa", 0), o.get("pb", 0), o.get("pm", 0), o.get("pw", 0)
    offA = STAMP_OFF + (pa//10)*0x20000 + pw*128 + (pa % 10)*8 + 4
    offB = STAMP_OFF + (pb//10)*0x20000 + pw*128 + (pb % 10)*8 + 4
    pr(f"""s_cmp_ge_u32 s2, 1
s_cbranch_scc1 Lp_end
s_load_dwordx2 s[4:5], s[0:1], 72
s_memrealtime s[8:9]
v_mov_b32 v1, {offA}
v_mov_b32 v2, {offB}
s_waitcnt lgkmcnt(0)
global_load_dword v3, v1, s[4:5]
global_load_dword v4, v2, s[4:5]
s_waitcnt vmcnt(0)
{"v_mov_b32 v4, s8" if pb == 99 else ""}
v_sub_u32 v3, v4, v3
s_nop 1
v_readfirstlane_b32 s6, v3
s_nop 3
s_min_u32 s6, s6, 20000
s_mul_i32 s6, s6, {M}
Lp_loop:
s_memrealtime s[10:11]
s_waitcnt lgkmcnt(0)
s_sub_u32 s12, s10, s8
s_cmp_lt_u32 s12, s6
s_cbranch_scc1 Lp_loop
Lp_end:
s_endpgm""")
    prb = dict(name="probe_kernel", grid=1, block=64, lds=0, body=pr, vgpr=8, agpr=0)
    for k in ks:
        k["body"].lines, n = hazard.fix(k["body"].lines, verbose=o.get("hv", 0))
    seq = o.get("seq", 123)
    ks = [{"1": ks[0], "2": ks[1], "3": ks[2], "9": emp, "8": prb}[c] for c in str(seq)]
    return HEADER + file_text(ks)
if __name__ == "__main__":
    kw = {}
    for x in sys.argv[2:]:
        k, v = x.split("="); kw[k] = int(v)
    open(sys.argv[1], "w").write(gen(**kw))
```

```python
import sys, struct, math, os
from asmlib import *
import hazard

WS_A, WS_I, WS_CS, WS_ST, WS_SIZE = 0, 0x1400000, 0x1C00000, 0x1C80000, 0x1D00000
def f2u(x): return hex(struct.unpack("<I", struct.pack("<f", x))[0])
LOG2E = 1.4426950408889634
GA1 = -2.0*LOG2E*math.sqrt(2.0/math.pi); GA3 = GA1*0.044715
W_OFF = 32768
STAGE = 73728
MB = 2*STAGE
MB_AOS, MB_NM, MB_RS = MB + 10240, MB + 14336, MB + 15360
CSS = 65536
KVX = STAGE
KVF = STAGE + 16384
STRM = 144*2048
SPIN = 0x20000
BIG = 0x7ff00000
FL = WS_I + 3072

def cls(i):
    n = i.split()[0]
    if n.endswith(":"): return -1
    if n.startswith("s_"): return 0
    if n.startswith(("ds_", "buffer_", "global_")): return 1
    return 2
def emit(a, mfmas, slots):
    for i in range(-1, len(mfmas)):
        if i >= 0: a(mfmas[i])
        items = slots.get(i, [])
        if any(cls(x) < 0 or "exec" in x or "cbranch" in x for x in items): a.extend(items)
        else: a.extend(sorted(items, key=cls))
def spread(slots, items, lo, hi):
    n = len(items)
    for i, x in enumerate(items):
        p = lo + (i*(hi - lo + 1))//max(n, 1)
        slots[p].extend(x if isinstance(x, list) else [x])
class VM:
    def __init__(self, a): self.a = a; self.n = 0
    def __call__(self, s):
        self.a(s); self.n += 1; return self.n
    def wait(self, tag): self.a(f"s_waitcnt vmcnt({self.n - tag})")
def P(r): return f"v[{r}:{r+1}]"
SETS = {0: ["start", "loop", "e0", "k2", "s", "fin", "end"],
        2: ["k2", "it1", "it2", "it3", "it4", "it6", "s"],
        3: ["start", "karg", "addr", "dma", "zero", "loop", "i1"],
        4: ["loop", "i1", "i2", "i4", "i6", "s14", "e0"],
        5: ["e0", "b1", "w1d", "b2", "chk", "chkd", "k2"]}

def gen(**kw):
    o = dict(stamps=0, stw=2, ev=5, dst=52, od=1, sq=0, cpf=1, npf0=1, npf1=3, zper=12, slp=8, pfd=1, pfp=1, rp=2, pf2p=3, inp=4, csp=8, atp=6,
             pf2s=8, rs=2, sh=4, ctm=1, pA=1, pB=4, cB=7)
    o.update(kw)
    a = Asm(); ool = Asm(); st = Stamps(o["stamps"], 74, 0)
    sset = SETS[o["sq"]]
    def stamp(tag, w=False):
        if tag in sset and o["stamps"]:
            st.n = sset.index(tag); st.stamp(a)
            if w: a("s_waitcnt lgkmcnt(0)")
    SX, SQ, SG, SW, SD, SO, SOUT, SP, SP2, SI, SU = 8, 12, 16, 24, 28, 32, 36, 40, 44, 48, 64
    V_XV, V_WV, V_XR, V_WR, V_PF, V_PF2, V_CSO = 8, 16, 22, 26, 32, 33, 34
    V_T, V_CSA, V_SEL, V_SENT = 36, 40, 44, 4
    V_ACC = 48; A_X = 0; A_W = 64; A_ACC = 144
    def S(d): return f"s[{d}:{d+3}]"
    def fin(d, size): a(f"s_mov_b32 s{d+2}, {size}\ns_mov_b32 s{d+3}, 0x20000")
    def accb(tb, cb):
        i = cb*8 + tb
        return ("v", V_ACC + 4*i) if i < 52 else ("a", A_ACC + 4*(i-52))
    def acc(tb, cb):
        p, b = accb(tb, cb); return vr(b, 4, p)
    def xf(tb, ks): return ar(A_X + (tb*2+ks)*4, 4)
    def wfb(cb, ks): return A_W + (cb*2+ks)*4
    def spin_ool(name, cmp, reload):
        ool(f"{name}_s:\ns_mov_b32 s0, 0\n{name}_l:\ns_sleep {o['slp']}\n{reload}\ns_waitcnt vmcnt(0)\n{cmp}\ns_add_u32 s0, s0, 1\ns_cmp_ge_u32 s0, {SPIN}\ns_cbranch_scc1 {name}_d\ns_nop 1\ns_cbranch_vccnz {name}_l\ns_branch {name}_d")
    def spin(name, cmp, reload):
        a(cmp + f"\ns_nop 3\ns_cbranch_vccnz {name}_s\n{name}_d:")
        spin_ool(name, cmp, reload)

    a("s_cmp_ge_u32 s2, 256\ns_cbranch_scc1 L_end")
    stamp("start")
    a(f"s_load_dwordx2 s[{SX}:{SX+1}], s[0:1], 0\ns_load_dwordx2 s[{SQ}:{SQ+1}], s[0:1], 8\ns_load_dwordx2 s[{SG}:{SG+1}], s[0:1], 32\ns_load_dwordx2 s[{SU}:{SU+1}], s[0:1], 40")
    a("v_lshrrev_b32 v1, 6, v0\nv_and_b32 v2, 63, v0\ns_lshr_b32 s58, s2, 3")
    n0 = 0
    if o["cpf"]:
        a("s_getpc_b64 s[68:69]\nL_pc:\nv_min_u32 v3, 15, v2\nv_mad_u32_u24 v4, v1, 11, v3\nv_mad_u32_u24 v5, v1, 5, v3\ns_mul_i32 s6, s58, 20\nv_cmp_ne_u32 vcc, 0, v1")
        a("s_bitcmp1_b32 s2, 5\ns_cselect_b32 s7, (L_tB-L_tA)/128-5, 0\nv_mov_b32 v6, s7\nv_add_u32 v5, s6, v5\nv_cndmask_b32 v6, 0, v6, vcc\nv_cmp_gt_u32 vcc, 5, v3\nv_add3_u32 v4, v4, v6, -5")
        a("v_cndmask_b32 v4, v4, v5, vcc\nv_lshlrev_b32 v4, 7, v4\nv_min_u32 v4, L_cend-L_pc-4, v4")
        a("global_load_dword v0, v4, s[68:69]")
    a("v_readfirstlane_b32 s3, v1\nv_lshlrev_b32 v1, 4, v2")
    a(f"s_load_dwordx2 s[{SW}:{SW+1}], s[0:1], 72\ns_load_dwordx2 s[{SD}:{SD+1}], s[0:1], 48\ns_load_dwordx2 s[{SO}:{SO+1}], s[0:1], 16")
    a(f"s_load_dwordx2 s[{SOUT}:{SOUT+1}], s[0:1], 56\ns_load_dwordx2 s[62:63], s[0:1], 64")
    a("s_bfe_u32 s60, s2, 0x20001\ns_lshr_b32 s6, s2, 5\ns_lshl3_add_u32 s4, s60, s6")
    a("s_and_b32 s23, s2, 1\ns_bfe_u32 s6, s2, 0x20003\ns_lshl2_add_u32 s5, s23, s6\ns_lshl_b32 s23, s23, 3")
    a("s_lshr_b32 s52, s3, 1\ns_and_b32 s53, s3, 1")
    a("s_cmp_eq_u32 s3, 0\ns_cbranch_scc1 L_pf0\ns_cmp_eq_u32 s3, 1\ns_cbranch_scc1 L_pf1")
    a(f"s_mov_b32 s{SP+2}, {1024*3584*2}\ns_mov_b32 s59, {64*7168}")
    a("v_min_u32 v3, 27, v2\nv_cmp_le_u32 vcc, 14, v3\ns_lshl_b32 s6, s58, 1\ns_mul_i32 s7, s60, 1792\nv_cndmask_b32 v4, 0, 1, vcc\nv_mul_u32_u24 v5, 14, v4\nv_sub_u32 v5, v3, v5")
    a("v_add_u32 v4, s6, v4\nv_lshl_add_u32 v5, v5, 7, s7\ns_movk_i32 s57, 7168")
    a(f"v_mad_u32_u24 v{V_PF}, v4, s57, v5\ns_waitcnt lgkmcnt(0)\ns_cmp_eq_u32 s3, 2\ns_cselect_b32 s{SP}, s{SG}, s{SU}\ns_cselect_b32 s{SP+1}, s{SG+1}, s{SU+1}\ns_branch L_pfd")
    a("L_pf1:")
    a(f"s_mov_b32 s{SP+2}, {1024*3072*2}\ns_mov_b32 s59, {64*6144}")
    a("v_min_u32 v3, 23, v2\nv_cmp_le_u32 vcc, 12, v3\ns_lshl_b32 s6, s58, 1\ns_lshl_b32 s7, s60, 9\nv_cndmask_b32 v4, 0, 1, vcc\nv_mul_u32_u24 v5, 12, v4\nv_sub_u32 v5, v3, v5")
    a("v_add_u32 v4, s6, v4\nv_lshrrev_b32 v6, 2, v5\nv_and_b32 v5, 3, v5\nv_lshl_add_u32 v5, v5, 7, s7\nv_lshl_add_u32 v5, v6, 11, v5\ns_movk_i32 s57, 6144")
    a(f"v_mad_u32_u24 v{V_PF}, v4, s57, v5\ns_waitcnt lgkmcnt(0)\ns_mov_b32 s{SP}, s{SQ}\ns_mov_b32 s{SP+1}, s{SQ+1}\ns_branch L_pfd")
    a("L_pf0:")
    a(f"s_mov_b32 s{SP+2}, {2048*1024*2}\ns_mov_b32 s59, 128")
    a(f"s_lshl2_add_u32 s6, s23, s58\ns_lshl_b32 s6, s6, 5\nv_min_u32 v4, 31, v2\nv_add_u32 v4, s6, v4\nv_lshlrev_b32 v{V_PF}, 11, v4")
    a(f"s_waitcnt lgkmcnt(0)\ns_mov_b32 s{SP}, s{SX}\ns_mov_b32 s{SP+1}, s{SX+1}")
    a("L_pfd:")
    a(f"s_mov_b32 s{SP+3}, 0x20000\ns_mul_i32 s58, s23, s59")
    stamp("karg", True)
    PFA = [f"s_add_u32 s58, s23, {o['pfd'] + 1}", f"s_and_b32 s58, s58, {o.get('kmask', 15)}", "s_mul_i32 s58, s58, s59"]
    PFI = f"buffer_load_dword v0, v{V_PF}, {S(SP)}, s58 offen"
    for i in range(o["npf0"]): a(PFI); a("s_add_u32 s58, s58, s59")
    fin(SG, 1024*3584*2); fin(SU, 1024*3584*2); fin(SX, 2048*1024*2); fin(SQ, 1024*3072*2)
    a(f"s_lshl_b32 s20, s23, 7\ns_mul_i32 s21, s23, {64*6144}\ns_mul_i32 s22, s23, {64*7168}")
    a(f"s_lshl_b32 s54, s3, 13\ns_lshl_b32 s55, s3, 11\ns_add_u32 s55, s55, {W_OFF}\ns_lshl_b32 s56, s3, 10\ns_add_u32 s56, s56, {W_OFF + 32768}")
    a("s_lshl_b32 s6, s5, 8\ns_lshl_b32 s7, s3, 6\ns_add_u32 s6, s6, s7")
    a("v_lshrrev_b32 v3, 3, v2\nv_add_u32 v7, s6, v3\nv_lshlrev_b32 v7, 11, v7\nv_lshrrev_b32 v4, 4, v2\nv_and_b32 v5, 7, v2")
    for c in range(2):
        a(f"v_add_u32 v6, {4*c}, v4\nv_xor_b32 v6, v6, v5\nv_lshl_add_u32 v6, v6, 4, v7")
        for cc in range(c, 8, 2): a(f"v_add_u32 v{V_XV+cc}, {cc*8*2048}, v6")
    a("s_lshl_b32 s6, s52, 5\ns_lshl2_add_u32 s61, s53, s6")
    a("v_and_b32 v3, 3, v3\nv_lshrrev_b32 v6, 5, v2\nv_lshl_add_u32 v3, v6, 3, v3\nv_add_u32 v3, s61, v3")
    a("v_lshlrev_b32 v6, 1, v4\nv_xor_b32 v5, v5, v6\nv_lshlrev_b32 v5, 4, v5")
    a("s_lshr_b32 s0, s4, 1\ns_and_b32 s1, s0, 1\ns_mul_i32 s6, s0, 448\ns_movk_i32 s57, 7168")
    a("s_bitcmp1_b32 s2, 5\ns_cbranch_scc1 L_tB")

    def dma_list(ty, stage):
        b = stage*STAGE
        xs = [(f"s_add_u32 m0, s54, {b + c*1024}", f"buffer_load_dwordx4 v{V_XV+c}, {S(SX)}, s20 offen lds") for c in range(8)]
        def w(u, c, reg, srd, so, off=0):
            return (f"s_add_u32 m0, s55, {b + u*8192 + c*1024 - off}", f"buffer_load_dwordx4 v{reg}, {S(srd)}, s{so} offen{f' offset:{off}' if off else ''} lds")
        if ty == 0:
            ws = [w(u, c, V_WV+c, (SG, SU)[u], 22) for u in range(2) for c in range(2)]
            ws += [w(2, c, V_WV+2+c, SQ, 21) for c in range(2)] + [w(3, c, V_WV+2+c, SQ, 21, 2048) for c in range(2)] + [w(4, c, V_WV+4+c, SQ, 21) for c in range(2)]
        else:
            ws = [w(2*h+u, c, V_WV+c, (SG, SU)[u], 22, 128*h) for u in range(2) for c in range(2) for h in range(2)]
            ws += [(f"s_add_u32 m0, s56, {b + u*4096}", f"buffer_load_dwordx4 v{V_WV+2}, {S((SG, SU)[u])}, s22 offen lds") for u in range(2)]
        od = o.get("od", 0)
        if od == 1: return xs + ws
        if od == 2: return [y for p in zip(xs, ws) for y in p] + ws[8:]
        return ws + xs
    adv = ["s_add_u32 s23, s23, 1", f"s_and_b32 s23, s23, {o.get('kmask', 15)}", f"s_mul_i32 s22, s23, {64*7168}", f"s_mul_i32 s21, s23, {64*6144}", "s_lshl_b32 s20, s23, 7"]
    EV, ST0 = o["ev"], o["dst"]
    dpos = [ST0 + EV*i for i in range(18)]
    dpos = [p + 1 if p == 80 else p for p in dpos]
    n3 = sum(1 for p in dpos if p < 80)
    BL = [[("g", 0, 0), ("u", 1, 0), ("g", 0, 1), ("u", 1, 1), ("q", 2, 0), ("q", 2, 1), ("k", 3, 0), ("k", 3, 1), ("v", 4, 0), ("v", 4, 1)],
          [("g", 0, 0), ("u", 1, 0), ("g", 0, 1), ("u", 1, 1), ("h", 0, 2), ("h", 1, 2), ("g", 2, 0), ("u", 3, 0), ("g", 2, 1), ("u", 3, 1)]]
    def xread(stage, tb, ks): return f"ds_read_b128 {xf(tb, ks)}, v{V_XR + stage*2 + ks} offset:{tb*2048}"
    def wread(ty, stage, cb):
        t, u, i = BL[ty][cb]; L = []
        for ks in range(2):
            for rd in range(2):
                row = 32*ks + 16*rd
                off = u*4096 + row*64 if t == "h" else u*8192 + row*128
                L.append(f"ds_read_b64_tr_b16 {ar(wfb(cb, ks)+2*rd, 2)}, v{V_WR + 2*i + stage} offset:{off}")
        return L
    def mfmas(ty, half):
        L = []
        for cb, (t, u, i) in enumerate(BL[ty]):
            for n, tb in enumerate(range(4*half, 4*half+4)):
                for ks in ((0, 1) if n % 2 == 0 else (1, 0)):
                    x, w = xf(tb, ks), ar(wfb(cb, ks), 4)
                    A, B = (x, w) if t in "kv" else (w, x)
                    L.append(f"v_mfma_f32_16x16x32_bf16 {acc(tb, cb)}, {A}, {B}, {acc(tb, cb)}")
        return L
    V_BV = 8
    INC = [16, 23, 66, 67]
    def bdma(slot, ph):
        s_, so = (S(SD), 15) if ph == "f" else (S(SO), 17)
        return [(f"s_add_u32 m0, s18, {slot*16384 + c*1024}", f"buffer_load_dwordx4 v{V_BV+c}, {s_}, s{so} offen lds") for c in range(4)]
    def put(slots, dm):
        for pre, m, d, p in dm:
            for k, x in enumerate(pre): slots[p - 1 - len(pre) + k].append(x)
            slots[p-1].append(m); slots[p].append(d)
    def atomic(off):
        return f"v_mov_b32 v{V_SEL}, {off}\nv_mov_b32 v{V_SEL+1}, 1\ns_mov_b64 exec, 1\nglobal_atomic_add v{V_SEL}, v{V_SEL+1}, s[62:63] sc1\ns_mov_b64 exec, -1"
    def fill(slots, items, lo, hi):
        p = lo
        for x in items:
            x = x if isinstance(x, list) else [x]
            while True:
                assert p <= hi, "no room"
                nv = sum(cls(y) > 0 for y in slots[p]); ns_ = sum(cls(y) == 0 for y in slots[p])
                if ns_ + len(x) <= (3 if nv == 0 else 1) and not any("m0" in y or "waitcnt" in y for y in slots[p]): break
                p += 1
            slots[p].extend(x)
    def aux_prep(ty, stage):
        ss = PFA + [f"s_sub_u32 s60, s71, {o['pf2s']}", "s_min_u32 s60, s60, 64", "s_mul_i32 s60, s60, 1664",
                    "s_sub_u32 s61, s71, 10", "s_min_u32 s61, s61, 64", "s_add_u32 s61, s61, 4"]
        if ty == 0: ss += ["s_sub_u32 s6, s71, 4", ["s_cmp_lt_u32 s6, 4", "s_cselect_b32 s61, s6, s61"]]
        ss += ["s_lshl_b32 s61, s61, 10"]
        ss += [f"s_sub_u32 s6, s71, {o['rs']}", "s_lshl2_add_u32 s0, s3, s6", "s_lshl4_add_u32 s1, s2, s0", "s_lshl_b32 s0, s0, 10", "s_lshl_b32 s1, s1, 10", f"s_add_u32 s0, s0, {MB}",
               ["s_cmp_lt_u32 s6, 4", "s_cselect_b32 s0, s0, 0x28000", f"s_cselect_b32 s1, s1, {BIG}"]]
        if stage == 1: ss += [["s_cmp_eq_u32 s57, s68", f"s_cselect_b32 s7, s69, {BIG}"]]
        return ss
    def phase1(ty, stage, kind, dm):
        slots = {i: [] for i in range(-1, 80)}
        slots[-1].append("s_waitcnt lgkmcnt(4)")
        rl = wread(ty, stage, 9) + [xread(stage, tb, ks) for tb in range(4, 8) for ks in range(2)]
        for i, r in enumerate(rl): slots[1 + 3*i].append(r)
        slots[63].append("s_waitcnt lgkmcnt(0)")
        put(slots, dm)
        if kind == "loop":
            fill(slots, aux_prep(ty, stage), 36, 62)
            fill(slots, adv, max(64, dpos[-1] - 79), 78)
            nm = f"L_cs{ty}{stage}"
            slots[79].extend(["s_cmp_eq_u32 s57, s68" if not o.get("nocs") else "s_cmp_eq_u32 s57, 77", f"s_cbranch_scc1 {nm}", f"{nm}_d:"])
            ool(f"{nm}:\nv_and_b32 v{V_SEL}, 15, v2\nv_cmp_eq_u32 vcc, 0, v{V_SEL}\nv_mov_b32 v{V_SEL+1}, 0x3f803f80\ns_cmp_eq_u32 s53, 0\nv_cndmask_b32 v{V_SEL}, 0, v{V_SEL+1}, vcc")
            ool(f"v_mov_b32 v{V_SEL+1}, v{V_SEL}\nv_mov_b32 v{V_SEL+2}, v{V_SEL}\nv_mov_b32 v{V_SEL+3}, v{V_SEL}\ns_nop 1\ns_cbranch_scc0 {nm}_1")
            for wr in range(2):
                if wr: ool(f"{nm}_1:")
                for n in range(5):
                    for ks in range(2):
                        c = "0" if stage == 0 and n == 0 and ks == 0 else vr(V_CSA, 4)
                        ool(f"v_mfma_f32_16x16x32_bf16 {vr(V_CSA, 4)}, {ar(wfb(5*wr+n, ks), 4)}, {vr(V_SEL, 4)}, {c}")
                    if n < 4:
                        for r in range(4): ool(f"v_mov_b32_dpp v{V_SEL+r}, v{V_SEL+r} row_shr:1 row_mask:0xf bank_mask:0xf bound_ctrl:0")
                ool(f"s_branch {nm}_d")
        if kind == "s14":
            slots[2].append("v_and_b32 v35, 1, v2"); slots[3].append("v_lshlrev_b32 v35, 7, v35")
            slots[6].append("global_load_dword v3, v35, s[62:63] sc1")
            ss = ["s_mul_i32 s6, s4, 10240", f"s_add_u32 s6, s6, {WS_CS}", "s_mul_i32 s7, s5, 6144", f"s_add_u32 s7, s7, {WS_ST - 10240}", "s_lshl_b32 s1, s3, 12", "s_add_u32 s6, s6, s1", "s_add_u32 s7, s7, s1",
                  ["s_cmp_lt_u32 s3, 3", "s_cselect_b32 s58, s6, s7"], ["s_cmp_lt_u32 s3, 2", "s_cselect_b32 s59, s6, s7"]]
            ss = ["s_lshr_b32 s69, s2, 5", f"s_mul_i32 s69, s69, {32768 + 128}", "s_and_b32 s6, s2, 31", "s_lshl2_add_u32 s69, s6, s69", f"s_add_u32 s69, s69, {FL + 192*32768}"] + ss
            spread(slots, ss, 64, 78)
        emit(a, mfmas(ty, 0), slots)
    def phase2(ty, stage, kind, dm, nwait=0):
        slots = {i: [] for i in range(-1, 80)}
        ms = mfmas(ty, 1)
        slots[0].extend([f"s_waitcnt vmcnt({nwait})", "s_barrier"])
        if kind != "s15":
            xr = [xread(stage ^ 1, tb, ks) for tb in range(4) for ks in range(2)]
            for i, p in enumerate([5, 7, 14, 22, 30, 38, 46, 54]): slots[p].append(xr[i])
            for cb in range(9):
                for i, r in enumerate(wread(ty, stage ^ 1, cb)): slots[8*(cb+1) + [1, 3, 5, 7][i]].append(r)
        put(slots, dm)
        if kind == "loop":
            if not o.get("nopf"): slots[o["pfp"]].append(PFI)
            if not o.get("nopf2"): slots[o["pf2p"]].append(f"buffer_load_dword v0, v{V_PF2}, {S(SP2)}, s60 offen")
            if not o.get("noinit"): slots[o["inp"]].append(f"buffer_store_dwordx4 {vr(V_SENT, 4)}, v1, {S(SI)}, s61 offen sc1")
            if stage == 1: slots[o["csp"]].append(f"buffer_store_dwordx4 {vr(V_CSA, 4)}, v{V_CSO}, {S(SW)}, s7 offen sc1")
            if not o.get("nostat"):
                slots[o["rp"]-1].append("s_mov_b32 m0, s0"); slots[o["rp"]].append(f"buffer_load_dwordx4 v1, {S(SX)}, s1 offen lds")
            slots[o["atp"]].extend(["s_cmp_eq_u32 s71, s70", f"s_cbranch_scc1 L_atom{ty}{stage}", f"L_atom{ty}{stage}_d:"])
            ool(f"L_atom{ty}{stage}:\ns_and_b32 s6, s2, 1\ns_lshl_b32 s6, s6, 7\n{atomic('s6')}\ns_branch L_atom{ty}{stage}_d")
            slots[o["atp"]+2].append("s_add_u32 s71, s71, 1")
        if kind == "s14":
            nm = f"L_ini{ty}"
            cmp = "v_cmp_ne_u32 vcc, 0x80, v3"
            slots[1].append(cmp)
            slots[3].extend([f"s_cbranch_vccnz {nm}_s", f"{nm}_d:"])
            spin_ool(nm, cmp, "global_load_dword v3, v35, s[62:63] sc1")
            slots[2].append(f"v_mov_b32 v{V_SEL}, 1")
            slots[4].extend(["s_cmp_eq_u32 s3, 0", "s_cselect_b64 exec, 1, 0", f"buffer_store_dword v{V_SEL}, off, {S(SW)}, s69 sc1", "s_mov_b64 exec, -1"])
            vv = ["v_lshrrev_b32 v12, 3, v2", "v_bfe_u32 v13, v2, 4, 2", "v_lshlrev_b32 v13, 1, v13", "v_and_b32 v14, 7, v2", "v_xor_b32 v14, v14, v13",
                  "v_lshlrev_b32 v14, 4, v14", f"v_lshl_add_u32 v{V_BV}, v12, 11, v14"] + [f"v_add_u32 v{V_BV+c}, {16384*c}, v{V_BV}" for c in range(1, 4)]
            for i, x in enumerate(vv): slots[8 + 2*i].append(x)
            ss = ["s_bfe_u32 s20, s2, 0x10002", "s_and_b32 s6, s2, 1", "s_bfe_u32 s7, s2, 0x10001", "s_lshl1_add_u32 s6, s6, s7", "s_lshr_b32 s7, s2, 6", "s_lshl2_add_u32 s21, s6, s7",
                  "s_bfe_u32 s22, s2, 0x20003", "s_bfe_u32 s7, s2, 0x10005", "s_lshl1_add_u32 s22, s22, s7" if o["ctm"] else "s_lshl2_add_u32 s22, s7, s22", "s_lshl_b32 s22, s22, 8",
                  f"s_mul_i32 s14, s20, {1792*2048}", "s_add_u32 s14, s14, s22", "s_xor_b32 s6, s53, s20", "s_lshl_b32 s6, s6, 7", "s_add_u32 s14, s14, s6",
                  "s_lshl_b32 s18, s3, 12", "s_lshl_b32 s15, s52, 16", "s_add_u32 s14, s15, s14", "s_mov_b32 s15, s14"]
            ss += [f"s_mov_b32 s{r}, {(v*65536) & 0xffffffff}" for r, v in zip(INC, (2, 10, -4, 6))]
            for i, x in enumerate(ss): slots[7 + i].insert(0, x)
        if kind == "s15":
            slots[1].extend(["s_mul_i32 s6, s3, 320", "v_lshl_add_u32 v32, v2, 3, s6"])
            slots[2].append(f"v_add_u32 v33, {MB}, v32")
            for r in range(8): slots[4 + r].append(f"ds_read_b64 v[{16+2*r}:{17+2*r}], v33 offset:{r*1280}")
            slots[20].append("s_waitcnt lgkmcnt(0)")
            k = 21
            for stp in (8, 4, 2):
                for i in range(stp): slots[k].append(f"v_add_f32 v{16+i}, v{16+i}, v{16+stp+i}"); k += 1
            slots[k].append(f"v_add_u32 v32, {CSS}, v32")
            slots[k+2].append("ds_write_b64 v32, v[16:17]")
            vv = ["v_and_b32 v44, 15, v2", "v_lshrrev_b32 v45, 4, v2", "v_add_u32 v44, s7, v44", "v_lshlrev_b32 v44, 4, v44", f"v_add_u32 v44, {MB_AOS}, v44",
                  "v_lshl_add_u32 v45, v45, 4, s64", "v_and_b32 v46, 31, v2", "v_lshlrev_b32 v46, 2, v46", "v_mov_b32 v3, 1"]
            for i, x in enumerate(vv): slots[k + 4 + i].append(x)
            ss = ["s_lshl_b32 s7, s53, 7", "s_mul_i32 s64, s52, 640", f"s_add_u32 s64, s64, {CSS}",
                  "s_lshl1_add_u32 s0, s5, s53", f"s_mul_i32 s1, s0, {4*STRM}", "s_lshr_b32 s6, s4, 4", "s_mul_i32 s48, s6, 56", "s_add_u32 s48, s48, 32", "s_and_b32 s56, s4, 15",
                  "s_lshl1_add_u32 s41, s56, s52", "s_add_u32 s40, s41, s48", "s_lshl_b32 s40, s40, 11", "s_add_u32 s40, s40, s1",
                  "s_lshl1_add_u32 s54, s0, s6", "s_and_b32 s55, s54, 7", "s_lshl_b32 s54, s54, 15", "s_lshl_b32 s55, s55, 7", "s_add_u32 s55, s54, s55",
                  "s_lshl2_add_u32 s54, s41, s55", f"s_add_u32 s54, s54, {FL}"]
            if ty == 0:
                ss += ["s_add_u32 s41, s4, s52", "s_lshl_b32 s44, s41, 11", "s_add_u32 s44, s44, s1",
                       "s_and_b32 s55, s0, 7", "s_lshl_b32 s55, s55, 7", "s_lshl2_add_u32 s55, s41, s55", "s_lshl_b32 s0, s0, 15", "s_add_u32 s55, s55, s0", f"s_add_u32 s55, s55, {FL + 128*32768}"]
            else:
                ss += ["s_add_u32 s41, s56, s52", "s_sub_u32 s41, s41, 1", "s_add_u32 s44, s41, s48", "s_add_u32 s44, s44, 32", "s_lshl_b32 s44, s44, 11", "s_add_u32 s44, s44, s1",
                       "s_lshl1_add_u32 s48, s48, s41", "s_add_u32 s48, s48, 96", "s_lshl_b32 s48, s48, 10", "s_add_u32 s48, s48, s1",
                       "s_lshl2_add_u32 s55, s41, s55", f"s_add_u32 s55, s55, {FL + 64*32768}"]
            for b in (40, 44, 48)[:2+ty]:
                for i in range(1, 4): ss.append(f"s_add_u32 s{b+i}, s{b}, {i*STRM}")
            ss += ["s_lshl1_add_u32 s58, s21, s20", "s_and_b32 s59, s58, 7", "s_lshl_b32 s58, s58, 15", "s_lshl_b32 s59, s59, 7", "s_add_u32 s58, s58, s59",
                   f"s_add_u32 s58, s58, {FL}", f"s_add_u32 s59, s58, {64*32768}",
                   "s_and_b32 s60, s21, 7", "s_lshl_b32 s60, s60, 7", "s_lshl_b32 s0, s21, 15", "s_add_u32 s60, s60, s0", f"s_add_u32 s60, s60, {FL + 128*32768}",
                   "s_lshl2_add_u32 s19, s21, s3", f"s_mul_i32 s13, s19, {STRM}", f"s_mul_i32 s12, s20, {56*2048}", "s_add_u32 s12, s12, s13", f"s_add_u32 s12, s12, {32*2048}",
                   "s_lshl_b32 s0, s20, 7", "s_add_u32 s0, s0, s22", "s_lshl_b32 s19, s19, 16", "s_add_u32 s19, s19, s0", "s_lshl_b32 s17, s3, 16", "s_add_u32 s17, s17, s0",
                   "s_lshl2_add_u32 s61, s2, s3", "s_lshl_b32 s61, s61, 13", f"s_xor_b32 s65, s61, {16*8192}", f"s_add_u32 s61, s61, {WS_I + 4096}", f"s_add_u32 s65, s65, {WS_I + 4096}",
                   f"s_mov_b32 s68, {f2u(1e-6)}", f"s_mov_b32 s56, {f2u(LOG2E)}"]
            assert len(ss) <= 76, len(ss)
            for i, x in enumerate(ss): slots[3 + i].insert(0, x)
        emit(a, ms, slots)
    VF, VQ, VS = 144, 208, 176

    for ty in range(2):
        vm = VM(a)
        if ty == 0:
            a("L_tA:")
            a("s_mul_i32 s7, s1, 320\ns_add_u32 s6, s6, s7\nv_add_u32 v6, s6, v5")
            a(f"v_mad_u32_u24 v{V_WV}, v3, s57, v6\ns_movk_i32 s57, 6144\ns_lshl_b32 s6, s0, 7\nv_add_u32 v{V_WV+1}, {16*7168}, v{V_WV}\nv_add_u32 v6, s6, v5")
            a(f"v_mad_u32_u24 v{V_WV+2}, v3, s57, v6\nv_add_u32 v{V_WV+3}, {16*6144}, v{V_WV+2}\nv_add_u32 v{V_WV+4}, 4096, v{V_WV+2}\nv_add_u32 v{V_WV+5}, 4096, v{V_WV+3}")
        else:
            a("L_tB:")
            a("s_lshr_b32 s7, 128, s1\ns_add_u32 s7, s6, s7\nv_add_u32 v6, s7, v5")
            a(f"v_mad_u32_u24 v{V_WV}, v3, s57, v6\ns_xor_b32 s7, s1, 1\ns_mul_i32 s7, s7, 384\ns_add_u32 s7, s6, s7\nv_add_u32 v{V_WV+1}, {16*7168}, v{V_WV}")
            a("v_bfe_u32 v3, v2, 2, 2\nv_lshl_add_u32 v3, v4, 3, v3\nv_add_u32 v3, s61, v3\nv_and_b32 v5, 3, v2\nv_and_b32 v6, 1, v4\nv_lshlrev_b32 v6, 1, v6\nv_xor_b32 v5, v5, v6\nv_lshl_add_u32 v5, v5, 4, s7")
            a(f"v_mad_u32_u24 v{V_WV+2}, v3, s57, v5")
        stamp("addr", True)
        zero = [f"v_accvgpr_write_b32 a{A_ACC+i}, 0" for i in range(112)] + [f"v_mov_b64 v[{i}:{i+1}], 0" for i in range(48, 256, 2)]
        for m, d in dma_list(ty, 0):
            a(m)
            for _ in range(o["zper"]):
                if zero: a(zero.pop(0))
            t_st0 = vm(d)
        if o["npf0"] < 2 <= o["npf1"]:
            if o["npf0"] == 0: a("s_add_u32 s58, s58, s59")
            vm(PFI); a("s_add_u32 s58, s58, s59")
        a.extend(adv)
        stamp("dma", True)
        fin(SW, WS_SIZE); fin(SD, 3584*1024*2); fin(SO, 1024*1024*2); fin(SOUT, 2048*1024*2)
        a(f"s_lshl2_add_u32 s6, s2, s3\ns_lshl_b32 s6, s6, 13\ns_add_u32 s6, s6, {WS_I}\ns_add_u32 s{SI}, s{SW}, s6\ns_addc_u32 s{SI+1}, s{SW+1}, 0")
        fin(SI, 8192)
        a(f"s_mul_i32 s6, s2, 28672\ns_mul_i32 s7, s3, 9600\ns_add_u32 s6, s6, s7\ns_sub_u32 s7, 28672, s7\ns_min_u32 s7, s7, 9600\ns_lshl_b32 s0, s2, 13")
        a(f"s_cmp_eq_u32 s3, 3\ns_cselect_b32 s6, s0, s6\ns_cselect_b32 s{SP2+2}, 8192, s7\ns_cselect_b32 s0, s{SO}, s{SD}\ns_cselect_b32 s1, s{SO+1}, s{SD+1}")
        a(f"s_add_u32 s{SP2}, s0, s6\ns_addc_u32 s{SP2+1}, s1, 0\ns_mov_b32 s{SP2+3}, 0x20000")
        a("v_and_b32 v3, 15, v2\nv_bfe_u32 v5, v3, 1, 3\ns_lshl_b32 s6, s53, 7\nv_add_u32 v7, s6, v3\nv_lshlrev_b32 v7, 7, v7")
        for ks in range(2):
            a(f"v_add_u32 v6, {ks*4}, v4\nv_xor_b32 v6, v6, v5\nv_lshl_add_u32 v{V_XR+ks}, v6, 4, v7\nv_add_u32 v{V_XR+2+ks}, {STAGE}, v{V_XR+ks}")
        a(f"s_mul_i32 s6, s3, 320\nv_lshl_add_u32 v5, v3, 6, s6\nv_lshl_add_u32 v5, v4, 4, v5\nv_cmp_gt_u32 vcc, 5, v3\nv_mov_b32 v6, {BIG}\nv_lshlrev_b32 v{V_PF2}, 7, v2\nv_cndmask_b32 v{V_CSO}, v6, v5, vcc")
        a(f"v_cmp_gt_u32 vcc, 13, v2\nv_and_b32 v3, 3, v2\nv_lshlrev_b32 v3, 3, v3\nv_cndmask_b32 v{V_PF2}, v6, v{V_PF2}, vcc")
        a(f"v_lshrrev_b32 v5, 2, v2\nv_add_u32 v3, {W_OFF}, v3\nv_lshl_add_u32 v6, v5, 7, v3\nv_bfe_u32 v7, v2, 3, 2\ns_lshl_b32 s6, s52, 1\nv_xor_b32 v7, s6, v7")
        a(f"v_lshl_add_u32 v{V_WR}, v7, 5, v6\nv_xor_b32 v7, 1, v7\nv_lshl_add_u32 v{V_WR+2}, v7, 5, v6")
        if ty == 1:
            a(f"v_lshl_add_u32 v6, v5, 6, v3\nv_and_b32 v7, 1, v4\nv_xor_b32 v7, s52, v7\nv_lshl_add_u32 v6, v7, 5, v6\nv_add_u32 v{V_WR+4}, 32768, v6")
        for r in range(V_WR, V_WR + 4 + 2*ty, 2): a(f"v_add_u32 v{r+1}, {STAGE}, v{r}")
        a(f"s_bfe_u32 s68, s2, 0x20003\ns_lshl3_add_u32 s69, s4, s5\ns_mul_i32 s69, s69, 1280\ns_add_u32 s69, s69, {WS_CS}\ns_mov_b32 s57, 0\ns_mov_b32 s71, 0\ns_lshl4_add_u32 s70, s3, s68\ns_add_u32 s70, s70, 8")
        a.extend(zero)
        a("v_mov_b64 v[4:5], -1\nv_mov_b64 v[6:7], -1")
        stamp("zero", True)
        for m, d in dma_list(ty, 1)[:n3]: a(m); vm(d)
        if o["npf0"] < 3 <= o["npf1"]: vm(PFI)
        vm.wait(t_st0)
        a("s_barrier")
        stamp("loop", True)
        for tb in range(4):
            for ks in range(2): a(xread(0, tb, ks))
        for cb in range(9): a.extend(wread(ty, 0, cb))
        a(".p2align 6")
        a.label(f"L_loop{ty}")
        def d1(stage): return [([], m, d, p-80) for (m, d), p in zip(dma_list(ty, stage ^ 1)[n3:], dpos[n3:])]
        def d2(stage): return [([], m, d, p) for (m, d), p in zip(dma_list(ty, stage)[:n3], dpos[:n3])]
        for stage in range(2):
            phase1(ty, stage, "loop", d1(stage))
            phase2(ty, stage, "loop", d2(stage))
        a("s_add_u32 s57, s57, 1")
        for it in (1, 2, 4, 6):
            if o["stamps"] and f"i{it}" in sset:
                a(f"s_cmp_eq_u32 s57, {it}\ns_cbranch_scc0 L_st{ty}{it}"); stamp(f"i{it}", True); a(f"L_st{ty}{it}:")
        a(f"s_cmp_eq_u32 s57, {77 if o.get('nostat') else o['sh']}\ns_cbranch_scc1 L_sh{ty}\ns_cmp_lt_u32 s57, 7\ns_cbranch_scc1 L_loop{ty}")
        ool(f"L_sh{ty}:\ns_lshl_b32 s7, s3, 12\ns_add_u32 s7, s7, {MB}\nv_add_u32 v3, s7, v1\ns_mov_b32 s6, 0x3f803f80")
        DR = [V_T, V_CSA, V_SEL]
        for i in range(3): ool(f"ds_read_b128 {vr(DR[i], 4)}, v3 offset:{1024*i}")
        ool(f"s_lshr_b32 s0, s2, 5\ns_mul_i32 s0, s0, 6144\ns_add_u32 s0, s0, {WS_ST}\ns_and_b32 s7, s2, 31\ns_lshl2_add_u32 s7, s7, s3\ns_lshl3_add_u32 s1, s7, s0\ns_add_u32 s1, s1, 4096\ns_lshl_b32 s7, s7, 5\ns_add_u32 s0, s0, s7")
        for i in range(4):
            ool(f"s_waitcnt lgkmcnt({[2, 2, 1, 0][i]})")
            r = i >> 1
            for q in range(4):
                x = DR[i % 3] + q; f = (i & 1) == 0 and q == 0
                ool(f"v_dot2_f32_bf16 v{4+r}, v{x}, s6, {'0' if f else f'v{4+r}'}\nv_dot2_f32_bf16 v{6+r}, v{x}, v{x}, {'0' if f else f'v{6+r}'}")
            if i == 0: ool(f"ds_read_b128 {vr(DR[0], 4)}, v3 offset:3072")
        ool(f"v_lshrrev_b32 v46, 3, v2\nv_lshrrev_b32 v47, 1, v2\nv_mov_b32 v45, {f2u(1.0/1024)}")
        ool("v_permlane32_swap_b32 v4, v5\nv_permlane32_swap_b32 v6, v7\nv_add_f32 v4, v4, v5\nv_add_f32 v6, v6, v7\nv_permlane16_swap_b32 v4, v6\nv_add_f32 v4, v4, v6")
        for sh in (8, 4, 2, 1): ool(f"v_add_f32_dpp v4, v4, v4 row_ror:{sh} row_mask:0xf bank_mask:0xf")
        ool("v_mov_b32 v6, v4\nv_permlane16_swap_b32 v4, v6")
        ool(f"v_mul_f32 v36, {f2u(-1.0/1024)}, v4\nv_mul_f32 v44, v36, v36\nv_fma_f32 v44, v6, v45, -v44\nv_max_f32 v44, 0, v44\nv_add_f32 v39, {f2u(1e-5)}, v44")
        ool(f"v_rsq_f32 v44, v39\nv_mov_b64 v[4:5], -1\nv_mul_f32 v37, {f2u(GA1)}, v44\nv_mul_f32 v45, v44, v44\nv_mul_f32 v38, {f2u(0.044715)}, v37\nv_mul_f32 v38, v38, v45\nv_mov_b64 v[6:7], -1")
        ool(f"s_mov_b32 exec_lo, 1\ns_mov_b32 exec_hi, 1\nbuffer_store_dwordx4 v[36:39], v47, {S(SW)}, s0 offen sc1\nbuffer_store_dword v36, v46, {S(SW)}, s1 offen sc1\nbuffer_store_dword v44, v46, {S(SW)}, s1 offen offset:1024 sc1\ns_mov_b64 exec, -1")
        ool(f"s_branch L_loop{ty}")
        stamp("s14", True)
        phase1(ty, 0, "s14", d1(0))
        tail = [([], f"s_add_u32 m0, s1, {MB}" if c == 0 else "s_nop 0", f"buffer_load_dwordx4 v1, {S(SW)}, s{58 + (c >> 1)} offen offset:{c*1024} sc1 lds") for c in range(4)]
        for t in range(4):
            for c, (m, d) in enumerate(bdma(t, "f")):
                tail.append(([f"s_add_u32 s15, s15, s{INC[t-1]}"] if c == 0 and t else [], m, d))
        tp = [6, 12, 18, 24] + [32 + 7*i for i in range(16)]
        tp = [p if p not in (80, 81) else 83 for p in tp]
        phase2(ty, 0, "s14", [(pre, m, d, p) for (pre, m, d), p in zip(tail, tp) if p < 80])
        stamp("s15", True)
        phase1(ty, 1, "s15", [(pre, m, d, p-80) for (pre, m, d), p in zip(tail, tp) if p >= 80])
        phase2(ty, 1, "s15", [], nwait=16)
        a("s_waitcnt lgkmcnt(0)\ns_barrier")
        stamp("e0", True)
        vm = VM(a)
        CS, TK, Z = 12, 28, 36
        def rd_cs(cb0, n):
            for i in range(n): a(f"ds_read_b128 v[{CS+4*i}:{CS+4*i+3}], v45 offset:{(cb0+i)*64}")
        def rd_tk(tb): a(f"ds_read_b128 v[{TK+4*(tb&1)}:{TK+4*(tb&1)+3}], v44 offset:{tb*256}")
        def getv(tb, cb, tmp):
            p, b = accb(tb, cb)
            if p == "v": return b
            for i in range(4): a(f"v_accvgpr_read_b32 v{tmp+i}, a{b+i}")
            return tmp
        def pack(d, ps):
            for i, p in enumerate(ps): a(f"v_cvt_pk_bf16_f32 v{d+i}, v{p}, v{p+1}")
        def fixm(b, cs, tk):
            for h in (0, 2): a(f"v_pk_fma_f32 {P(b+h)}, {P(cs+h)}, {P(tk)}, {P(b+h)} op_sel_hi:[1,0,1]")
        def geglu(items, d):
            el = [(g+h, u+h, tk, Z + 4*n + h) for n, (g, u, cg, cu, tk) in enumerate(items) for h in (0, 2)]
            for g, u, cg, cu, tk in items: fixm(g, cg, tk)
            for g, u, tk, z in el: a(f"v_pk_mul_f32 {P(z)}, {P(g)}, {P(g)}")
            for g, u, tk, z in el: a(f"v_pk_fma_f32 {P(z)}, {P(z)}, {P(tk+2)}, {P(tk)} op_sel:[0,0,1] op_sel_hi:[1,0,1]")
            for g, u, tk, z in el: a(f"v_pk_mul_f32 {P(z)}, {P(z)}, {P(g)}")
            for i in range(8): a(f"v_exp_f32 v{Z+i}, v{Z+i}")
            for g, u, cg, cu, tk in items: fixm(u, cu, tk)
            for g, u, tk, z in el: a(f"v_pk_fma_f32 {P(z)}, {P(z)}, {P(tk+2)}, {P(tk+2)} op_sel:[0,1,1] op_sel_hi:[1,1,1]")
            for i in range(8): a(f"v_rcp_f32 v{Z+i}, v{Z+i}")
            for g, u, tk, z in el: a(f"v_pk_mul_f32 {P(u)}, {P(u)}, {P(g)}")
            for g, u, tk, z in el: a(f"v_pk_mul_f32 {P(u)}, {P(u)}, {P(z)}")
            pack(d, [u for g, u, tk, z in el])
        def frag(tb, cb0, sb, nxt):
            r = [getv(tb, cb0+i, accb(tb, i)[1]) for i in range(4)]
            a("s_waitcnt lgkmcnt(0)")
            if nxt is not None: rd_tk(nxt)
            tk = TK + 4*(tb & 1)
            geglu([(r[0], r[1], CS, CS+4, tk), (r[2], r[3], CS+8, CS+12, tk)], r[0])
            return vm(f"buffer_store_dwordx4 v[{r[0]}:{r[0]+3}], v1, {S(SW)}, s{sb+(tb>>1)} offen offset:{(tb&1)*1024} sc1")
        def flag(sreg):
            a("s_mov_b64 exec, 1"); vm(f"buffer_store_dword v3, off, {S(SW)}, s{sreg} sc1"); a("s_mov_b64 exec, -1")
        POLL1 = f"buffer_load_dword v47, v46, {S(SW)}, s58 offen sc1"
        def af(slot, i): return ar(slot*32 + i*4, 4)
        def check_and_load(t_poll):
            stamp("b2")
            vm.wait(t_poll)
            stamp("chk")
            spin(f"L_b1{ty}", "v_cmp_ne_u32 vcc, 1, v47", POLL1)
            stamp("chkd")
            tags = []
            for t in range(3):
                for i in range(4): tg = vm(f"buffer_load_dwordx4 {af(t, i)}, v1, {S(SW)}, s12 offen offset:{i*1024} sc1")
                a("s_add_u32 s12, s12, 4096"); tags.append(tg)
            return tags
        def set_b1(t_b1):
            stamp("w1"); vm.wait(t_b1); stamp("w1d"); flag(54)
        def phi_tail(ps, ts, scale):
            for i in range(8): a(f"v_exp_f32_e64 v{Z+i}, v{Z+i} clamp")
            for p in ps: a(f"v_max_f32 v{p}, 0, v{p}\nv_max_f32 v{p+1}, 0, v{p+1}")
            for p in ps:
                if scale is None: a(f"v_pk_add_f32 {P(p)}, {P(p)}, s[68:69] op_sel_hi:[1,0]")
                else: a(f"v_pk_fma_f32 {P(p)}, {P(p)}, {P(scale)}, s[68:69] op_sel_hi:[1,0,0]")
            for p, q in zip(ps, ts): a(f"v_pk_add_f32 {P(p)}, {P(p)}, {P(q)}")
            pack(ps[0], ps)
        zf = [f"v_mov_b64 v[{i}:{i+1}], 0" for b in (VF, VQ) for i in range(b, b+32, 2)]
        rd_cs(0, 4); rd_tk(0)
        for tb in range(8): t_b1 = frag(tb, 0, 40, tb+1 if tb < 7 else (0 if ty else None))
        stamp("b1")
        if ty == 1:
            rd_cs(6, 4)
            for tb in range(8):
                frag(tb, 6, 44, tb+1 if tb < 7 else 0)
                if tb == 1: set_b1(t_b1)
                if tb == o["pB"]: t_poll = vm(POLL1)
                if tb == o["cB"]: tags = check_and_load(t_poll)
            rd_cs(4, 2)
            for tp in range(4):
                rd_tk(2*tp+1)
                a("s_waitcnt lgkmcnt(0)")
                g0, g1, u0, u1 = accb(2*tp, 4)[1], accb(2*tp+1, 4)[1], accb(2*tp, 5)[1], accb(2*tp+1, 5)[1]
                geglu([(g0, u0, CS, CS+4, TK), (g1, u1, CS, CS+4, TK+4)], g0)
                if tp < 3: rd_tk(2*tp+2)
                a(f"v_permlane32_swap_b32 v{g0}, v{g0+2}\nv_permlane32_swap_b32 v{g0+1}, v{g0+3}")
                vm(f"buffer_store_dwordx4 v[{g0}:{g0+3}], v1, {S(SW)}, s{48+tp} offen sc1")
            a.extend(zf)
            a("s_barrier")
        else:
            a(f"v_and_b32 v4, 15, v2\nv_lshl_add_u32 v4, v4, 2, s64\ns_lshl_b32 s0, s53, 9\ns_add_u32 s0, s0, {MB_NM}\ns_sub_u32 s0, s0, s64\nv_add_u32 v5, s0, v45")
            for i in range(4): a(f"ds_read_b32 v{12+i}, v4 offset:{(6+i)*64}")
            KV, ONES = 112, 136
            for i in range(4): a(f"v_mov_b32 v{ONES+i}, 0x3f803f80")
            for tp in range(4):
                for h in range(2):
                    a(f"ds_read_b128 v[{16+8*h}:{19+8*h}], v5 offset:{(2*tp+h)*64}\nds_read_b128 v[{20+8*h}:{23+8*h}], v5 offset:{(2*tp+h)*64 + 1024}")
                r = [[getv(2*tp+h, 6+i, 48 + 32*(tp & 1) + 8*i + 4*h) for h in range(2)] for i in range(4)]
                a("s_waitcnt lgkmcnt(0)")
                for i in range(4):
                    sel = i & 1
                    for h in range(2):
                        for q in (0, 2):
                            a(f"v_pk_fma_f32 {P(r[i][h]+q)}, {P(16+8*h+q)}, {P(12+(i&2))}, {P(r[i][h]+q)} op_sel:[0,{sel},0] op_sel_hi:[1,{sel},1]")
                    for h in range(2):
                        for q in (0, 2): a(f"v_pk_mul_f32 {P(r[i][h]+q)}, {P(r[i][h]+q)}, {P(20+8*h+q)}")
                    ps = [r[i][0], r[i][0]+2, r[i][1], r[i][1]+2]; ts = [Z, Z+2, Z+4, Z+6]
                    if i < 2:
                        for p, q in zip(ps, ts): a(f"v_pk_mul_f32 {P(q)}, {P(p)}, s[56:57] op_sel_hi:[1,0]")
                        phi_tail(ps, ts, None)
                    else: pack(ps[0], ps)
                for db in range(2):
                    for eb in range(3):
                        d = vr(KV + (db*3+eb)*4, 4)
                        B = vr(r[2+eb][0], 4) if eb < 2 else vr(ONES, 4)
                        a(f"v_mfma_f32_16x16x32_bf16 {d}, {vr(r[db][0], 4)}, {B}, {d if tp else 0}")
                if tp == 0: set_b1(t_b1)
                if tp == o["pA"]: t_poll = vm(POLL1)
            rd_cs(4, 2); rd_tk(0)
            a(f"s_mul_i32 s0, s3, 3072\ns_add_u32 s0, s0, {KVX}\nv_add_u32 v4, s0, v1\ns_xor_b32 s1, s3, 1\ns_mul_i32 s1, s1, 3072\ns_add_u32 s1, s1, {KVX}\nv_add_u32 v5, s1, v1")
            tags = check_and_load(t_poll)
            a("s_cmp_eq_u32 s53, 0\ns_cbranch_scc1 L_kv0")
            for eb in range(3): a(f"ds_write_b128 v5, v[{KV+eb*4}:{KV+eb*4+3}] offset:{eb*1024}")
            for i in range(0, 12, 2): a(f"v_mov_b64 {P(48+i)}, {P(KV+12+i)}")
            a("s_branch L_kv1\nL_kv0:")
            for eb in range(3): a(f"ds_write_b128 v5, v[{KV+12+eb*4}:{KV+12+eb*4+3}] offset:{eb*1024}")
            for i in range(0, 12, 2): a(f"v_mov_b64 {P(48+i)}, {P(KV+i)}")
            a("L_kv1:")
            for tb in range(8):
                a("s_waitcnt lgkmcnt(0)")
                if tb < 7: rd_tk(tb+1)
                tk = TK + 4*(tb & 1)
                b0, b1 = accb(tb, 4)[1], accb(tb, 5)[1]
                a(f"v_mul_f32 v{tk+2}, {f2u(1.0/GA1)}, v{tk+1}\nv_mul_f32 v{tk+3}, {f2u(LOG2E/GA1)}, v{tk+1}")
                fixm(b0, CS, tk); fixm(b1, CS+4, tk)
                ps = [b0, b0+2, b1, b1+2]; ts = [Z, Z+2, Z+4, Z+6]
                for p, q in zip(ps, ts): a(f"v_pk_mul_f32 {P(q)}, {P(p)}, {P(tk+2)} op_sel:[0,1] op_sel_hi:[1,1]")
                phi_tail(ps, ts, tk+2)
                if tb == 3:
                    a("s_barrier")
                    for eb in range(3): a(f"ds_read_b128 v[{60+eb*4}:{63+eb*4}], v4 offset:{eb*1024}")
                if tb == 4:
                    a("s_sub_u32 s0, s61, 4096")
                    for i in range(0, 12, 2): a(f"v_pk_add_f32 {P(48+i)}, {P(48+i)}, {P(60+i)}")
                    for eb in range(3): vm(f"buffer_store_dwordx4 v[{48+eb*4}:{51+eb*4}], v1, {S(SW)}, s0 offen offset:{eb*1024} sc1")
            a.extend(zf)
        vm.wait(tags[1])
        if ty == 0: a("s_branch L_k2")

    a("L_k2:")
    D = 3; R = 4; nf, ns = 28, 8; T = nf + ns
    V_BR, V_A2, V_AO, V_XO = 36, 40, 41, 42
    def bf(p, u, cb): return 128 + p*64 + (u*4+cb)*4
    def facc(ch, cb, tb): return (VF, VQ, VS)[ch] + (cb*2+tb)*4
    a("v_lshrrev_b32 v4, 2, v2\nv_lshlrev_b32 v4, 7, v4\nv_and_b32 v6, 3, v2\nv_lshl_add_u32 v4, v6, 3, v4\nv_bfe_u32 v6, v2, 3, 2")
    for cb in range(4): a(f"v_xor_b32 v7, {cb}, v6\nv_lshl_add_u32 v{V_BR+cb}, v7, 5, v4")
    def al(slot, ph, odd=False):
        if odd:
            L = [f"buffer_load_dwordx2 {ar(slot*32 + (ks*2+tb)*4 + 2*h, 2)}, v{V_AO}, {S(SW)}, s12 offen offset:{ks*2048 + h*1024 + tb*512} sc1" for ks in range(2) for h in range(2) for tb in range(2)]
            return L, "s_add_u32 s12, s12, 4096"
        n, so = (4, 12) if ph == "f" else (8, 13)
        L = [f"buffer_load_dwordx4 {af(slot, i)}, v{1 if i < 4 else V_A2}, {S(SW)}, s{so} offen offset:{(i&3)*1024} sc1" for i in range(n)]
        return L, f"s_add_u32 s{so}, s{so}, {n*1024}"
    def rl(slot, p, ph):
        od = [(ks*2+ch, cb) for ch in range(2) for cb in range(4) for ks in range(2)] if ph == "f" else [(u, cb) for cb in range(4) for u in range(4)]
        return [f"ds_read_b64_tr_b16 {ar(bf(p, u, cb) + rd*2, 2)}, v{V_BR + cb} offset:{slot*16384 + u*4096 + rd*2048}" for u, cb in od for rd in range(2)]
    def ml(slot, p, ph, first=False):
        L = []
        if ph == "f":
            for ch in range(2):
                for cb in range(4):
                    for tb in range(2):
                        for ks in ((0, 1) if tb == 0 else (1, 0)):
                            c = vr(facc(ch, cb, tb), 4)
                            L.append(f"v_mfma_f32_16x16x32_bf16 {c}, {ar(bf(p, ks*2+ch, cb), 4)}, {af(slot, ks*2+tb)}, {c}")
        else:
            for cb in range(4):
                for tb in range(2):
                    for n, ks in enumerate(range(4) if tb == 0 else (3, 2, 1, 0)):
                        c = vr(facc(2, cb, tb), 4)
                        L.append(f"v_mfma_f32_16x16x32_bf16 {c}, {ar(bf(p, ks, cb), 4)}, {af(slot, ks*2+tb)}, {0 if first and n == 0 else c}")
        return L
    def ph(t): return "f" if t < nf else ("s" if t < T else None)
    XL, PL = 48, 64
    extra = {21: 2, nf: 4, nf+5: 8}
    def nops(t): return (4 if ph(t+D+1) else 0) + {"f": 4 if t+D < 24 else 8, "s": 8, None: 0}[ph(t+D)] + extra.get(t, 0)
    a.extend(rl(0, 0, "f"))
    a(f"v_add_u32 v{V_A2}, 4096, v1\nv_and_b32 v44, 60, v46\ns_xor_b32 s69, s69, 16")
    a(f"v_and_b32 v4, 15, v2\nv_lshlrev_b32 v4, 11, v4\nv_bfe_u32 v6, v2, 4, 1\nv_lshl_add_u32 v4, v6, 5, v4\nv_lshrrev_b32 v6, 5, v2\nv_lshl_add_u32 v{V_XO}, v6, 4, v4\nv_add_u32 v{V_XO+1}, 32768, v{V_XO}")
    a(f"v_lshlrev_b32 v4, 2, v46\nv_lshl_add_u32 v{V_AO}, v6, 3, v4\ns_add_u32 s15, s15, s{INC[3]}")
    PLD = [f"buffer_load_dwordx4 v[{PL+4*i}:{PL+4*i+3}], v1, {S(SW)}, s65 offen offset:{i*1024} sc1" for i in range(4)]
    def stage(t):
        p = t & 1
        ms = ml(t % R, p, ph(t), first=(t == nf))
        slots = {i: [] for i in range(-1, 32)}
        n = sum(nops(u) for u in range(t-D+1, t))
        slots[-1].append(f"s_waitcnt vmcnt({n}) lgkmcnt(0)")
        if ph(t+1):
            slots[0].append("s_barrier")
            spread(slots, rl((t+1) % R, p ^ 1, ph(t+1)), 0, 27)
        if ph(t+D+1):
            for c, (m, d) in enumerate(bdma((t+D+1) % R, ph(t+D+1))):
                slots[1+3*c].append(m); slots[2+3*c].append(d)
            if ph(t+D+1) == "s": slots[12].append(f"s_add_u32 s17, s17, {128*2048}")
            elif t < 20: slots[12].append(f"s_add_u32 s15, s15, s{INC[t & 3]}")
            else: slots[12].append(f"s_add_u32 s15, s15, {14*65536}")
        if ph(t+D):
            L, ad = al((t+D) % R, ph(t+D), 24 <= t+D < nf)
            spread(slots, L, 15, 30); slots[31].append(ad)
        if t == nf:
            for i in range(16): slots[8 + i].append(f"v_cvt_pk_bf16_f32 v{VQ+i}, v{VQ+2*i}, v{VQ+2*i+1}")
            for i in range(4): slots[[13, 20, 28, 31][i]].append(f"buffer_store_dwordx4 v[{VQ+4*i}:{VQ+4*i+3}], v1, {S(SW)}, s61 offen offset:{i*1024} sc1")
        if t == nf+5:
            spread(slots, [f"buffer_load_dwordx4 v[{XL+4*i}:{XL+4*i+3}], v{V_XO + (i>>1)}, {S(SX)}, s19 offen offset:{(i&1)*64}" for i in range(4)] + PLD, 1, 30)
        emit(a, ms, slots)
    stamp("k2", True)
    a("s_mov_b32 s57, 0\n.p2align 6\nL2_loop:")
    for t in range(R): stage(t + R)
    a("s_add_u32 s57, s57, 1")
    for it in range(1, 5): a(f"s_cmp_eq_u32 s57, {it}\ns_cbranch_scc1 L_h{it}")
    main = a
    hk = Asm(); a = hk
    G = 48
    FLAG55 = f"s_mov_b64 exec, 1\nbuffer_store_dword v3, off, {S(SW)}, s55 sc1\ns_mov_b64 exec, -1\ns_branch L2_loop"
    POLL2 = f"buffer_load_dword v47, v44, {S(SW)}, s59 offen sc1"
    KLD = []
    for r in range(8):
        KLD.append(f"s_add_u32 s1, s64, {(8*(r&3) + (r>>2))*32768}")
        KLD += [f"buffer_load_dwordx4 v[{G+(r*3+eb)*4}:{G+(r*3+eb)*4+3}], v1, {S(SW)}, s1 offen offset:{eb*1024} sc1" for eb in range(3)]
    a("L_h1:"); stamp("it1")
    a("s_bitcmp1_b32 s2, 5\ns_cbranch_scc1 L_fl")
    a(f"s_and_b32 s64, s2, 0xe6\ns_lshl2_add_u32 s64, s64, s3\ns_lshl_b32 s64, s64, 13\ns_add_u32 s64, s64, {WS_I}")
    a.extend(KLD); a("s_branch L2_loop")
    a("L_h2:"); stamp("it2")
    a(POLL2)
    a("s_bitcmp1_b32 s2, 5\ns_cbranch_scc1 L2_loop")
    mx = [f"v_max3_u32 v{4+i}, v{G+3*i}, v{G+3*i+1}, v{G+3*i+2}" for i in range(2)] + [f"v_max3_u32 v{4+(i&1)}, v{4+(i&1)}, v{G+6+2*i}, v{G+7+2*i}" for i in range(45)] + ["v_max_u32 v4, v4, v5", "v_cmp_eq_u32 vcc, -1, v4"]
    spin("L_kvg", "\n".join(mx), "\n".join(KLD))
    for stp in (48, 24, 12):
        for i in range(0, stp, 2): a(f"v_pk_add_f32 {P(G+i)}, {P(G+i)}, {P(G+stp+i)}")
    for i in range(6): a(f"v_cvt_pk_bf16_f32 v{G+i}, v{G+2*i}, v{G+2*i+1}")
    a(f"s_mul_i32 s64, s52, 3072\ns_add_u32 s64, s64, {KVF}\ns_lshl3_add_u32 s0, s53, s64\nv_add_u32 v4, s0, v1")
    for eb in range(3): a(f"ds_write_b64 v4, v[{G+2*eb}:{G+2*eb+1}] offset:{eb*1024}")
    a("s_branch L2_loop")
    a("L_h3:"); stamp("it3")
    a(f"s_add_u32 s15, s14, {4*65536}")
    for r, v in zip(INC, (6, 8, 6, 8)): a(f"s_mov_b32 s{r}, {v*65536}")
    spin("L_b2", "v_cmp_ne_u32 vcc, 1, v47", POLL2)
    a("s_bitcmp1_b32 s2, 5\ns_cbranch_scc1 L2_loop")
    a("v_add_u32 v4, s64, v1")
    for eb in range(3): a(f"ds_read_b128 v[{12+4*eb}:{15+4*eb}], v4 offset:{eb*1024}")
    a("s_waitcnt lgkmcnt(0)")
    for tb in range(8):
        for eb in (2, 0, 1): a(f"v_mfma_f32_16x16x32_bf16 {vr(G+(tb*3+eb)*4, 4)}, v[{12+4*eb}:{15+4*eb}], v[{VS+4*tb}:{VS+3+4*tb}], 0")
    for tb in range(8): a(f"v_add_f32 v{G+tb*12+8}, s68, v{G+tb*12+8}")
    for tb in range(8): a(f"v_rcp_f32 v{G+tb*12+8}, v{G+tb*12+8}")
    for tb in range(8):
        b = G + tb*12
        for i in range(4): a(f"v_pk_mul_f32 {P(b+2*i)}, {P(b+2*i)}, {P(b+8)} op_sel_hi:[1,0]")
        for i in range(4): a(f"v_cvt_pk_bf16_f32 v{b+i}, v{b+2*i}, v{b+2*i+1}")
        a(f"buffer_store_dwordx4 v[{b}:{b+3}], v1, {S(SW)}, s{44+(tb>>1)} offen offset:{(tb&1)*1024} sc1")
    a("s_branch L2_loop")
    a("L_h4:"); stamp("it4")
    a("s_bitcmp1_b32 s2, 5\ns_cbranch_scc1 L2_loop\nL_fl:")
    a(FLAG55)
    a = main
    OPOLL = f"buffer_load_dword v47, v46, {S(SW)}, s60 offen sc1\nbuffer_load_dword v35, off, {S(SW)}, s69 sc1"
    a(f"s_add_u32 s15, s14, {6*65536}")
    for t in range(20, T):
        if t == nf: stamp("s")
        if t == 25:
            stamp("it6")
            spin("L_of", "v_or_b32 v4, v35, v47\nv_cmp_ne_u32 vcc, 1, v4", OPOLL)
        stage(t)
        if t == 21: a(OPOLL)
    stamp("fin")
    a(f"s_mov_b32 s6, {f2u(-LOG2E)}\ns_waitcnt vmcnt(0)")
    mx = [f"v_max3_u32 v4, v{PL}, v{PL+1}, v{PL+2}"] + [f"v_max3_u32 v4, v4, v{PL+3+2*i}, v{PL+4+2*i}" for i in range(6)] + [f"v_max_u32 v4, v4, v{PL+15}", "v_cmp_eq_u32 vcc, -1, v4"]
    spin("L_xb", "\n".join(mx), "\n".join(PLD))
    F, Q, Sa, XF = VF, VQ, VS, 80
    for i in range(16): a(f"v_lshlrev_b32 v{Q+2*i}, 16, v{PL+i}\nv_and_b32 v{Q+2*i+1}, 0xffff0000, v{PL+i}")
    for i in range(0, 32, 2): a(f"v_pk_add_f32 {P(F+i)}, {P(F+i)}, {P(Q+i)}")
    for i in range(0, 32, 2): a(f"v_pk_mul_f32 {P(Q+i)}, {P(F+i)}, s[6:7] op_sel_hi:[1,0]")
    for i in range(32): a(f"v_exp_f32 v{Q+i}, v{Q+i}")
    for q in range(4):
        b = XL + 4*q
        a(f"v_permlane16_swap_b32 v{b}, v{b+2}\nv_permlane16_swap_b32 v{b+1}, v{b+3}")
    for i in range(0, 32, 2): a(f"v_pk_add_f32 {P(Q+i)}, {P(Q+i)}, 1.0 op_sel_hi:[1,0]")
    for i in range(32): a(f"v_rcp_f32 v{Q+i}, v{Q+i}")
    for i in range(16): a(f"v_lshlrev_b32 v{XF+2*i}, 16, v{XL+i}\nv_and_b32 v{XF+1+2*i}, 0xffff0000, v{XL+i}")
    for i in range(0, 32, 2): a(f"v_pk_mul_f32 {P(F+i)}, {P(F+i)}, {P(Q+i)}")
    for tb in range(2):
        for p in range(2):
            d = XL + (tb*2+p)*4
            for e in range(2):
                cb = 2*p + e; off = (cb*2+tb)*4; xb = XF + ((tb*2+p)*4 + 2*e)*2
                for h in range(2): a(f"v_pk_fma_f32 {P(Sa+off+2*h)}, {P(Sa+off+2*h)}, {P(F+off+2*h)}, {P(xb+2*h)}")
                for h in range(2): a(f"v_cvt_pk_bf16_f32 v{d+2*e+h}, v{Sa+off+2*h}, v{Sa+off+2*h+1}")
            a(f"v_permlane16_swap_b32 v{d}, v{d+2}\nv_permlane16_swap_b32 v{d+1}, v{d+3}")
            a(f"buffer_store_dwordx4 v[{d}:{d+3}], v{V_XO+tb}, {S(SOUT)}, s19 offen offset:{p*64} sc1")
    if o["stamps"]:
        a("s_waitcnt vmcnt(0)")
        stamp("end")
        a(f"s_cmp_lg_u32 s3, {o['stw']}\ns_cbranch_scc1 L_end")
        st.n = len(sset)
        st.flush(a, SW, 2, 4)
    a("L_end:\ns_endpgm")
    a.lines += hk.lines + ool.lines + ["L_cend:"]
    a.lines, n = hazard.fix(a.lines, verbose=o.get("hv", 0))
    ref = "cdna_kernels/" + NAME + ".s.ref"
    hdr = open(ref).read().split("; Override launch")[0] if os.path.exists(ref) else ""
    k = dict(name=NAME + "_kernel", grid=256, block=256, lds=163840, body=a, vgpr=256, agpr=256)
    txt = file_text([k]).replace(f"@launch kernel={NAME}_kernel ", "@launch ")
    return hdr + txt
if __name__ == "__main__":
    kw = {}
    for x in sys.argv[2:]:
        k, v = x.split("="); kw[k] = int(v)
    open(sys.argv[1], "w").write(gen(**kw))
```

```python
import sys, struct, math, os
from asmlib import *
import hazard

WS_A, WS_I, WS_CS, WS_ST, WS_SIZE = 0, 0x1400000, 0x1C00000, 0x1C80000, 0x1D00000
def f2u(x): return hex(struct.unpack("<I", struct.pack("<f", x))[0])
LOG2E = 1.4426950408889634
GA1 = -2.0*LOG2E*math.sqrt(2.0/math.pi); GA3 = GA1*0.044715
W_OFF = 32768
STAGE = 73728
MB = 2*STAGE
MB_AOS, MB_NM, MB_RS = MB + 10240, MB + 14336, MB + 15360
CSS = 65536
KVX = STAGE
KVF = STAGE + 16384
STRM = 144*2048
SPIN = 0x20000
BIG = 0x7ff00000

def cls(i):
    n = i.split()[0]
    if n.endswith(":"): return -1
    if n.startswith("s_"): return 0
    if n.startswith(("ds_", "buffer_", "global_")): return 1
    return 2
def emit(a, mfmas, slots):
    for i in range(-1, len(mfmas)):
        if i >= 0: a(mfmas[i])
        items = slots.get(i, [])
        if any(cls(x) < 0 or "exec" in x or "cbranch" in x for x in items): a.extend(items)
        else: a.extend(sorted(items, key=cls))
def spread(slots, items, lo, hi):
    n = len(items)
    for i, x in enumerate(items):
        p = lo + (i*(hi - lo + 1))//max(n, 1)
        slots[p].extend(x if isinstance(x, list) else [x])
def vcost(x): return 2 if x.startswith(("v_exp", "v_rcp", "v_rsq")) else 1
def fillv(gaps, items):
    used = [sum(vcost(y) for y in g if cls(y) > 0) for g in gaps]
    tot = sum(used) + sum(vcost(x) for x in items)
    if tot <= 1.8*len(gaps):
        p = 0
        for x in items:
            while p < len(gaps) - 1 and used[p] + vcost(x) > 2: p += 1
            used[p] += vcost(x); gaps[p].append(x)
        return
    rate = tot/len(gaps); cum = 0; k = 0
    for p, g in enumerate(gaps):
        cum += used[p]
        while k < len(items) and (cum + vcost(items[k])/2 <= rate*(p+1) or p == len(gaps) - 1):
            g.append(items[k]); cum += vcost(items[k]); k += 1
def resolve(lines, paths):
    best = {}
    for path in paths:
        n = 0; pos = {}
        for i in path:
            l = lines[i].strip()
            if l.startswith(("buffer_", "global_")):
                n += 1
                if ";@" in l:
                    for t in l.split(";@")[1].split(","): pos[t.strip()] = n
            elif l.startswith("s_waitcnt @"):
                tags = [t for t in l.split()[1][1:].split(",") if t in pos]
                c = n - max(pos[t] for t in tags) if tags else 63
                best[i] = min(best.get(i, 63), c)
    for i, c in best.items():
        w = lines[i].split()
        lines[i] = "    " + " ".join([w[0], f"vmcnt({c})"] + w[2:])
    assert not any("s_waitcnt @" in l for l in lines)
class VM:
    def __init__(self, a): self.a = a; self.n = 0
    def __call__(self, s):
        self.a(s); self.n += 1; return self.n
    def wait(self, tag): self.a(f"s_waitcnt vmcnt({self.n - tag})")
def P(r): return f"v[{r}:{r+1}]"
SETS = {0: ["start", "loop", "e0", "k2", "s", "fin", "end"],
        2: ["k2", "t4", "t8", "t12", "t16", "t25", "s"],
        3: ["start", "karg", "addr", "dma", "zero", "loop", "i1"],
        4: ["loop", "i1", "i2", "i4", "i6", "s14", "e0"],
        8: ["t7", "t8", "t9", "t10", "t11", "t12", "t13"],
        9: ["k2", "t1", "t2", "t3", "t4", "t5", "t6"],
        7: ["t16", "t20", "t22", "t24", "t26", "t28", "t30"],
        6: ["s", "t32", "t33", "t34", "fin", "fs", "end"],
        5: ["e0", "b1", "w1d", "b2", "chk", "chkd", "k2"]}

def gen(**kw):
    o = dict(stamps=0, stw=2, ev=5, dst=52, od=1, sq=0, cpf=1, npf0=1, npf1=2, zper=12, slp=8, pfd=0, pfp=1, rp=2, pf2p=3, inp=4, csp=8, atp=6,
             pf2s=8, rs=2, sh=4, ctm=1, nin=80, s7e=20, pl=4, opoll=21, pro=1, tj=3, tg=9, nsA=11, nsB=11, fB=1, pf3=0, pB=3, cB=5)
    o.update(kw)
    a = Asm(); ool = Asm(); st = Stamps(o["stamps"], 74, 0)
    sset = SETS[o["sq"]]
    def stamp(tag, w=False):
        if tag in sset and o["stamps"]:
            st.n = sset.index(tag); st.stamp(a)
            if w: a("s_waitcnt lgkmcnt(0)")
    SX, SQ, SG, SW, SD, SO, SOUT, SP, SP2, SI, SU = 8, 12, 16, 24, 28, 32, 36, 40, 44, 48, 64
    V_XV, V_WV, V_XR, V_WR, V_PF, V_PF2, V_CSO = 8, 16, 22, 26, 32, 33, 34
    V_T, V_CSA, V_SEL, V_SENT = 36, 40, 44, 4
    V_ACC = 48; A_X = 0; A_W = 64; A_ACC = 144
    def S(d): return f"s[{d}:{d+3}]"
    def fin(d, size): a(f"s_mov_b32 s{d+2}, {size}\ns_mov_b32 s{d+3}, 0x20000")
    def accb(tb, cb):
        i = cb*8 + tb
        return ("v", V_ACC + 4*i) if i < 52 else ("a", A_ACC + 4*(i-52))
    def acc(tb, cb):
        p, b = accb(tb, cb); return vr(b, 4, p)
    def xf(tb, ks): return ar(A_X + (tb*2+ks)*4, 4)
    def wfb(cb, ks): return A_W + (cb*2+ks)*4
    spn = {}
    def spin_ool(name, cmp, reload):
        k = spn.setdefault(name[:4] if name[:4] in ("L_b1", "L_b2", "L_in") else name, len(spn) + 1)
        ool(f"{name}_s:")
        if o.get("cnt"):
            ool(f"s_bitset1_b32 s72, {k}")
        ool(f"s_mov_b32 s0, 0\n{name}_l:\ns_sleep {o['slp']}\n{reload}\ns_waitcnt vmcnt(0)\n{cmp}\ns_add_u32 s0, s0, 1\ns_cmp_ge_u32 s0, {SPIN}\ns_cbranch_scc1 {name}_d\ns_nop 1\ns_cbranch_vccnz {name}_l\ns_branch {name}_d")
    def spin(name, cmp, reload):
        a(cmp + f"\ns_nop 3\ns_cbranch_vccnz {name}_s\n{name}_d:")
        spin_ool(name, cmp, reload)

    a("s_cmp_ge_u32 s2, 256\ns_cbranch_scc1 L_end")
    stamp("start")
    a(f"s_load_dwordx2 s[{SX}:{SX+1}], s[0:1], 0\ns_load_dwordx2 s[{SQ}:{SQ+1}], s[0:1], 8\ns_load_dwordx2 s[{SG}:{SG+1}], s[0:1], 32\ns_load_dwordx2 s[{SU}:{SU+1}], s[0:1], 40")
    a("v_lshrrev_b32 v1, 6, v0\nv_and_b32 v2, 63, v0\ns_lshr_b32 s58, s2, 3")
    n0 = 0
    if o["cpf"]:
        a("s_getpc_b64 s[72:73]\nL_pc:\nv_min_u32 v3, 15, v2\nv_mad_u32_u24 v4, v1, 10, v3\nv_mad_u32_u24 v5, v1, 6, v3\ns_mul_i32 s6, s58, 24\nv_cmp_ne_u32 vcc, 0, v1")
        a("s_bitcmp1_b32 s2, 5\ns_cselect_b32 s7, (L_tB-L_tA)/128-4, 0\nv_mov_b32 v6, s7\nv_add_u32 v5, s6, v5\nv_cndmask_b32 v6, 0, v6, vcc\nv_cmp_gt_u32 vcc, 6, v3\nv_add3_u32 v4, v4, v6, -6")
        a("v_cndmask_b32 v4, v4, v5, vcc\nv_lshlrev_b32 v4, 7, v4\nv_min_u32 v4, L_cend-L_pc-4, v4")
        a("global_load_dword v0, v4, s[72:73]")
        a("v_min_u32 v3, 5, v2\nv_mad_u32_u24 v5, v1, 6, v3\nv_add_lshl_u32 v5, v5, s6, 7\nv_min_u32 v35, L_cend-L_pc-4, v5")
    a("v_readfirstlane_b32 s3, v1\nv_lshlrev_b32 v1, 4, v2")
    a(f"s_load_dwordx2 s[{SW}:{SW+1}], s[0:1], 72\ns_load_dwordx2 s[{SD}:{SD+1}], s[0:1], 48\ns_load_dwordx2 s[{SO}:{SO+1}], s[0:1], 16")
    a(f"s_load_dwordx2 s[{SOUT}:{SOUT+1}], s[0:1], 56\ns_load_dwordx2 s[62:63], s[0:1], 64")
    a("s_bfe_u32 s60, s2, 0x20001\ns_lshr_b32 s6, s2, 5\ns_lshl3_add_u32 s4, s60, s6")
    a("s_and_b32 s23, s2, 1\ns_bfe_u32 s6, s2, 0x20003\ns_lshl2_add_u32 s5, s23, s6\ns_lshl_b32 s23, s23, 3")
    a("s_lshr_b32 s52, s3, 1\ns_and_b32 s53, s3, 1")
    a("s_cmp_eq_u32 s3, 0\ns_cbranch_scc1 L_pf0\ns_cmp_eq_u32 s3, 1\ns_cbranch_scc1 L_pf1")
    a(f"s_mov_b32 s{SP+2}, {1024*3584*2}\ns_mov_b32 s59, {64*7168}")
    a("v_min_u32 v3, 27, v2\nv_cmp_le_u32 vcc, 14, v3\ns_lshl_b32 s6, s58, 1\ns_mul_i32 s7, s60, 1792\nv_cndmask_b32 v4, 0, 1, vcc\nv_mul_u32_u24 v5, 14, v4\nv_sub_u32 v5, v3, v5")
    a("v_add_u32 v4, s6, v4\nv_lshl_add_u32 v5, v5, 7, s7\ns_movk_i32 s57, 7168")
    a(f"v_mad_u32_u24 v{V_PF}, v4, s57, v5\ns_waitcnt lgkmcnt(0)\ns_cmp_eq_u32 s3, 2\ns_cselect_b32 s{SP}, s{SG}, s{SU}\ns_cselect_b32 s{SP+1}, s{SG+1}, s{SU+1}\ns_branch L_pfd")
    a("L_pf1:")
    a(f"s_mov_b32 s{SP+2}, {1024*3072*2}\ns_mov_b32 s59, {64*6144}")
    a("v_min_u32 v3, 23, v2\nv_cmp_le_u32 vcc, 12, v3\ns_lshl_b32 s6, s58, 1\ns_lshl_b32 s7, s60, 9\nv_cndmask_b32 v4, 0, 1, vcc\nv_mul_u32_u24 v5, 12, v4\nv_sub_u32 v5, v3, v5")
    a("v_add_u32 v4, s6, v4\nv_lshrrev_b32 v6, 2, v5\nv_and_b32 v5, 3, v5\nv_lshl_add_u32 v5, v5, 7, s7\nv_lshl_add_u32 v5, v6, 11, v5\ns_movk_i32 s57, 6144")
    a(f"v_mad_u32_u24 v{V_PF}, v4, s57, v5\ns_waitcnt lgkmcnt(0)\ns_mov_b32 s{SP}, s{SQ}\ns_mov_b32 s{SP+1}, s{SQ+1}\ns_branch L_pfd")
    a("L_pf0:")
    a(f"s_mov_b32 s{SP+2}, {2048*1024*2}\ns_mov_b32 s59, 128")
    a(f"s_lshl2_add_u32 s6, s23, s58\ns_lshl_b32 s6, s6, 5\nv_min_u32 v4, 31, v2\nv_add_u32 v4, s6, v4\nv_lshlrev_b32 v{V_PF}, 11, v4")
    a(f"s_waitcnt lgkmcnt(0)\ns_mov_b32 s{SP}, s{SX}\ns_mov_b32 s{SP+1}, s{SX+1}")
    a("L_pfd:")
    a(f"s_mov_b32 s{SP+3}, 0x20000\ns_mul_i32 s58, s23, s59")
    stamp("karg", True)
    PFA = [f"s_add_u32 s58, s23, {o['pfd'] + 1}", f"s_and_b32 s58, s58, {o.get('kmask', 15)}", "s_mul_i32 s58, s58, s59"]
    PFI = f"buffer_load_dword v0, v{V_PF}, {S(SP)}, s58 offen"
    for i in range(o["npf0"]): a(PFI); a("s_add_u32 s58, s58, s59")
    fin(SG, 1024*3584*2); fin(SU, 1024*3584*2); fin(SX, 2048*1024*2); fin(SQ, 1024*3072*2)
    a(f"s_lshl_b32 s20, s23, 7\ns_mul_i32 s21, s23, {64*6144}\ns_mul_i32 s22, s23, {64*7168}")
    a(f"s_lshl_b32 s54, s3, 13\ns_lshl_b32 s55, s3, 11\ns_add_u32 s55, s55, {W_OFF}\ns_lshl_b32 s56, s3, 10\ns_add_u32 s56, s56, {W_OFF + 32768}")
    a("s_lshl_b32 s6, s5, 8\ns_lshl_b32 s7, s3, 6\ns_add_u32 s6, s6, s7")
    a("v_lshrrev_b32 v3, 3, v2\nv_add_u32 v7, s6, v3\nv_lshlrev_b32 v7, 11, v7\nv_lshrrev_b32 v4, 4, v2\nv_and_b32 v5, 7, v2")
    for c in range(2):
        a(f"v_add_u32 v6, {4*c}, v4\nv_xor_b32 v6, v6, v5\nv_lshl_add_u32 v6, v6, 4, v7")
        for cc in range(c, 8, 2): a(f"v_add_u32 v{V_XV+cc}, {cc*8*2048}, v6")
    a("s_lshl_b32 s6, s52, 5\ns_lshl2_add_u32 s61, s53, s6")
    a("v_and_b32 v3, 3, v3\nv_lshrrev_b32 v6, 5, v2\nv_lshl_add_u32 v3, v6, 3, v3\nv_add_u32 v3, s61, v3")
    a("v_lshlrev_b32 v6, 1, v4\nv_xor_b32 v5, v5, v6\nv_lshlrev_b32 v5, 4, v5")
    a("s_lshr_b32 s0, s4, 1\ns_and_b32 s1, s0, 1\ns_mul_i32 s6, s0, 448\ns_movk_i32 s57, 7168")
    a("s_bitcmp1_b32 s2, 5\ns_cbranch_scc1 L_tB")

    def dma_list(ty, stage):
        b = stage*STAGE
        xs = [(f"s_add_u32 m0, s54, {b + c*1024}", f"buffer_load_dwordx4 v{V_XV+c}, {S(SX)}, s20 offen lds") for c in range(8)]
        def w(u, c, reg, srd, so, off=0):
            return (f"s_add_u32 m0, s55, {b + u*8192 + c*1024 - off}", f"buffer_load_dwordx4 v{reg}, {S(srd)}, s{so} offen{f' offset:{off}' if off else ''} lds")
        if ty == 0:
            ws = [w(u, c, V_WV+c, (SG, SU)[u], 22) for u in range(2) for c in range(2)]
            ws += [w(2, c, V_WV+2+c, SQ, 21) for c in range(2)] + [w(3, c, V_WV+2+c, SQ, 21, 2048) for c in range(2)] + [w(4, c, V_WV+4+c, SQ, 21) for c in range(2)]
        else:
            ws = [w(2*h+u, c, V_WV+c, (SG, SU)[u], 22, 128*h) for u in range(2) for c in range(2) for h in range(2)]
            ws += [(f"s_add_u32 m0, s56, {b + u*4096}", f"buffer_load_dwordx4 v{V_WV+2}, {S((SG, SU)[u])}, s22 offen lds") for u in range(2)]
        od = o.get("od", 0)
        if od == 1: return xs + ws
        if od == 2: return [y for p in zip(xs, ws) for y in p] + ws[8:]
        return ws + xs
    adv = ["s_add_u32 s23, s23, 1", f"s_and_b32 s23, s23, {o.get('kmask', 15)}", f"s_mul_i32 s22, s23, {64*7168}", f"s_mul_i32 s21, s23, {64*6144}", "s_lshl_b32 s20, s23, 7"]
    EV, ST0 = o["ev"], o["dst"]
    dpos = [ST0 + EV*i for i in range(18)]
    dpos = [p + 1 if p == 80 else p for p in dpos]
    n3 = sum(1 for p in dpos if p < 80)
    BL = [[("g", 0, 0), ("u", 1, 0), ("g", 0, 1), ("u", 1, 1), ("q", 2, 0), ("q", 2, 1), ("k", 3, 0), ("k", 3, 1), ("v", 4, 0), ("v", 4, 1)],
          [("g", 0, 0), ("u", 1, 0), ("g", 0, 1), ("u", 1, 1), ("h", 0, 2), ("h", 1, 2), ("g", 2, 0), ("u", 3, 0), ("g", 2, 1), ("u", 3, 1)]]
    def xread(stage, tb, ks): return f"ds_read_b128 {xf(tb, ks)}, v{V_XR + stage*2 + ks} offset:{tb*2048}"
    def wread(ty, stage, cb):
        t, u, i = BL[ty][cb]; L = []
        for ks in range(2):
            for rd in range(2):
                row = 32*ks + 16*rd
                off = u*4096 + row*64 if t == "h" else u*8192 + row*128
                L.append(f"ds_read_b64_tr_b16 {ar(wfb(cb, ks)+2*rd, 2)}, v{V_WR + 2*i + stage} offset:{off}")
        return L
    def mfmas(ty, half):
        L = []
        for cb, (t, u, i) in enumerate(BL[ty]):
            for n, tb in enumerate(range(4*half, 4*half+4)):
                for ks in ((0, 1) if n % 2 == 0 else (1, 0)):
                    x, w = xf(tb, ks), ar(wfb(cb, ks), 4)
                    A, B = (x, w) if t in "kv" else (w, x)
                    L.append(f"v_mfma_f32_16x16x32_bf16 {acc(tb, cb)}, {A}, {B}, {acc(tb, cb)}")
        return L
    V_BV = 8
    def n0(T): return [0, 2, 12, 8][T & 3] + 14*(T >> 2) if T < 16 else 7*(T-16) + 4 - (T & 1) if T < 24 else 14*(T-24) + 6
    def bdma(slot, ph):
        s_, so = (S(SD) if ph == "f" else S(SO)), 15
        return [(f"s_add_u32 m0, s18, {slot*16384 + c*1024}", f"buffer_load_dwordx4 v{V_BV+c}, {s_}, s{so} offen lds") for c in range(4)]
    def put(slots, dm):
        for pre, m, d, p in dm:
            for k, x in enumerate(pre): slots[p - 1 - len(pre) + k].append(x)
            slots[p-1].append(m); slots[p].append(d)
    def atomic(off):
        return f"v_mov_b32 v{V_SEL}, {off}\nv_mov_b32 v{V_SEL+1}, 1\ns_mov_b64 exec, 1\nglobal_atomic_add v{V_SEL}, v{V_SEL+1}, s[62:63] sc1\ns_mov_b64 exec, -1"
    def fill(slots, items, lo, hi):
        p = lo
        for x in items:
            x = x if isinstance(x, list) else [x]
            while True:
                assert p <= hi, "no room"
                nv = sum(cls(y) > 0 for y in slots[p]); ns_ = sum(cls(y) == 0 for y in slots[p])
                if ns_ + len(x) <= (3 if nv == 0 else 1) and not any("m0" in y or "waitcnt" in y for y in slots[p]): break
                p += 1
            slots[p].extend(x)
    def aux_prep(ty, stage):
        ss = PFA + [f"s_sub_u32 s60, s71, {o['pf2s']}", "s_min_u32 s60, s60, 64", "s_mul_i32 s60, s60, 1664",
                    "s_sub_u32 s61, s71, 10", "s_min_u32 s61, s61, 64", "s_add_u32 s61, s61, 4"]
        ss += ["s_sub_u32 s6, s71, 4", [f"s_cmp_lt_u32 s6, {2 if ty else 4}", "s_cselect_b32 s61, s6, s61"]]
        ss += ["s_lshl_b32 s61, s61, 10"]
        ss += [f"s_sub_u32 s6, s71, {o['rs']}", "s_lshl2_add_u32 s0, s3, s6", "s_lshl4_add_u32 s1, s2, s0", "s_lshl_b32 s0, s0, 10", "s_lshl_b32 s1, s1, 10", f"s_add_u32 s0, s0, {MB}",
               ["s_cmp_lt_u32 s6, 4", "s_cselect_b32 s0, s0, 0x28000", f"s_cselect_b32 s1, s1, {BIG}"]]
        if stage == 1: ss += [["s_cmp_eq_u32 s57, s68", f"s_cselect_b32 s7, s69, {BIG}"]]
        return ss
    def phase1(ty, stage, kind, dm):
        slots = {i: [] for i in range(-1, 80)}
        slots[-1].append("s_waitcnt lgkmcnt(4)")
        rl = wread(ty, stage, 9) + [xread(stage, tb, ks) for tb in range(4, 8) for ks in range(2)]
        for i, r in enumerate(rl): slots[1 + 3*i].append(r)
        slots[63].append("s_waitcnt lgkmcnt(0)")
        put(slots, dm)
        if kind == "loop":
            fill(slots, aux_prep(ty, stage), 36, 62)
            fill(slots, adv, max(64, dpos[-1] - 79), 78)
            nm = f"L_cs{ty}{stage}"
            slots[79].extend(["s_cmp_eq_u32 s57, s68" if not o.get("nocs") else "s_cmp_eq_u32 s57, 77", f"s_cbranch_scc1 {nm}", f"{nm}_d:"])
            ool(f"{nm}:\nv_and_b32 v{V_SEL}, 15, v2\nv_cmp_eq_u32 vcc, 0, v{V_SEL}\nv_mov_b32 v{V_SEL+1}, 0x3f803f80\ns_cmp_eq_u32 s53, 0\nv_cndmask_b32 v{V_SEL}, 0, v{V_SEL+1}, vcc")
            ool(f"v_mov_b32 v{V_SEL+1}, v{V_SEL}\nv_mov_b32 v{V_SEL+2}, v{V_SEL}\nv_mov_b32 v{V_SEL+3}, v{V_SEL}\ns_nop 1\ns_cbranch_scc0 {nm}_1")
            for wr in range(2):
                if wr: ool(f"{nm}_1:")
                for n in range(5):
                    for ks in range(2):
                        c = "0" if stage == 0 and n == 0 and ks == 0 else vr(V_CSA, 4)
                        ool(f"v_mfma_f32_16x16x32_bf16 {vr(V_CSA, 4)}, {ar(wfb(5*wr+n, ks), 4)}, {vr(V_SEL, 4)}, {c}")
                    if n < 4:
                        for r in range(4): ool(f"v_mov_b32_dpp v{V_SEL+r}, v{V_SEL+r} row_shr:1 row_mask:0xf bank_mask:0xf bound_ctrl:0")
                ool(f"s_branch {nm}_d")
        if kind == "s15" and o["pf3"]:
            vv = ["v_bfe_u32 v12, v2, 3, 2", "v_lshlrev_b32 v12, 2, v12", "v_lshrrev_b32 v12, v12, v14", "v_and_b32 v12, 15, v12", "v_lshrrev_b32 v13, 5, v2", "v_mad_u32_u24 v12, v13, 14, v12",
                  "v_and_b32 v15, 7, v2", "v_lshl_add_u32 v15, v15, 7, s6", "v_lshl_add_u32 v12, v12, 16, v15"]
            v2_ = ["v_bfe_u32 v16, v2, 3, 2", "v_mul_u32_u24 v17, 7, v16", "v_and_b32 v16, 1, v16", "v_sub_u32 v16, v17, v16", "v_add_u32 v16, 4, v16", "v_lshl_add_u32 v16, v16, 16, v15",
                   f"v_add_u32 v17, {42*65536}, v12", "v_cmp_gt_u32 vcc, 32, v2", f"v_add_u32 v18, {28*65536}, v16", f"v_add_u32 v12, {14*65536}, v12", "v_cndmask_b32 v16, v16, v17, vcc"]
            ss = ["s_lshr_b32 s6, s2, 3", "s_lshl2_add_u32 s6, s6, s3", "s_lshl_b32 s6, s6, 10", f"s_mul_i32 s7, s20, {1792*2048}", "s_add_u32 s6, s6, s7"]
            fill(slots, ss, 0, 12)
            slots[0].append("v_mov_b32 v14, 0x8c20")
            p = 14
            for x in vv + v2_:
                while sum(cls(y) > 0 for y in slots[p]) >= 1: p += 1
                slots[p].append(x)
            assert p < 60
            slots[62].append(f"buffer_load_dword v0, v12, {S(SD)}, 0 offen")
            if o["pf3"] > 1: slots[70].append(f"buffer_load_dword v0, v16, {S(SD)}, 0 offen")
            if o["pf3"] > 2: slots[76].extend(["s_mov_b32 exec_lo, 0", f"buffer_load_dword v0, v18, {S(SD)}, 0 offen", "s_mov_b32 exec_lo, -1"])
        if kind == "s14":
            slots[2].append("v_and_b32 v35, 1, v2"); slots[3].append("v_lshlrev_b32 v35, 7, v35")
            slots[6].append("global_load_dword v3, v35, s[62:63] sc1")
            ss = ["s_mul_i32 s6, s4, 10240", f"s_add_u32 s6, s6, {WS_CS}", "s_mul_i32 s7, s5, 6144", f"s_add_u32 s7, s7, {WS_ST - 10240}", "s_lshl_b32 s1, s3, 12", "s_add_u32 s6, s6, s1", "s_add_u32 s7, s7, s1",
                  ["s_cmp_lt_u32 s3, 3", "s_cselect_b32 s58, s6, s7"], ["s_cmp_lt_u32 s3, 2", "s_cselect_b32 s59, s6, s7"]]
            spread(slots, ss, 64, 78)
        emit(a, mfmas(ty, 0), slots)
    def phase2(ty, stage, kind, dm, nwait=0):
        slots = {i: [] for i in range(-1, 80)}
        ms = mfmas(ty, 1)
        slots[0].extend([f"s_waitcnt vmcnt({nwait})", "s_barrier"])
        if kind != "s15":
            xr = [xread(stage ^ 1, tb, ks) for tb in range(4) for ks in range(2)]
            for i, p in enumerate([5, 7, 14, 22, 30, 38, 46, 54]): slots[p].append(xr[i])
            for cb in range(9):
                for i, r in enumerate(wread(ty, stage ^ 1, cb)): slots[8*(cb+1) + [1, 3, 5, 7][i]].append(r)
        put(slots, dm)
        if kind == "loop":
            if not o.get("nopf"): slots[o["pfp"]].append(PFI)
            if not o.get("nopf2"): slots[o["pf2p"]].append(f"buffer_load_dword v0, v{V_PF2}, {S(SP2)}, s60 offen")
            if not o.get("noinit"): slots[o["inp"]].append(f"buffer_store_dwordx4 {vr(V_SENT, 4)}, v1, {S(SI)}, s61 offen sc1")
            if stage == 0 and o["cpf"] > 1: slots[o["csp"]].append("global_load_dword v0, v35, s[72:73]")
            if stage == 1: slots[o["csp"]].append(f"buffer_store_dwordx4 {vr(V_CSA, 4)}, v{V_CSO}, {S(SW)}, s7 offen sc1")
            if not o.get("nostat"):
                slots[o["rp"]-1].append("s_mov_b32 m0, s0"); slots[o["rp"]].append(f"buffer_load_dwordx4 v1, {S(SX)}, s1 offen lds")
            slots[o["atp"]].extend(["s_cmp_eq_u32 s71, s70", f"s_cbranch_scc1 L_atom{ty}{stage}", f"L_atom{ty}{stage}_d:"])
            ool(f"L_atom{ty}{stage}:\ns_and_b32 s6, s2, 1\ns_lshl_b32 s6, s6, 7\n{atomic('s6')}\ns_branch L_atom{ty}{stage}_d")
            slots[o["atp"]+2].append("s_add_u32 s71, s71, 1")
        if kind == "s14":
            nm = f"L_ini{ty}"
            cmp = "v_cmp_gt_u32 vcc, 0x80, v3"
            slots[1].append(cmp)
            slots[3].extend([f"s_cbranch_vccnz {nm}_s", f"{nm}_d:"])
            spin_ool(nm, cmp, "global_load_dword v3, v35, s[62:63] sc1")
            vv = ["v_lshrrev_b32 v12, 3, v2", "v_bfe_u32 v13, v2, 4, 2", "v_lshlrev_b32 v13, 1, v13", "v_and_b32 v14, 7, v2", "v_xor_b32 v14, v14, v13",
                  "v_lshlrev_b32 v14, 4, v14", f"v_lshl_add_u32 v{V_BV}, v12, 11, v14"] + [f"v_add_u32 v{V_BV+c}, {16384*c}, v{V_BV}" for c in range(1, 4)]
            for i, x in enumerate(vv): slots[8 + 2*i].append(x)
            ss = ["s_bfe_u32 s20, s2, 0x10002", "s_and_b32 s6, s2, 1", "s_bfe_u32 s7, s2, 0x10001", "s_lshl1_add_u32 s6, s6, s7", "s_lshr_b32 s7, s2, 6", "s_lshl2_add_u32 s21, s6, s7",
                  "s_bfe_u32 s22, s2, 0x20003", "s_bfe_u32 s7, s2, 0x10005", "s_lshl1_add_u32 s22, s22, s7" if o["ctm"] else "s_lshl2_add_u32 s22, s7, s22", "s_lshl_b32 s22, s22, 8",
                  f"s_mul_i32 s14, s20, {1792*2048}", "s_add_u32 s14, s14, s22", "s_xor_b32 s6, s53, s20", "s_lshl_b32 s6, s6, 7", "s_add_u32 s14, s14, s6",
                  "s_lshl_b32 s18, s3, 12", "s_lshl_b32 s15, s52, 16", "s_add_u32 s14, s15, s14", "s_mov_b32 s15, s14"]
            for i, x in enumerate(ss): slots[7 + i].insert(0, x)
        if kind == "s15":
            slots[1].extend(["s_mul_i32 s6, s3, 320", "v_lshl_add_u32 v32, v2, 3, s6"])
            slots[2].append(f"v_add_u32 v33, {MB}, v32")
            for r in range(8): slots[4 + r].append(f"ds_read_b64 v[{16+2*r}:{17+2*r}], v33 offset:{r*1280}")
            slots[20].append("s_waitcnt lgkmcnt(0)")
            k = 21
            for stp in (8, 4, 2):
                for i in range(stp): slots[k].append(f"v_add_f32 v{16+i}, v{16+i}, v{16+stp+i}"); k += 1
            slots[k].append(f"v_add_u32 v32, {CSS}, v32")
            slots[k+2].append("ds_write_b64 v32, v[16:17]")
            vv = ["v_and_b32 v44, 15, v2", "v_lshrrev_b32 v45, 4, v2", "v_add_u32 v44, s7, v44", "v_lshlrev_b32 v44, 4, v44", f"v_add_u32 v44, {MB_AOS}, v44",
                  "v_lshl_add_u32 v45, v45, 4, s64", "v_bfe_u32 v46, v2, 1, 3", "v_bfe_u32 v47, v2, 4, 1", "v_lshl_or_b32 v46, v46, 4, v47", "v_and_b32 v47, 1, v2", "v_lshl_or_b32 v46, v46, 2, v47", "v_lshlrev_b32 v46, 14, v46", "v_mov_b32 v3, 1"]
            for i, x in enumerate(vv): slots[k + 4 + i].append(x)
            ss = ["s_lshl_b32 s7, s53, 7", "s_mul_i32 s64, s52, 640", f"s_add_u32 s64, s64, {CSS}",
                  "s_lshl1_add_u32 s0, s5, s53", f"s_mul_i32 s1, s0, {4*STRM}", "s_lshr_b32 s6, s4, 4", "s_mul_i32 s48, s6, 56", "s_add_u32 s48, s48, 32", "s_and_b32 s56, s4, 15",
                  "s_lshl1_add_u32 s41, s56, s52", "s_add_u32 s40, s41, s48", "s_lshl_b32 s40, s40, 11", "s_add_u32 s40, s40, s1",
                  ]
            if ty == 0:
                ss += ["s_add_u32 s41, s4, s52", "s_lshl_b32 s44, s41, 11", "s_add_u32 s44, s44, s1",
                       ]
            else:
                ss += ["s_add_u32 s41, s56, s52", "s_sub_u32 s41, s41, 1", "s_add_u32 s44, s41, s48", "s_add_u32 s44, s44, 32", "s_lshl_b32 s44, s44, 11", "s_add_u32 s44, s44, s1",
                       "s_lshl1_add_u32 s48, s48, s41", "s_add_u32 s48, s48, 96", "s_lshl_b32 s48, s48, 10", "s_add_u32 s48, s48, s1",
                       ]
            for b in (40, 44, 48)[:2+ty]:
                for i in range(1, 4): ss.append(f"s_add_u32 s{b+i}, s{b}, {i*STRM}")
            ss += ["s_bfe_u32 s58, s21, 0x20001", "s_lshr_b32 s59, s21, 3", "s_lshl3_add_u32 s58, s58, s59", "s_and_b32 s59, s21, 1", "s_lshl2_add_u32 s58, s58, s59",
                   "s_lshl4_add_u32 s59, s20, s58", "s_lshl3_add_u32 s69, s3, s58", "s_lshl_b32 s59, s59, 13", "s_lshl_b32 s69, s69, 13", f"s_add_u32 s59, s59, {WS_I}", f"s_add_u32 s69, s69, {WS_I}",
                   "s_lshl_b32 s60, s53, 22", "s_lshl_b32 s0, s52, 16", "s_add_u32 s60, s60, s0", "s_add_u32 s60, s60, s59", f"s_add_u32 s60, s60, {1 << 20}",
                   "s_lshl2_add_u32 s19, s21, s3", f"s_mul_i32 s13, s19, {STRM}", f"s_mul_i32 s12, s20, {56*2048}", "s_add_u32 s12, s12, s13", f"s_add_u32 s12, s12, {32*2048}",
                   "s_lshl_b32 s0, s20, 7", "s_add_u32 s0, s0, s22", "s_lshl_b32 s19, s19, 16", "s_add_u32 s19, s19, s0", "s_lshl_b32 s17, s3, 16", "s_add_u32 s17, s17, s0",
                   "s_lshl2_add_u32 s61, s2, s3", "s_lshl_b32 s61, s61, 13", f"s_xor_b32 s65, s61, {16*8192}", f"s_add_u32 s54, s61, {WS_I}", f"s_add_u32 s55, s65, {WS_I}", f"s_add_u32 s61, s61, {WS_I + 4096}", f"s_add_u32 s65, s65, {WS_I + 4096}",
                   f"s_mov_b32 s68, {f2u(1e-6)}", f"s_mov_b32 s56, {f2u(LOG2E)}"]
            assert len(ss) <= 72, len(ss)
            for i, x in enumerate(ss): slots[3 + i].insert(0, x)
            vx = ["v_and_b32 v4, 15, v2", "v_lshlrev_b32 v4, 11, v4", "v_and_b32 v5, 48, v2", "v_add_u32 v4, v4, v5", "v_add_u32 v5, 32768, v4"]
            for i, x in enumerate(vx): slots[56 + i].append(x)
            for i in range(4): slots[72 + 2*i].append(f"buffer_load_dwordx4 {ar(16 + 4*i, 4)}, v{4 + (i>>1)}, {S(SX)}, s19 offen offset:{(i&1)*64}")
        emit(a, ms, slots)
    VF, VQ, VS = 144, 112, 176
    D = 3; R = 4; nf, ns = 28, 8; T = nf + ns; NU = 16
    V_BR, V_A2, V_AO, V_XO, V_P2, V_P3 = 36, 40, 41, 42, 24, 25
    PL, PK, XF, SE, SX0, G = 64, 80, 208, 12, 20, 48
    CS, TK, Z, Z2 = 12, 28, 36, 240
    TP = nf + o['pl']; TC = TP + 2
    def af(slot, i): return ar(slot*32 + i*4, 4)
    def bf(p, u, cb): return 128 + p*64 + (u*4+cb)*4
    def facc(ch, cb, tb): return (VF, VQ, VS)[ch] + (cb*2+tb)*4
    def ph(t): return "f" if t < nf else ("s" if t < T else None)
    def al(t):
        slot = t % R
        if 24 <= t < nf:
            L = [f"buffer_load_dwordx2 {ar(slot*32 + (ks*2+tb)*4 + 2*h, 2)}, v{V_AO}, {S(SW)}, s12 offen offset:{ks*2048 + h*1024 + tb*512} sc1 ;@A{t}" for ks in range(2) for h in range(2) for tb in range(2)]
            return L, "s_add_u32 s12, s12, 4096"
        n, so = (4, 12) if ph(t) == "f" else (8, 13)
        L = [f"buffer_load_dwordx4 {af(slot, i)}, v{1 if i < 4 else V_A2}, {S(SW)}, s{so} offen offset:{(i&3)*1024} sc1 ;@A{t}" for i in range(n)]
        return L, f"s_add_u32 s{so}, s{so}, {n*1024}"
    def rl(t):
        slot, p = t % R, t & 1
        od = [(ks*2+ch, cb) for ch in range(2) for cb in range(4) for ks in range(2)] if ph(t) == "f" else [(u, cb) for cb in range(4) for u in range(4)]
        return [f"ds_read_b64_tr_b16 {ar(bf(p, u, cb) + rd*2, 2)}, v{V_BR + cb} offset:{slot*16384 + u*4096 + rd*2048}" for u, cb in od for rd in range(2)]
    def ml(t):
        slot, p = t % R, t & 1; L = []
        if ph(t) == "f":
            for ch in range(2):
                for cb in range(4):
                    for tb in range(2):
                        for n, ks in enumerate((0, 1) if tb == 0 else (1, 0)):
                            c = vr(facc(ch, cb, tb), 4)
                            L.append(f"v_mfma_f32_16x16x32_bf16 {c}, {ar(bf(p, ks*2+ch, cb), 4)}, {af(slot, ks*2+tb)}, {0 if t == 0 and n == 0 else c}")
        else:
            for cb in range(4):
                for tb in range(2):
                    for n, ks in enumerate(range(4) if tb == 0 else (3, 2, 1, 0)):
                        c = vr(facc(2, cb, tb), 4)
                        L.append(f"v_mfma_f32_16x16x32_bf16 {c}, {ar(bf(p, ks, cb), 4)}, {af(slot, ks*2+tb)}, {0 if t == nf and n == 0 else c}")
        return L
    def build(t, tags=(), first=(), xm=0):
        ms = ml(t); n = 32 + xm
        slots = {i: [] for i in range(-1, n)}
        slots[-1].append(f"s_waitcnt @{','.join([f'A{t}', f'B{t+1}'] + list(tags))} lgkmcnt(0)")
        if ph(t+1):
            slots[0].append("s_barrier")
            spread(slots, rl(t+1), 0, n - 5)
        b0 = len(first)
        for i, x in enumerate(first): slots[1+i].extend(x if isinstance(x, list) else [x])
        u = t + D + 1
        if ph(u):
            st_ = 3 if b0 < 2 else 2
            slots[b0].append(f"s_add_u32 s15, s14, {n0(u)*65536}" if ph(u) == "f" else f"s_add_u32 s15, s17, {(u-nf)*128*2048}")
            for c, (m, d) in enumerate(bdma(u % R, ph(u))):
                slots[b0+1+st_*c].append(m); slots[b0+2+st_*c].append(d + f" ;@B{u}" + (f",F{t}" if c == 0 else ""))
        if ph(t+D):
            L, ad = al(t+D)
            spread(slots, L, 14, n - 2); slots[n-1].append(ad)
        return ms, slots
    def check(slots, name, cmps, reload):
        for i, x in enumerate(cmps): slots[i].append(x)
        k = len(cmps) + 1
        slots[k].extend([f"s_cbranch_vccnz {name}_s", f"{name}_d:"])
        spin_ool(name, "\n".join(cmps), "\n".join(reload))
        return k
    def maxtree(b, n):
        return [f"v_max3_u32 v4, v{b}, v{b+1}, v{b+2}", f"v_max3_u32 v5, v{b+3}, v{b+4}, v{b+5}"] + [f"v_max3_u32 v{4+(i&1)}, v{4+(i&1)}, v{b+6+2*i}, v{b+7+2*i}" for i in range((n-6)//2)] + ["v_max_u32 v4, v4, v5", "v_cmp_eq_u32 vcc, -1, v4"]
    def FLG(sreg, off=0): return ["s_mov_b64 exec, 1", f"buffer_store_dword v3, off, {S(SW)}, s{sreg} offset:{off} sc1", "s_mov_b64 exec, -1"]
    def POLL(sreg, v, off=0): return f"buffer_load_dword v47, v{v}, {S(SW)}, s{sreg} offen offset:{off} sc1 ;@poll"
    CMP1 = ["v_cmp_ne_u32 vcc, 1, v47"]
    paths = [[], []]

    for ty in range(2):
        vm = VM(a)
        if ty == 0:
            a("L_tA:")
            a("s_mul_i32 s7, s1, 320\ns_add_u32 s6, s6, s7\nv_add_u32 v6, s6, v5")
            a(f"v_mad_u32_u24 v{V_WV}, v3, s57, v6\ns_movk_i32 s57, 6144\ns_lshl_b32 s6, s0, 7\nv_add_u32 v{V_WV+1}, {16*7168}, v{V_WV}\nv_add_u32 v6, s6, v5")
            a(f"v_mad_u32_u24 v{V_WV+2}, v3, s57, v6\nv_add_u32 v{V_WV+3}, {16*6144}, v{V_WV+2}\nv_add_u32 v{V_WV+4}, 4096, v{V_WV+2}\nv_add_u32 v{V_WV+5}, 4096, v{V_WV+3}")
        else:
            a("L_tB:")
            a("s_lshr_b32 s7, 128, s1\ns_add_u32 s7, s6, s7\nv_add_u32 v6, s7, v5")
            a(f"v_mad_u32_u24 v{V_WV}, v3, s57, v6\ns_xor_b32 s7, s1, 1\ns_mul_i32 s7, s7, 384\ns_add_u32 s7, s6, s7\nv_add_u32 v{V_WV+1}, {16*7168}, v{V_WV}")
            a("v_bfe_u32 v3, v2, 2, 2\nv_lshl_add_u32 v3, v4, 3, v3\nv_add_u32 v3, s61, v3\nv_and_b32 v5, 3, v2\nv_and_b32 v6, 1, v4\nv_lshlrev_b32 v6, 1, v6\nv_xor_b32 v5, v5, v6\nv_lshl_add_u32 v5, v5, 4, s7")
            a(f"v_mad_u32_u24 v{V_WV+2}, v3, s57, v5")
        stamp("addr", True)
        zero = [f"v_accvgpr_write_b32 a{A_ACC+i}, 0" for i in range(112)] + [f"v_mov_b64 v[{i}:{i+1}], 0" for i in range(48, 256, 2)]
        for m, d in dma_list(ty, 0):
            a(m)
            for _ in range(o["zper"]):
                if zero: a(zero.pop(0))
            t_st0 = vm(d)
        if o["pro"]: a("s_barrier")
        if o["npf0"] < 2 <= o["npf1"]:
            if o["npf0"] == 0: a("s_add_u32 s58, s58, s59")
            vm(PFI); a("s_add_u32 s58, s58, s59")
        if o["pro"] == 2: vm(PFI)
        a.extend(adv)
        stamp("dma", True)
        fin(SW, WS_SIZE); fin(SD, 3584*1024*2); fin(SO, 1024*1024*2); fin(SOUT, 2048*1024*2)
        a(f"s_lshl2_add_u32 s6, s2, s3\ns_lshl_b32 s6, s6, 13\ns_add_u32 s6, s6, {WS_I}\ns_add_u32 s{SI}, s{SW}, s6\ns_addc_u32 s{SI+1}, s{SW+1}, 0")
        fin(SI, 8192)
        a(f"s_mul_i32 s6, s2, 28672\ns_mul_i32 s7, s3, 9600\ns_add_u32 s6, s6, s7\ns_sub_u32 s7, 28672, s7\ns_min_u32 s7, s7, 9600\ns_lshl_b32 s0, s2, 13")
        a(f"s_cmp_eq_u32 s3, 3\ns_cselect_b32 s6, s0, s6\ns_cselect_b32 s{SP2+2}, 8192, s7\ns_cselect_b32 s0, s{SO}, s{SD}\ns_cselect_b32 s1, s{SO+1}, s{SD+1}")
        a(f"s_add_u32 s{SP2}, s0, s6\ns_addc_u32 s{SP2+1}, s1, 0\ns_mov_b32 s{SP2+3}, 0x20000")
        a("v_and_b32 v3, 15, v2\nv_bfe_u32 v5, v3, 1, 3\ns_lshl_b32 s6, s53, 7\nv_add_u32 v7, s6, v3\nv_lshlrev_b32 v7, 7, v7")
        for ks in range(2):
            a(f"v_add_u32 v6, {ks*4}, v4\nv_xor_b32 v6, v6, v5\nv_lshl_add_u32 v{V_XR+ks}, v6, 4, v7\nv_add_u32 v{V_XR+2+ks}, {STAGE}, v{V_XR+ks}")
        a(f"s_mul_i32 s6, s3, 320\nv_lshl_add_u32 v5, v3, 6, s6\nv_lshl_add_u32 v5, v4, 4, v5\nv_cmp_gt_u32 vcc, 5, v3\nv_mov_b32 v6, {BIG}\nv_lshlrev_b32 v{V_PF2}, 7, v2\nv_cndmask_b32 v{V_CSO}, v6, v5, vcc")
        a(f"v_cmp_gt_u32 vcc, 13, v2\nv_and_b32 v3, 3, v2\nv_lshlrev_b32 v3, 3, v3\nv_cndmask_b32 v{V_PF2}, v6, v{V_PF2}, vcc")
        a(f"v_lshrrev_b32 v5, 2, v2\nv_add_u32 v3, {W_OFF}, v3\nv_lshl_add_u32 v6, v5, 7, v3\nv_bfe_u32 v7, v2, 3, 2\ns_lshl_b32 s6, s52, 1\nv_xor_b32 v7, s6, v7")
        a(f"v_lshl_add_u32 v{V_WR}, v7, 5, v6\nv_xor_b32 v7, 1, v7\nv_lshl_add_u32 v{V_WR+2}, v7, 5, v6")
        if ty == 1:
            a(f"v_lshl_add_u32 v6, v5, 6, v3\nv_and_b32 v7, 1, v4\nv_xor_b32 v7, s52, v7\nv_lshl_add_u32 v6, v7, 5, v6\nv_add_u32 v{V_WR+4}, 32768, v6")
        for r in range(V_WR, V_WR + 4 + 2*ty, 2): a(f"v_add_u32 v{r+1}, {STAGE}, v{r}")
        a(f"s_bfe_u32 s68, s2, 0x20003\ns_lshl3_add_u32 s69, s4, s5\ns_mul_i32 s69, s69, 1280\ns_add_u32 s69, s69, {WS_CS}\ns_mov_b32 s57, 0\ns_mov_b32 s71, 0\ns_lshl4_add_u32 s70, s3, s68\ns_add_u32 s70, s70, 8")
        a.extend(zero)
        a("v_mov_b64 v[4:5], -1\nv_mov_b64 v[6:7], -1")
        stamp("zero", True)
        if not o["pro"]:
            for m, d in dma_list(ty, 1)[:n3]: a(m); vm(d)
            if o["npf0"] < 3 <= o["npf1"]: vm(PFI)
        vm.wait(t_st0)
        a("s_barrier")
        stamp("loop", True)
        if o.get("cnt"): a("s_mov_b32 s72, 0")
        pre = [xread(0, tb, ks) for tb in range(4) for ks in range(2)] + [x for cb in range(9) for x in wread(ty, 0, cb)]
        dl = list(dma_list(ty, 1)[:n3]) if o["pro"] else []
        for i, x in enumerate(pre):
            if dl and i % 6 == 4: a(dl[0][0])
            a(x)
            if dl and i % 6 == 4: a(dl.pop(0)[1])
        assert not dl
        if o["pro"] == 1 and o["npf1"] >= 3: a(PFI)
        a(".p2align 6")
        a.label(f"L_loop{ty}")
        def d1(stage): return [([], m, d, p-80) for (m, d), p in zip(dma_list(ty, stage ^ 1)[n3:], dpos[n3:])]
        def d2(stage): return [([], m, d, p) for (m, d), p in zip(dma_list(ty, stage)[:n3], dpos[:n3])]
        for stage in range(2):
            phase1(ty, stage, "loop", d1(stage))
            phase2(ty, stage, "loop", d2(stage))
        a("s_add_u32 s57, s57, 1")
        for it in (1, 2, 4, 6):
            if o["stamps"] and f"i{it}" in sset:
                a(f"s_cmp_eq_u32 s57, {it}\ns_cbranch_scc0 L_st{ty}{it}"); stamp(f"i{it}", True); a(f"L_st{ty}{it}:")
        a(f"s_cmp_eq_u32 s57, {77 if o.get('nostat') else o['sh']}\ns_cbranch_scc1 L_sh{ty}\ns_cmp_lt_u32 s57, 7\ns_cbranch_scc1 L_loop{ty}")
        ool(f"L_sh{ty}:\ns_lshl_b32 s7, s3, 12\ns_add_u32 s7, s7, {MB}\nv_add_u32 v3, s7, v1\ns_mov_b32 s6, 0x3f803f80")
        DR = [V_T, V_CSA, V_SEL]
        for i in range(3): ool(f"ds_read_b128 {vr(DR[i], 4)}, v3 offset:{1024*i}")
        ool(f"s_lshr_b32 s0, s2, 5\ns_mul_i32 s0, s0, 6144\ns_add_u32 s0, s0, {WS_ST}\ns_and_b32 s7, s2, 31\ns_lshl2_add_u32 s7, s7, s3\ns_lshl3_add_u32 s1, s7, s0\ns_add_u32 s1, s1, 4096\ns_lshl_b32 s7, s7, 5\ns_add_u32 s0, s0, s7")
        for i in range(4):
            ool(f"s_waitcnt lgkmcnt({[2, 2, 1, 0][i]})")
            r = i >> 1
            for q in range(4):
                x = DR[i % 3] + q; f = (i & 1) == 0 and q == 0
                ool(f"v_dot2_f32_bf16 v{4+r}, v{x}, s6, {'0' if f else f'v{4+r}'}\nv_dot2_f32_bf16 v{6+r}, v{x}, v{x}, {'0' if f else f'v{6+r}'}")
            if i == 0: ool(f"ds_read_b128 {vr(DR[0], 4)}, v3 offset:3072")
        ool(f"v_lshrrev_b32 v46, 3, v2\nv_lshrrev_b32 v47, 1, v2\nv_mov_b32 v45, {f2u(1.0/1024)}")
        ool("v_permlane32_swap_b32 v4, v5\nv_permlane32_swap_b32 v6, v7\nv_add_f32 v4, v4, v5\nv_add_f32 v6, v6, v7\nv_permlane16_swap_b32 v4, v6\nv_add_f32 v4, v4, v6")
        for sh in (8, 4, 2, 1): ool(f"v_add_f32_dpp v4, v4, v4 row_ror:{sh} row_mask:0xf bank_mask:0xf")
        ool("v_mov_b32 v6, v4\nv_permlane16_swap_b32 v4, v6")
        ool(f"v_mul_f32 v36, {f2u(-1.0/1024)}, v4\nv_mul_f32 v44, v36, v36\nv_fma_f32 v44, v6, v45, -v44\nv_max_f32 v44, 0, v44\nv_add_f32 v39, {f2u(1e-5)}, v44")
        ool(f"v_rsq_f32 v44, v39\nv_mov_b64 v[4:5], -1\nv_mul_f32 v37, {f2u(GA1)}, v44\nv_mul_f32 v45, v44, v44\nv_mul_f32 v38, {f2u(0.044715)}, v37\nv_mul_f32 v38, v38, v45\nv_mov_b64 v[6:7], -1")
        ool(f"s_mov_b32 exec_lo, 1\ns_mov_b32 exec_hi, 1\nbuffer_store_dwordx4 v[36:39], v47, {S(SW)}, s0 offen sc1\nbuffer_store_dword v36, v46, {S(SW)}, s1 offen sc1\nbuffer_store_dword v44, v46, {S(SW)}, s1 offen offset:1024 sc1\ns_mov_b64 exec, -1")
        ool(f"s_branch L_loop{ty}")
        stamp("s14", True)
        phase1(ty, 0, "s14", d1(0))
        tail = [([], f"s_add_u32 m0, s1, {MB}" if c == 0 else "s_nop 0", f"buffer_load_dwordx4 v1, {S(SW)}, s{58 + (c >> 1)} offen offset:{c*1024} sc1 lds") for c in range(4)]
        for t in range(4):
            for c, (m, d) in enumerate(bdma(t, "f")):
                tail.append(([f"s_add_u32 s15, s14, {n0(t)*65536}"] if c == 0 and t else [], m, d))
        tp = [6, 12, 18, 24] + [32 + 7*i for i in range(16)]
        tp = [p if p not in (80, 81) else 83 for p in tp]
        phase2(ty, 0, "s14", [(pre, m, d, p) for (pre, m, d), p in zip(tail, tp) if p < 80])
        stamp("s15", True)
        phase1(ty, 1, "s15", [(pre, m, d, p-80) for (pre, m, d), p in zip(tail, tp) if p >= 80])
        phase2(ty, 1, "s15", [], nwait=16 + o["pf3"])
        a("s_waitcnt lgkmcnt(0)\ns_barrier")
        stamp("e0", True)
        p0 = len(a.lines)
        def rd_cs(cb0, n):
            for i in range(n): a(f"ds_read_b128 v[{CS+4*i}:{CS+4*i+3}], v45 offset:{(cb0+i)*64}")
        def rd_tk(tb): a(f"ds_read_b128 v[{TK+4*(tb&1)}:{TK+4*(tb&1)+3}], v44 offset:{tb*256}")
        def getv(tb, cb, tmp):
            p, b = accb(tb, cb)
            if p == "v": return b
            for i in range(4): a(f"v_accvgpr_read_b32 v{tmp+i}, a{b+i}")
            return tmp
        def pack(d, ps):
            for i, p in enumerate(ps): a(f"v_cvt_pk_bf16_f32 v{d+i}, v{p}, v{p+1}")
        def fixm(b, cs, tk):
            for h in (0, 2): a(f"v_pk_fma_f32 {P(b+h)}, {P(cs+h)}, {P(tk)}, {P(b+h)} op_sel_hi:[1,0,1]")
        def geglu(items, d):
            el = [(g+h, u+h, tk, Z + 4*n + h) for n, (g, u, cg, cu, tk) in enumerate(items) for h in (0, 2)]
            for g, u, cg, cu, tk in items: fixm(g, cg, tk)
            for g, u, tk, z in el: a(f"v_pk_mul_f32 {P(z)}, {P(g)}, {P(g)}")
            for g, u, tk, z in el: a(f"v_pk_fma_f32 {P(z)}, {P(z)}, {P(tk+2)}, {P(tk)} op_sel:[0,0,1] op_sel_hi:[1,0,1]")
            for g, u, tk, z in el: a(f"v_pk_mul_f32 {P(z)}, {P(z)}, {P(g)}")
            for i in range(8): a(f"v_exp_f32 v{Z+i}, v{Z+i}")
            for g, u, cg, cu, tk in items: fixm(u, cu, tk)
            for g, u, tk, z in el: a(f"v_pk_fma_f32 {P(z)}, {P(z)}, {P(tk+2)}, {P(tk+2)} op_sel:[0,1,1] op_sel_hi:[1,1,1]")
            for i in range(8): a(f"v_rcp_f32 v{Z+i}, v{Z+i}")
            for g, u, tk, z in el: a(f"v_pk_mul_f32 {P(u)}, {P(u)}, {P(g)}")
            for g, u, tk, z in el: a(f"v_pk_mul_f32 {P(u)}, {P(u)}, {P(z)}")
            pack(d, [u for g, u, tk, z in el])
        def frag(tb, cb0, sb, nxt):
            r = [getv(tb, cb0+i, accb(tb, i)[1]) for i in range(4)]
            a("s_waitcnt lgkmcnt(0)")
            if nxt is not None: rd_tk(nxt)
            tk = TK + 4*(tb & 1)
            geglu([(r[0], r[1], CS, CS+4, tk), (r[2], r[3], CS+8, CS+12, tk)], r[0])
            a(f"buffer_store_dwordx4 v[{r[0]}:{r[0]+3}], v1, {S(SW)}, s{sb+(tb>>1)} offen offset:{(tb&1)*1024} sc1 ;@h{sb}")
        ALD = [x for t in range(3) for x in al(t)[0] + [al(t)[1]]]
        def try_load():
            stamp("b2")
            a("s_waitcnt @poll"); a.extend(CMP1)
            a(f"s_mov_b32 s70, 0\ns_nop 2\ns_cbranch_vccz L_tl{ty}\n{POLL(59, 46)}\nL_tl{ty}_d:")
            ool(f"L_tl{ty}:\ns_mov_b32 s70, 1"); ool.extend(ALD); ool(f"s_branch L_tl{ty}_d")
        def must_load():
            stamp("chk")
            a(f"s_cmp_eq_u32 s70, 1\ns_cbranch_scc1 L_ml{ty}\ns_waitcnt @poll")
            spin(f"L_b1{ty}", CMP1[0], POLL(59, 46))
            a.extend(ALD)
            a(f"L_ml{ty}:")
            stamp("chkd")
        def set_b1():
            a("s_waitcnt @h40"); stamp("w1d"); a.extend(FLG(54))
        def phi_tail(ps, ts, scale):
            for i in range(8): a(f"v_exp_f32_e64 v{Z+i}, v{Z+i} clamp")
            for p in ps: a(f"v_max_f32 v{p}, 0, v{p}\nv_max_f32 v{p+1}, 0, v{p+1}")
            for p in ps:
                if scale is None: a(f"v_pk_add_f32 {P(p)}, {P(p)}, s[68:69] op_sel_hi:[1,0]")
                else: a(f"v_pk_fma_f32 {P(p)}, {P(p)}, {P(scale)}, s[68:69] op_sel_hi:[1,0,0]")
            for p, q in zip(ps, ts): a(f"v_pk_add_f32 {P(p)}, {P(p)}, {P(q)}")
            pack(ps[0], ps)
        rd_cs(0, 4); rd_tk(0)
        for tb in range(8): frag(tb, 0, 40, tb+1 if tb < 7 else (0 if ty else None))
        stamp("b1")
        if ty == 1:
            rd_cs(6, 4)
            for tb in range(8):
                frag(tb, 6, 44, tb+1 if tb < 7 else 0)
                if tb == o["fB"]: set_b1()
                if tb == o["pB"]: a(POLL(59, 46))
                if tb == o["cB"]: try_load()
            rd_cs(4, 2)
            must_load()
        else:
            a(f"v_and_b32 v4, 15, v2\nv_lshl_add_u32 v4, v4, 2, s64\ns_lshl_b32 s0, s53, 9\ns_add_u32 s0, s0, {MB_NM}\ns_sub_u32 s0, s0, s64\nv_add_u32 v5, s0, v45")
            for i in range(4): a(f"ds_read_b32 v{12+i}, v4 offset:{(6+i)*64}")
            KV, ONES = 112, 136
            for i in range(4): a(f"v_mov_b32 v{ONES+i}, 0x3f803f80")
            for tp in range(4):
                for h in range(2):
                    a(f"ds_read_b128 v[{16+8*h}:{19+8*h}], v5 offset:{(2*tp+h)*64}\nds_read_b128 v[{20+8*h}:{23+8*h}], v5 offset:{(2*tp+h)*64 + 1024}")
                r = [[getv(2*tp+h, 6+i, 48 + 32*(tp & 1) + 8*i + 4*h) for h in range(2)] for i in range(4)]
                a("s_waitcnt lgkmcnt(0)")
                for i in range(4):
                    sel = i & 1
                    for h in range(2):
                        for q in (0, 2):
                            a(f"v_pk_fma_f32 {P(r[i][h]+q)}, {P(16+8*h+q)}, {P(12+(i&2))}, {P(r[i][h]+q)} op_sel:[0,{sel},0] op_sel_hi:[1,{sel},1]")
                    for h in range(2):
                        for q in (0, 2): a(f"v_pk_mul_f32 {P(r[i][h]+q)}, {P(r[i][h]+q)}, {P(20+8*h+q)}")
                    ps = [r[i][0], r[i][0]+2, r[i][1], r[i][1]+2]; ts = [Z, Z+2, Z+4, Z+6]
                    if i < 2:
                        for p, q in zip(ps, ts): a(f"v_pk_mul_f32 {P(q)}, {P(p)}, s[56:57] op_sel_hi:[1,0]")
                        phi_tail(ps, ts, None)
                    else: pack(ps[0], ps)
                for db in range(2):
                    for eb in range(3):
                        d = vr(KV + (db*3+eb)*4, 4)
                        B = vr(r[2+eb][0], 4) if eb < 2 else vr(ONES, 4)
                        a(f"v_mfma_f32_16x16x32_bf16 {d}, {vr(r[db][0], 4)}, {B}, {d if tp else 0}")
                if tp == 0: set_b1()
                if tp == 1: a(POLL(59, 46))
                if tp == 2: try_load()
            rd_cs(4, 2); rd_tk(0)
            a(f"s_mul_i32 s0, s3, 3072\ns_add_u32 s0, s0, {KVX}\nv_add_u32 v4, s0, v1\ns_xor_b32 s1, s3, 1\ns_mul_i32 s1, s1, 3072\ns_add_u32 s1, s1, {KVX}\nv_add_u32 v5, s1, v1")
            must_load()
            a("s_cmp_eq_u32 s53, 0\ns_nop 3\ns_cbranch_scc1 L_kv0")
            for eb in range(3): a(f"ds_write_b128 v5, v[{KV+eb*4}:{KV+eb*4+3}] offset:{eb*1024}")
            for i in range(0, 12, 2): a(f"v_mov_b64 {P(48+i)}, {P(KV+12+i)}")
            a("s_branch L_kv1\nL_kv0:")
            for eb in range(3): a(f"ds_write_b128 v5, v[{KV+12+eb*4}:{KV+12+eb*4+3}] offset:{eb*1024}")
            for i in range(0, 12, 2): a(f"v_mov_b64 {P(48+i)}, {P(KV+i)}")
            a("L_kv1:")
        a("v_lshrrev_b32 v5, 2, v2\nv_lshlrev_b32 v5, 7, v5\nv_and_b32 v6, 3, v2\nv_lshl_add_u32 v5, v6, 3, v5\nv_bfe_u32 v6, v2, 3, 2")
        for cb in range(4): a(f"v_xor_b32 v7, {cb}, v6\nv_lshl_add_u32 v{V_BR+cb}, v7, 5, v5")
        a("s_waitcnt lgkmcnt(0)\ns_barrier")
        if ty == 0:
            for eb in range(3): a(f"ds_read_b128 v[{60+eb*4}:{63+eb*4}], v4 offset:{eb*1024}")
        a.extend(rl(0))
        stamp("k2")
        TJ, TG, TO = o["tj"], o["tg"], o["tg"] + 2
        KG = 100
        GLD = [f"buffer_load_dwordx4 {vr(KG+4*e, 4)}, v1, {S(SW)}, s{r} offen sc1 ;@gld" for e, r in enumerate((64, 66, 67))]
        def ob(tb, eb):
            i = tb*3 + eb
            return G + 4*i if i < 12 else 208 + 4*(i - 12)
        NS_ = o["nsA"] if ty == 0 else o["nsB"]
        TB3 = NS_ + 2
        st_ = []
        for t in range(NU):
            tags = []; first = []; xm = 0
            otb = {TO: range(0, 2), TO+1: range(2, 5), TO+2: range(5, 8)}.get(t, []) if ty == 0 else []
            if ty == 0:
                if t == TG: first = GLD
                if t == TO: tags = ["gld"]
                xm = 3*len(otb)
            else:
                if t == 2: tags = ["h44"]; first = [FLG(54, 128)]
                if t == TJ+3: tags = [f"F{TJ+1}"]
                if t == TB3: tags = ["late"]; first = [FLG(54, 256)]
            if t == 12: tags = tags + ["poll"]
            ms, slots = build(t, tags, first, xm)
            n = 32 + xm; lo = 0
            if t == 12: lo = check(slots, f"L_b2{ty}", CMP1, [POLL(60, V_P2, 128)])
            if t == 9: slots[n-1].append(POLL(60, V_P2, 128))
            if t == 14:
                vv = [f"v_add_u32 v{V_A2}, 4096, v1", "v_and_b32 v4, 15, v2", "v_lshlrev_b32 v4, 11, v4", "v_bfe_u32 v6, v2, 4, 1", "v_lshl_add_u32 v4, v6, 5, v4",
                      "v_lshrrev_b32 v6, 5, v2", f"v_lshl_add_u32 v{V_XO}, v6, 4, v4", f"v_add_u32 v{V_XO+1}, 32768, v{V_XO}", "v_and_b32 v4, 0x1f0, v1", f"v_lshl_add_u32 v{V_AO}, v6, 3, v4"]
                fillv([slots[i] for i in range(n)], vv)
                slots[20].append(f"s_add_u32 s66, s54, {256 + 128*ty}")
            if ty == 0 and t == TG - 1:
                fill(slots, ["s_and_b32 s64, s2, 0xc6", "s_or_b32 s64, s64, s52", "s_lshl_b32 s64, s64, 15", f"s_add_u32 s64, s64, {WS_I + 0x28*32768 + 1024}", f"s_add_u32 s66, s64, {16*32768}", "s_add_u32 s67, s64, 8192"], 13, 30)
            if otb:
                if t == TO: lo = check(slots, "L_kvf", maxtree(KG, 12), GLD)
                om = [f"v_mfma_f32_16x16x32_bf16 {vr(ob(tb, eb), 4)}, {vr(KG+4*eb, 4)}, v[{VS+4*tb}:{VS+3+4*tb}], 0" for tb in otb for eb in (2, 0, 1)]
                ms = ms[:lo+1] + om + ms[lo+1:]
                lo += 7
                per = (n - 1 - lo)//len(otb)
                for k, tb in enumerate(otb):
                    dn = ob(tb, 2); e8 = [ob(tb, 0)+i for i in range(4)] + [ob(tb, 1)+i for i in range(4)]
                    w = [f"v_add_f32 v{dn}, s68, v{dn}", f"v_rcp_f32 v{dn}, v{dn}"] + [f"v_mul_f32 v{e}, v{e}, v{dn}" for e in e8] + [f"v_cvt_pk_bf16_f32 v{e8[0]+i}, v{e8[2*i]}, v{e8[2*i+1]}" for i in range(4)]
                    fillv([slots[i] for i in range(lo + k*per, lo + (k+1)*per)], w)
                    slots[lo + (k+1)*per].append(f"buffer_store_dwordx4 {vr(e8[0], 4)}, v1, {S(SW)}, s{44+(tb>>1)} offen offset:{(tb&1)*1024} sc1 ;@late")
            if ty == 1 and t == 0:
                fill(slots, ["s_bfe_u32 s6, s2, 0x10004", "s_add_u32 s70, s6, s3", "s_min_u32 s7, s3, 1", "s_mul_i32 s70, s70, s7", "s_lshl1_add_u32 s6, s7, s6", "s_andn2_b32 s7, 8, s2", "s_add_u32 s70, s70, s7",
                             "s_and_b32 s64, s2, 0xc6", "s_and_b32 s7, s2, 1", "s_lshl1_add_u32 s64, s64, s7", "s_lshl4_add_u32 s64, s64, s6", "s_lshl_b32 s64, s64, 10", f"s_add_u32 s64, s64, {WS_I + 1024}"], 12, 30)
            if ty == 1 and t == TJ+3:
                slots[-1].extend(["s_cmp_lt_u32 s70, 2", "s_cbranch_scc1 L_red", "L_red_d:"])
            st_.append((ms, slots))
        gaps = [st_[t][1][i] for t in range(NS_) for i in range(32)]
        pre = [f"v_bfe_u32 v{V_P3}, v2, 1, 2", f"v_and_b32 v{V_P2}, 1, v2", f"v_lshl_or_b32 v{V_P3}, v{V_P3}, 7, v{V_P2}", f"v_lshlrev_b32 v{V_P3}, 14, v{V_P3}", f"v_and_b32 v{V_P2}, {0xffbfffff}, v{V_P3}"]
        g0 = 0
        if ty == 0:
            fillv(gaps[0:8], [f"v_add_f32 v{48+i}, v{48+i}, v{60+i}" for i in range(12)])
            for eb in range(3): gaps[9+3*eb].append(f"buffer_store_dwordx4 v[{48+eb*4}:{51+eb*4}], v1, {S(SW)}, s54 offen offset:{(eb+1)*1024} sc1")
            g0 = 8
        per = (len(gaps) - g0)//8
        assert per >= 32
        for tb in range(8):
            tk = TK + 4*(tb & 1); b0, b1 = accb(tb, 4)[1], accb(tb, 5)[1]
            gg = gaps[g0 + tb*per:g0 + (tb+1)*per]
            if tb < 7: gg[0].append(f"ds_read_b128 v[{TK+4*((tb+1)&1)}:{TK+4*((tb+1)&1)+3}], v44 offset:{(tb+1)*256}")
            vv = list(pre) if tb == 0 else []
            if ty == 0:
                el = [(b0+i, CS+i, Z2+i) for i in range(4)] + [(b1+i, CS+4+i, Z2+4+i) for i in range(4)]
                vv += [f"v_mul_f32 v{tk+2}, {f2u(1.0/GA1)}, v{tk+1}", f"v_mul_f32 v{tk+3}, {f2u(LOG2E/GA1)}, v{tk+1}"]
                vv += [f"v_fmac_f32 v{q}, v{c}, v{tk}" for q, c, z in el] + [f"v_mul_f32 v{z}, v{q}, v{tk+3}" for q, c, z in el]
                for q, c, z in el: vv += [f"v_exp_f32_e64 v{z}, v{z} clamp", f"v_max_f32 v{q}, 0, v{q}", f"v_fma_f32 v{q}, v{q}, v{tk+2}, s68"]
                vv += [f"v_add_f32 v{q}, v{q}, v{z}" for q, c, z in el]
                vv += [f"v_cvt_pk_bf16_f32 v{b0+i}, v{el[2*i][0]}, v{el[2*i+1][0]}" for i in range(4)]
            else:
                el = [(b0+i, b1+i, CS+i, CS+4+i, Z2+i) for i in range(4)]
                d = accb(tb & ~1, 4)[1]
                vv += [f"v_fmac_f32 v{g}, v{cg}, v{tk}" for g, u, cg, cu, z in el] + [f"v_mul_f32 v{z}, v{g}, v{g}" for g, u, cg, cu, z in el]
                vv += [f"v_fma_f32 v{z}, v{z}, v{tk+2}, v{tk+1}" for g, u, cg, cu, z in el] + [f"v_mul_f32 v{z}, v{z}, v{g}" for g, u, cg, cu, z in el]
                for g, u, cg, cu, z in el: vv += [f"v_exp_f32 v{z}, v{z}", f"v_fmac_f32 v{u}, v{cu}, v{tk}"]
                vv += [f"v_fma_f32 v{z}, v{z}, v{tk+3}, v{tk+3}" for g, u, cg, cu, z in el]
                for g, u, cg, cu, z in el: vv += [f"v_rcp_f32 v{z}, v{z}", f"v_mul_f32 v{u}, v{u}, v{g}"]
                vv += [f"v_mul_f32 v{u}, v{u}, v{z}" for g, u, cg, cu, z in el]
                vv += [f"v_cvt_pk_bf16_f32 v{d+2*(tb&1)+i}, v{b1+2*i}, v{b1+2*i+1}" for i in range(2)]
                if tb & 1:
                    gg[-2].extend([f"v_permlane32_swap_b32 v{d}, v{d+2}", f"v_permlane32_swap_b32 v{d+1}, v{d+3}"])
                    gg[-1].append(f"buffer_store_dwordx4 v[{d}:{d+3}], v1, {S(SW)}, s{48+(tb>>1)} offen sc1 ;@late")
                    gg = gg[:-3]
            if o.get("ab", 0) & 32: vv = vv[:5]
            fillv(gg, vv)
        for t, (ms, slots) in enumerate(st_):
            stamp(f"t{t}")
            emit(a, ms, slots)
            if ty == 1 and t == TJ: a("s_cmp_lt_u32 s70, 2\ns_cbranch_scc1 L_gat\nL_gat_d:")
        if ty == 0: a("s_branch L_tail")
        paths[ty] = list(range(p0, len(a.lines)))
    KLD = []
    for r in range(8):
        for db in range(2):
            KLD += [f"s_add_u32 s1, s64, {(8*(r&3) + (r>>2))*32768 + db*8192}", f"buffer_load_dwordx4 v[{G+(r*2+db)*4}:{G+(r*2+db)*4+3}], v1, {S(SW)}, s1 offen sc1"]
    main = a; hk = Asm(); a = hk
    a("L_gat:"); a.extend(KLD); a("s_branch L_gat_d\nL_red:")
    spin("L_kvg", "\n".join(maxtree(G, 64)), "\n".join(KLD))
    for stp in (32, 16, 8):
        for i in range(0, stp, 2): a(f"v_pk_add_f32 {P(G+i)}, {P(G+i)}, {P(G+stp+i)}")
    for i in range(4): a(f"v_cvt_pk_bf16_f32 v{G+i}, v{G+2*i}, v{G+2*i+1}")
    a(f"buffer_store_dwordx4 v[{G}:{G+3}], v1, {S(SW)}, s54 offen offset:1024 sc1\ns_branch L_red_d")
    a = main
    a("L_tail:")
    p0 = len(a.lines)
    PLD = [f"buffer_load_dwordx4 v[{PL+4*i}:{PL+4*i+3}], v1, {S(SW)}, s65 offen offset:{i*1024} sc1 ;@pld" for i in range(4)]
    OPOLL = [POLL(69, V_P3, 256), f"buffer_load_dword v35, off, {S(SW)}, s55 sc1 ;@poll"]
    def tail(t):
        tags = {NU: ["late"], 20: ["poll"], 24: ["poll"], TC: ["pld"]}.get(t, [])
        first = {NU: [FLG(66)], TP: PLD}.get(t, [])
        ms, slots = build(t, tags, first, 8 if t in (20, TC) else 0)
        if t == 17: slots[31].append(POLL(60, V_P2, 256))
        if t == 20: check(slots, "L_b3", CMP1, [POLL(60, V_P2, 256)])
        if t == o["opoll"]: slots[30].append(OPOLL[0]); slots[31].append(OPOLL[1])
        if t == 24: check(slots, "L_of", ["v_or_b32 v4, v35, v47", "v_cmp_ne_u32 vcc, 1, v4"], OPOLL)
        if t == nf:
            for q in range(4):
                tb, pp = q >> 1, q & 1
                for i in range(4):
                    r = facc(1, 2*pp + (i >> 1), tb) + 2*(i & 1)
                    slots[8 + 4*q + i].append(f"v_cvt_pk_bf16_f32 v{PK+4*q+i}, v{r}, v{r+1}")
                slots[[13, 19, 25, 31][q]].append(f"buffer_store_dwordx4 v[{PK+4*q}:{PK+4*q+3}], v1, {S(SW)}, s61 offen offset:{q*1024} sc1")
        if t == 18:
            vv = ["v_and_b32 v4, 1, v2", "v_lshlrev_b32 v4, 4, v4", "v_mov_b32 v5, 0x3f80", "v_lshlrev_b32 v4, v4, v5", "v_lshrrev_b32 v5, 4, v2", "v_bfe_u32 v6, v2, 1, 3", "v_lshlrev_b32 v7, 1, v5",
                  "v_sub_u32 v6, v6, v7", "v_sub_u32 v7, v6, v7"]
            for i in range(2): vv += [f"v_cmp_eq_u32 vcc, {i}, v6", f"v_mov_b32 v{SE+i}, 0", f"v_mov_b32 v{SE+4+i}, 0", f"v_cndmask_b32 v{SE+2+i}, 0, v4, vcc"]
            fillv([slots[i] for i in range(1, 32)], vv)
        if t == 19:
            for e in range(2):
                for i in range(4):
                    k = 4*e + i
                    slots[1+4*k].append(f"v_cmp_eq_u32 vcc, {i - 8*e}, v7"); slots[3+4*k].append(f"v_cndmask_b32 v{PK+k}, 0, v4, vcc")
        if t == 20:
            ms = ms + [f"v_mfma_f32_16x16x32_bf16 {vr(XF + (cb*2+tb)*4, 4)}, {vr(PK + 4*(cb&1), 4)}, {ar(16 + 4*(2*tb + (cb>>1)), 4)}, 0" for cb in range(4) for tb in range(2)]
        return ms, slots
    for t in range(NU, TC):
        if t == nf: stamp("s")
        stamp(f"t{t}")
        emit(a, *tail(t))
    last = [list(tail(t)) for t in range(TC, T)]
    m5, s5 = last[0]
    k = check(s5, "L_xb", maxtree(PL, 16), PLD)
    s5[1].append(f"s_mov_b32 s6, {f2u(-LOG2E)}")
    blocks = [(2*pp + e, tb) for pp in range(2) for tb in range(2) for e in range(2)]
    addm = [f"v_mfma_f32_16x16x32_bf16 {vr(facc(0, cb, tb), 4)}, {vr(SE + 2 - 2*(cb&1), 4)}, {vr(PL + 4*(2*tb + (cb>>1)), 4)}, {vr(facc(0, cb, tb), 4)}" for cb, tb in blocks]
    last[0][0] = m5[:k+1] + addm + m5[k+1:]
    silu = []
    for g in range(0, 8, 2):
        el = [(cb*2+tb)*4 + i for cb, tb in blocks[g:g+2] for i in range(4)]
        silu += [f"v_mul_f32 v{VQ+e}, s6, v{VF+e}" for e in el] + [f"v_exp_f32 v{VQ+e}, v{VQ+e}" for e in el] + [f"v_add_f32 v{VQ+e}, 1.0, v{VQ+e}" for e in el]
        silu += [f"v_rcp_f32 v{VQ+e}, v{VQ+e}" for e in el] + [f"v_mul_f32 v{VF+e}, v{VF+e}, v{VQ+e}" for e in el]
    def outp(pp, tb, pk):
        d = PK + (tb*2+pp)*4; L = []
        for e in range(2):
            off = ((2*pp+e)*2+tb)*4
            if pk: L += [f"v_pk_fma_f32 {P(VS+off+h)}, {P(VS+off+h)}, {P(VF+off+h)}, {P(XF+off+h)}" for h in (0, 2)]
            else: L += [f"v_fma_f32 v{VS+off+h}, v{VS+off+h}, v{VF+off+h}, v{XF+off+h}" for h in range(4)]
        for e in range(2):
            off = ((2*pp+e)*2+tb)*4
            L += [f"v_cvt_pk_bf16_f32 v{d+2*e+h}, v{VS+off+2*h}, v{VS+off+2*h+1}" for h in range(2)]
        return L, [f"v_permlane16_swap_b32 v{d}, v{d+2}", f"v_permlane16_swap_b32 v{d+1}, v{d+3}"], f"buffer_store_dwordx4 v[{d}:{d+3}], v{V_XO+tb}, {S(SOUT)}, s19 offen offset:{pp*64} sc1"
    nin = o["nin"]
    gaps = [sl[i] for ms, sl in last for i in range(len(ms))]
    e7 = len(gaps) - 32 + o["s7e"]
    fillv(gaps[k+9:e7], silu[:nin])
    (l0, w0, t0), (l1, w1, t1) = outp(0, 0, False), outp(0, 1, False)
    if o["s7e"] < 32:
        assert nin >= 80
        fillv(gaps[e7:-1], l0 + l1 + w0 + w1)
        gaps[-1].extend([t0, t1])
    for t, (ms, sl) in zip(range(TC, T), last):
        stamp(f"t{t}"); emit(a, ms, sl)
    stamp("fin")
    for g in range(nin//20, 8, 2):
        el = [(cb*2+tb)*4 + i for cb, tb in blocks[g:g+2] for i in range(4)]; ep = el[::2]
        a.extend([f"v_pk_mul_f32 {P(VQ+e)}, {P(VF+e)}, s[6:7] op_sel_hi:[1,0]" for e in ep] + [f"v_exp_f32 v{VQ+e}, v{VQ+e}" for e in el] + [f"v_pk_add_f32 {P(VQ+e)}, {P(VQ+e)}, 1.0 op_sel_hi:[1,0]" for e in ep])
        a.extend([f"v_rcp_f32 v{VQ+e}, v{VQ+e}" for e in el] + [f"v_pk_mul_f32 {P(VF+e)}, {P(VF+e)}, {P(VQ+e)}" for e in ep])
    for pp in range(0 if o["s7e"] == 32 else 1, 2):
        (l0, w0, t0), (l1, w1, t1) = outp(pp, 0, True), outp(pp, 1, True)
        a.extend(l0 + l1 + w0 + [t0] + w1 + [t1])
    if o.get("cnt"):
        a(f"s_lshl2_add_u32 s0, s2, s3\ns_lshl_b32 s0, s0, 2\ns_add_u32 s0, s0, {STAMP_OFF + 0x10000}\nv_mov_b32 v4, s0\nv_mov_b32 v5, s72\nglobal_store_dword v4, v5, s[{SW}:{SW+1}]")
    if o["stamps"]:
        stamp("fs")
        a("s_waitcnt vmcnt(0)")
        stamp("end")
        a(f"s_cmp_lg_u32 s3, {o['stw']}\ns_cbranch_scc1 L_end")
        st.n = len(sset)
        st.flush(a, SW, 2, 4)
    for ty in range(2): paths[ty] += list(range(p0, len(a.lines)))
    ab = o.get("ab", 0)
    k2lines = set(paths[0] + paths[1])
    for i in k2lines:
        l = a.lines[i]
        kill = False
        if ab & 1 and "buffer_store_dword v3, off" in l and "offset:0" not in l: kill = True
        if ab & 2 and ";@poll" in l and "s59" not in l: kill = True
        if ab & 3 and any(f"s_cbranch_vccnz {n}" in l for n in ("L_b2", "L_b3", "L_of")): kill = True
        if ab & 4 and (";@gld" in l or "L_kvf_s" in l or "scc1 L_gat" in l or "scc1 L_red" in l or ("s54 offen" in l and "store" in l)): kill = True
        if ab & 8 and ";@late" in l: kill = True
        if ab & 16 and (";@pld" in l or "L_xb_s" in l or ("s61 offen" in l and "store" in l)): kill = True
        if kill: a.lines[i] = "    s_nop 0"
    resolve(a.lines, paths)
    a("L_end:\ns_endpgm")
    a.lines += hk.lines + ool.lines + ["L_cend:"]
    a.lines, n = hazard.fix(a.lines, verbose=o.get("hv", 0))
    if o.get("cnt"): print(spn)
    ref = "cdna_kernels/" + NAME + ".s.ref"
    hdr = open(ref).read().split("; Override launch")[0] if os.path.exists(ref) else ""
    k = dict(name=NAME + "_kernel", grid=256, block=256, lds=163840, body=a, vgpr=256, agpr=256)
    txt = file_text([k]).replace(f"@launch kernel={NAME}_kernel ", "@launch ")
    return hdr + txt
if __name__ == "__main__":
    kw = {}
    for x in sys.argv[2:]:
        k, v = x.split("="); kw[k] = int(v)
    open(sys.argv[1], "w").write(gen(**kw))
```

```python
import sys, struct, math, os
from asmlib import *
import hazard

WS_A, WS_I, WS_CS, WS_ST, WS_SIZE = 0, 0x1400000, 0x1C00000, 0x1C80000, 0x1D00000
def f2u(x): return hex(struct.unpack("<I", struct.pack("<f", x))[0])
LOG2E = 1.4426950408889634
GA1 = -2.0*LOG2E*math.sqrt(2.0/math.pi); GA3 = GA1*0.044715
W_OFF = 32768
STAGE = 73728
MB = 2*STAGE
MB_AOS, MB_NM, MB_RS = MB + 10240, MB + 14336, MB + 15360
CSS = 65536
KVX = STAGE
KVF = STAGE + 16384
STRM = 144*2048
SPIN = 0x20000
BIG = 0x7ff00000

def cls(i):
    n = i.split()[0]
    if n.endswith(":"): return -1
    if n.startswith("s_"): return 0
    if n.startswith(("ds_", "buffer_", "global_")): return 1
    return 2
def emit(a, mfmas, slots):
    for i in range(-1, len(mfmas)):
        if i >= 0: a(mfmas[i])
        items = slots.get(i, [])
        if any(cls(x) < 0 or "exec" in x or "cbranch" in x for x in items): a.extend(items)
        else: a.extend(sorted(items, key=cls))
def spread(slots, items, lo, hi):
    n = len(items)
    for i, x in enumerate(items):
        p = lo + (i*(hi - lo + 1))//max(n, 1)
        slots[p].extend(x if isinstance(x, list) else [x])
def vcost(x): return 2 if x.startswith(("v_exp", "v_rcp", "v_rsq")) else 1
def fillv(gaps, items):
    used = [sum(vcost(y) for y in g if cls(y) > 0) for g in gaps]
    tot = sum(used) + sum(vcost(x) for x in items)
    if tot <= 1.8*len(gaps):
        p = 0
        for x in items:
            while p < len(gaps) - 1 and used[p] + vcost(x) > 2: p += 1
            used[p] += vcost(x); gaps[p].append(x)
        return
    rate = tot/len(gaps); cum = 0; k = 0
    for p, g in enumerate(gaps):
        cum += used[p]
        while k < len(items) and (cum + vcost(items[k])/2 <= rate*(p+1) or p == len(gaps) - 1):
            g.append(items[k]); cum += vcost(items[k]); k += 1
def resolve(lines, paths):
    best = {}
    for path in paths:
        n = 0; pos = {}
        for i in path:
            l = lines[i].strip()
            if l.startswith(("buffer_", "global_")):
                n += 1
                if ";@" in l:
                    for t in l.split(";@")[1].split(","): pos[t.strip()] = n
            elif l.startswith("s_waitcnt @"):
                tags = [t for t in l.split()[1][1:].split(",") if t in pos]
                c = n - max(pos[t] for t in tags) if tags else 63
                best[i] = min(best.get(i, 63), c)
    for i, c in best.items():
        w = lines[i].split()
        lines[i] = "    " + " ".join([w[0], f"vmcnt({c})"] + w[2:])
    assert not any("s_waitcnt @" in l for l in lines)
class VM:
    def __init__(self, a): self.a = a; self.n = 0
    def __call__(self, s):
        self.a(s); self.n += 1; return self.n
    def wait(self, tag): self.a(f"s_waitcnt vmcnt({self.n - tag})")
def P(r): return f"v[{r}:{r+1}]"
SETS = {0: ["start", "loop", "e0", "k2", "s", "fin", "end"],
        2: ["k2", "t4", "t8", "t12", "t16", "t25", "s"],
        3: ["start", "karg", "addr", "dma", "zero", "loop", "i1"],
        4: ["loop", "i1", "i2", "i4", "i6", "s14", "e0"],
        8: ["t7", "t8", "t9", "t10", "t11", "t12", "t13"],
        9: ["k2", "t1", "t2", "t3", "t4", "t5", "t6"],
        7: ["t16", "t20", "t22", "t24", "t26", "t28", "t30"],
        6: ["s", "t32", "t33", "t34", "fin", "fs", "end"],
        5: ["e0", "b1", "w1d", "b2", "chk", "chkd", "k2"]}

def gen(**kw):
    o = dict(stamps=0, stw=2, ev=5, dst=52, od=1, sq=0, cpf=1, npf0=1, npf1=2, zper=12, slp=8, pfd=0, pfp=1, rp=2, pf2p=3, inp=4, csp=8, atp=6,
             pf2s=8, rs=2, sh=4, ctm=1, nin=80, s7e=20, pl=4, opoll=21, pro=1, tj=3, tg=9, nsA=11, nsB=11, fB=1, pf3=0, pB=3, cB=5)
    o.update(kw)
    a = Asm(); ool = Asm(); st = Stamps(o["stamps"], 74, 0)
    sset = SETS[o["sq"]]
    def stamp(tag, w=False):
        if tag in sset and o["stamps"]:
            st.n = sset.index(tag); st.stamp(a)
            if w: a("s_waitcnt lgkmcnt(0)")
    SX, SQ, SG, SW, SD, SO, SOUT, SP, SP2, SI, SU = 8, 12, 16, 24, 28, 32, 36, 40, 44, 48, 64
    V_XV, V_WV, V_XR, V_WR, V_PF, V_PF2, V_CSO = 8, 16, 22, 26, 32, 33, 34
    V_T, V_CSA, V_SEL, V_SENT = 36, 40, 44, 4
    V_ACC = 48; A_X = 0; A_W = 64; A_ACC = 144
    def S(d): return f"s[{d}:{d+3}]"
    def fin(d, size): a(f"s_mov_b32 s{d+2}, {size}\ns_mov_b32 s{d+3}, 0x20000")
    def accb(tb, cb):
        i = cb*8 + tb
        return ("v", V_ACC + 4*i) if i < 52 else ("a", A_ACC + 4*(i-52))
    def acc(tb, cb):
        p, b = accb(tb, cb); return vr(b, 4, p)
    def xf(tb, ks): return ar(A_X + (tb*2+ks)*4, 4)
    def wfb(cb, ks): return A_W + (cb*2+ks)*4
    spn = {}
    def spin_ool(name, cmp, reload):
        k = spn.setdefault(name[:4] if name[:4] in ("L_b1", "L_b2", "L_in") else name, len(spn) + 1)
        ool(f"{name}_s:")
        if o.get("cnt"):
            ool(f"s_bitset1_b32 s72, {k}")
        ool(f"s_mov_b32 s0, 0\n{name}_l:\ns_sleep {o['slp']}\n{reload}\ns_waitcnt vmcnt(0)\n{cmp}\ns_add_u32 s0, s0, 1\ns_cmp_ge_u32 s0, {SPIN}\ns_cbranch_scc1 {name}_d\ns_nop 1\ns_cbranch_vccnz {name}_l\ns_branch {name}_d")
    def spin(name, cmp, reload):
        a(cmp + f"\ns_nop 3\ns_cbranch_vccnz {name}_s\n{name}_d:")
        spin_ool(name, cmp, reload)

    a("s_cmp_ge_u32 s2, 256\ns_cbranch_scc1 L_end")
    stamp("start")
    a(f"s_load_dwordx2 s[{SX}:{SX+1}], s[0:1], 0\ns_load_dwordx2 s[{SQ}:{SQ+1}], s[0:1], 8\ns_load_dwordx2 s[{SG}:{SG+1}], s[0:1], 32\ns_load_dwordx2 s[{SU}:{SU+1}], s[0:1], 40")
    a("v_lshrrev_b32 v1, 6, v0\nv_and_b32 v2, 63, v0\ns_lshr_b32 s58, s2, 3")
    n0 = 0
    if o["cpf"]:
        a("s_getpc_b64 s[72:73]\nL_pc:\nv_min_u32 v3, 15, v2\nv_mad_u32_u24 v4, v1, 10, v3\nv_mad_u32_u24 v5, v1, 6, v3\ns_mul_i32 s6, s58, 24\nv_cmp_ne_u32 vcc, 0, v1")
        a("s_bitcmp1_b32 s2, 5\ns_cselect_b32 s7, (L_tB-L_tA)/128-4, 0\nv_mov_b32 v6, s7\nv_add_u32 v5, s6, v5\nv_cndmask_b32 v6, 0, v6, vcc\nv_cmp_gt_u32 vcc, 6, v3\nv_add3_u32 v4, v4, v6, -6")
        a("v_cndmask_b32 v4, v4, v5, vcc\nv_lshlrev_b32 v4, 7, v4\nv_min_u32 v4, L_cend-L_pc-4, v4")
        a("global_load_dword v0, v4, s[72:73]")
        a("v_min_u32 v3, 5, v2\nv_mad_u32_u24 v5, v1, 6, v3\nv_add_lshl_u32 v5, v5, s6, 7\nv_min_u32 v35, L_cend-L_pc-4, v5")
    a("v_readfirstlane_b32 s3, v1\nv_lshlrev_b32 v1, 4, v2")
    a(f"s_load_dwordx2 s[{SW}:{SW+1}], s[0:1], 72\ns_load_dwordx2 s[{SD}:{SD+1}], s[0:1], 48\ns_load_dwordx2 s[{SO}:{SO+1}], s[0:1], 16")
    a(f"s_load_dwordx2 s[{SOUT}:{SOUT+1}], s[0:1], 56\ns_load_dwordx2 s[62:63], s[0:1], 64")
    a("s_bfe_u32 s60, s2, 0x20001\ns_lshr_b32 s6, s2, 5\ns_lshl3_add_u32 s4, s60, s6")
    a("s_and_b32 s23, s2, 1\ns_bfe_u32 s6, s2, 0x20003\ns_lshl2_add_u32 s5, s23, s6\ns_lshl_b32 s23, s23, 3")
    a("s_lshr_b32 s52, s3, 1\ns_and_b32 s53, s3, 1")
    a("s_cmp_eq_u32 s3, 0\ns_cbranch_scc1 L_pf0\ns_cmp_eq_u32 s3, 1\ns_cbranch_scc1 L_pf1")
    a(f"s_mov_b32 s{SP+2}, {1024*3584*2}\ns_mov_b32 s59, {64*7168}")
    a("v_min_u32 v3, 27, v2\nv_cmp_le_u32 vcc, 14, v3\ns_lshl_b32 s6, s58, 1\ns_mul_i32 s7, s60, 1792\nv_cndmask_b32 v4, 0, 1, vcc\nv_mul_u32_u24 v5, 14, v4\nv_sub_u32 v5, v3, v5")
    a("v_add_u32 v4, s6, v4\nv_lshl_add_u32 v5, v5, 7, s7\ns_movk_i32 s57, 7168")
    a(f"v_mad_u32_u24 v{V_PF}, v4, s57, v5\ns_waitcnt lgkmcnt(0)\ns_cmp_eq_u32 s3, 2\ns_cselect_b32 s{SP}, s{SG}, s{SU}\ns_cselect_b32 s{SP+1}, s{SG+1}, s{SU+1}\ns_branch L_pfd")
    a("L_pf1:")
    a(f"s_mov_b32 s{SP+2}, {1024*3072*2}\ns_mov_b32 s59, {64*6144}")
    a("v_min_u32 v3, 23, v2\nv_cmp_le_u32 vcc, 12, v3\ns_lshl_b32 s6, s58, 1\ns_lshl_b32 s7, s60, 9\nv_cndmask_b32 v4, 0, 1, vcc\nv_mul_u32_u24 v5, 12, v4\nv_sub_u32 v5, v3, v5")
    a("v_add_u32 v4, s6, v4\nv_lshrrev_b32 v6, 2, v5\nv_and_b32 v5, 3, v5\nv_lshl_add_u32 v5, v5, 7, s7\nv_lshl_add_u32 v5, v6, 11, v5\ns_movk_i32 s57, 6144")
    a(f"v_mad_u32_u24 v{V_PF}, v4, s57, v5\ns_waitcnt lgkmcnt(0)\ns_mov_b32 s{SP}, s{SQ}\ns_mov_b32 s{SP+1}, s{SQ+1}\ns_branch L_pfd")
    a("L_pf0:")
    a(f"s_mov_b32 s{SP+2}, {2048*1024*2}\ns_mov_b32 s59, 128")
    a(f"s_lshl2_add_u32 s6, s23, s58\ns_lshl_b32 s6, s6, 5\nv_min_u32 v4, 31, v2\nv_add_u32 v4, s6, v4\nv_lshlrev_b32 v{V_PF}, 11, v4")
    a(f"s_waitcnt lgkmcnt(0)\ns_mov_b32 s{SP}, s{SX}\ns_mov_b32 s{SP+1}, s{SX+1}")
    a("L_pfd:")
    a(f"s_mov_b32 s{SP+3}, 0x20000\ns_mul_i32 s58, s23, s59")
    stamp("karg", True)
    PFA = [f"s_add_u32 s58, s23, {o['pfd'] + 1}", f"s_and_b32 s58, s58, {o.get('kmask', 15)}", "s_mul_i32 s58, s58, s59"]
    PFI = f"buffer_load_dword v0, v{V_PF}, {S(SP)}, s58 offen"
    for i in range(o["npf0"]): a(PFI); a("s_add_u32 s58, s58, s59")
    fin(SG, 1024*3584*2); fin(SU, 1024*3584*2); fin(SX, 2048*1024*2); fin(SQ, 1024*3072*2)
    a(f"s_lshl_b32 s20, s23, 7\ns_mul_i32 s21, s23, {64*6144}\ns_mul_i32 s22, s23, {64*7168}")
    a(f"s_lshl_b32 s54, s3, 13\ns_lshl_b32 s55, s3, 11\ns_add_u32 s55, s55, {W_OFF}\ns_lshl_b32 s56, s3, 10\ns_add_u32 s56, s56, {W_OFF + 32768}")
    a("s_lshl_b32 s6, s5, 8\ns_lshl_b32 s7, s3, 6\ns_add_u32 s6, s6, s7")
    a("v_lshrrev_b32 v3, 3, v2\nv_add_u32 v7, s6, v3\nv_lshlrev_b32 v7, 11, v7\nv_lshrrev_b32 v4, 4, v2\nv_and_b32 v5, 7, v2")
    for c in range(2):
        a(f"v_add_u32 v6, {4*c}, v4\nv_xor_b32 v6, v6, v5\nv_lshl_add_u32 v6, v6, 4, v7")
        for cc in range(c, 8, 2): a(f"v_add_u32 v{V_XV+cc}, {cc*8*2048}, v6")
    a("s_lshl_b32 s6, s52, 5\ns_lshl2_add_u32 s61, s53, s6")
    a("v_and_b32 v3, 3, v3\nv_lshrrev_b32 v6, 5, v2\nv_lshl_add_u32 v3, v6, 3, v3\nv_add_u32 v3, s61, v3")
    a("v_lshlrev_b32 v6, 1, v4\nv_xor_b32 v5, v5, v6\nv_lshlrev_b32 v5, 4, v5")
    a("s_lshr_b32 s0, s4, 1\ns_and_b32 s1, s0, 1\ns_mul_i32 s6, s0, 448\ns_movk_i32 s57, 7168")
    a("s_bitcmp1_b32 s2, 5\ns_cbranch_scc1 L_tB")

    def dma_list(ty, stage):
        b = stage*STAGE
        xs = [(f"s_add_u32 m0, s54, {b + c*1024}", f"buffer_load_dwordx4 v{V_XV+c}, {S(SX)}, s20 offen lds") for c in range(8)]
        def w(u, c, reg, srd, so, off=0):
            return (f"s_add_u32 m0, s55, {b + u*8192 + c*1024 - off}", f"buffer_load_dwordx4 v{reg}, {S(srd)}, s{so} offen{f' offset:{off}' if off else ''} lds")
        if ty == 0:
            ws = [w(u, c, V_WV+c, (SG, SU)[u], 22) for u in range(2) for c in range(2)]
            ws += [w(2, c, V_WV+2+c, SQ, 21) for c in range(2)] + [w(3, c, V_WV+2+c, SQ, 21, 2048) for c in range(2)] + [w(4, c, V_WV+4+c, SQ, 21) for c in range(2)]
        else:
            ws = [w(2*h+u, c, V_WV+c, (SG, SU)[u], 22, 128*h) for u in range(2) for c in range(2) for h in range(2)]
            ws += [(f"s_add_u32 m0, s56, {b + u*4096}", f"buffer_load_dwordx4 v{V_WV+2}, {S((SG, SU)[u])}, s22 offen lds") for u in range(2)]
        od = o.get("od", 0)
        if od == 1: return xs + ws
        if od == 2: return [y for p in zip(xs, ws) for y in p] + ws[8:]
        return ws + xs
    adv = ["s_add_u32 s23, s23, 1", f"s_and_b32 s23, s23, {o.get('kmask', 15)}", f"s_mul_i32 s22, s23, {64*7168}", f"s_mul_i32 s21, s23, {64*6144}", "s_lshl_b32 s20, s23, 7"]
    EV, ST0 = o["ev"], o["dst"]
    dpos = [ST0 + EV*i for i in range(18)]
    dpos = [p + 1 if p == 80 else p for p in dpos]
    n3 = sum(1 for p in dpos if p < 80)
    BL = [[("g", 0, 0), ("u", 1, 0), ("g", 0, 1), ("u", 1, 1), ("q", 2, 0), ("q", 2, 1), ("k", 3, 0), ("k", 3, 1), ("v", 4, 0), ("v", 4, 1)],
          [("g", 0, 0), ("u", 1, 0), ("g", 0, 1), ("u", 1, 1), ("h", 0, 2), ("h", 1, 2), ("g", 2, 0), ("u", 3, 0), ("g", 2, 1), ("u", 3, 1)]]
    def xread(stage, tb, ks): return f"ds_read_b128 {xf(tb, ks)}, v{V_XR + stage*2 + ks} offset:{tb*2048}"
    def wread(ty, stage, cb):
        t, u, i = BL[ty][cb]; L = []
        for ks in range(2):
            for rd in range(2):
                row = 32*ks + 16*rd
                off = u*4096 + row*64 if t == "h" else u*8192 + row*128
                L.append(f"ds_read_b64_tr_b16 {ar(wfb(cb, ks)+2*rd, 2)}, v{V_WR + 2*i + stage} offset:{off}")
        return L
    def mfmas(ty, half):
        L = []
        for cb, (t, u, i) in enumerate(BL[ty]):
            for n, tb in enumerate(range(4*half, 4*half+4)):
                for ks in ((0, 1) if n % 2 == 0 else (1, 0)):
                    x, w = xf(tb, ks), ar(wfb(cb, ks), 4)
                    A, B = (x, w) if t in "kv" else (w, x)
                    L.append(f"v_mfma_f32_16x16x32_bf16 {acc(tb, cb)}, {A}, {B}, {acc(tb, cb)}")
        return L
    V_BV = 8
    def n0(T): return [0, 2, 12, 8][T & 3] + 14*(T >> 2) if T < 16 else 7*(T-16) + 4 - (T & 1) if T < 24 else 14*(T-24) + 6
    def bdma(slot, ph):
        s_, so = (S(SD) if ph == "f" else S(SO)), 15
        return [(f"s_add_u32 m0, s18, {slot*16384 + c*1024}", f"buffer_load_dwordx4 v{V_BV+c}, {s_}, s{so} offen lds") for c in range(4)]
    def put(slots, dm):
        for pre, m, d, p in dm:
            for k, x in enumerate(pre): slots[p - 1 - len(pre) + k].append(x)
            slots[p-1].append(m); slots[p].append(d)
    def atomic(off):
        return f"v_mov_b32 v{V_SEL}, {off}\nv_mov_b32 v{V_SEL+1}, 1\ns_mov_b64 exec, 1\nglobal_atomic_add v{V_SEL}, v{V_SEL+1}, s[62:63] sc1\ns_mov_b64 exec, -1"
    def fill(slots, items, lo, hi):
        p = lo
        for x in items:
            x = x if isinstance(x, list) else [x]
            while True:
                assert p <= hi, "no room"
                nv = sum(cls(y) > 0 for y in slots[p]); ns_ = sum(cls(y) == 0 for y in slots[p])
                if ns_ + len(x) <= (3 if nv == 0 else 1) and not any("m0" in y or "waitcnt" in y for y in slots[p]): break
                p += 1
            slots[p].extend(x)
    def aux_prep(ty, stage):
        ss = PFA + [f"s_sub_u32 s60, s71, {o['pf2s']}", "s_min_u32 s60, s60, 64", "s_mul_i32 s60, s60, 1664",
                    "s_sub_u32 s61, s71, 10", "s_min_u32 s61, s61, 64", "s_add_u32 s61, s61, 4"]
        ss += ["s_sub_u32 s6, s71, 4", [f"s_cmp_lt_u32 s6, {2 if ty else 4}", "s_cselect_b32 s61, s6, s61"]]
        ss += ["s_lshl_b32 s61, s61, 10"]
        ss += [f"s_sub_u32 s6, s71, {o['rs']}", "s_lshl2_add_u32 s0, s3, s6", "s_lshl4_add_u32 s1, s2, s0", "s_lshl_b32 s0, s0, 10", "s_lshl_b32 s1, s1, 10", f"s_add_u32 s0, s0, {MB}",
               ["s_cmp_lt_u32 s6, 4", "s_cselect_b32 s0, s0, 0x28000", f"s_cselect_b32 s1, s1, {BIG}"]]
        if stage == 1: ss += [["s_cmp_eq_u32 s57, s68", f"s_cselect_b32 s7, s69, {BIG}"]]
        return ss
    def phase1(ty, stage, kind, dm):
        slots = {i: [] for i in range(-1, 80)}
        slots[-1].append("s_waitcnt lgkmcnt(4)")
        rl = wread(ty, stage, 9) + [xread(stage, tb, ks) for tb in range(4, 8) for ks in range(2)]
        for i, r in enumerate(rl): slots[1 + 3*i].append(r)
        slots[63].append("s_waitcnt lgkmcnt(0)")
        put(slots, dm)
        if kind == "loop":
            fill(slots, aux_prep(ty, stage), 36, 62)
            fill(slots, adv, max(64, dpos[-1] - 79), 78)
            nm = f"L_cs{ty}{stage}"
            slots[79].extend(["s_cmp_eq_u32 s57, s68" if not o.get("nocs") else "s_cmp_eq_u32 s57, 77", f"s_cbranch_scc1 {nm}", f"{nm}_d:"])
            ool(f"{nm}:\nv_and_b32 v{V_SEL}, 15, v2\nv_cmp_eq_u32 vcc, 0, v{V_SEL}\nv_mov_b32 v{V_SEL+1}, 0x3f803f80\ns_cmp_eq_u32 s53, 0\nv_cndmask_b32 v{V_SEL}, 0, v{V_SEL+1}, vcc")
            ool(f"v_mov_b32 v{V_SEL+1}, v{V_SEL}\nv_mov_b32 v{V_SEL+2}, v{V_SEL}\nv_mov_b32 v{V_SEL+3}, v{V_SEL}\ns_nop 1\ns_cbranch_scc0 {nm}_1")
            for wr in range(2):
                if wr: ool(f"{nm}_1:")
                for n in range(5):
                    for ks in range(2):
                        c = "0" if stage == 0 and n == 0 and ks == 0 else vr(V_CSA, 4)
                        ool(f"v_mfma_f32_16x16x32_bf16 {vr(V_CSA, 4)}, {ar(wfb(5*wr+n, ks), 4)}, {vr(V_SEL, 4)}, {c}")
                    if n < 4:
                        for r in range(4): ool(f"v_mov_b32_dpp v{V_SEL+r}, v{V_SEL+r} row_shr:1 row_mask:0xf bank_mask:0xf bound_ctrl:0")
                ool(f"s_branch {nm}_d")
        if kind == "s15" and o["pf3"]:
            vv = ["v_bfe_u32 v12, v2, 3, 2", "v_lshlrev_b32 v12, 2, v12", "v_lshrrev_b32 v12, v12, v14", "v_and_b32 v12, 15, v12", "v_lshrrev_b32 v13, 5, v2", "v_mad_u32_u24 v12, v13, 14, v12",
                  "v_and_b32 v15, 7, v2", "v_lshl_add_u32 v15, v15, 7, s6", "v_lshl_add_u32 v12, v12, 16, v15"]
            v2_ = ["v_bfe_u32 v16, v2, 3, 2", "v_mul_u32_u24 v17, 7, v16", "v_and_b32 v16, 1, v16", "v_sub_u32 v16, v17, v16", "v_add_u32 v16, 4, v16", "v_lshl_add_u32 v16, v16, 16, v15",
                   f"v_add_u32 v17, {42*65536}, v12", "v_cmp_gt_u32 vcc, 32, v2", f"v_add_u32 v18, {28*65536}, v16", f"v_add_u32 v12, {14*65536}, v12", "v_cndmask_b32 v16, v16, v17, vcc"]
            ss = ["s_lshr_b32 s6, s2, 3", "s_lshl2_add_u32 s6, s6, s3", "s_lshl_b32 s6, s6, 10", f"s_mul_i32 s7, s20, {1792*2048}", "s_add_u32 s6, s6, s7"]
            fill(slots, ss, 0, 12)
            slots[0].append("v_mov_b32 v14, 0x8c20")
            p = 14
            for x in vv + v2_:
                while sum(cls(y) > 0 for y in slots[p]) >= 1: p += 1
                slots[p].append(x)
            assert p < 60
            slots[62].append(f"buffer_load_dword v0, v12, {S(SD)}, 0 offen")
            if o["pf3"] > 1: slots[70].append(f"buffer_load_dword v0, v16, {S(SD)}, 0 offen")
            if o["pf3"] > 2: slots[76].extend(["s_mov_b32 exec_lo, 0", f"buffer_load_dword v0, v18, {S(SD)}, 0 offen", "s_mov_b32 exec_lo, -1"])
        if kind == "s14":
            slots[2].append("v_and_b32 v35, 1, v2"); slots[3].append("v_lshlrev_b32 v35, 7, v35")
            slots[6].append("global_load_dword v3, v35, s[62:63] sc1")
            ss = ["s_mul_i32 s6, s4, 10240", f"s_add_u32 s6, s6, {WS_CS}", "s_mul_i32 s7, s5, 6144", f"s_add_u32 s7, s7, {WS_ST - 10240}", "s_lshl_b32 s1, s3, 12", "s_add_u32 s6, s6, s1", "s_add_u32 s7, s7, s1",
                  ["s_cmp_lt_u32 s3, 3", "s_cselect_b32 s58, s6, s7"], ["s_cmp_lt_u32 s3, 2", "s_cselect_b32 s59, s6, s7"]]
            spread(slots, ss, 64, 78)
        emit(a, mfmas(ty, 0), slots)
    def phase2(ty, stage, kind, dm, nwait=0):
        slots = {i: [] for i in range(-1, 80)}
        ms = mfmas(ty, 1)
        slots[0].extend([f"s_waitcnt vmcnt({nwait})", "s_barrier"])
        if kind != "s15":
            xr = [xread(stage ^ 1, tb, ks) for tb in range(4) for ks in range(2)]
            for i, p in enumerate([5, 7, 14, 22, 30, 38, 46, 54]): slots[p].append(xr[i])
            for cb in range(9):
                for i, r in enumerate(wread(ty, stage ^ 1, cb)): slots[8*(cb+1) + [1, 3, 5, 7][i]].append(r)
        put(slots, dm)
        if kind == "loop":
            if not o.get("nopf"): slots[o["pfp"]].append(PFI)
            if not o.get("nopf2"): slots[o["pf2p"]].append(f"buffer_load_dword v0, v{V_PF2}, {S(SP2)}, s60 offen")
            if not o.get("noinit"): slots[o["inp"]].append(f"buffer_store_dwordx4 {vr(V_SENT, 4)}, v1, {S(SI)}, s61 offen sc1")
            if stage == 0 and o["cpf"] > 1: slots[o["csp"]].append("global_load_dword v0, v35, s[72:73]")
            if stage == 1: slots[o["csp"]].append(f"buffer_store_dwordx4 {vr(V_CSA, 4)}, v{V_CSO}, {S(SW)}, s7 offen sc1")
            if not o.get("nostat"):
                slots[o["rp"]-1].append("s_mov_b32 m0, s0"); slots[o["rp"]].append(f"buffer_load_dwordx4 v1, {S(SX)}, s1 offen lds")
            slots[o["atp"]].extend(["s_cmp_eq_u32 s71, s70", f"s_cbranch_scc1 L_atom{ty}{stage}", f"L_atom{ty}{stage}_d:"])
            ool(f"L_atom{ty}{stage}:\ns_and_b32 s6, s2, 1\ns_lshl_b32 s6, s6, 7\n{atomic('s6')}\ns_branch L_atom{ty}{stage}_d")
            slots[o["atp"]+2].append("s_add_u32 s71, s71, 1")
        if kind == "s14":
            nm = f"L_ini{ty}"
            cmp = "v_cmp_gt_u32 vcc, 0x80, v3"
            slots[1].append(cmp)
            slots[3].extend([f"s_cbranch_vccnz {nm}_s", f"{nm}_d:"])
            spin_ool(nm, cmp, "global_load_dword v3, v35, s[62:63] sc1")
            vv = ["v_lshrrev_b32 v12, 3, v2", "v_bfe_u32 v13, v2, 4, 2", "v_lshlrev_b32 v13, 1, v13", "v_and_b32 v14, 7, v2", "v_xor_b32 v14, v14, v13",
                  "v_lshlrev_b32 v14, 4, v14", f"v_lshl_add_u32 v{V_BV}, v12, 11, v14"] + [f"v_add_u32 v{V_BV+c}, {16384*c}, v{V_BV}" for c in range(1, 4)]
            for i, x in enumerate(vv): slots[8 + 2*i].append(x)
            ss = ["s_bfe_u32 s20, s2, 0x10002", "s_and_b32 s6, s2, 1", "s_bfe_u32 s7, s2, 0x10001", "s_lshl1_add_u32 s6, s6, s7", "s_lshr_b32 s7, s2, 6", "s_lshl2_add_u32 s21, s6, s7",
                  "s_bfe_u32 s22, s2, 0x20003", "s_bfe_u32 s7, s2, 0x10005", "s_lshl1_add_u32 s22, s22, s7" if o["ctm"] else "s_lshl2_add_u32 s22, s7, s22", "s_lshl_b32 s22, s22, 8",
                  f"s_mul_i32 s14, s20, {1792*2048}", "s_add_u32 s14, s14, s22", "s_xor_b32 s6, s53, s20", "s_lshl_b32 s6, s6, 7", "s_add_u32 s14, s14, s6",
                  "s_lshl_b32 s18, s3, 12", "s_lshl_b32 s15, s52, 16", "s_add_u32 s14, s15, s14", "s_mov_b32 s15, s14"]
            for i, x in enumerate(ss): slots[7 + i].insert(0, x)
        if kind == "s15":
            slots[1].extend(["s_mul_i32 s6, s3, 320", "v_lshl_add_u32 v32, v2, 3, s6"])
            slots[2].append(f"v_add_u32 v33, {MB}, v32")
            for r in range(8): slots[4 + r].append(f"ds_read_b64 v[{16+2*r}:{17+2*r}], v33 offset:{r*1280}")
            slots[20].append("s_waitcnt lgkmcnt(0)")
            k = 21
            for stp in (8, 4, 2):
                for i in range(stp): slots[k].append(f"v_add_f32 v{16+i}, v{16+i}, v{16+stp+i}"); k += 1
            slots[k].append(f"v_add_u32 v32, {CSS}, v32")
            slots[k+2].append("ds_write_b64 v32, v[16:17]")
            vv = ["v_and_b32 v44, 15, v2", "v_lshrrev_b32 v45, 4, v2", "v_add_u32 v44, s7, v44", "v_lshlrev_b32 v44, 4, v44", f"v_add_u32 v44, {MB_AOS}, v44",
                  "v_lshl_add_u32 v45, v45, 4, s64", "v_bfe_u32 v46, v2, 1, 3", "v_bfe_u32 v47, v2, 4, 1", "v_lshl_or_b32 v46, v46, 4, v47", "v_and_b32 v47, 1, v2", "v_lshl_or_b32 v46, v46, 2, v47", "v_lshlrev_b32 v46, 14, v46", "v_mov_b32 v3, 1"]
            for i, x in enumerate(vv): slots[k + 4 + i].append(x)
            ss = ["s_lshl_b32 s7, s53, 7", "s_mul_i32 s64, s52, 640", f"s_add_u32 s64, s64, {CSS}",
                  "s_lshl1_add_u32 s0, s5, s53", f"s_mul_i32 s1, s0, {4*STRM}", "s_lshr_b32 s6, s4, 4", "s_mul_i32 s48, s6, 56", "s_add_u32 s48, s48, 32", "s_and_b32 s56, s4, 15",
                  "s_lshl1_add_u32 s41, s56, s52", "s_add_u32 s40, s41, s48", "s_lshl_b32 s40, s40, 11", "s_add_u32 s40, s40, s1",
                  ]
            if ty == 0:
                ss += ["s_add_u32 s41, s4, s52", "s_lshl_b32 s44, s41, 11", "s_add_u32 s44, s44, s1",
                       ]
            else:
                ss += ["s_add_u32 s41, s56, s52", "s_sub_u32 s41, s41, 1", "s_add_u32 s44, s41, s48", "s_add_u32 s44, s44, 32", "s_lshl_b32 s44, s44, 11", "s_add_u32 s44, s44, s1",
                       "s_lshl1_add_u32 s48, s48, s41", "s_add_u32 s48, s48, 96", "s_lshl_b32 s48, s48, 10", "s_add_u32 s48, s48, s1",
                       ]
            for b in (40, 44, 48)[:2+ty]:
                for i in range(1, 4): ss.append(f"s_add_u32 s{b+i}, s{b}, {i*STRM}")
            ss += ["s_bfe_u32 s58, s21, 0x20001", "s_lshr_b32 s59, s21, 3", "s_lshl3_add_u32 s58, s58, s59", "s_and_b32 s59, s21, 1", "s_lshl2_add_u32 s58, s58, s59",
                   "s_lshl4_add_u32 s59, s20, s58", "s_lshl3_add_u32 s69, s3, s58", "s_lshl_b32 s59, s59, 13", "s_lshl_b32 s69, s69, 13", f"s_add_u32 s59, s59, {WS_I}", f"s_add_u32 s69, s69, {WS_I}",
                   "s_lshl_b32 s60, s53, 22", "s_lshl_b32 s0, s52, 16", "s_add_u32 s60, s60, s0", "s_add_u32 s60, s60, s59", f"s_add_u32 s60, s60, {1 << 20}",
                   "s_lshl2_add_u32 s19, s21, s3", f"s_mul_i32 s13, s19, {STRM}", f"s_mul_i32 s12, s20, {56*2048}", "s_add_u32 s12, s12, s13", f"s_add_u32 s12, s12, {32*2048}",
                   "s_lshl_b32 s0, s20, 7", "s_add_u32 s0, s0, s22", "s_lshl_b32 s19, s19, 16", "s_add_u32 s19, s19, s0", "s_lshl_b32 s17, s3, 16", "s_add_u32 s17, s17, s0",
                   "s_lshl2_add_u32 s61, s2, s3", "s_lshl_b32 s61, s61, 13", f"s_xor_b32 s65, s61, {16*8192}", f"s_add_u32 s54, s61, {WS_I}", f"s_add_u32 s55, s65, {WS_I}", f"s_add_u32 s61, s61, {WS_I + 4096}", f"s_add_u32 s65, s65, {WS_I + 4096}",
                   f"s_mov_b32 s68, {f2u(1e-6)}", f"s_mov_b32 s56, {f2u(LOG2E)}"]
            assert len(ss) <= 72, len(ss)
            for i, x in enumerate(ss): slots[3 + i].insert(0, x)
            vx = ["v_and_b32 v4, 15, v2", "v_lshlrev_b32 v4, 11, v4", "v_and_b32 v5, 48, v2", "v_add_u32 v4, v4, v5", "v_add_u32 v5, 32768, v4"]
            for i, x in enumerate(vx): slots[56 + i].append(x)
            for i in range(4): slots[72 + 2*i].append(f"buffer_load_dwordx4 {ar(16 + 4*i, 4)}, v{4 + (i>>1)}, {S(SX)}, s19 offen offset:{(i&1)*64}")
        emit(a, ms, slots)
    VF, VQ, VS = 144, 112, 176
    D = 3; R = 4; nf, ns = 28, 8; T = nf + ns; NU = 16
    V_BR, V_A2, V_AO, V_XO, V_P2, V_P3 = 36, 40, 41, 42, 24, 25
    PL, PK, XF, SE, SX0, G = 64, 80, 208, 12, 20, 48
    CS, TK, Z, Z2 = 12, 28, 36, 240
    TP = nf + o['pl']; TC = TP + 2
    def af(slot, i): return ar(slot*32 + i*4, 4)
    def bf(p, u, cb): return 128 + p*64 + (u*4+cb)*4
    def facc(ch, cb, tb): return (VF, VQ, VS)[ch] + (cb*2+tb)*4
    def ph(t): return "f" if t < nf else ("s" if t < T else None)
    def al(t):
        slot = t % R
        if 24 <= t < nf:
            L = [f"buffer_load_dwordx2 {ar(slot*32 + (ks*2+tb)*4 + 2*h, 2)}, v{V_AO}, {S(SW)}, s12 offen offset:{ks*2048 + h*1024 + tb*512} sc1 ;@A{t}" for ks in range(2) for h in range(2) for tb in range(2)]
            return L, "s_add_u32 s12, s12, 4096"
        n, so = (4, 12) if ph(t) == "f" else (8, 13)
        L = [f"buffer_load_dwordx4 {af(slot, i)}, v{1 if i < 4 else V_A2}, {S(SW)}, s{so} offen offset:{(i&3)*1024} sc1 ;@A{t}" for i in range(n)]
        return L, f"s_add_u32 s{so}, s{so}, {n*1024}"
    def rl(t):
        slot, p = t % R, t & 1
        od = [(ks*2+ch, cb) for ch in range(2) for cb in range(4) for ks in range(2)] if ph(t) == "f" else [(u, cb) for cb in range(4) for u in range(4)]
        return [f"ds_read_b64_tr_b16 {ar(bf(p, u, cb) + rd*2, 2)}, v{V_BR + cb} offset:{slot*16384 + u*4096 + rd*2048}" for u, cb in od for rd in range(2)]
    def ml(t):
        slot, p = t % R, t & 1; L = []
        if ph(t) == "f":
            for ch in range(2):
                for cb in range(4):
                    for tb in range(2):
                        for n, ks in enumerate((0, 1) if tb == 0 else (1, 0)):
                            c = vr(facc(ch, cb, tb), 4)
                            L.append(f"v_mfma_f32_16x16x32_bf16 {c}, {ar(bf(p, ks*2+ch, cb), 4)}, {af(slot, ks*2+tb)}, {0 if t == 0 and n == 0 else c}")
        else:
            for cb in range(4):
                for tb in range(2):
                    for n, ks in enumerate(range(4) if tb == 0 else (3, 2, 1, 0)):
                        c = vr(facc(2, cb, tb), 4)
                        L.append(f"v_mfma_f32_16x16x32_bf16 {c}, {ar(bf(p, ks, cb), 4)}, {af(slot, ks*2+tb)}, {0 if t == nf and n == 0 else c}")
        return L
    def build(t, tags=(), first=(), xm=0):
        ms = ml(t); n = 32 + xm
        slots = {i: [] for i in range(-1, n)}
        slots[-1].append(f"s_waitcnt @{','.join([f'A{t}', f'B{t+1}'] + list(tags))} lgkmcnt(0)")
        if ph(t+1):
            slots[0].append("s_barrier")
            spread(slots, rl(t+1), 0, n - 5)
        b0 = len(first)
        for i, x in enumerate(first): slots[1+i].extend(x if isinstance(x, list) else [x])
        u = t + D + 1
        if ph(u):
            st_ = 3 if b0 < 2 else 2
            slots[b0].append(f"s_add_u32 s15, s14, {n0(u)*65536}" if ph(u) == "f" else f"s_add_u32 s15, s17, {(u-nf)*128*2048}")
            for c, (m, d) in enumerate(bdma(u % R, ph(u))):
                slots[b0+1+st_*c].append(m); slots[b0+2+st_*c].append(d + f" ;@B{u}" + (f",F{t}" if c == 0 else ""))
        if ph(t+D):
            L, ad = al(t+D)
            spread(slots, L, 14, n - 2); slots[n-1].append(ad)
        return ms, slots
    def check(slots, name, cmps, reload):
        for i, x in enumerate(cmps): slots[i].append(x)
        k = len(cmps) + 1
        slots[k].extend([f"s_cbranch_vccnz {name}_s", f"{name}_d:"])
        spin_ool(name, "\n".join(cmps), "\n".join(reload))
        return k
    def maxtree(b, n):
        return [f"v_max3_u32 v4, v{b}, v{b+1}, v{b+2}", f"v_max3_u32 v5, v{b+3}, v{b+4}, v{b+5}"] + [f"v_max3_u32 v{4+(i&1)}, v{4+(i&1)}, v{b+6+2*i}, v{b+7+2*i}" for i in range((n-6)//2)] + ["v_max_u32 v4, v4, v5", "v_cmp_eq_u32 vcc, -1, v4"]
    def FLG(sreg, off=0): return ["s_mov_b64 exec, 1", f"buffer_store_dword v3, off, {S(SW)}, s{sreg} offset:{off} sc1", "s_mov_b64 exec, -1"]
    def POLL(sreg, v, off=0): return f"buffer_load_dword v47, v{v}, {S(SW)}, s{sreg} offen offset:{off} sc1 ;@poll"
    CMP1 = ["v_cmp_ne_u32 vcc, 1, v47"]
    paths = [[], []]

    for ty in range(2):
        vm = VM(a)
        if ty == 0:
            a("L_tA:")
            a("s_mul_i32 s7, s1, 320\ns_add_u32 s6, s6, s7\nv_add_u32 v6, s6, v5")
            a(f"v_mad_u32_u24 v{V_WV}, v3, s57, v6\ns_movk_i32 s57, 6144\ns_lshl_b32 s6, s0, 7\nv_add_u32 v{V_WV+1}, {16*7168}, v{V_WV}\nv_add_u32 v6, s6, v5")
            a(f"v_mad_u32_u24 v{V_WV+2}, v3, s57, v6\nv_add_u32 v{V_WV+3}, {16*6144}, v{V_WV+2}\nv_add_u32 v{V_WV+4}, 4096, v{V_WV+2}\nv_add_u32 v{V_WV+5}, 4096, v{V_WV+3}")
        else:
            a("L_tB:")
            a("s_lshr_b32 s7, 128, s1\ns_add_u32 s7, s6, s7\nv_add_u32 v6, s7, v5")
            a(f"v_mad_u32_u24 v{V_WV}, v3, s57, v6\ns_xor_b32 s7, s1, 1\ns_mul_i32 s7, s7, 384\ns_add_u32 s7, s6, s7\nv_add_u32 v{V_WV+1}, {16*7168}, v{V_WV}")
            a("v_bfe_u32 v3, v2, 2, 2\nv_lshl_add_u32 v3, v4, 3, v3\nv_add_u32 v3, s61, v3\nv_and_b32 v5, 3, v2\nv_and_b32 v6, 1, v4\nv_lshlrev_b32 v6, 1, v6\nv_xor_b32 v5, v5, v6\nv_lshl_add_u32 v5, v5, 4, s7")
            a(f"v_mad_u32_u24 v{V_WV+2}, v3, s57, v5")
        stamp("addr", True)
        zero = [f"v_accvgpr_write_b32 a{A_ACC+i}, 0" for i in range(112)] + [f"v_mov_b64 v[{i}:{i+1}], 0" for i in range(48, 256, 2)]
        for m, d in dma_list(ty, 0):
            a(m)
            for _ in range(o["zper"]):
                if zero: a(zero.pop(0))
            t_st0 = vm(d)
        if o["pro"]: a("s_barrier")
        if o["npf0"] < 2 <= o["npf1"]:
            if o["npf0"] == 0: a("s_add_u32 s58, s58, s59")
            vm(PFI); a("s_add_u32 s58, s58, s59")
        if o["pro"] == 2: vm(PFI)
        a.extend(adv)
        stamp("dma", True)
        fin(SW, WS_SIZE); fin(SD, 3584*1024*2); fin(SO, 1024*1024*2); fin(SOUT, 2048*1024*2)
        a(f"s_lshl2_add_u32 s6, s2, s3\ns_lshl_b32 s6, s6, 13\ns_add_u32 s6, s6, {WS_I}\ns_add_u32 s{SI}, s{SW}, s6\ns_addc_u32 s{SI+1}, s{SW+1}, 0")
        fin(SI, 8192)
        a(f"s_mul_i32 s6, s2, 28672\ns_mul_i32 s7, s3, 9600\ns_add_u32 s6, s6, s7\ns_sub_u32 s7, 28672, s7\ns_min_u32 s7, s7, 9600\ns_lshl_b32 s0, s2, 13")
        a(f"s_cmp_eq_u32 s3, 3\ns_cselect_b32 s6, s0, s6\ns_cselect_b32 s{SP2+2}, 8192, s7\ns_cselect_b32 s0, s{SO}, s{SD}\ns_cselect_b32 s1, s{SO+1}, s{SD+1}")
        a(f"s_add_u32 s{SP2}, s0, s6\ns_addc_u32 s{SP2+1}, s1, 0\ns_mov_b32 s{SP2+3}, 0x20000")
        a("v_and_b32 v3, 15, v2\nv_bfe_u32 v5, v3, 1, 3\ns_lshl_b32 s6, s53, 7\nv_add_u32 v7, s6, v3\nv_lshlrev_b32 v7, 7, v7")
        for ks in range(2):
            a(f"v_add_u32 v6, {ks*4}, v4\nv_xor_b32 v6, v6, v5\nv_lshl_add_u32 v{V_XR+ks}, v6, 4, v7\nv_add_u32 v{V_XR+2+ks}, {STAGE}, v{V_XR+ks}")
        a(f"s_mul_i32 s6, s3, 320\nv_lshl_add_u32 v5, v3, 6, s6\nv_lshl_add_u32 v5, v4, 4, v5\nv_cmp_gt_u32 vcc, 5, v3\nv_mov_b32 v6, {BIG}\nv_lshlrev_b32 v{V_PF2}, 7, v2\nv_cndmask_b32 v{V_CSO}, v6, v5, vcc")
        a(f"v_cmp_gt_u32 vcc, 13, v2\nv_and_b32 v3, 3, v2\nv_lshlrev_b32 v3, 3, v3\nv_cndmask_b32 v{V_PF2}, v6, v{V_PF2}, vcc")
        a(f"v_lshrrev_b32 v5, 2, v2\nv_add_u32 v3, {W_OFF}, v3\nv_lshl_add_u32 v6, v5, 7, v3\nv_bfe_u32 v7, v2, 3, 2\ns_lshl_b32 s6, s52, 1\nv_xor_b32 v7, s6, v7")
        a(f"v_lshl_add_u32 v{V_WR}, v7, 5, v6\nv_xor_b32 v7, 1, v7\nv_lshl_add_u32 v{V_WR+2}, v7, 5, v6")
        if ty == 1:
            a(f"v_lshl_add_u32 v6, v5, 6, v3\nv_and_b32 v7, 1, v4\nv_xor_b32 v7, s52, v7\nv_lshl_add_u32 v6, v7, 5, v6\nv_add_u32 v{V_WR+4}, 32768, v6")
        for r in range(V_WR, V_WR + 4 + 2*ty, 2): a(f"v_add_u32 v{r+1}, {STAGE}, v{r}")
        a(f"s_bfe_u32 s68, s2, 0x20003\ns_lshl3_add_u32 s69, s4, s5\ns_mul_i32 s69, s69, 1280\ns_add_u32 s69, s69, {WS_CS}\ns_mov_b32 s57, 0\ns_mov_b32 s71, 0\ns_lshl4_add_u32 s70, s3, s68\ns_add_u32 s70, s70, 8")
        a.extend(zero)
        a("v_mov_b64 v[4:5], -1\nv_mov_b64 v[6:7], -1")
        stamp("zero", True)
        if not o["pro"]:
            for m, d in dma_list(ty, 1)[:n3]: a(m); vm(d)
            if o["npf0"] < 3 <= o["npf1"]: vm(PFI)
        vm.wait(t_st0)
        a("s_barrier")
        stamp("loop", True)
        if o.get("cnt"): a("s_mov_b32 s72, 0")
        pre = [xread(0, tb, ks) for tb in range(4) for ks in range(2)] + [x for cb in range(9) for x in wread(ty, 0, cb)]
        dl = list(dma_list(ty, 1)[:n3]) if o["pro"] else []
        for i, x in enumerate(pre):
            if dl and i % 6 == 4: a(dl[0][0])
            a(x)
            if dl and i % 6 == 4: a(dl.pop(0)[1])
        assert not dl
        if o["pro"] == 1 and o["npf1"] >= 3: a(PFI)
        a(".p2align 6")
        a.label(f"L_loop{ty}")
        def d1(stage): return [([], m, d, p-80) for (m, d), p in zip(dma_list(ty, stage ^ 1)[n3:], dpos[n3:])]
        def d2(stage): return [([], m, d, p) for (m, d), p in zip(dma_list(ty, stage)[:n3], dpos[:n3])]
        for stage in range(2):
            phase1(ty, stage, "loop", d1(stage))
            phase2(ty, stage, "loop", d2(stage))
        a("s_add_u32 s57, s57, 1")
        for it in (1, 2, 4, 6):
            if o["stamps"] and f"i{it}" in sset:
                a(f"s_cmp_eq_u32 s57, {it}\ns_cbranch_scc0 L_st{ty}{it}"); stamp(f"i{it}", True); a(f"L_st{ty}{it}:")
        a(f"s_cmp_eq_u32 s57, {77 if o.get('nostat') else o['sh']}\ns_cbranch_scc1 L_sh{ty}\ns_cmp_lt_u32 s57, 7\ns_cbranch_scc1 L_loop{ty}")
        ool(f"L_sh{ty}:\ns_lshl_b32 s7, s3, 12\ns_add_u32 s7, s7, {MB}\nv_add_u32 v3, s7, v1\ns_mov_b32 s6, 0x3f803f80")
        DR = [V_T, V_CSA, V_SEL]
        for i in range(3): ool(f"ds_read_b128 {vr(DR[i], 4)}, v3 offset:{1024*i}")
        ool(f"s_lshr_b32 s0, s2, 5\ns_mul_i32 s0, s0, 6144\ns_add_u32 s0, s0, {WS_ST}\ns_and_b32 s7, s2, 31\ns_lshl2_add_u32 s7, s7, s3\ns_lshl3_add_u32 s1, s7, s0\ns_add_u32 s1, s1, 4096\ns_lshl_b32 s7, s7, 5\ns_add_u32 s0, s0, s7")
        for i in range(4):
            ool(f"s_waitcnt lgkmcnt({[2, 2, 1, 0][i]})")
            r = i >> 1
            for q in range(4):
                x = DR[i % 3] + q; f = (i & 1) == 0 and q == 0
                ool(f"v_dot2_f32_bf16 v{4+r}, v{x}, s6, {'0' if f else f'v{4+r}'}\nv_dot2_f32_bf16 v{6+r}, v{x}, v{x}, {'0' if f else f'v{6+r}'}")
            if i == 0: ool(f"ds_read_b128 {vr(DR[0], 4)}, v3 offset:3072")
        ool(f"v_lshrrev_b32 v46, 3, v2\nv_lshrrev_b32 v47, 1, v2\nv_mov_b32 v45, {f2u(1.0/1024)}")
        ool("v_permlane32_swap_b32 v4, v5\nv_permlane32_swap_b32 v6, v7\nv_add_f32 v4, v4, v5\nv_add_f32 v6, v6, v7\nv_permlane16_swap_b32 v4, v6\nv_add_f32 v4, v4, v6")
        for sh in (8, 4, 2, 1): ool(f"v_add_f32_dpp v4, v4, v4 row_ror:{sh} row_mask:0xf bank_mask:0xf")
        ool("v_mov_b32 v6, v4\nv_permlane16_swap_b32 v4, v6")
        ool(f"v_mul_f32 v36, {f2u(-1.0/1024)}, v4\nv_mul_f32 v44, v36, v36\nv_fma_f32 v44, v6, v45, -v44\nv_max_f32 v44, 0, v44\nv_add_f32 v39, {f2u(1e-5)}, v44")
        ool(f"v_rsq_f32 v44, v39\nv_mov_b64 v[4:5], -1\nv_mul_f32 v37, {f2u(GA1)}, v44\nv_mul_f32 v45, v44, v44\nv_mul_f32 v38, {f2u(0.044715)}, v37\nv_mul_f32 v38, v38, v45\nv_mov_b64 v[6:7], -1")
        ool(f"s_mov_b32 exec_lo, 1\ns_mov_b32 exec_hi, 1\nbuffer_store_dwordx4 v[36:39], v47, {S(SW)}, s0 offen sc1\nbuffer_store_dword v36, v46, {S(SW)}, s1 offen sc1\nbuffer_store_dword v44, v46, {S(SW)}, s1 offen offset:1024 sc1\ns_mov_b64 exec, -1")
        ool(f"s_branch L_loop{ty}")
        stamp("s14", True)
        phase1(ty, 0, "s14", d1(0))
        tail = [([], f"s_add_u32 m0, s1, {MB}" if c == 0 else "s_nop 0", f"buffer_load_dwordx4 v1, {S(SW)}, s{58 + (c >> 1)} offen offset:{c*1024} sc1 lds") for c in range(4)]
        for t in range(4):
            for c, (m, d) in enumerate(bdma(t, "f")):
                tail.append(([f"s_add_u32 s15, s14, {n0(t)*65536}"] if c == 0 and t else [], m, d))
        tp = [6, 12, 18, 24] + [32 + 7*i for i in range(16)]
        tp = [p if p not in (80, 81) else 83 for p in tp]
        phase2(ty, 0, "s14", [(pre, m, d, p) for (pre, m, d), p in zip(tail, tp) if p < 80])
        stamp("s15", True)
        phase1(ty, 1, "s15", [(pre, m, d, p-80) for (pre, m, d), p in zip(tail, tp) if p >= 80])
        phase2(ty, 1, "s15", [], nwait=16 + o["pf3"])
        a("s_waitcnt lgkmcnt(0)\ns_barrier")
        stamp("e0", True)
        p0 = len(a.lines)
        def rd_cs(cb0, n):
            for i in range(n): a(f"ds_read_b128 v[{CS+4*i}:{CS+4*i+3}], v45 offset:{(cb0+i)*64}")
        def rd_tk(tb): a(f"ds_read_b128 v[{TK+4*(tb&1)}:{TK+4*(tb&1)+3}], v44 offset:{tb*256}")
        def getv(tb, cb, tmp):
            p, b = accb(tb, cb)
            if p == "v": return b
            for i in range(4): a(f"v_accvgpr_read_b32 v{tmp+i}, a{b+i}")
            return tmp
        def pack(d, ps):
            for i, p in enumerate(ps): a(f"v_cvt_pk_bf16_f32 v{d+i}, v{p}, v{p+1}")
        def fixm(b, cs, tk):
            for h in (0, 2): a(f"v_pk_fma_f32 {P(b+h)}, {P(cs+h)}, {P(tk)}, {P(b+h)} op_sel_hi:[1,0,1]")
        def geglu(items, d):
            el = [(g+h, u+h, tk, Z + 4*n + h) for n, (g, u, cg, cu, tk) in enumerate(items) for h in (0, 2)]
            for g, u, cg, cu, tk in items: fixm(g, cg, tk)
            for g, u, tk, z in el: a(f"v_pk_mul_f32 {P(z)}, {P(g)}, {P(g)}")
            for g, u, tk, z in el: a(f"v_pk_fma_f32 {P(z)}, {P(z)}, {P(tk+2)}, {P(tk)} op_sel:[0,0,1] op_sel_hi:[1,0,1]")
            for g, u, tk, z in el: a(f"v_pk_mul_f32 {P(z)}, {P(z)}, {P(g)}")
            for i in range(8): a(f"v_exp_f32 v{Z+i}, v{Z+i}")
            for g, u, cg, cu, tk in items: fixm(u, cu, tk)
            for g, u, tk, z in el: a(f"v_pk_fma_f32 {P(z)}, {P(z)}, {P(tk+2)}, {P(tk+2)} op_sel:[0,1,1] op_sel_hi:[1,1,1]")
            for i in range(8): a(f"v_rcp_f32 v{Z+i}, v{Z+i}")
            for g, u, tk, z in el: a(f"v_pk_mul_f32 {P(u)}, {P(u)}, {P(g)}")
            for g, u, tk, z in el: a(f"v_pk_mul_f32 {P(u)}, {P(u)}, {P(z)}")
            pack(d, [u for g, u, tk, z in el])
        def frag(tb, cb0, sb, nxt):
            r = [getv(tb, cb0+i, accb(tb, i)[1]) for i in range(4)]
            a("s_waitcnt lgkmcnt(0)")
            if nxt is not None: rd_tk(nxt)
            tk = TK + 4*(tb & 1)
            geglu([(r[0], r[1], CS, CS+4, tk), (r[2], r[3], CS+8, CS+12, tk)], r[0])
            a(f"buffer_store_dwordx4 v[{r[0]}:{r[0]+3}], v1, {S(SW)}, s{sb+(tb>>1)} offen offset:{(tb&1)*1024} sc1 ;@h{sb}")
        ALD = [x for t in range(3) for x in al(t)[0] + [al(t)[1]]]
        def try_load():
            stamp("b2")
            a("s_waitcnt @poll"); a.extend(CMP1)
            a(f"s_mov_b32 s70, 0\ns_nop 2\ns_cbranch_vccz L_tl{ty}\n{POLL(59, 46)}\nL_tl{ty}_d:")
            ool(f"L_tl{ty}:\ns_mov_b32 s70, 1"); ool.extend(ALD); ool(f"s_branch L_tl{ty}_d")
        def must_load():
            stamp("chk")
            a(f"s_cmp_eq_u32 s70, 1\ns_cbranch_scc1 L_ml{ty}\ns_waitcnt @poll")
            spin(f"L_b1{ty}", CMP1[0], POLL(59, 46))
            a.extend(ALD)
            a(f"L_ml{ty}:")
            stamp("chkd")
        def set_b1():
            a("s_waitcnt @h40"); stamp("w1d"); a.extend(FLG(54))
        def phi_tail(ps, ts, scale):
            for i in range(8): a(f"v_exp_f32_e64 v{Z+i}, v{Z+i} clamp")
            for p in ps: a(f"v_max_f32 v{p}, 0, v{p}\nv_max_f32 v{p+1}, 0, v{p+1}")
            for p in ps:
                if scale is None: a(f"v_pk_add_f32 {P(p)}, {P(p)}, s[68:69] op_sel_hi:[1,0]")
                else: a(f"v_pk_fma_f32 {P(p)}, {P(p)}, {P(scale)}, s[68:69] op_sel_hi:[1,0,0]")
            for p, q in zip(ps, ts): a(f"v_pk_add_f32 {P(p)}, {P(p)}, {P(q)}")
            pack(ps[0], ps)
        rd_cs(0, 4); rd_tk(0)
        for tb in range(8): frag(tb, 0, 40, tb+1 if tb < 7 else (0 if ty else None))
        stamp("b1")
        if ty == 1:
            rd_cs(6, 4)
            for tb in range(8):
                frag(tb, 6, 44, tb+1 if tb < 7 else 0)
                if tb == o["fB"]: set_b1()
                if tb == o["pB"]: a(POLL(59, 46))
                if tb == o["cB"]: try_load()
            rd_cs(4, 2)
            must_load()
        else:
            a(f"v_and_b32 v4, 15, v2\nv_lshl_add_u32 v4, v4, 2, s64\ns_lshl_b32 s0, s53, 9\ns_add_u32 s0, s0, {MB_NM}\ns_sub_u32 s0, s0, s64\nv_add_u32 v5, s0, v45")
            for i in range(4): a(f"ds_read_b32 v{12+i}, v4 offset:{(6+i)*64}")
            KV, ONES = 112, 136
            for i in range(4): a(f"v_mov_b32 v{ONES+i}, 0x3f803f80")
            for tp in range(4):
                for h in range(2):
                    a(f"ds_read_b128 v[{16+8*h}:{19+8*h}], v5 offset:{(2*tp+h)*64}\nds_read_b128 v[{20+8*h}:{23+8*h}], v5 offset:{(2*tp+h)*64 + 1024}")
                r = [[getv(2*tp+h, 6+i, 48 + 32*(tp & 1) + 8*i + 4*h) for h in range(2)] for i in range(4)]
                a("s_waitcnt lgkmcnt(0)")
                for i in range(4):
                    sel = i & 1
                    for h in range(2):
                        for q in (0, 2):
                            a(f"v_pk_fma_f32 {P(r[i][h]+q)}, {P(16+8*h+q)}, {P(12+(i&2))}, {P(r[i][h]+q)} op_sel:[0,{sel},0] op_sel_hi:[1,{sel},1]")
                    for h in range(2):
                        for q in (0, 2): a(f"v_pk_mul_f32 {P(r[i][h]+q)}, {P(r[i][h]+q)}, {P(20+8*h+q)}")
                    ps = [r[i][0], r[i][0]+2, r[i][1], r[i][1]+2]; ts = [Z, Z+2, Z+4, Z+6]
                    if i < 2:
                        for p, q in zip(ps, ts): a(f"v_pk_mul_f32 {P(q)}, {P(p)}, s[56:57] op_sel_hi:[1,0]")
                        phi_tail(ps, ts, None)
                    else: pack(ps[0], ps)
                for db in range(2):
                    for eb in range(3):
                        d = vr(KV + (db*3+eb)*4, 4)
                        B = vr(r[2+eb][0], 4) if eb < 2 else vr(ONES, 4)
                        a(f"v_mfma_f32_16x16x32_bf16 {d}, {vr(r[db][0], 4)}, {B}, {d if tp else 0}")
                if tp == 0: set_b1()
                if tp == 1: a(POLL(59, 46))
                if tp == 2: try_load()
            rd_cs(4, 2); rd_tk(0)
            a(f"s_mul_i32 s0, s3, 3072\ns_add_u32 s0, s0, {KVX}\nv_add_u32 v4, s0, v1\ns_xor_b32 s1, s3, 1\ns_mul_i32 s1, s1, 3072\ns_add_u32 s1, s1, {KVX}\nv_add_u32 v5, s1, v1")
            must_load()
            a("s_cmp_eq_u32 s53, 0\ns_nop 3\ns_cbranch_scc1 L_kv0")
            for eb in range(3): a(f"ds_write_b128 v5, v[{KV+eb*4}:{KV+eb*4+3}] offset:{eb*1024}")
            for i in range(0, 12, 2): a(f"v_mov_b64 {P(48+i)}, {P(KV+12+i)}")
            a("s_branch L_kv1\nL_kv0:")
            for eb in range(3): a(f"ds_write_b128 v5, v[{KV+12+eb*4}:{KV+12+eb*4+3}] offset:{eb*1024}")
            for i in range(0, 12, 2): a(f"v_mov_b64 {P(48+i)}, {P(KV+i)}")
            a("L_kv1:")
        a("v_lshrrev_b32 v5, 2, v2\nv_lshlrev_b32 v5, 7, v5\nv_and_b32 v6, 3, v2\nv_lshl_add_u32 v5, v6, 3, v5\nv_bfe_u32 v6, v2, 3, 2")
        for cb in range(4): a(f"v_xor_b32 v7, {cb}, v6\nv_lshl_add_u32 v{V_BR+cb}, v7, 5, v5")
        a("s_waitcnt lgkmcnt(0)\ns_barrier")
        if ty == 0:
            for eb in range(3): a(f"ds_read_b128 v[{60+eb*4}:{63+eb*4}], v4 offset:{eb*1024}")
        a.extend(rl(0))
        stamp("k2")
        TJ, TG, TO = o["tj"], o["tg"], o["tg"] + 2
        KG = 100
        GLD = [f"buffer_load_dwordx4 {vr(KG+4*e, 4)}, v1, {S(SW)}, s{r} offen sc1 ;@gld" for e, r in enumerate((64, 66, 67))]
        def ob(tb, eb):
            i = tb*3 + eb
            return G + 4*i if i < 12 else 208 + 4*(i - 12)
        NS_ = o["nsA"] if ty == 0 else o["nsB"]
        TB3 = NS_ + 2
        st_ = []
        for t in range(NU):
            tags = []; first = []; xm = 0
            otb = {TO: range(0, 2), TO+1: range(2, 5), TO+2: range(5, 8)}.get(t, []) if ty == 0 else []
            if ty == 0:
                if t == TG: first = GLD
                if t == TO: tags = ["gld"]
                xm = 3*len(otb)
            else:
                if t == 2: tags = ["h44"]; first = [FLG(54, 128)]
                if t == TJ+3: tags = [f"F{TJ+1}"]
                if t == TB3: tags = ["late"]; first = [FLG(54, 256)]
            if t == 12: tags = tags + ["poll"]
            ms, slots = build(t, tags, first, xm)
            n = 32 + xm; lo = 0
            if t == 12: lo = check(slots, f"L_b2{ty}", CMP1, [POLL(60, V_P2, 128)])
            if t == 9: slots[n-1].append(POLL(60, V_P2, 128))
            if t == 14:
                vv = [f"v_add_u32 v{V_A2}, 4096, v1", "v_and_b32 v4, 15, v2", "v_lshlrev_b32 v4, 11, v4", "v_bfe_u32 v6, v2, 4, 1", "v_lshl_add_u32 v4, v6, 5, v4",
                      "v_lshrrev_b32 v6, 5, v2", f"v_lshl_add_u32 v{V_XO}, v6, 4, v4", f"v_add_u32 v{V_XO+1}, 32768, v{V_XO}", "v_and_b32 v4, 0x1f0, v1", f"v_lshl_add_u32 v{V_AO}, v6, 3, v4"]
                fillv([slots[i] for i in range(n)], vv)
                slots[20].append(f"s_add_u32 s66, s54, {256 + 128*ty}")
            if ty == 0 and t == TG - 1:
                fill(slots, ["s_and_b32 s64, s2, 0xc6", "s_or_b32 s64, s64, s52", "s_lshl_b32 s64, s64, 15", f"s_add_u32 s64, s64, {WS_I + 0x28*32768 + 1024}", f"s_add_u32 s66, s64, {16*32768}", "s_add_u32 s67, s64, 8192"], 13, 30)
            if otb:
                if t == TO: lo = check(slots, "L_kvf", maxtree(KG, 12), GLD)
                om = [f"v_mfma_f32_16x16x32_bf16 {vr(ob(tb, eb), 4)}, {vr(KG+4*eb, 4)}, v[{VS+4*tb}:{VS+3+4*tb}], 0" for tb in otb for eb in (2, 0, 1)]
                ms = ms[:lo+1] + om + ms[lo+1:]
                lo += 7
                per = (n - 1 - lo)//len(otb)
                for k, tb in enumerate(otb):
                    dn = ob(tb, 2); e8 = [ob(tb, 0)+i for i in range(4)] + [ob(tb, 1)+i for i in range(4)]
                    w = [f"v_add_f32 v{dn}, s68, v{dn}", f"v_rcp_f32 v{dn}, v{dn}"] + [f"v_mul_f32 v{e}, v{e}, v{dn}" for e in e8] + [f"v_cvt_pk_bf16_f32 v{e8[0]+i}, v{e8[2*i]}, v{e8[2*i+1]}" for i in range(4)]
                    fillv([slots[i] for i in range(lo + k*per, lo + (k+1)*per)], w)
                    slots[lo + (k+1)*per].append(f"buffer_store_dwordx4 {vr(e8[0], 4)}, v1, {S(SW)}, s{44+(tb>>1)} offen offset:{(tb&1)*1024} sc1 ;@late")
            if ty == 1 and t == 0:
                fill(slots, ["s_bfe_u32 s6, s2, 0x10004", "s_add_u32 s70, s6, s3", "s_min_u32 s7, s3, 1", "s_mul_i32 s70, s70, s7", "s_lshl1_add_u32 s6, s7, s6", "s_andn2_b32 s7, 8, s2", "s_add_u32 s70, s70, s7",
                             "s_and_b32 s64, s2, 0xc6", "s_and_b32 s7, s2, 1", "s_lshl1_add_u32 s64, s64, s7", "s_lshl4_add_u32 s64, s64, s6", "s_lshl_b32 s64, s64, 10", f"s_add_u32 s64, s64, {WS_I + 1024}"], 12, 30)
            if ty == 1 and t == TJ+3:
                slots[-1].extend(["s_cmp_lt_u32 s70, 2", "s_cbranch_scc1 L_red", "L_red_d:"])
            st_.append((ms, slots))
        gaps = [st_[t][1][i] for t in range(NS_) for i in range(32)]
        pre = [f"v_bfe_u32 v{V_P3}, v2, 1, 2", f"v_and_b32 v{V_P2}, 1, v2", f"v_lshl_or_b32 v{V_P3}, v{V_P3}, 7, v{V_P2}", f"v_lshlrev_b32 v{V_P3}, 14, v{V_P3}", f"v_and_b32 v{V_P2}, {0xffbfffff}, v{V_P3}"]
        g0 = 0
        if ty == 0:
            fillv(gaps[0:8], [f"v_add_f32 v{48+i}, v{48+i}, v{60+i}" for i in range(12)])
            for eb in range(3): gaps[9+3*eb].append(f"buffer_store_dwordx4 v[{48+eb*4}:{51+eb*4}], v1, {S(SW)}, s54 offen offset:{(eb+1)*1024} sc1")
            g0 = 8
        per = (len(gaps) - g0)//8
        assert per >= 32
        for tb in range(8):
            tk = TK + 4*(tb & 1); b0, b1 = accb(tb, 4)[1], accb(tb, 5)[1]
            gg = gaps[g0 + tb*per:g0 + (tb+1)*per]
            if tb < 7: gg[0].append(f"ds_read_b128 v[{TK+4*((tb+1)&1)}:{TK+4*((tb+1)&1)+3}], v44 offset:{(tb+1)*256}")
            vv = list(pre) if tb == 0 else []
            if ty == 0:
                el = [(b0+i, CS+i, Z2+i) for i in range(4)] + [(b1+i, CS+4+i, Z2+4+i) for i in range(4)]
                vv += [f"v_mul_f32 v{tk+2}, {f2u(1.0/GA1)}, v{tk+1}", f"v_mul_f32 v{tk+3}, {f2u(LOG2E/GA1)}, v{tk+1}"]
                vv += [f"v_fmac_f32 v{q}, v{c}, v{tk}" for q, c, z in el] + [f"v_mul_f32 v{z}, v{q}, v{tk+3}" for q, c, z in el]
                for q, c, z in el: vv += [f"v_exp_f32_e64 v{z}, v{z} clamp", f"v_max_f32 v{q}, 0, v{q}", f"v_fma_f32 v{q}, v{q}, v{tk+2}, s68"]
                vv += [f"v_add_f32 v{q}, v{q}, v{z}" for q, c, z in el]
                vv += [f"v_cvt_pk_bf16_f32 v{b0+i}, v{el[2*i][0]}, v{el[2*i+1][0]}" for i in range(4)]
            else:
                el = [(b0+i, b1+i, CS+i, CS+4+i, Z2+i) for i in range(4)]
                d = accb(tb & ~1, 4)[1]
                vv += [f"v_fmac_f32 v{g}, v{cg}, v{tk}" for g, u, cg, cu, z in el] + [f"v_mul_f32 v{z}, v{g}, v{g}" for g, u, cg, cu, z in el]
                vv += [f"v_fma_f32 v{z}, v{z}, v{tk+2}, v{tk+1}" for g, u, cg, cu, z in el] + [f"v_mul_f32 v{z}, v{z}, v{g}" for g, u, cg, cu, z in el]
                for g, u, cg, cu, z in el: vv += [f"v_exp_f32 v{z}, v{z}", f"v_fmac_f32 v{u}, v{cu}, v{tk}"]
                vv += [f"v_fma_f32 v{z}, v{z}, v{tk+3}, v{tk+3}" for g, u, cg, cu, z in el]
                for g, u, cg, cu, z in el: vv += [f"v_rcp_f32 v{z}, v{z}", f"v_mul_f32 v{u}, v{u}, v{g}"]
                vv += [f"v_mul_f32 v{u}, v{u}, v{z}" for g, u, cg, cu, z in el]
                vv += [f"v_cvt_pk_bf16_f32 v{d+2*(tb&1)+i}, v{b1+2*i}, v{b1+2*i+1}" for i in range(2)]
                if tb & 1:
                    gg[-2].extend([f"v_permlane32_swap_b32 v{d}, v{d+2}", f"v_permlane32_swap_b32 v{d+1}, v{d+3}"])
                    gg[-1].append(f"buffer_store_dwordx4 v[{d}:{d+3}], v1, {S(SW)}, s{48+(tb>>1)} offen sc1 ;@late")
                    gg = gg[:-3]
            if o.get("ab", 0) & 32: vv = vv[:5]
            fillv(gg, vv)
        for t, (ms, slots) in enumerate(st_):
            stamp(f"t{t}")
            emit(a, ms, slots)
            if ty == 1 and t == TJ: a("s_cmp_lt_u32 s70, 2\ns_cbranch_scc1 L_gat\nL_gat_d:")
        if ty == 0: a("s_branch L_tail")
        paths[ty] = list(range(p0, len(a.lines)))
    KLD = []
    for r in range(8):
        for db in range(2):
            KLD += [f"s_add_u32 s1, s64, {(8*(r&3) + (r>>2))*32768 + db*8192}", f"buffer_load_dwordx4 v[{G+(r*2+db)*4}:{G+(r*2+db)*4+3}], v1, {S(SW)}, s1 offen sc1"]
    main = a; hk = Asm(); a = hk
    a("L_gat:"); a.extend(KLD); a("s_branch L_gat_d\nL_red:")
    spin("L_kvg", "\n".join(maxtree(G, 64)), "\n".join(KLD))
    for stp in (32, 16, 8):
        for i in range(0, stp, 2): a(f"v_pk_add_f32 {P(G+i)}, {P(G+i)}, {P(G+stp+i)}")
    for i in range(4): a(f"v_cvt_pk_bf16_f32 v{G+i}, v{G+2*i}, v{G+2*i+1}")
    a(f"buffer_store_dwordx4 v[{G}:{G+3}], v1, {S(SW)}, s54 offen offset:1024 sc1\ns_branch L_red_d")
    a = main
    a("L_tail:")
    p0 = len(a.lines)
    PLD = [f"buffer_load_dwordx4 v[{PL+4*i}:{PL+4*i+3}], v1, {S(SW)}, s65 offen offset:{i*1024} sc1 ;@pld" for i in range(4)]
    OPOLL = [POLL(69, V_P3, 256), f"buffer_load_dword v35, off, {S(SW)}, s55 sc1 ;@poll"]
    def tail(t):
        tags = {NU: ["late"], 20: ["poll"], 24: ["poll"], TC: ["pld"]}.get(t, [])
        first = {NU: [FLG(66)], TP: PLD}.get(t, [])
        ms, slots = build(t, tags, first, 8 if t in (20, TC) else 0)
        if t == 17: slots[31].append(POLL(60, V_P2, 256))
        if t == 20: check(slots, "L_b3", CMP1, [POLL(60, V_P2, 256)])
        if t == o["opoll"]: slots[30].append(OPOLL[0]); slots[31].append(OPOLL[1])
        if t == 24: check(slots, "L_of", ["v_or_b32 v4, v35, v47", "v_cmp_ne_u32 vcc, 1, v4"], OPOLL)
        if t == nf:
            for q in range(4):
                tb, pp = q >> 1, q & 1
                for i in range(4):
                    r = facc(1, 2*pp + (i >> 1), tb) + 2*(i & 1)
                    slots[8 + 4*q + i].append(f"v_cvt_pk_bf16_f32 v{PK+4*q+i}, v{r}, v{r+1}")
                slots[[13, 19, 25, 31][q]].append(f"buffer_store_dwordx4 v[{PK+4*q}:{PK+4*q+3}], v1, {S(SW)}, s61 offen offset:{q*1024} sc1")
        if t == 18:
            vv = ["v_and_b32 v4, 1, v2", "v_lshlrev_b32 v4, 4, v4", "v_mov_b32 v5, 0x3f80", "v_lshlrev_b32 v4, v4, v5", "v_lshrrev_b32 v5, 4, v2", "v_bfe_u32 v6, v2, 1, 3", "v_lshlrev_b32 v7, 1, v5",
                  "v_sub_u32 v6, v6, v7", "v_sub_u32 v7, v6, v7"]
            for i in range(2): vv += [f"v_cmp_eq_u32 vcc, {i}, v6", f"v_mov_b32 v{SE+i}, 0", f"v_mov_b32 v{SE+4+i}, 0", f"v_cndmask_b32 v{SE+2+i}, 0, v4, vcc"]
            fillv([slots[i] for i in range(1, 32)], vv)
        if t == 19:
            for e in range(2):
                for i in range(4):
                    k = 4*e + i
                    slots[1+4*k].append(f"v_cmp_eq_u32 vcc, {i - 8*e}, v7"); slots[3+4*k].append(f"v_cndmask_b32 v{PK+k}, 0, v4, vcc")
        if t == 20:
            ms = ms + [f"v_mfma_f32_16x16x32_bf16 {vr(XF + (cb*2+tb)*4, 4)}, {vr(PK + 4*(cb&1), 4)}, {ar(16 + 4*(2*tb + (cb>>1)), 4)}, 0" for cb in range(4) for tb in range(2)]
        return ms, slots
    for t in range(NU, TC):
        if t == nf: stamp("s")
        stamp(f"t{t}")
        emit(a, *tail(t))
    last = [list(tail(t)) for t in range(TC, T)]
    m5, s5 = last[0]
    k = check(s5, "L_xb", maxtree(PL, 16), PLD)
    s5[1].append(f"s_mov_b32 s6, {f2u(-LOG2E)}")
    blocks = [(2*pp + e, tb) for pp in range(2) for tb in range(2) for e in range(2)]
    addm = [f"v_mfma_f32_16x16x32_bf16 {vr(facc(0, cb, tb), 4)}, {vr(SE + 2 - 2*(cb&1), 4)}, {vr(PL + 4*(2*tb + (cb>>1)), 4)}, {vr(facc(0, cb, tb), 4)}" for cb, tb in blocks]
    last[0][0] = m5[:k+1] + addm + m5[k+1:]
    silu = []
    for g in range(0, 8, 2):
        el = [(cb*2+tb)*4 + i for cb, tb in blocks[g:g+2] for i in range(4)]
        silu += [f"v_mul_f32 v{VQ+e}, s6, v{VF+e}" for e in el] + [f"v_exp_f32 v{VQ+e}, v{VQ+e}" for e in el] + [f"v_add_f32 v{VQ+e}, 1.0, v{VQ+e}" for e in el]
        silu += [f"v_rcp_f32 v{VQ+e}, v{VQ+e}" for e in el] + [f"v_mul_f32 v{VF+e}, v{VF+e}, v{VQ+e}" for e in el]
    def outp(pp, tb, pk):
        d = PK + (tb*2+pp)*4; L = []
        for e in range(2):
            off = ((2*pp+e)*2+tb)*4
            if pk: L += [f"v_pk_fma_f32 {P(VS+off+h)}, {P(VS+off+h)}, {P(VF+off+h)}, {P(XF+off+h)}" for h in (0, 2)]
            else: L += [f"v_fma_f32 v{VS+off+h}, v{VS+off+h}, v{VF+off+h}, v{XF+off+h}" for h in range(4)]
        for e in range(2):
            off = ((2*pp+e)*2+tb)*4
            L += [f"v_cvt_pk_bf16_f32 v{d+2*e+h}, v{VS+off+2*h}, v{VS+off+2*h+1}" for h in range(2)]
        return L, [f"v_permlane16_swap_b32 v{d}, v{d+2}", f"v_permlane16_swap_b32 v{d+1}, v{d+3}"], f"buffer_store_dwordx4 v[{d}:{d+3}], v{V_XO+tb}, {S(SOUT)}, s19 offen offset:{pp*64} sc1"
    nin = o["nin"]
    gaps = [sl[i] for ms, sl in last for i in range(len(ms))]
    e7 = len(gaps) - 32 + o["s7e"]
    fillv(gaps[k+9:e7], silu[:nin])
    (l0, w0, t0), (l1, w1, t1) = outp(0, 0, False), outp(0, 1, False)
    if o["s7e"] < 32:
        assert nin >= 80
        fillv(gaps[e7:-1], l0 + l1 + w0 + w1)
        gaps[-1].extend([t0, t1])
    for t, (ms, sl) in zip(range(TC, T), last):
        stamp(f"t{t}"); emit(a, ms, sl)
    stamp("fin")
    for g in range(nin//20, 8, 2):
        el = [(cb*2+tb)*4 + i for cb, tb in blocks[g:g+2] for i in range(4)]; ep = el[::2]
        a.extend([f"v_pk_mul_f32 {P(VQ+e)}, {P(VF+e)}, s[6:7] op_sel_hi:[1,0]" for e in ep] + [f"v_exp_f32 v{VQ+e}, v{VQ+e}" for e in el] + [f"v_pk_add_f32 {P(VQ+e)}, {P(VQ+e)}, 1.0 op_sel_hi:[1,0]" for e in ep])
        a.extend([f"v_rcp_f32 v{VQ+e}, v{VQ+e}" for e in el] + [f"v_pk_mul_f32 {P(VF+e)}, {P(VF+e)}, {P(VQ+e)}" for e in ep])
    for pp in range(0 if o["s7e"] == 32 else 1, 2):
        (l0, w0, t0), (l1, w1, t1) = outp(pp, 0, True), outp(pp, 1, True)
        a.extend(l0 + l1 + w0 + [t0] + w1 + [t1])
    if o.get("cnt"):
        a(f"s_lshl2_add_u32 s0, s2, s3\ns_lshl_b32 s0, s0, 2\ns_add_u32 s0, s0, {STAMP_OFF + 0x10000}\nv_mov_b32 v4, s0\nv_mov_b32 v5, s72\nglobal_store_dword v4, v5, s[{SW}:{SW+1}]")
    if o["stamps"]:
        stamp("fs")
        a("s_waitcnt vmcnt(0)")
        stamp("end")
        a(f"s_cmp_lg_u32 s3, {o['stw']}\ns_cbranch_scc1 L_end")
        st.n = len(sset)
        st.flush(a, SW, 2, 4)
    for ty in range(2): paths[ty] += list(range(p0, len(a.lines)))
    ab = o.get("ab", 0)
    k2lines = set(paths[0] + paths[1])
    for i in k2lines:
        l = a.lines[i]
        kill = False
        if ab & 1 and "buffer_store_dword v3, off" in l and "offset:0" not in l: kill = True
        if ab & 2 and ";@poll" in l and "s59" not in l: kill = True
        if ab & 3 and any(f"s_cbranch_vccnz {n}" in l for n in ("L_b2", "L_b3", "L_of")): kill = True
        if ab & 4 and (";@gld" in l or "L_kvf_s" in l or "scc1 L_gat" in l or "scc1 L_red" in l or ("s54 offen" in l and "store" in l)): kill = True
        if ab & 8 and ";@late" in l: kill = True
        if ab & 16 and (";@pld" in l or "L_xb_s" in l or ("s61 offen" in l and "store" in l)): kill = True
        if kill: a.lines[i] = "    s_nop 0"
    resolve(a.lines, paths)
    a("L_end:\ns_endpgm")
    a.lines += hk.lines + ool.lines + ["L_cend:"]
    a.lines, n = hazard.fix(a.lines, verbose=o.get("hv", 0))
    if o.get("cnt"): print(spn)
    ref = "cdna_kernels/" + NAME + ".s.ref"
    hdr = open(ref).read().split("; Override launch")[0] if os.path.exists(ref) else ""
    k = dict(name=NAME + "_kernel", grid=256, block=256, lds=163840, body=a, vgpr=256, agpr=256)
    if "pm" in o:
        pr = Asm(); pa, pb, M, pw = o.get("pa", 0), o.get("pb", 0), o["pm"], o.get("pw", 0)
        pr(f"""s_cmp_ge_u32 s2, 1
s_cbranch_scc1 Lp_end
s_load_dwordx2 s[4:5], s[0:1], 72
s_memrealtime s[8:9]
v_mov_b32 v1, {STAMP_OFF + pw*128 + pa*8 + 4}
v_mov_b32 v2, {STAMP_OFF + pw*128 + (pb % 10)*8 + 4}
s_waitcnt lgkmcnt(0)
global_load_dword v3, v1, s[4:5]
global_load_dword v4, v2, s[4:5]
s_waitcnt vmcnt(0)
{"v_mov_b32 v4, s8" if pb == 99 else ""}
v_sub_u32 v3, v4, v3
s_nop 1
v_readfirstlane_b32 s6, v3
s_nop 3
s_min_u32 s6, s6, 20000
s_mul_i32 s6, s6, {M}
Lp_loop:
s_memrealtime s[10:11]
s_waitcnt lgkmcnt(0)
s_sub_u32 s12, s10, s8
s_cmp_lt_u32 s12, s6
s_cbranch_scc1 Lp_loop
Lp_end:
s_endpgm""")
        return hdr + file_text([k, dict(name="probe_kernel", grid=1, block=64, lds=0, body=pr, vgpr=8, agpr=0)])
    txt = file_text([k]).replace(f"@launch kernel={NAME}_kernel ", "@launch ")
    return hdr + txt
if __name__ == "__main__":
    kw = {}
    for x in sys.argv[2:]:
        k, v = x.split("="); kw[k] = int(v)
    open(sys.argv[1], "w").write(gen(**kw))
```

```python
import sys, struct, math, os
from asmlib import *
import hazard

WS_A, WS_I, WS_CS, WS_ST, WS_SIZE = 0, 0x1400000, 0x1C00000, 0x1C80000, 0x1D00000
def f2u(x): return hex(struct.unpack("<I", struct.pack("<f", x))[0])
LOG2E = 1.4426950408889634
GA1 = -2.0*LOG2E*math.sqrt(2.0/math.pi); GA3 = GA1*0.044715
W_OFF = 32768
STAGE = 73728
MB = 2*STAGE
MB_AOS, MB_NM, MB_RS = MB + 10240, MB + 14336, MB + 15360
CSS = 65536
KVX = STAGE
KVF = STAGE + 16384
STRM = 144*2048
SPIN = 0x20000
BIG = 0x7ff00000

def cls(i):
    n = i.split()[0]
    if n.endswith(":"): return -1
    if n.startswith("s_"): return 0
    if n.startswith(("ds_", "buffer_", "global_")): return 1
    return 2
def emit(a, mfmas, slots):
    for i in range(-1, len(mfmas)):
        if i >= 0: a(mfmas[i])
        items = slots.get(i, [])
        if any(cls(x) < 0 or "exec" in x or "cbranch" in x for x in items): a.extend(items)
        else: a.extend(sorted(items, key=cls))
def spread(slots, items, lo, hi):
    n = len(items)
    for i, x in enumerate(items):
        p = lo + (i*(hi - lo + 1))//max(n, 1)
        slots[p].extend(x if isinstance(x, list) else [x])
def vcost(x): return 2 if x.startswith(("v_exp", "v_rcp", "v_rsq")) else 1
def fillv(gaps, items):
    used = [sum(vcost(y) for y in g if cls(y) > 0) for g in gaps]
    tot = sum(used) + sum(vcost(x) for x in items)
    if tot <= 1.8*len(gaps):
        p = 0
        for x in items:
            while p < len(gaps) - 1 and used[p] + vcost(x) > 2: p += 1
            used[p] += vcost(x); gaps[p].append(x)
        return
    rate = tot/len(gaps); cum = 0; k = 0
    for p, g in enumerate(gaps):
        cum += used[p]
        while k < len(items) and (cum + vcost(items[k])/2 <= rate*(p+1) or p == len(gaps) - 1):
            g.append(items[k]); cum += vcost(items[k]); k += 1
def resolve(lines, paths):
    best = {}
    for path in paths:
        n = 0; pos = {}
        for i in path:
            l = lines[i].strip()
            if l.startswith(("buffer_", "global_")):
                n += 1
                if ";@" in l:
                    for t in l.split(";@")[1].split(","): pos[t.strip()] = n
            elif l.startswith("s_waitcnt @"):
                tags = [t for t in l.split()[1][1:].split(",") if t in pos]
                c = n - max(pos[t] for t in tags) if tags else 63
                best[i] = min(best.get(i, 63), c)
    for i, c in best.items():
        w = lines[i].split()
        lines[i] = "    " + " ".join([w[0], f"vmcnt({c})"] + w[2:])
    assert not any("s_waitcnt @" in l for l in lines)
class VM:
    def __init__(self, a): self.a = a; self.n = 0
    def __call__(self, s):
        self.a(s); self.n += 1; return self.n
    def wait(self, tag): self.a(f"s_waitcnt vmcnt({self.n - tag})")
def P(r): return f"v[{r}:{r+1}]"
SETS = {0: ["start", "loop", "e0", "k2", "s", "fin", "end"],
        2: ["k2", "t4", "t8", "t12", "t16", "t25", "s"],
        3: ["start", "karg", "addr", "zero", "dma", "loop", "i1"],
        4: ["loop", "i1", "i2", "i4", "i6", "s14", "e0"],
        1: ["i5", "s14"], 10: ["loop", "s0m", "s0e", "i1", "i2"], 11: ["i4", "s8m", "i5", "s14", "s14m", "s15", "e0"],
        8: ["t7", "t8", "t9", "t10", "t11", "t12", "t13"],
        9: ["k2", "t1", "t2", "t3", "t4", "t5", "t6"],
        7: ["t16", "t20", "t22", "t24", "t26", "t28", "t30"],
        6: ["s", "t32", "t33", "t34", "fin", "fs", "end"],
        5: ["e0", "b1", "w1d", "b2", "chk", "chkd", "k2"]}

def gen(**kw):
    o = dict(stamps=0, stw=2, ev=5, dst=18, od=1, sq=0, cpf=1, npf0=1, nd0=2, d0s=16, d0e=3, ax0=72, lb0=40, spf=0, ts=10, te=10, xl=0, lba=0, npf1=2, zper=12, slp=8, pfd=0, pfp=1, rp=2, pf2p=3, inp=4, csp=8, atp=6,
             pf2s=8, rs=2, sh=4, ctm=1, nin=80, s7e=20, pl=4, opoll=21, pro=1, ax=44, early=0, tj=3, tg=10, nsA=11, nsB=11, fB=1, pf3=0, pB=3, cB=5)
    o.update(kw)
    a = Asm(); ool = Asm(); near = Asm(); st = Stamps(o["stamps"], 74, 0)
    sset = SETS[o["sq"]]
    def stamp(tag, w=False):
        if tag in sset and o["stamps"]:
            st.n = sset.index(tag); st.stamp(a)
            if w: a("s_waitcnt lgkmcnt(0)")
    SX, SQ, SG, SW, SD, SO, SOUT, SP, SP2, SI, SU = 8, 12, 16, 24, 28, 32, 36, 40, 44, 48, 64
    V_XV, V_WV, V_XR, V_WR, V_PF, V_PF2, V_CSO = 8, 16, 22, 26, 32, 33, 34
    V_T, V_CSA, V_SEL, V_SENT = 36, 40, 44, 4
    V_ACC = 48; A_X = 0; A_W = 64; A_ACC = 144
    def S(d): return f"s[{d}:{d+3}]"
    def fin(d, size): a(f"s_mov_b32 s{d+2}, {size}\ns_mov_b32 s{d+3}, 0x20000")
    def accb(tb, cb):
        i = cb*8 + tb
        return ("v", V_ACC + 4*i) if i < 52 else ("a", A_ACC + 4*(i-52))
    def acc(tb, cb):
        p, b = accb(tb, cb); return vr(b, 4, p)
    def xf(tb, ks): return ar(A_X + (tb*2+ks)*4, 4)
    def wfb(cb, ks): return A_W + (cb*2+ks)*4
    spn = {}
    def spin_ool(name, cmp, reload):
        k = spn.setdefault(name[:4] if name[:4] in ("L_b1", "L_b2", "L_in") else name, len(spn) + 1)
        ool(f"{name}_s:")
        if o.get("cnt"):
            ool(f"s_bitset1_b32 s101, {k}")
        ool(f"s_mov_b32 s0, 0\n{name}_l:\ns_sleep {o['slp']}\n{reload}\ns_waitcnt vmcnt(0)\n{cmp}\ns_add_u32 s0, s0, 1\ns_cmp_ge_u32 s0, {SPIN}\ns_cbranch_scc1 {name}_d\ns_nop 1\ns_cbranch_vccnz {name}_l\ns_branch {name}_d")
    def spin(name, cmp, reload):
        a(cmp + f"\ns_nop 3\ns_cbranch_vccnz {name}_s\n{name}_d:")
        spin_ool(name, cmp, reload)

    a("s_cmp_ge_u32 s2, 256\ns_cbranch_scc1 L_end")
    stamp("start")
    a(f"s_load_dwordx2 s[{SX}:{SX+1}], s[0:1], 0\ns_load_dwordx2 s[{SQ}:{SQ+1}], s[0:1], 8\ns_load_dwordx2 s[{SG}:{SG+1}], s[0:1], 32\ns_load_dwordx2 s[{SU}:{SU+1}], s[0:1], 40")
    a("v_lshrrev_b32 v1, 6, v0\nv_and_b32 v2, 63, v0\ns_lshr_b32 s58, s2, 3")
    n0 = 0
    if o["cpf"]:
        a("s_getpc_b64 s[72:73]\nL_pc:\nv_min_u32 v3, 15, v2\nv_mad_u32_u24 v4, v1, 9, v3\nv_mad_u32_u24 v5, v1, 7, v3\ns_mul_i32 s6, s58, 28\nv_cmp_ne_u32 vcc, 0, v1")
        a("s_bitcmp1_b32 s2, 5\ns_cselect_b32 s7, (L_tB-L_tA)/128-3, 0\nv_mov_b32 v6, s7\nv_add_u32 v5, s6, v5\nv_cndmask_b32 v6, 0, v6, vcc\nv_cmp_gt_u32 vcc, 7, v3\nv_add3_u32 v4, v4, v6, -7")
        a("v_cndmask_b32 v4, v4, v5, vcc\nv_lshlrev_b32 v4, 7, v4\nv_min_u32 v4, L_cend-L_pc-4, v4")
        a("global_load_dword v0, v4, s[72:73]")
    a("v_readfirstlane_b32 s3, v1\nv_lshlrev_b32 v1, 4, v2")
    a(f"s_load_dwordx2 s[{SW}:{SW+1}], s[0:1], 72\ns_load_dwordx2 s[{SD}:{SD+1}], s[0:1], 48\ns_load_dwordx2 s[{SO}:{SO+1}], s[0:1], 16")
    a(f"s_load_dwordx2 s[{SOUT}:{SOUT+1}], s[0:1], 56\ns_load_dwordx2 s[62:63], s[0:1], 64")
    a("s_bfe_u32 s60, s2, 0x20001\ns_lshr_b32 s6, s2, 5\ns_lshl3_add_u32 s4, s60, s6")
    a("s_and_b32 s23, s2, 1\ns_bfe_u32 s6, s2, 0x20003\ns_lshl2_add_u32 s5, s23, s6\ns_lshl_b32 s23, s23, 3")
    a("s_lshr_b32 s52, s3, 1\ns_and_b32 s53, s3, 1")
    a("s_cmp_eq_u32 s3, 0\ns_cbranch_scc1 L_pf0\ns_cmp_eq_u32 s3, 1\ns_cbranch_scc1 L_pf1")
    a(f"s_mov_b32 s{SP+2}, {1024*3584*2}\ns_mov_b32 s59, {64*7168}")
    a("v_min_u32 v3, 27, v2\nv_cmp_le_u32 vcc, 14, v3\ns_lshl_b32 s6, s58, 1\ns_mul_i32 s7, s60, 1792\nv_cndmask_b32 v4, 0, 1, vcc\nv_mul_u32_u24 v5, 14, v4\nv_sub_u32 v5, v3, v5")
    a("v_add_u32 v4, s6, v4\nv_lshl_add_u32 v5, v5, 7, s7\ns_movk_i32 s57, 7168")
    a(f"v_mad_u32_u24 v{V_PF}, v4, s57, v5\ns_waitcnt lgkmcnt(0)\ns_cmp_eq_u32 s3, 2\ns_cselect_b32 s{SP}, s{SG}, s{SU}\ns_cselect_b32 s{SP+1}, s{SG+1}, s{SU+1}\ns_branch L_pfd")
    a("L_pf1:")
    a(f"s_mov_b32 s{SP+2}, {1024*3072*2}\ns_mov_b32 s59, {64*6144}")
    a("v_min_u32 v3, 23, v2\nv_cmp_le_u32 vcc, 12, v3\ns_lshl_b32 s6, s58, 1\ns_lshl_b32 s7, s60, 9\nv_cndmask_b32 v4, 0, 1, vcc\nv_mul_u32_u24 v5, 12, v4\nv_sub_u32 v5, v3, v5")
    a("v_add_u32 v4, s6, v4\nv_lshrrev_b32 v6, 2, v5\nv_and_b32 v5, 3, v5\nv_lshl_add_u32 v5, v5, 7, s7\nv_lshl_add_u32 v5, v6, 11, v5\ns_movk_i32 s57, 6144")
    a(f"v_mad_u32_u24 v{V_PF}, v4, s57, v5\ns_waitcnt lgkmcnt(0)\ns_mov_b32 s{SP}, s{SQ}\ns_mov_b32 s{SP+1}, s{SQ+1}\ns_branch L_pfd")
    a("L_pf0:")
    a(f"s_mov_b32 s{SP+2}, {2048*1024*2}\ns_mov_b32 s59, 128")
    a(f"s_lshl2_add_u32 s6, s23, s58\ns_lshl_b32 s6, s6, 5\nv_min_u32 v4, 31, v2\nv_add_u32 v4, s6, v4\nv_lshlrev_b32 v{V_PF}, 11, v4")
    a(f"s_waitcnt lgkmcnt(0)\ns_mov_b32 s{SP}, s{SX}\ns_mov_b32 s{SP+1}, s{SX+1}")
    a("L_pfd:")
    a(f"s_mov_b32 s{SP+3}, 0x20000\ns_mul_i32 s58, s23, s59")
    stamp("karg", True)
    PFA = [f"s_add_u32 s58, s23, {o['pfd'] + 1}", f"s_and_b32 s58, s58, {o.get('kmask', 15)}", "s_mul_i32 s58, s58, s59"]
    PFI = f"buffer_load_dword v0, v{V_PF}, {S(SP)}, s58 offen"
    for i in range(o["npf0"]): a(PFI); a("s_add_u32 s58, s58, s59")
    def sload(lo, hi):
        for i in range(lo, hi):
            a(f"s_load_dword s73, s[{SP}:{SP+1}], s44")
            a(f"s_add_u32 s44, s44, s{45 if i % 4 < 3 else 46 if i % 16 < 15 else 47}")
    if o["spf"]:
        a(f"v_readfirstlane_b32 s44, v{V_PF}\ns_movk_i32 s47, 2048\ns_cmp_eq_u32 s3, 0\ns_cselect_b32 s45, s47, 128\ns_cselect_b32 s46, s47, 128\ns_cselect_b32 s47, s47, {7168 - 1920}\ns_cmp_eq_u32 s3, 1\ns_cselect_b32 s46, {2048 - 384}, s46\ns_cselect_b32 s47, {2048 - 384}, s47\ns_add_u32 s44, s44, s58")
        sload(0, o["spf"])
    fin(SG, 1024*3584*2); fin(SU, 1024*3584*2); fin(SX, 2048*1024*2); fin(SQ, 1024*3072*2)
    a(f"s_lshl_b32 s20, s23, 7\ns_mul_i32 s21, s23, {64*6144}\ns_mul_i32 s22, s23, {64*7168}")
    a(f"s_lshl_b32 s54, s3, 13\ns_lshl_b32 s55, s3, 11\ns_add_u32 s55, s55, {W_OFF}\ns_lshl_b32 s56, s3, 10\ns_add_u32 s56, s56, {W_OFF + 32768}")
    a("s_lshl_b32 s6, s5, 8\ns_lshl_b32 s7, s3, 6\ns_add_u32 s6, s6, s7")
    a("v_lshrrev_b32 v3, 3, v2\nv_add_u32 v7, s6, v3\nv_lshlrev_b32 v7, 11, v7\nv_lshrrev_b32 v4, 4, v2\nv_and_b32 v5, 7, v2")
    for c in range(2):
        a(f"v_add_u32 v6, {4*c}, v4\nv_xor_b32 v6, v6, v5\nv_lshl_add_u32 v6, v6, 4, v7")
        for cc in range(c, 8, 2): a(f"v_add_u32 v{V_XV+cc}, {cc*8*2048}, v6")
    a("s_lshl_b32 s6, s52, 5\ns_lshl2_add_u32 s61, s53, s6")
    a("v_and_b32 v3, 3, v3\nv_lshrrev_b32 v6, 5, v2\nv_lshl_add_u32 v3, v6, 3, v3\nv_add_u32 v3, s61, v3")
    a("v_lshlrev_b32 v6, 1, v4\nv_xor_b32 v5, v5, v6\nv_lshlrev_b32 v5, 4, v5")
    a("s_lshr_b32 s0, s4, 1\ns_and_b32 s1, s0, 1\ns_mul_i32 s6, s0, 448\ns_movk_i32 s57, 7168")
    a("s_bitcmp1_b32 s2, 5\ns_cbranch_scc1 L_tB")

    def dma_list(ty, stage):
        b = stage*STAGE
        xs = [(f"s_add_u32 m0, s54, {b + c*1024}", f"buffer_load_dwordx4 v{V_XV+c}, {S(SX)}, s20 offen lds") for c in range(8)]
        def w(u, c, reg, srd, so, off=0):
            return (f"s_add_u32 m0, s55, {b + u*8192 + c*1024 - off}", f"buffer_load_dwordx4 v{reg}, {S(srd)}, s{so} offen{f' offset:{off}' if off else ''} lds")
        if ty == 0:
            ws = [w(u, c, V_WV+c, (SG, SU)[u], 22) for u in range(2) for c in range(2)]
            ws += [w(2, c, V_WV+2+c, SQ, 21) for c in range(2)] + [w(3, c, V_WV+2+c, SQ, 21, 2048) for c in range(2)] + [w(4, c, V_WV+4+c, SQ, 21) for c in range(2)]
        else:
            ws = [w(2*h+u, c, V_WV+c, (SG, SU)[u], 22, 128*h) for u in range(2) for c in range(2) for h in range(2)]
            ws += [(f"s_add_u32 m0, s56, {b + u*4096}", f"buffer_load_dwordx4 v{V_WV+2}, {S((SG, SU)[u])}, s22 offen lds") for u in range(2)]
        od = o.get("od", 0)
        if od == 1: return xs + ws
        if od == 2: return [y for p in zip(xs, ws) for y in p] + ws[8:]
        return ws + xs
    adv = ["s_add_u32 s23, s23, 1", f"s_and_b32 s23, s23, {o.get('kmask', 15)}", f"s_mul_i32 s22, s23, {64*7168}", f"s_mul_i32 s21, s23, {64*6144}", "s_lshl_b32 s20, s23, 7"]
    EV, ST0 = o["ev"], o["dst"]
    dpos = [ST0 + EV*i for i in range(18)]
    dpos = [p + 1 if p == 80 else p for p in dpos]
    n3 = sum(1 for p in dpos if p < 80)
    BL = [[("g", 0, 0), ("u", 1, 0), ("g", 0, 1), ("u", 1, 1), ("q", 2, 0), ("q", 2, 1), ("k", 3, 0), ("k", 3, 1), ("v", 4, 0), ("v", 4, 1)],
          [("g", 0, 0), ("u", 1, 0), ("g", 0, 1), ("u", 1, 1), ("h", 0, 2), ("h", 1, 2), ("g", 2, 0), ("u", 3, 0), ("g", 2, 1), ("u", 3, 1)]]
    def xread(stage, tb, ks): return f"ds_read_b128 {xf(tb, ks)}, v{V_XR + stage*2 + ks} offset:{tb*2048}"
    def wread(ty, stage, cb):
        t, u, i = BL[ty][cb]; L = []
        for ks in range(2):
            for rd in range(2):
                row = 32*ks + 16*rd
                off = u*4096 + row*64 if t == "h" else u*8192 + row*128
                L.append(f"ds_read_b64_tr_b16 {ar(wfb(cb, ks)+2*rd, 2)}, v{V_WR + 2*i + stage} offset:{off}")
        return L
    def mfmas(ty, half, first=False):
        L = []
        for cb, (t, u, i) in enumerate(BL[ty]):
            for n, tb in enumerate(range(4*half, 4*half+4)):
                for ks in ((0, 1) if n % 2 == 0 else (1, 0)):
                    x, w = xf(tb, ks), ar(wfb(cb, ks), 4)
                    A, B = (x, w) if t in "kv" else (w, x)
                    L.append(f"v_mfma_f32_16x16x32_bf16 {acc(tb, cb)}, {A}, {B}, {0 if first and ks == n % 2 else acc(tb, cb)}")
        return L
    V_BV = 8
    def n0(T): return [0, 2, 12, 8][T & 3] + 14*(T >> 2) if T < 16 else 7*(T-16) + 4 - (T & 1) if T < 24 else 14*(T-24) + 6
    def bdma(slot, ph):
        s_, so = (S(SD) if ph == "f" else S(SO)), 15
        return [(f"s_add_u32 m0, s18, {slot*16384 + c*1024}", f"buffer_load_dwordx4 v{V_BV+c}, {s_}, s{so} offen lds") for c in range(4)]
    def put(slots, dm):
        for pre, m, d, p in dm:
            for k, x in enumerate(pre): slots[p - 1 - len(pre) + k].append(x)
            slots[p-1].append(m); slots[p].append(d)
    def atomic(off):
        return f"v_mov_b32 v{V_SEL}, {off}\nv_mov_b32 v{V_SEL+1}, 1\ns_mov_b64 exec, 1\nglobal_atomic_add v{V_SEL}, v{V_SEL+1}, s[62:63] sc1\ns_mov_b64 exec, -1"
    def fill(slots, items, lo, hi):
        p = lo
        for x in items:
            x = x if isinstance(x, list) else [x]
            while True:
                assert p <= hi, "no room"
                nv = sum(cls(y) > 0 for y in slots[p]); ns_ = sum(cls(y) == 0 for y in slots[p])
                if ns_ + len(x) <= (3 if nv == 0 else 1) and not any("m0" in y or "waitcnt" in y for y in slots[p]): break
                p += 1
            slots[p].extend(x)
    def putds(slots, items, pos, hi):
        last = -1
        for x, p in zip(items, pos):
            p = max(p, last + 1)
            q = p
            while q <= hi and any(cls(y) > 0 for y in slots[q]): q += 1
            if q > hi or q > p + 2: q = p
            slots[q].append(x); last = q
    uid = [0]
    def cond(cmp, body, neg=False):
        uid[0] += 1
        return cmp + [f"s_cbranch_scc{1 if neg else 0} L_c{uid[0]}"] + body + [f"L_c{uid[0]}:"]
    def phase1(ty, stage, kind, dm):
        slots = {i: [] for i in range(-1, 80)}
        slots[-1].append("s_waitcnt lgkmcnt(4)")
        put(slots, dm)
        if kind == "s14": slots[2].append("global_load_dword v3, v35, s[62:63] sc1")
        xb = [xread(stage, tb, ks) for tb in range(4, 8) for ks in range(2)]
        lastd = max([x[3] for x in dm] + [0])
        if kind == "s0":
            for cb in range(8):
                gp = sorted(sorted(range(8*cb, 8*cb+7), key=lambda q: any(cls(y) > 0 for y in slots[q]))[:5])
                for q, x in zip(gp, wread(ty, 0, cb+2) + [xb[cb]]): slots[q].append(x)
                assert len(gp) == 5
                slots[8*cb+7].append("s_waitcnt lgkmcnt(5)")
            slots[71].append("s_waitcnt lgkmcnt(0)")
        elif kind == "s8":
            putds(slots, wread(ty, stage, 9) + xb, [8 + 2*i for i in range(12)], 40)
            slots[63].append("s_waitcnt lgkmcnt(0)")
        else:
            putds(slots, wread(ty, stage, 9) + xb, [1 + 3*i for i in range(12)], 40)
            slots[63].append("s_waitcnt lgkmcnt(0)")
        if kind in ("s0", "la", "s8", "lb"):
            ax = o["ax"] if kind != "s0" else o["ax0"]
            assert ax > lastd
            fill(slots, PFA, 0, ax - 1)
            slots[ax].append(PFI)
            if kind in ("lb", "s8"):
                slots[ax+3].append(f"buffer_load_dword v0, v{V_PF2}, {S(SP2)}, s60 offen"); slots[ax+4].append("s_add_u32 s60, s60, 1664")
            elif kind == "s0" and o.get("nor0"): slots[ax+2].append(f"buffer_load_dword v0, v1, {S(SX)}, 0 offen")
            elif stage == 0:
                slots[ax+1].append("s_mov_b32 m0, s0"); slots[ax+2].append(f"buffer_load_dwordx4 v1, {S(SX)}, s1 offen lds")
                slots[ax+3].extend(["s_add_u32 s0, s0, 1024", "s_add_u32 s1, s1, 1024"])
            else:
                slots[ax+3].append(f"buffer_store_dwordx4 {vr(V_SENT, 4)}, v1, {S(SI)}, s61 offen sc1"); slots[ax+4].append("s_add_u32 s61, s61, 1024")
            fill(slots, adv, max(64, lastd + 1), 77)
        if kind in ("s0", "la"):
            for r in range(4): slots[66 + 2*r].append(f"v_mov_b32 v{V_SEL+r}, v35")
            ret = 1 if kind == "s0" else 2 + stage
            slots[62].append(f"s_mov_b32 s72, {ret}")
            slots[78].append("s_cmp_eq_u32 s57, s68")
            slots[79].extend([f"s_cbranch_scc1 L_cs{ty}", f"L_cs{ty}_d{ret}:"])
        if kind == "s8":
            slots[-1].extend([f"buffer_store_dwordx4 {vr(V_CSA, 4)}, v{V_CSO}, {S(SW)}, s69 offen sc1", "v_add_u32 v3, s0, v1"])
            DR = [V_T, V_SEL, V_CSA]
            for i in range(3): slots[i].append(f"ds_read_b128 {vr(DR[i], 4)}, v3 offset:{1024*i}")
            fill(slots, ["s_lshr_b32 s0, s2, 5", "s_mul_i32 s0, s0, 6144", f"s_add_u32 s0, s0, {WS_ST}", "s_and_b32 s7, s2, 31", "s_lshl2_add_u32 s7, s7, s3", "s_lshl3_add_u32 s1, s7, s0", "s_add_u32 s1, s1, 4096", "s_lshl_b32 s7, s7, 5", "s_add_u32 s0, s0, s7"], 8, 60)
            slots[7].append("s_waitcnt lgkmcnt(0)")
            def chunk(i):
                r = i >> 1; vv = []
                for q in range(4):
                    x = DR[i % 3] + q; f = (i & 1) == 0 and q == 0
                    vv += [f"v_lshlrev_b32 v34, 16, v{x}", f"v_and_b32 v{x}, 0xffff0000, v{x}"]
                    vv += [f"v_add_f32 v{4+r}, v34, v{x}", f"v_mul_f32 v{6+r}, v34, v34"] if f else [f"v_add_f32 v{4+r}, v{4+r}, v34", f"v_fmac_f32 v{6+r}, v34, v34", f"v_add_f32 v{4+r}, v{4+r}, v{x}"]
                    vv += [f"v_fmac_f32 v{6+r}, v{x}, v{x}"]
                return vv
            fillv([slots[i] for i in range(7, 19)], chunk(0))
            slots[19].append(f"ds_read_b128 {vr(DR[0], 4)}, v3 offset:3072")
            fillv([slots[i] for i in range(19, 42)], chunk(1) + chunk(2))
            slots[42].append("s_waitcnt lgkmcnt(0)")
            fillv([slots[i] for i in range(42, 53)], chunk(3))
            seq = [["v_lshrrev_b32 v46, 3, v2", "v_lshrrev_b32 v47, 1, v2"], ["v_permlane32_swap_b32 v4, v5", "v_permlane32_swap_b32 v6, v7"], ["v_add_f32 v4, v4, v5", "v_add_f32 v6, v6, v7"],
                   [f"v_mov_b32 v45, {f2u(1.0/1024)}"], ["v_permlane16_swap_b32 v4, v6", "v_add_f32 v4, v4, v6"]]
            seq += [["s_nop 0", f"v_add_f32_dpp v4, v4, v4 row_ror:{sh} row_mask:0xf bank_mask:0xf"] for sh in (8, 4, 2, 1)]
            seq += [["v_mov_b32 v6, v4"], ["s_nop 0", "v_permlane16_swap_b32 v4, v6", f"v_mul_f32 v36, {f2u(-1.0/1024)}, v4"], ["v_mul_f32 v44, v36, v36", "v_fma_f32 v44, v6, v45, -v44"],
                    ["v_max_f32 v44, 0, v44", f"v_add_f32 v39, {f2u(1e-5)}, v44"], ["v_rsq_f32 v44, v39"], [f"v_mul_f32 v37, {f2u(GA1)}, v44", "v_mul_f32 v45, v44, v44"],
                    [f"v_mul_f32 v38, {f2u(0.044715)}, v37", "v_mul_f32 v38, v38, v45"], ["v_mov_b64 v[4:5], -1", "v_mov_b64 v[6:7], -1"]]
            for i, x in enumerate(seq): slots[53 + i].extend(x)
            for i, x in enumerate([f"buffer_store_dwordx4 v[36:39], v47, {S(SW)}, s0 offen sc1", f"buffer_store_dword v36, v46, {S(SW)}, s1 offen sc1", f"buffer_store_dword v44, v46, {S(SW)}, s1 offen offset:1024 sc1"]):
                slots[72 + 3*i].extend(["s_mov_b64 exec, s[72:73]", x, "s_mov_b64 exec, -1"])
            slots[4].extend(["s_mov_b32 s72, 1", "s_mov_b32 s73, 1"])
        if kind == "s14":
            slots[0].extend(["v_and_b32 v35, 1, v2", "v_lshlrev_b32 v35, 7, v35"])
            nm = f"L_ini{ty}"; cmp = "v_cmp_gt_u32 vcc, 0x80, v3"
            slots[41].append(f"s_waitcnt vmcnt({sum(1 for x in dm if x[3] > 2)})"); slots[42].append(cmp)
            slots[44].extend([f"s_cbranch_vccnz {nm}_s", f"{nm}_d:"])
            spin_ool(nm, cmp, "global_load_dword v3, v35, s[62:63] sc1")
            ss = ["s_mul_i32 s6, s4, 10240", f"s_add_u32 s6, s6, {WS_CS}", "s_mul_i32 s7, s5, 6144", f"s_add_u32 s7, s7, {WS_ST - 10240}", "s_lshl_b32 s18, s3, 12", "s_add_u32 s6, s6, s18", "s_add_u32 s7, s7, s18",
                  ["s_cmp_lt_u32 s3, 3", "s_cselect_b32 s58, s6, s7"], ["s_cmp_lt_u32 s3, 2", "s_cselect_b32 s59, s6, s7"], f"s_mov_b32 s{SI+2}, 8192", "s_movk_i32 s61, 4096"]
            fill(slots, ss, lastd + 1, 43)
            slots[45].append(f"s_add_u32 m0, s18, {MB}")
            for c in range(4): slots[46 + 3*c].append(f"buffer_load_dwordx4 v1, {S(SW)}, s{58 + (c >> 1)} offen offset:{c*1024} sc1 lds")
            vv = ["v_lshrrev_b32 v12, 3, v2", "v_bfe_u32 v13, v2, 4, 2", "v_lshlrev_b32 v13, 1, v13", "v_and_b32 v14, 7, v2", "v_xor_b32 v14, v14, v13",
                  "v_lshlrev_b32 v14, 4, v14", f"v_lshl_add_u32 v{V_BV}, v12, 11, v14"] + [f"v_add_u32 v{V_BV+c}, {16384*c}, v{V_BV}" for c in range(1, 4)]
            for i, x in enumerate(vv): slots[66 + i].append(x)
            for c in range(4): slots[59 + 5*c].append(f"buffer_store_dwordx4 {vr(V_SENT, 4)}, v1, {S(SI)}, s61 offen offset:{c*1024} sc1")
            ss = ["s_bfe_u32 s20, s2, 0x10002", "s_and_b32 s6, s2, 1", "s_bfe_u32 s7, s2, 0x10001", "s_lshl1_add_u32 s6, s6, s7", "s_lshr_b32 s7, s2, 6", "s_lshl2_add_u32 s21, s6, s7",
                  "s_bfe_u32 s22, s2, 0x20003", "s_bfe_u32 s7, s2, 0x10005", "s_lshl1_add_u32 s22, s22, s7", "s_lshl_b32 s22, s22, 8",
                  f"s_mul_i32 s14, s20, {1792*2048}", "s_add_u32 s14, s14, s22", "s_xor_b32 s6, s53, s20", "s_lshl_b32 s6, s6, 7", "s_add_u32 s14, s14, s6",
                  "s_lshl_b32 s15, s52, 16", "s_add_u32 s14, s15, s14", "s_mov_b32 s15, s14"]
            fill(slots, ss, 47, 78)
        if kind == "s15":
            slots[0].extend([f"s_waitcnt vmcnt({o['n14']})", "s_barrier"])
            slots[2].extend(["s_mul_i32 s6, s3, 320", "v_lshl_add_u32 v12, v2, 3, s6"])
            slots[5].append(f"v_add_u32 v13, {MB}, v12"); slots[6].append(f"v_add_u32 v12, {CSS}, v12")
            putds(slots, [f"ds_read_b64 v[{32+2*r}:{33+2*r}], v13 offset:{r*1280}" for r in range(8)], range(37, 45), 50)
            slots[54].append("s_waitcnt lgkmcnt(0)")
            fillv([slots[i] for i in range(54, 64)], [f"v_add_f32 v{32+i}, v{32+i}, v{32+stp+i}" for stp in (8, 4, 2) for i in range(stp)])
            slots[65].append("ds_write_b64 v12, v[32:33]")
            vv = ["v_and_b32 v44, 15, v2", "v_lshrrev_b32 v45, 4, v2", "v_lshlrev_b32 v4, 11, v44", "v_add_u32 v44, s7, v44", "v_lshlrev_b32 v44, 4, v44", f"v_add_u32 v44, {MB_AOS}, v44",
                  "v_lshl_add_u32 v4, v45, 4, v4", "v_lshl_add_u32 v45, v45, 4, s64", "v_add_u32 v5, 32768, v4",
                  "v_bfe_u32 v46, v2, 1, 3", "v_bfe_u32 v47, v2, 4, 1", "v_lshl_or_b32 v46, v46, 4, v47", "v_and_b32 v47, 1, v2", "v_lshl_or_b32 v46, v46, 2, v47", "v_lshlrev_b32 v46, 14, v46", "v_mov_b32 v3, 1"]
            fillv([slots[i] for i in range(66, 80)], vv)
            ss = ["s_lshl_b32 s7, s53, 7", "s_mul_i32 s64, s52, 640", f"s_add_u32 s64, s64, {CSS}",
                  "s_lshl1_add_u32 s0, s5, s53", f"s_mul_i32 s1, s0, {4*STRM}", "s_lshr_b32 s6, s4, 4", "s_mul_i32 s48, s6, 56", "s_add_u32 s48, s48, 32", "s_and_b32 s56, s4, 15",
                  "s_lshl1_add_u32 s41, s56, s52", "s_add_u32 s40, s41, s48", "s_lshl_b32 s40, s40, 11", "s_add_u32 s40, s40, s1"]
            if ty == 0:
                ss += ["s_add_u32 s41, s4, s52", "s_lshl_b32 s44, s41, 11", "s_add_u32 s44, s44, s1"]
            else:
                ss += ["s_add_u32 s41, s56, s52", "s_sub_u32 s41, s41, 1", "s_add_u32 s44, s41, s48", "s_add_u32 s44, s44, 32", "s_lshl_b32 s44, s44, 11", "s_add_u32 s44, s44, s1",
                       "s_lshl1_add_u32 s48, s48, s41", "s_add_u32 s48, s48, 96", "s_lshl_b32 s48, s48, 10", "s_add_u32 s48, s48, s1"]
            for b in (40, 44, 48)[:2+ty]:
                for i in range(1, 4): ss.append(f"s_add_u32 s{b+i}, s{b}, {i*STRM}")
            ss += ["s_bfe_u32 s58, s21, 0x20001", "s_lshr_b32 s59, s21, 3", "s_lshl3_add_u32 s58, s58, s59", "s_and_b32 s59, s21, 1", "s_lshl2_add_u32 s58, s58, s59",
                   "s_lshl4_add_u32 s59, s20, s58", "s_lshl3_add_u32 s69, s3, s58", "s_lshl_b32 s59, s59, 13", "s_lshl_b32 s69, s69, 13", f"s_add_u32 s59, s59, {WS_I}", f"s_add_u32 s69, s69, {WS_I}",
                   "s_lshl_b32 s60, s53, 22", "s_lshl_b32 s0, s52, 16", "s_add_u32 s60, s60, s0", "s_add_u32 s60, s60, s59", f"s_add_u32 s60, s60, {1 << 20}",
                   "s_lshl2_add_u32 s19, s21, s3", f"s_mul_i32 s13, s19, {STRM}", f"s_mul_i32 s12, s20, {56*2048}", "s_add_u32 s12, s12, s13", f"s_add_u32 s12, s12, {32*2048}",
                   "s_lshl_b32 s0, s20, 7", "s_add_u32 s0, s0, s22", "s_lshl_b32 s19, s19, 16", "s_add_u32 s19, s19, s0", "s_lshl_b32 s17, s3, 16", "s_add_u32 s17, s17, s0",
                   "s_lshl2_add_u32 s61, s2, s3", "s_lshl_b32 s61, s61, 13", f"s_xor_b32 s65, s61, {16*8192}", f"s_add_u32 s54, s61, {WS_I}", f"s_add_u32 s55, s65, {WS_I}", f"s_add_u32 s61, s61, {WS_I + 4096}", f"s_add_u32 s65, s65, {WS_I + 4096}",
                   f"s_mov_b32 s68, {f2u(1e-6)}", f"s_mov_b32 s56, {f2u(LOG2E)}"]
            fill(slots, ss, 3, 62)
        emit(a, mfmas(ty, 0, kind == "s0"), slots)
    CS, TK, Z, Z2 = 12, 28, 36, 240
    def geglu1(el):
        vv = [f"v_fmac_f32 v{g}, v{cg}, v{tk}" for g, u, cg, cu, tk, z in el] + [f"v_mul_f32 v{z}, v{g}, v{g}" for g, u, cg, cu, tk, z in el]
        vv += [f"v_fma_f32 v{z}, v{z}, v{tk+2}, v{tk+1}" for g, u, cg, cu, tk, z in el] + [f"v_mul_f32 v{z}, v{z}, v{g}" for g, u, cg, cu, tk, z in el]
        vv += [f"v_exp_f32 v{z}, v{z}" for g, u, cg, cu, tk, z in el] + [f"v_fmac_f32 v{u}, v{cu}, v{tk}" for g, u, cg, cu, tk, z in el]
        vv += [f"v_fma_f32 v{z}, v{z}, v{tk+3}, v{tk+3}" for g, u, cg, cu, tk, z in el]
        vv += [f"v_rcp_f32 v{z}, v{z}" for g, u, cg, cu, tk, z in el] + [f"v_mul_f32 v{u}, v{u}, v{g}" for g, u, cg, cu, tk, z in el]
        return vv + [f"v_mul_f32 v{u}, v{u}, v{z}" for g, u, cg, cu, tk, z in el]
    XLD = [f"buffer_load_dwordx4 {ar(16 + 4*i, 4)}, v{4 + (i>>1)}, {S(SX)}, s19 offen offset:{(i&1)*64}" for i in range(4)]
    def phase2(ty, stage, kind, dm, nwait):
        slots = {i: [] for i in range(-1, 80)}
        ms = mfmas(ty, 1, kind == "s0")
        lb = {"s0": o["lb0"], "la": o["lba"]}.get(kind, 0)
        if lb:
            slots[0].append("s_barrier")
            slots[lb].extend([f"s_waitcnt vmcnt({2 + sum(1 for x in dm if x[3] < lb)})", "s_barrier"])
        else: slots[0].extend([f"s_waitcnt {nwait}", "s_barrier"])
        if kind == "lb" and stage == 0: slots[0].append(f"L_lbm{ty}:")
        put(slots, dm)
        if kind == "lb":
            nm = f"L_at{ty}{stage}"
            slots[1].append(f"s_cmp_eq_u32 s57, s{70 + stage}"); slots[2].extend([f"s_cbranch_scc1 {nm}", f"{nm}_d:"])
            near(f"{nm}:\ns_and_b32 s6, s2, 1\ns_lshl_b32 s6, s6, 7\n{atomic('s6')}\ns_branch {nm}_d")
        if kind in ("la", "lb") and stage == 1:
            slots[76].append("s_add_u32 s57, s57, 1"); slots[78].append(f"s_cmp_lt_u32 s57, {4 if kind == 'la' else 7}")
            assert not any("m0" in y for y in slots[78] + slots[79])
        if kind != "s15":
            xr = [xread(stage ^ 1, tb, ks) for tb in range(4) for ks in range(2)]
            if lb:
                rd = [(0, x) for x in xr] + [(8*(cb+1) + 1, x) for cb in range(9) for x in wread(ty, stage ^ 1, cb)]
                for i, (e, x) in enumerate(rd): slots[max(e, lb + (i*(80 - lb))//44)].append(x)
            else:
                for cb in range(9): putds(slots, wread(ty, stage ^ 1, cb), [8*(cb+1) + q for q in (1, 3, 5, 7)], 79)
                putds(slots, xr, [4, 6, 14, 22, 30, 38, 46, 54], 70)
        else:
            for i in range(4): slots[1+i].append(f"ds_read_b128 v[{CS+4*i}:{CS+4*i+3}], v45 offset:{i*64}")
            for i in range(2): slots[5+i].append(f"ds_read_b128 v[{TK+4*i}:{TK+4*i+3}], v44 offset:{i*256}")
            if not o["xl"]:
                for i in range(4): slots[7 + 2*i].append(XLD[i])
            slots[14].append("s_waitcnt lgkmcnt(0)")
            ne = o["early"]
            for tb in range(ne):
                r = [accb(tb, i)[1] for i in range(4)]
                el = [(r[2*n]+i, r[2*n+1]+i, CS+8*n+i, CS+8*n+4+i, TK+4*tb, Z+4*n+i) for n in range(2) for i in range(4)]
                lo, hi = 14 + (65*tb)//ne, 14 + (65*(tb+1))//ne
                fillv([slots[i] for i in range(lo, hi)], geglu1(el) + [f"v_cvt_pk_bf16_f32 v{r[0]+i}, v{el[2*i][1]}, v{el[2*i+1][1]}" for i in range(4)])
                slots[hi].append(f"buffer_store_dwordx4 v[{r[0]}:{r[0]+3}], v1, {S(SW)}, s40 offen offset:{tb*1024} sc1")
                if tb == 1: slots[lo+1].append(f"ds_read_b128 v[{TK}:{TK+3}], v44 offset:512")
        emit(a, ms, slots)
    VF, VQ, VS = 144, 112, 176
    D = 3; R = 4; nf, ns = 28, 8; T = nf + ns; NU = 16
    V_BR, V_A2, V_AO, V_XO, V_P2, V_P3 = 36, 40, 41, 42, 24, 25
    PL, PK, XF, SE, SX0, G = 64, 80, 208, 12, 20, 48
    TP = nf + o['pl']; TC = TP + 2
    def af(slot, i): return ar(slot*32 + i*4, 4)
    def bf(p, u, cb): return 128 + p*64 + (u*4+cb)*4
    def facc(ch, cb, tb): return (VF, VQ, VS)[ch] + (cb*2+tb)*4
    def ph(t): return "f" if t < nf else ("s" if t < T else None)
    def al(t):
        slot = t % R
        if 24 <= t < nf:
            L = [f"buffer_load_dwordx2 {ar(slot*32 + (ks*2+tb)*4 + 2*h, 2)}, v{V_AO}, {S(SW)}, s12 offen offset:{ks*2048 + h*1024 + tb*512} sc1 ;@A{t}" for ks in range(2) for h in range(2) for tb in range(2)]
            return L, "s_add_u32 s12, s12, 4096"
        n, so = (4, 12) if ph(t) == "f" else (8, 13)
        L = [f"buffer_load_dwordx4 {af(slot, i)}, v{1 if i < 4 else V_A2}, {S(SW)}, s{so} offen offset:{(i&3)*1024} sc1 ;@A{t}" for i in range(n)]
        return L, f"s_add_u32 s{so}, s{so}, {n*1024}"
    def rl(t):
        slot, p = t % R, t & 1
        od = [(ks*2+ch, cb) for ch in range(2) for cb in range(4) for ks in range(2)] if ph(t) == "f" else [(u, cb) for cb in range(4) for u in range(4)]
        return [f"ds_read_b64_tr_b16 {ar(bf(p, u, cb) + rd*2, 2)}, v{V_BR + cb} offset:{slot*16384 + u*4096 + rd*2048}" for u, cb in od for rd in range(2)]
    def ml(t):
        slot, p = t % R, t & 1; L = []
        if ph(t) == "f":
            for ch in range(2):
                for cb in range(4):
                    for tb in range(2):
                        for n, ks in enumerate((0, 1) if tb == 0 else (1, 0)):
                            c = vr(facc(ch, cb, tb), 4)
                            L.append(f"v_mfma_f32_16x16x32_bf16 {c}, {ar(bf(p, ks*2+ch, cb), 4)}, {af(slot, ks*2+tb)}, {0 if t == 0 and n == 0 else c}")
        else:
            for cb in range(4):
                for tb in range(2):
                    for n, ks in enumerate(range(4) if tb == 0 else (3, 2, 1, 0)):
                        c = vr(facc(2, cb, tb), 4)
                        L.append(f"v_mfma_f32_16x16x32_bf16 {c}, {ar(bf(p, ks, cb), 4)}, {af(slot, ks*2+tb)}, {0 if t == nf and n == 0 else c}")
        return L
    def build(t, tags=(), first=(), xm=0):
        ms = ml(t); n = 32 + xm
        slots = {i: [] for i in range(-1, n)}
        slots[-1].append(f"s_waitcnt @{','.join([f'A{t}', f'B{t+1}'] + list(tags))} lgkmcnt(0)")
        if ph(t+1):
            slots[0].append("s_barrier")
            spread(slots, rl(t+1), 0, n - 5)
        b0 = len(first)
        for i, x in enumerate(first): slots[1+i].extend(x if isinstance(x, list) else [x])
        u = t + D + 1
        if ph(u):
            st_ = 3 if b0 < 2 else 2
            slots[b0].append(f"s_add_u32 s15, s14, {n0(u)*65536}" if ph(u) == "f" else f"s_add_u32 s15, s17, {(u-nf)*128*2048}")
            for c, (m, d) in enumerate(bdma(u % R, ph(u))):
                slots[b0+1+st_*c].append(m); slots[b0+2+st_*c].append(d + f" ;@B{u}" + (f",F{t}" if c == 0 else ""))
        if ph(t+D):
            L, ad = al(t+D)
            spread(slots, L, 14, n - 2); slots[n-1].append(ad)
        return ms, slots
    def check(slots, name, cmps, reload):
        for i, x in enumerate(cmps): slots[i].append(x)
        k = len(cmps) + 1
        slots[k].extend([f"s_cbranch_vccnz {name}_s", f"{name}_d:"])
        spin_ool(name, "\n".join(cmps), "\n".join(reload))
        return k
    def maxtree(b, n):
        return [f"v_max3_u32 v4, v{b}, v{b+1}, v{b+2}", f"v_max3_u32 v5, v{b+3}, v{b+4}, v{b+5}"] + [f"v_max3_u32 v{4+(i&1)}, v{4+(i&1)}, v{b+6+2*i}, v{b+7+2*i}" for i in range((n-6)//2)] + ["v_max_u32 v4, v4, v5", "v_cmp_eq_u32 vcc, -1, v4"]
    def FLG(sreg, off=0): return ["s_mov_b64 exec, 1", f"buffer_store_dword v3, off, {S(SW)}, s{sreg} offset:{off} sc1", "s_mov_b64 exec, -1"]
    def POLL(sreg, v, off=0): return f"buffer_load_dword v47, v{v}, {S(SW)}, s{sreg} offen offset:{off} sc1 ;@poll"
    CMP1 = ["v_cmp_ne_u32 vcc, 1, v47"]
    paths = [[], []]

    for ty in range(2):
        vm = VM(a)
        if ty == 0:
            a("L_tA:")
            a("s_mul_i32 s7, s1, 320\ns_add_u32 s6, s6, s7\nv_add_u32 v6, s6, v5")
            a(f"v_mad_u32_u24 v{V_WV}, v3, s57, v6\ns_movk_i32 s57, 6144\ns_lshl_b32 s6, s0, 7\nv_add_u32 v{V_WV+1}, {16*7168}, v{V_WV}\nv_add_u32 v6, s6, v5")
            a(f"v_mad_u32_u24 v{V_WV+2}, v3, s57, v6\nv_add_u32 v{V_WV+3}, {16*6144}, v{V_WV+2}\nv_add_u32 v{V_WV+4}, 4096, v{V_WV+2}\nv_add_u32 v{V_WV+5}, 4096, v{V_WV+3}")
        else:
            a("L_tB:")
            a("s_lshr_b32 s7, 128, s1\ns_add_u32 s7, s6, s7\nv_add_u32 v6, s7, v5")
            a(f"v_mad_u32_u24 v{V_WV}, v3, s57, v6\ns_xor_b32 s7, s1, 1\ns_mul_i32 s7, s7, 384\ns_add_u32 s7, s6, s7\nv_add_u32 v{V_WV+1}, {16*7168}, v{V_WV}")
            a("v_bfe_u32 v3, v2, 2, 2\nv_lshl_add_u32 v3, v4, 3, v3\nv_add_u32 v3, s61, v3\nv_and_b32 v5, 3, v2\nv_and_b32 v6, 1, v4\nv_lshlrev_b32 v6, 1, v6\nv_xor_b32 v5, v5, v6\nv_lshl_add_u32 v5, v5, 4, s7")
            a(f"v_mad_u32_u24 v{V_WV+2}, v3, s57, v5")
        stamp("addr", True)
        for m, d in dma_list(ty, 0)[:o["nd0"]]: a(m); vm(d)
        if o["spf"]: sload(o["spf"], 32)
        fin(SW, WS_SIZE); fin(SD, 3584*1024*2); fin(SO, 1024*1024*2); fin(SOUT, 2048*1024*2)
        a(f"s_lshl2_add_u32 s6, s2, s3\ns_lshl_b32 s6, s6, 13\ns_add_u32 s6, s6, {WS_I}\ns_add_u32 s{SI}, s{SW}, s6\ns_addc_u32 s{SI+1}, s{SW+1}, 0")
        fin(SI, 2048 if ty else 4096)
        a(f"s_mul_i32 s6, s2, 28672\ns_mul_i32 s7, s3, 9600\ns_add_u32 s6, s6, s7\ns_sub_u32 s7, 28672, s7\ns_min_u32 s7, s7, 9600\ns_lshl_b32 s0, s2, 13")
        a(f"s_cmp_eq_u32 s3, 3\ns_cselect_b32 s6, s0, s6\ns_cselect_b32 s{SP2+2}, 8192, s7\ns_cselect_b32 s0, s{SO}, s{SD}\ns_cselect_b32 s1, s{SO+1}, s{SD+1}")
        a(f"s_add_u32 s{SP2}, s0, s6\ns_addc_u32 s{SP2+1}, s1, 0\ns_mov_b32 s{SP2+3}, 0x20000")
        a("v_and_b32 v3, 15, v2\nv_bfe_u32 v5, v3, 1, 3\ns_lshl_b32 s6, s53, 7\nv_add_u32 v7, s6, v3\nv_lshlrev_b32 v7, 7, v7")
        for ks in range(2):
            a(f"v_add_u32 v6, {ks*4}, v4\nv_xor_b32 v6, v6, v5\nv_lshl_add_u32 v{V_XR+ks}, v6, 4, v7\nv_add_u32 v{V_XR+2+ks}, {STAGE}, v{V_XR+ks}")
        a(f"s_mul_i32 s6, s3, 320\nv_lshl_add_u32 v5, v3, 6, s6\nv_lshl_add_u32 v5, v4, 4, v5\nv_cmp_gt_u32 vcc, 5, v3\nv_mov_b32 v6, {BIG}\nv_lshlrev_b32 v{V_PF2}, 7, v2\nv_cndmask_b32 v{V_CSO}, v6, v5, vcc")
        a(f"v_cmp_gt_u32 vcc, 13, v2\nv_and_b32 v3, 3, v2\nv_lshlrev_b32 v3, 3, v3\nv_cndmask_b32 v{V_PF2}, v6, v{V_PF2}, vcc")
        a(f"v_lshrrev_b32 v5, 2, v2\nv_add_u32 v3, {W_OFF}, v3\nv_lshl_add_u32 v6, v5, 7, v3\nv_bfe_u32 v7, v2, 3, 2\ns_lshl_b32 s6, s52, 1\nv_xor_b32 v7, s6, v7")
        a(f"v_lshl_add_u32 v{V_WR}, v7, 5, v6\nv_xor_b32 v7, 1, v7\nv_lshl_add_u32 v{V_WR+2}, v7, 5, v6")
        if ty == 1:
            a(f"v_lshl_add_u32 v6, v5, 6, v3\nv_and_b32 v7, 1, v4\nv_xor_b32 v7, s52, v7\nv_lshl_add_u32 v6, v7, 5, v6\nv_add_u32 v{V_WR+4}, 32768, v6")
        for r in range(V_WR, V_WR + 4 + 2*ty, 2): a(f"v_add_u32 v{r+1}, {STAGE}, v{r}")
        a(f"s_bfe_u32 s68, s2, 0x20003\ns_lshl3_add_u32 s69, s4, s5\ns_mul_i32 s69, s69, 1280\ns_add_u32 s69, s69, {WS_CS}\ns_mov_b32 s57, 0\ns_min_u32 s71, s68, 2\ns_add_u32 s71, s71, 9\ns_lshr_b32 s70, s71, 1\ns_lshl4_add_u32 s70, s3, s70\ns_and_b32 s71, s71, 1\ns_lshl3_add_u32 s70, s71, s70\ns_xor_b32 s71, s70, 8")
        a(f"s_mov_b32 s60, 0\ns_mov_b32 s61, 0\ns_lshl_b32 s0, s3, 12\ns_lshl_b32 s1, s2, 14\ns_add_u32 s1, s1, s0\ns_add_u32 s0, s0, {MB}")
        a("v_and_b32 v3, 15, v2\nv_cmp_eq_u32 vcc, 0, v3\nv_mov_b32 v3, 0x3f803f80\nv_cndmask_b32 v35, 0, v3, vcc")
        a("v_mov_b64 v[4:5], -1\nv_mov_b64 v[6:7], -1")
        a(f"s_mov_b32 s72, 0\nL_cs{ty}:\ns_cmp_eq_u32 s53, 0\ns_cbranch_scc0 L_cs{ty}_1")
        for wr in range(2):
            if wr: a(f"L_cs{ty}_1:")
            for n in range(5):
                X, Y = (V_SEL, V_T) if n % 2 == 0 else (V_T, V_SEL)
                for ks in range(2):
                    a(f"v_mfma_f32_16x16x32_bf16 {vr(V_CSA, 4)}, {ar(wfb(5*wr+n, ks), 4)}, {vr(X, 4)}, {vr(V_CSA, 4)}")
                    if n < 4 and ks == 0: a.extend([f"v_mov_b32_dpp v{Y+r}, v{X+r} row_shr:1 row_mask:0xf bank_mask:0xf bound_ctrl:0" for r in range(2)] + [f"v_mov_b64 {P(Y+2)}, {P(Y)}"])
                    if n == 4 and ks == 0: a("s_cmp_eq_u32 s72, 3")
            a(f"s_cbranch_scc1 L_cs{ty}_d3\ns_cmp_eq_u32 s72, 2\ns_cbranch_scc1 L_cs{ty}_d2\ns_cmp_eq_u32 s72, 1\ns_cbranch_scc1 L_cs{ty}_d1")
            if wr == 0: a(f"s_branch L_cs{ty}_d0")
        a(f"L_cs{ty}_d0:")
        stamp("zero", True)
        for m, d in dma_list(ty, 0)[o["nd0"]:]: a(m); t_st0 = vm(d)
        a(f"v_mov_b64 {P(V_CSA)}, 0\nv_mov_b64 {P(V_CSA+2)}, 0")
        if o["spf"]: a("s_waitcnt lgkmcnt(0)")
        elif o["npf0"] < 2:
            a("s_barrier")
            if o["npf0"] == 0: a("s_add_u32 s58, s58, s59")
            vm(PFI)
        a.extend(adv)
        stamp("dma", True)
        vm.wait(t_st0)
        a("s_barrier")
        stamp("loop", True)
        if o.get("cnt"): a("s_mov_b32 s101, 0")
        xa = [xread(0, tb, ks) for tb in range(4) for ks in range(2)]
        a.extend(xa[:2] + wread(ty, 0, 0) + xa[2:] + wread(ty, 0, 1))
        def d1(stage): return [([], m, d, p-80) for (m, d), p in zip(dma_list(ty, stage ^ 1)[n3:], dpos[n3:])]
        def d2(stage): return [([], m, d, p) for (m, d), p in zip(dma_list(ty, stage)[:n3], dpos[:n3])]
        def loop(kind):
            a(f".p2align 4\nL_{kind}{ty}:")
            for stage in range(2):
                if kind == "la" and stage == 1: a(f"L_lam{ty}:")
                phase1(ty, stage, kind, d1(stage))
                phase2(ty, stage, kind, d2(stage), "vmcnt(2)")
            if o["stamps"] and any(x[0] == "i" for x in sset):
                for it in (1, 2, 5, 6):
                    if f"i{it}" in sset and (it < 4) == (kind == "la"):
                        a(f"s_cmp_eq_u32 s57, {it}\ns_cbranch_scc0 L_st{ty}{it}"); stamp(f"i{it}", True); a(f"L_st{ty}{it}:")
                a(f"s_cmp_lt_u32 s57, {4 if kind == 'la' else 7}")
            a(f"s_cbranch_scc1 L_{kind}{ty}")
        phase1(ty, 0, "s0", [([], m, d, o["d0s"] + o["d0e"]*i) for i, (m, d) in enumerate(dma_list(ty, 1))])
        stamp("s0m", True)
        phase2(ty, 0, "s0", d2(0), "vmcnt(2)")
        stamp("s0e", True)
        a(f"s_branch L_lam{ty}")
        loop("la")
        stamp("i4", True)
        a("s_sub_u32 s0, s0, 4096")
        phase1(ty, 0, "s8", d1(0))
        stamp("s8m", True)
        a(mfmas(ty, 1)[0] + f"\ns_waitcnt vmcnt(5)\ns_barrier\ns_branch L_lbm{ty}")
        loop("lb")
        stamp("s14", True)
        phase1(ty, 0, "s14", d1(0))
        tail = []
        for t in range(4):
            for c, (m, d) in enumerate(bdma(t, "f")):
                tail.append(([f"s_add_u32 s15, s14, {n0(t)*65536}"] if c == 0 and t else [], m, d))
        tp = [o["ts"] + o["te"]*i for i in range(16)]
        tp = [p if p % 80 >= 4 or p < 80 else p - p % 80 + 4 for p in tp]
        def part(k): return [(pre, m, d, p - 80*k) for (pre, m, d), p in zip(tail, tp) if p//80 == k]
        rest = [x for x, p in zip(tail, tp) if p >= 240]
        stamp("s14m", True)
        phase2(ty, 0, "s14", part(0), "vmcnt(8)")
        stamp("s15", True)
        o["n14"] = len(part(0)) + 4
        phase1(ty, 1, "s15", part(1))
        phase2(ty, 1, "s15", part(2), "lgkmcnt(0)")
        stamp("e0", True)
        p0 = len(a.lines)
        def rd_cs(cb0, n):
            for i in range(n): a(f"ds_read_b128 v[{CS+4*i}:{CS+4*i+3}], v45 offset:{(cb0+i)*64}")
        def rd_tk(tb): a(f"ds_read_b128 v[{TK+4*(tb&1)}:{TK+4*(tb&1)+3}], v44 offset:{tb*256}")
        def getv(tb, cb, tmp):
            p, b = accb(tb, cb)
            if p == "v": return b
            for i in range(4): a(f"v_accvgpr_read_b32 v{tmp+i}, a{b+i}")
            return tmp
        def pack(d, ps):
            for i, p in enumerate(ps): a(f"v_cvt_pk_bf16_f32 v{d+i}, v{p}, v{p+1}")
        def fixm(b, cs, tk):
            for h in (0, 2): a(f"v_pk_fma_f32 {P(b+h)}, {P(cs+h)}, {P(tk)}, {P(b+h)} op_sel_hi:[1,0,1]")
        def geglu(items, d):
            el = [(g+h, u+h, tk, Z + 4*n + h) for n, (g, u, cg, cu, tk) in enumerate(items) for h in (0, 2)]
            for g, u, cg, cu, tk in items: fixm(g, cg, tk)
            for g, u, tk, z in el: a(f"v_pk_mul_f32 {P(z)}, {P(g)}, {P(g)}")
            for g, u, tk, z in el: a(f"v_pk_fma_f32 {P(z)}, {P(z)}, {P(tk+2)}, {P(tk)} op_sel:[0,0,1] op_sel_hi:[1,0,1]")
            for g, u, tk, z in el: a(f"v_pk_mul_f32 {P(z)}, {P(z)}, {P(g)}")
            for i in range(8): a(f"v_exp_f32 v{Z+i}, v{Z+i}")
            for g, u, cg, cu, tk in items: fixm(u, cu, tk)
            for g, u, tk, z in el: a(f"v_pk_fma_f32 {P(z)}, {P(z)}, {P(tk+2)}, {P(tk+2)} op_sel:[0,1,1] op_sel_hi:[1,1,1]")
            for i in range(8): a(f"v_rcp_f32 v{Z+i}, v{Z+i}")
            for g, u, tk, z in el: a(f"v_pk_mul_f32 {P(u)}, {P(u)}, {P(g)}")
            for g, u, tk, z in el: a(f"v_pk_mul_f32 {P(u)}, {P(u)}, {P(z)}")
            pack(d, [u for g, u, tk, z in el])
        def frag(tb, cb0, sb, nxt):
            r = [getv(tb, cb0+i, accb(tb, i)[1]) for i in range(4)]
            a("s_waitcnt lgkmcnt(0)")
            if nxt is not None: rd_tk(nxt)
            tk = TK + 4*(tb & 1)
            geglu([(r[0], r[1], CS, CS+4, tk), (r[2], r[3], CS+8, CS+12, tk)], r[0])
            a(f"buffer_store_dwordx4 v[{r[0]}:{r[0]+3}], v1, {S(SW)}, s{sb+(tb>>1)} offen offset:{(tb&1)*1024} sc1 ;@h{sb}")
        ALD = [x for t in range(3) for x in al(t)[0] + [al(t)[1]]]
        def try_load():
            stamp("b2")
            a("s_waitcnt @poll"); a.extend(CMP1)
            a(f"s_mov_b32 s70, 0\ns_nop 2\ns_cbranch_vccz L_tl{ty}\n{POLL(59, 46)}\nL_tl{ty}_d:")
            ool(f"L_tl{ty}:\ns_mov_b32 s70, 1"); ool.extend(ALD); ool(f"s_branch L_tl{ty}_d")
        def must_load():
            stamp("chk")
            a(f"s_cmp_eq_u32 s70, 1\ns_cbranch_scc1 L_ml{ty}\ns_waitcnt @poll")
            spin(f"L_b1{ty}", CMP1[0], POLL(59, 46))
            a.extend(ALD)
            a(f"L_ml{ty}:")
            stamp("chkd")
        def set_b1():
            a("s_waitcnt @h40"); stamp("w1d"); a.extend(FLG(54))
        def phi_tail(ps, ts, scale):
            for i in range(8): a(f"v_exp_f32_e64 v{Z+i}, v{Z+i} clamp")
            for p in ps: a(f"v_max_f32 v{p}, 0, v{p}\nv_max_f32 v{p+1}, 0, v{p+1}")
            for p in ps:
                if scale is None: a(f"v_pk_add_f32 {P(p)}, {P(p)}, s[68:69] op_sel_hi:[1,0]")
                else: a(f"v_pk_fma_f32 {P(p)}, {P(p)}, {P(scale)}, s[68:69] op_sel_hi:[1,0,0]")
            for p, q in zip(ps, ts): a(f"v_pk_add_f32 {P(p)}, {P(p)}, {P(q)}")
            pack(ps[0], ps)
        more = [pre + [m, "s_nop 0", d] for pre, m, d in rest] + ([[x] for x in XLD] if o["xl"] else [])
        for tb in range(o["early"], 8):
            for x in more[:2]: a.extend(x)
            more = more[2:]
            frag(tb, 0, 40, tb+1 if tb < 7 else (0 if ty else None))
        assert not more
        stamp("b1")
        if ty == 1:
            rd_cs(6, 4)
            for tb in range(8):
                frag(tb, 6, 44, tb+1 if tb < 7 else 0)
                if tb == o["fB"]: set_b1()
                if tb == o["pB"]: a(POLL(59, 46))
                if tb == o["cB"]: try_load()
            rd_cs(4, 2)
            must_load()
        else:
            a(f"v_and_b32 v4, 15, v2\nv_lshl_add_u32 v4, v4, 2, s64\ns_lshl_b32 s0, s53, 9\ns_add_u32 s0, s0, {MB_NM}\ns_sub_u32 s0, s0, s64\nv_add_u32 v5, s0, v45")
            for i in range(4): a(f"ds_read_b32 v{12+i}, v4 offset:{(6+i)*64}")
            KV, ONES = 112, 136
            for i in range(4): a(f"v_mov_b32 v{ONES+i}, 0x3f803f80")
            for tp in range(4):
                for h in range(2):
                    a(f"ds_read_b128 v[{16+8*h}:{19+8*h}], v5 offset:{(2*tp+h)*64}\nds_read_b128 v[{20+8*h}:{23+8*h}], v5 offset:{(2*tp+h)*64 + 1024}")
                r = [[getv(2*tp+h, 6+i, 48 + 32*(tp & 1) + 8*i + 4*h) for h in range(2)] for i in range(4)]
                a("s_waitcnt lgkmcnt(0)")
                for i in range(4):
                    sel = i & 1
                    for h in range(2):
                        for q in (0, 2):
                            a(f"v_pk_fma_f32 {P(r[i][h]+q)}, {P(16+8*h+q)}, {P(12+(i&2))}, {P(r[i][h]+q)} op_sel:[0,{sel},0] op_sel_hi:[1,{sel},1]")
                    for h in range(2):
                        for q in (0, 2): a(f"v_pk_mul_f32 {P(r[i][h]+q)}, {P(r[i][h]+q)}, {P(20+8*h+q)}")
                    ps = [r[i][0], r[i][0]+2, r[i][1], r[i][1]+2]; ts = [Z, Z+2, Z+4, Z+6]
                    if i < 2:
                        for p, q in zip(ps, ts): a(f"v_pk_mul_f32 {P(q)}, {P(p)}, s[56:57] op_sel_hi:[1,0]")
                        phi_tail(ps, ts, None)
                    else: pack(ps[0], ps)
                for db in range(2):
                    for eb in range(3):
                        d = vr(KV + (db*3+eb)*4, 4)
                        B = vr(r[2+eb][0], 4) if eb < 2 else vr(ONES, 4)
                        a(f"v_mfma_f32_16x16x32_bf16 {d}, {vr(r[db][0], 4)}, {B}, {d if tp else 0}")
                if tp == 0: set_b1()
                if tp == 1: a(POLL(59, 46))
                if tp == 2: try_load()
            rd_cs(4, 2); rd_tk(0)
            a(f"s_mul_i32 s0, s3, 3072\ns_add_u32 s0, s0, {KVX}\nv_add_u32 v4, s0, v1\ns_xor_b32 s1, s3, 1\ns_mul_i32 s1, s1, 3072\ns_add_u32 s1, s1, {KVX}\nv_add_u32 v5, s1, v1")
            must_load()
            a("s_cmp_eq_u32 s53, 0\ns_nop 3\ns_cbranch_scc1 L_kv0")
            for eb in range(3): a(f"ds_write_b128 v5, v[{KV+eb*4}:{KV+eb*4+3}] offset:{eb*1024}")
            for i in range(0, 12, 2): a(f"v_mov_b64 {P(48+i)}, {P(KV+12+i)}")
            a("s_branch L_kv1\nL_kv0:")
            for eb in range(3): a(f"ds_write_b128 v5, v[{KV+12+eb*4}:{KV+12+eb*4+3}] offset:{eb*1024}")
            for i in range(0, 12, 2): a(f"v_mov_b64 {P(48+i)}, {P(KV+i)}")
            a("L_kv1:")
        a("v_lshrrev_b32 v5, 2, v2\nv_lshlrev_b32 v5, 7, v5\nv_and_b32 v6, 3, v2\nv_lshl_add_u32 v5, v6, 3, v5\nv_bfe_u32 v6, v2, 3, 2")
        for cb in range(4): a(f"v_xor_b32 v7, {cb}, v6\nv_lshl_add_u32 v{V_BR+cb}, v7, 5, v5")
        a("s_waitcnt lgkmcnt(0)\ns_barrier")
        if ty == 0:
            for eb in range(3): a(f"ds_read_b128 v[{60+eb*4}:{63+eb*4}], v4 offset:{eb*1024}")
        a.extend(rl(0))
        stamp("k2")
        TJ, TG, TO = o["tj"], o["tg"], o["tg"] + 2
        KG = 100
        GLD = [f"buffer_load_dwordx4 {vr(KG+4*e, 4)}, v1, {S(SW)}, s{r} offen sc1 ;@gld" for e, r in enumerate((64, 66, 67))]
        def ob(tb, eb):
            i = tb*3 + eb
            return G + 4*i if i < 12 else 208 + 4*(i - 12)
        NS_ = o["nsA"] if ty == 0 else o["nsB"]
        TB3 = NS_ + 2
        st_ = []
        for t in range(NU):
            tags = []; first = []; xm = 0
            otb = {TO: range(0, 2), TO+1: range(2, 5), TO+2: range(5, 8)}.get(t, []) if ty == 0 else []
            if ty == 0:
                if t == TG: first = GLD
                if t == TO: tags = ["gld"]
                xm = 3*len(otb)
            else:
                if t == 2: tags = ["h44"]; first = [FLG(54, 128)]
                if t == TJ+3: tags = [f"F{TJ+1}"]
                if t == TB3: tags = ["late"]; first = [FLG(54, 256)]
            if t == 12: tags = tags + ["poll"]
            ms, slots = build(t, tags, first, xm)
            n = 32 + xm; lo = 0
            if t == 12: lo = check(slots, f"L_b2{ty}", CMP1, [POLL(60, V_P2, 128)])
            if t == 9: slots[n-1].append(POLL(60, V_P2, 128))
            if t == 14:
                vv = [f"v_add_u32 v{V_A2}, 4096, v1", "v_and_b32 v4, 15, v2", "v_lshlrev_b32 v4, 11, v4", "v_bfe_u32 v6, v2, 4, 1", "v_lshl_add_u32 v4, v6, 5, v4",
                      "v_lshrrev_b32 v6, 5, v2", f"v_lshl_add_u32 v{V_XO}, v6, 4, v4", f"v_add_u32 v{V_XO+1}, 32768, v{V_XO}", "v_and_b32 v4, 0x1f0, v1", f"v_lshl_add_u32 v{V_AO}, v6, 3, v4"]
                fillv([slots[i] for i in range(n)], vv)
                slots[20].append(f"s_add_u32 s66, s54, {256 + 128*ty}")
            if ty == 0 and t == TG - 1:
                fill(slots, ["s_and_b32 s64, s2, 0xc6", "s_or_b32 s64, s64, s52", "s_lshl_b32 s64, s64, 15", f"s_add_u32 s64, s64, {WS_I + 0x28*32768 + 1024}", f"s_add_u32 s66, s64, {16*32768}", "s_add_u32 s67, s64, 8192"], 13, 30)
            if otb:
                if t == TO: lo = check(slots, "L_kvf", maxtree(KG, 12), GLD)
                om = [f"v_mfma_f32_16x16x32_bf16 {vr(ob(tb, eb), 4)}, {vr(KG+4*eb, 4)}, v[{VS+4*tb}:{VS+3+4*tb}], 0" for tb in otb for eb in (2, 0, 1)]
                ms = ms[:lo+1] + om + ms[lo+1:]
                lo += 7
                per = (n - 1 - lo)//len(otb)
                for k, tb in enumerate(otb):
                    dn = ob(tb, 2); e8 = [ob(tb, 0)+i for i in range(4)] + [ob(tb, 1)+i for i in range(4)]
                    w = [f"v_add_f32 v{dn}, s68, v{dn}", f"v_rcp_f32 v{dn}, v{dn}"] + [f"v_mul_f32 v{e}, v{e}, v{dn}" for e in e8] + [f"v_cvt_pk_bf16_f32 v{e8[0]+i}, v{e8[2*i]}, v{e8[2*i+1]}" for i in range(4)]
                    fillv([slots[i] for i in range(lo + k*per, lo + (k+1)*per)], w)
                    slots[lo + (k+1)*per].append(f"buffer_store_dwordx4 {vr(e8[0], 4)}, v1, {S(SW)}, s{44+(tb>>1)} offen offset:{(tb&1)*1024} sc1 ;@late")
            if ty == 1 and t == 0:
                fill(slots, ["s_bfe_u32 s6, s2, 0x10004", "s_add_u32 s70, s6, s3", "s_min_u32 s7, s3, 1", "s_mul_i32 s70, s70, s7", "s_lshl1_add_u32 s6, s7, s6", "s_andn2_b32 s7, 8, s2", "s_add_u32 s70, s70, s7",
                             "s_and_b32 s64, s2, 0xc6", "s_and_b32 s7, s2, 1", "s_lshl1_add_u32 s64, s64, s7", "s_lshl4_add_u32 s64, s64, s6", "s_lshl_b32 s64, s64, 10", f"s_add_u32 s64, s64, {WS_I + 1024}"], 12, 30)
            if ty == 1 and t == TJ+3:
                slots[-1].extend(["s_cmp_lt_u32 s70, 2", "s_cbranch_scc1 L_red", "L_red_d:"])
            st_.append((ms, slots))
        gaps = [st_[t][1][i] for t in range(NS_) for i in range(32)]
        pre = [f"v_bfe_u32 v{V_P3}, v2, 1, 2", f"v_and_b32 v{V_P2}, 1, v2", f"v_lshl_or_b32 v{V_P3}, v{V_P3}, 7, v{V_P2}", f"v_lshlrev_b32 v{V_P3}, 14, v{V_P3}", f"v_and_b32 v{V_P2}, {0xffbfffff}, v{V_P3}"]
        g0 = 0
        if ty == 0:
            fillv(gaps[0:8], [f"v_add_f32 v{48+i}, v{48+i}, v{60+i}" for i in range(12)])
            for eb in range(3): gaps[9+3*eb].append(f"buffer_store_dwordx4 v[{48+eb*4}:{51+eb*4}], v1, {S(SW)}, s54 offen offset:{(eb+1)*1024} sc1")
            g0 = 8
        per = (len(gaps) - g0)//8
        assert per >= 32
        for tb in range(8):
            tk = TK + 4*(tb & 1); b0, b1 = accb(tb, 4)[1], accb(tb, 5)[1]
            gg = gaps[g0 + tb*per:g0 + (tb+1)*per]
            if tb < 7: gg[0].append(f"ds_read_b128 v[{TK+4*((tb+1)&1)}:{TK+4*((tb+1)&1)+3}], v44 offset:{(tb+1)*256}")
            vv = list(pre) if tb == 0 else []
            if ty == 0:
                el = [(b0+i, CS+i, Z2+i) for i in range(4)] + [(b1+i, CS+4+i, Z2+4+i) for i in range(4)]
                vv += [f"v_mul_f32 v{tk+2}, {f2u(1.0/GA1)}, v{tk+1}", f"v_mul_f32 v{tk+3}, {f2u(LOG2E/GA1)}, v{tk+1}"]
                vv += [f"v_fmac_f32 v{q}, v{c}, v{tk}" for q, c, z in el] + [f"v_mul_f32 v{z}, v{q}, v{tk+3}" for q, c, z in el]
                for q, c, z in el: vv += [f"v_exp_f32_e64 v{z}, v{z} clamp", f"v_max_f32 v{q}, 0, v{q}", f"v_fma_f32 v{q}, v{q}, v{tk+2}, s68"]
                vv += [f"v_add_f32 v{q}, v{q}, v{z}" for q, c, z in el]
                vv += [f"v_cvt_pk_bf16_f32 v{b0+i}, v{el[2*i][0]}, v{el[2*i+1][0]}" for i in range(4)]
            else:
                el = [(b0+i, b1+i, CS+i, CS+4+i, Z2+i) for i in range(4)]
                d = accb(tb & ~1, 4)[1]
                vv += [f"v_fmac_f32 v{g}, v{cg}, v{tk}" for g, u, cg, cu, z in el] + [f"v_mul_f32 v{z}, v{g}, v{g}" for g, u, cg, cu, z in el]
                vv += [f"v_fma_f32 v{z}, v{z}, v{tk+2}, v{tk+1}" for g, u, cg, cu, z in el] + [f"v_mul_f32 v{z}, v{z}, v{g}" for g, u, cg, cu, z in el]
                for g, u, cg, cu, z in el: vv += [f"v_exp_f32 v{z}, v{z}", f"v_fmac_f32 v{u}, v{cu}, v{tk}"]
                vv += [f"v_fma_f32 v{z}, v{z}, v{tk+3}, v{tk+3}" for g, u, cg, cu, z in el]
                for g, u, cg, cu, z in el: vv += [f"v_rcp_f32 v{z}, v{z}", f"v_mul_f32 v{u}, v{u}, v{g}"]
                vv += [f"v_mul_f32 v{u}, v{u}, v{z}" for g, u, cg, cu, z in el]
                vv += [f"v_cvt_pk_bf16_f32 v{d+2*(tb&1)+i}, v{b1+2*i}, v{b1+2*i+1}" for i in range(2)]
                if tb & 1:
                    gg[-2].extend([f"v_permlane32_swap_b32 v{d}, v{d+2}", f"v_permlane32_swap_b32 v{d+1}, v{d+3}"])
                    gg[-1].append(f"buffer_store_dwordx4 v[{d}:{d+3}], v1, {S(SW)}, s{48+(tb>>1)} offen sc1 ;@late")
                    gg = gg[:-3]
            if o.get("ab", 0) & 32: vv = vv[:5]
            fillv(gg, vv)
        for t, (ms, slots) in enumerate(st_):
            stamp(f"t{t}")
            emit(a, ms, slots)
            if ty == 1 and t == TJ: a("s_cmp_lt_u32 s70, 2\ns_cbranch_scc1 L_gat\nL_gat_d:")
        a("s_branch L_tail")
        paths[ty] = list(range(p0, len(a.lines)))
        a.lines += near.lines + ool.lines; near.lines = []; ool.lines = []
    KLD = []
    for r in range(8):
        for db in range(2):
            KLD += [f"s_add_u32 s1, s64, {(8*(r&3) + (r>>2))*32768 + db*8192}", f"buffer_load_dwordx4 v[{G+(r*2+db)*4}:{G+(r*2+db)*4+3}], v1, {S(SW)}, s1 offen sc1"]
    main = a; hk = Asm(); a = hk
    a("L_gat:"); a.extend(KLD); a("s_branch L_gat_d\nL_red:")
    spin("L_kvg", "\n".join(maxtree(G, 64)), "\n".join(KLD))
    for stp in (32, 16, 8):
        for i in range(0, stp, 2): a(f"v_pk_add_f32 {P(G+i)}, {P(G+i)}, {P(G+stp+i)}")
    for i in range(4): a(f"v_cvt_pk_bf16_f32 v{G+i}, v{G+2*i}, v{G+2*i+1}")
    a(f"buffer_store_dwordx4 v[{G}:{G+3}], v1, {S(SW)}, s54 offen offset:1024 sc1\ns_branch L_red_d")
    a = main
    a("L_tail:")
    p0 = len(a.lines)
    PLD = [f"buffer_load_dwordx4 v[{PL+4*i}:{PL+4*i+3}], v1, {S(SW)}, s65 offen offset:{i*1024} sc1 ;@pld" for i in range(4)]
    OPOLL = [POLL(69, V_P3, 256), f"buffer_load_dword v35, off, {S(SW)}, s55 sc1 ;@poll"]
    def tail(t):
        tags = {NU: ["late"], 20: ["poll"], 24: ["poll"], TC: ["pld"]}.get(t, [])
        first = {NU: [FLG(66)], TP: PLD}.get(t, [])
        ms, slots = build(t, tags, first, 8 if t in (20, TC) else 0)
        if t == 17: slots[31].append(POLL(60, V_P2, 256))
        if t == 20: check(slots, "L_b3", CMP1, [POLL(60, V_P2, 256)])
        if t == o["opoll"]: slots[30].append(OPOLL[0]); slots[31].append(OPOLL[1])
        if t == 24: check(slots, "L_of", ["v_or_b32 v4, v35, v47", "v_cmp_ne_u32 vcc, 1, v4"], OPOLL)
        if t == nf:
            for q in range(4):
                tb, pp = q >> 1, q & 1
                for i in range(4):
                    r = facc(1, 2*pp + (i >> 1), tb) + 2*(i & 1)
                    slots[8 + 4*q + i].append(f"v_cvt_pk_bf16_f32 v{PK+4*q+i}, v{r}, v{r+1}")
                slots[[13, 19, 25, 31][q]].append(f"buffer_store_dwordx4 v[{PK+4*q}:{PK+4*q+3}], v1, {S(SW)}, s61 offen offset:{q*1024} sc1")
        if t == 18:
            vv = ["v_and_b32 v4, 1, v2", "v_lshlrev_b32 v4, 4, v4", "v_mov_b32 v5, 0x3f80", "v_lshlrev_b32 v4, v4, v5", "v_lshrrev_b32 v5, 4, v2", "v_bfe_u32 v6, v2, 1, 3", "v_lshlrev_b32 v7, 1, v5",
                  "v_sub_u32 v6, v6, v7", "v_sub_u32 v7, v6, v7"]
            for i in range(2): vv += [f"v_cmp_eq_u32 vcc, {i}, v6", f"v_mov_b32 v{SE+i}, 0", f"v_mov_b32 v{SE+4+i}, 0", f"v_cndmask_b32 v{SE+2+i}, 0, v4, vcc"]
            fillv([slots[i] for i in range(1, 32)], vv)
        if t == 19:
            for e in range(2):
                for i in range(4):
                    k = 4*e + i
                    slots[1+4*k].append(f"v_cmp_eq_u32 vcc, {i - 8*e}, v7"); slots[3+4*k].append(f"v_cndmask_b32 v{PK+k}, 0, v4, vcc")
        if t == 20:
            ms = ms + [f"v_mfma_f32_16x16x32_bf16 {vr(XF + (cb*2+tb)*4, 4)}, {vr(PK + 4*(cb&1), 4)}, {ar(16 + 4*(2*tb + (cb>>1)), 4)}, 0" for cb in range(4) for tb in range(2)]
        return ms, slots
    for t in range(NU, TC):
        if t == nf: stamp("s")
        stamp(f"t{t}")
        emit(a, *tail(t))
    last = [list(tail(t)) for t in range(TC, T)]
    m5, s5 = last[0]
    k = check(s5, "L_xb", maxtree(PL, 16), PLD)
    s5[1].append(f"s_mov_b32 s6, {f2u(-LOG2E)}")
    blocks = [(2*pp + e, tb) for pp in range(2) for tb in range(2) for e in range(2)]
    addm = [f"v_mfma_f32_16x16x32_bf16 {vr(facc(0, cb, tb), 4)}, {vr(SE + 2 - 2*(cb&1), 4)}, {vr(PL + 4*(2*tb + (cb>>1)), 4)}, {vr(facc(0, cb, tb), 4)}" for cb, tb in blocks]
    last[0][0] = m5[:k+1] + addm + m5[k+1:]
    silu = []
    for g in range(0, 8, 2):
        el = [(cb*2+tb)*4 + i for cb, tb in blocks[g:g+2] for i in range(4)]
        silu += [f"v_mul_f32 v{VQ+e}, s6, v{VF+e}" for e in el] + [f"v_exp_f32 v{VQ+e}, v{VQ+e}" for e in el] + [f"v_add_f32 v{VQ+e}, 1.0, v{VQ+e}" for e in el]
        silu += [f"v_rcp_f32 v{VQ+e}, v{VQ+e}" for e in el] + [f"v_mul_f32 v{VF+e}, v{VF+e}, v{VQ+e}" for e in el]
    def outp(pp, tb, pk):
        d = PK + (tb*2+pp)*4; L = []
        for e in range(2):
            off = ((2*pp+e)*2+tb)*4
            if pk: L += [f"v_pk_fma_f32 {P(VS+off+h)}, {P(VS+off+h)}, {P(VF+off+h)}, {P(XF+off+h)}" for h in (0, 2)]
            else: L += [f"v_fma_f32 v{VS+off+h}, v{VS+off+h}, v{VF+off+h}, v{XF+off+h}" for h in range(4)]
        for e in range(2):
            off = ((2*pp+e)*2+tb)*4
            L += [f"v_cvt_pk_bf16_f32 v{d+2*e+h}, v{VS+off+2*h}, v{VS+off+2*h+1}" for h in range(2)]
        return L, [f"v_permlane16_swap_b32 v{d}, v{d+2}", f"v_permlane16_swap_b32 v{d+1}, v{d+3}"], f"buffer_store_dwordx4 v[{d}:{d+3}], v{V_XO+tb}, {S(SOUT)}, s19 offen offset:{pp*64} sc1"
    nin = o["nin"]
    gaps = [sl[i] for ms, sl in last for i in range(len(ms))]
    e7 = len(gaps) - 32 + o["s7e"]
    fillv(gaps[k+9:e7], silu[:nin])
    (l0, w0, t0), (l1, w1, t1) = outp(0, 0, False), outp(0, 1, False)
    if o["s7e"] < 32:
        assert nin >= 80
        fillv(gaps[e7:-1], l0 + l1 + w0 + w1)
        gaps[-1].extend([t0, t1])
    for t, (ms, sl) in zip(range(TC, T), last):
        stamp(f"t{t}"); emit(a, ms, sl)
    stamp("fin")
    for g in range(nin//20, 8, 2):
        el = [(cb*2+tb)*4 + i for cb, tb in blocks[g:g+2] for i in range(4)]; ep = el[::2]
        a.extend([f"v_pk_mul_f32 {P(VQ+e)}, {P(VF+e)}, s[6:7] op_sel_hi:[1,0]" for e in ep] + [f"v_exp_f32 v{VQ+e}, v{VQ+e}" for e in el] + [f"v_pk_add_f32 {P(VQ+e)}, {P(VQ+e)}, 1.0 op_sel_hi:[1,0]" for e in ep])
        a.extend([f"v_rcp_f32 v{VQ+e}, v{VQ+e}" for e in el] + [f"v_pk_mul_f32 {P(VF+e)}, {P(VF+e)}, {P(VQ+e)}" for e in ep])
    for pp in range(0 if o["s7e"] == 32 else 1, 2):
        (l0, w0, t0), (l1, w1, t1) = outp(pp, 0, True), outp(pp, 1, True)
        a.extend(l0 + l1 + w0 + [t0] + w1 + [t1])
    if o.get("cnt"):
        a(f"s_lshl2_add_u32 s0, s2, s3\ns_lshl_b32 s0, s0, 2\ns_add_u32 s0, s0, {STAMP_OFF + 0x10000}\nv_mov_b32 v4, s0\nv_mov_b32 v5, s101\nglobal_store_dword v4, v5, s[{SW}:{SW+1}]")
    if o["stamps"]:
        stamp("fs")
        a("s_waitcnt vmcnt(0)")
        stamp("end")
        a(f"s_cmp_lg_u32 s3, {o['stw']}\ns_cbranch_scc1 L_end")
        st.n = len(sset)
        st.flush(a, SW, 2, 4)
    for ty in range(2): paths[ty] += list(range(p0, len(a.lines)))
    ab = o.get("ab", 0)
    k2lines = set(paths[0] + paths[1])
    for i in k2lines:
        l = a.lines[i]
        kill = False
        if ab & 1 and "buffer_store_dword v3, off" in l and "offset:0" not in l: kill = True
        if ab & 2 and ";@poll" in l and "s59" not in l: kill = True
        if ab & 3 and any(f"s_cbranch_vccnz {n}" in l for n in ("L_b2", "L_b3", "L_of")): kill = True
        if ab & 4 and (";@gld" in l or "L_kvf_s" in l or "scc1 L_gat" in l or "scc1 L_red" in l or ("s54 offen" in l and "store" in l)): kill = True
        if ab & 8 and ";@late" in l: kill = True
        if ab & 16 and (";@pld" in l or "L_xb_s" in l or ("s61 offen" in l and "store" in l)): kill = True
        if kill: a.lines[i] = "    s_nop 0"
    resolve(a.lines, paths)
    a("L_end:\ns_endpgm")
    a.lines += hk.lines + ool.lines + ["L_cend:"]
    a.lines, n = hazard.fix(a.lines, verbose=o.get("hv", 0))
    if o.get("cnt"): print(spn)
    ref = "cdna_kernels/" + NAME + ".s.ref"
    hdr = open(ref).read().split("; Override launch")[0] if os.path.exists(ref) else ""
    k = dict(name=NAME + "_kernel", grid=256, block=256, lds=163840, body=a, vgpr=256, agpr=256)
    if "pm" in o:
        pr = Asm(); pa, pb, M, pw = o.get("pa", 0), o.get("pb", 0), o["pm"], o.get("pw", 0)
        pr(f"""s_cmp_ge_u32 s2, 1
s_cbranch_scc1 Lp_end
s_load_dwordx2 s[4:5], s[0:1], 72
s_memrealtime s[8:9]
v_mov_b32 v1, {STAMP_OFF + pw*128 + pa*8 + 4}
v_mov_b32 v2, {STAMP_OFF + pw*128 + (pb % 10)*8 + 4}
s_waitcnt lgkmcnt(0)
global_load_dword v3, v1, s[4:5]
global_load_dword v4, v2, s[4:5]
s_waitcnt vmcnt(0)
{"v_mov_b32 v4, s8" if pb == 99 else ""}
v_sub_u32 v3, v4, v3
s_nop 1
v_readfirstlane_b32 s6, v3
s_nop 3
s_min_u32 s6, s6, 20000
s_mul_i32 s6, s6, {M}
Lp_loop:
s_memrealtime s[10:11]
s_waitcnt lgkmcnt(0)
s_sub_u32 s12, s10, s8
s_cmp_lt_u32 s12, s6
s_cbranch_scc1 Lp_loop
Lp_end:
s_endpgm""")
        return hdr + file_text([k, dict(name="probe_kernel", grid=1, block=64, lds=0, body=pr, vgpr=8, agpr=0)])
    txt = file_text([k]).replace(f"@launch kernel={NAME}_kernel ", "@launch ")
    return hdr + txt
if __name__ == "__main__":
    kw = {}
    for x in sys.argv[2:]:
        k, v = x.split("="); kw[k] = int(v)
    open(sys.argv[1], "w").write(gen(**kw))
```

```python
import sys, struct, math, os
from asmlib import *
import hazard

WS_A, WS_I, WS_CS, WS_ST, WS_SIZE = 0, 0x1400000, 0x1C00000, 0x1C80000, 0x1D00000
def f2u(x): return hex(struct.unpack("<I", struct.pack("<f", x))[0])
LOG2E = 1.4426950408889634
GA1 = -2.0*LOG2E*math.sqrt(2.0/math.pi); GA3 = GA1*0.044715
W_OFF = 32768
STAGE = 73728
MB = 2*STAGE
MB_AOS, MB_NM, MB_RS = MB + 10240, MB + 14336, MB + 15360
CSS = 65536
KVX = 67584
RING2 = 81920
KVF = STAGE + 16384
STRM = 144*2048
SPIN = 0x20000
BIG = 0x7ff00000

def cls(i):
    n = i.split()[0]
    if n.endswith(":"): return -1
    if n.startswith("s_"): return 0
    if n.startswith(("ds_", "buffer_", "global_")): return 1
    return 2
def emit(a, mfmas, slots):
    for i in range(-1, len(mfmas)):
        if i >= 0: a(mfmas[i])
        items = slots.get(i, [])
        if any(cls(x) < 0 or "exec" in x or "cbranch" in x for x in items): a.extend(items)
        else: a.extend(sorted(items, key=cls))
def spread(slots, items, lo, hi):
    n = len(items)
    for i, x in enumerate(items):
        p = lo + (i*(hi - lo + 1))//max(n, 1)
        slots[p].extend(x if isinstance(x, list) else [x])
def vcost(x): return 2 if x.startswith(("v_exp", "v_rcp", "v_rsq")) else 1
def fillv(gaps, items):
    used = [sum(vcost(y) for y in g if cls(y) > 0) for g in gaps]
    tot = sum(used) + sum(vcost(x) for x in items)
    if tot <= 1.8*len(gaps):
        p = 0
        for x in items:
            while p < len(gaps) - 1 and used[p] + vcost(x) > 2: p += 1
            used[p] += vcost(x); gaps[p].append(x)
        return
    rate = tot/len(gaps); cum = 0; k = 0
    for p, g in enumerate(gaps):
        cum += used[p]
        while k < len(items) and (cum + vcost(items[k])/2 <= rate*(p+1) or p == len(gaps) - 1):
            g.append(items[k]); cum += vcost(items[k]); k += 1
def resolve(lines, paths):
    best = {}
    for path in paths:
        n = 0; pos = {}
        for i in path:
            l = lines[i].strip()
            if l.startswith(("buffer_", "global_")):
                n += 1
                if ";@" in l:
                    for t in l.split(";@")[1].split(","): pos[t.strip()] = n
            elif l.startswith("s_waitcnt @"):
                tags = [t for t in l.split()[1][1:].split(",") if t in pos]
                c = n - max(pos[t] for t in tags) if tags else 63
                best[i] = min(best.get(i, 63), c)
    for i, c in best.items():
        w = lines[i].split()
        lines[i] = "    " + " ".join([w[0], f"vmcnt({c})"] + w[2:])
    assert not any("s_waitcnt @" in l for l in lines)
class VM:
    def __init__(self, a): self.a = a; self.n = 0
    def __call__(self, s):
        self.a(s); self.n += 1; return self.n
    def wait(self, tag): self.a(f"s_waitcnt vmcnt({self.n - tag})")
def P(r): return f"v[{r}:{r+1}]"
SETS = {0: ["start", "loop", "e0", "k2", "s", "fin", "end"],
        2: ["k2", "t4", "t8", "t12", "t16", "t25", "s"],
        3: ["start", "karg", "addr", "zero", "dma", "loop", "i1"],
        4: ["loop", "i1", "i2", "i4", "i6", "s14", "e0"],
        1: ["i5", "s14"], 10: ["loop", "s0m", "s0e", "i1", "i2"], 11: ["i4", "s8m", "i5", "s14", "s14m", "s15", "e0"],
        8: ["t7", "t8", "t9", "t10", "t11", "t12", "t13"],
        9: ["k2", "t1", "t2", "t3", "t4", "t5", "t6"],
        7: ["t16", "t20", "t22", "t24", "t26", "t28", "t30"],
        6: ["s", "t32", "t33", "t34", "fin", "fs", "end"],
        5: ["e0", "b1", "w1d", "b2", "chk", "chkd", "k2"]}

def gen(**kw):
    o = dict(stamps=0, stw=2, ev=5, dst=18, od=1, sq=0, cpf=2, npf0=1, nd0=2, d0s=16, d0e=3, ax0=72, lb0=40, spf=0, pfb=0, dsb=4, evb=5, axb=24, ts=10, te=10, xl=0, nm=0, lba=0, npf1=2, zper=12, slp=8, pfd=0, pfp=1, rp=2, pf2p=3, inp=4, csp=8, atp=6,
             pf2s=8, rs=2, sh=4, ctm=1, nin=80, s7e=20, pl=4, opoll=21, pro=1, ax=44, early=2, cpq=50, nw=4, tw=8, bs=0, na=2, cpt=99, tj=3, tg=10, nsA=12, nsB=13, fB=1, pf3=0, pB=4, cB=7, fA=3, pA=8, cA=15)
    o.update(kw)
    a = Asm(); ool = Asm(); near = Asm(); st = Stamps(o["stamps"], 74, 0)
    sset = SETS[o["sq"]]
    def stamp(tag, w=False):
        if tag in sset and o["stamps"]:
            st.n = sset.index(tag); st.stamp(a)
            if w: a("s_waitcnt lgkmcnt(0)")
    SX, SQ, SG, SW, SD, SO, SOUT, SP, SP2, SI, SU = 8, 12, 16, 24, 28, 32, 36, 40, 44, 48, 64
    V_XV, V_WV, V_XR, V_WR, V_PF, V_PF2, V_CSO = 8, 16, 22, 26, 32, 33, 34
    V_T, V_CSA, V_SEL, V_SENT = 36, 40, 44, 4
    V_ACC = 48; A_X = 0; A_W = 64; A_ACC = 144
    def S(d): return f"s[{d}:{d+3}]"
    def fin(d, size): a(f"s_mov_b32 s{d+2}, {size}\ns_mov_b32 s{d+3}, 0x20000")
    def accb(tb, cb):
        i = cb*8 + tb
        return ("v", V_ACC + 4*i) if i < 52 else ("a", A_ACC + 4*(i-52))
    def acc(tb, cb):
        p, b = accb(tb, cb); return vr(b, 4, p)
    def xf(tb, ks): return ar(A_X + (tb*2+ks)*4, 4)
    def wfb(cb, ks): return A_W + (cb*2+ks)*4
    spn = {}
    def spin_ool(name, cmp, reload):
        k = spn.setdefault(name[:4] if name[:4] in ("L_b1", "L_b2", "L_in") else name, len(spn) + 1)
        ool(f"{name}_s:")
        if o.get("cnt"):
            ool(f"s_bitset1_b32 s101, {k}")
        ool(f"s_mov_b32 s0, 0\n{name}_l:\ns_sleep {o['slp']}\n{reload}\ns_waitcnt vmcnt(0)\n{cmp}\ns_add_u32 s0, s0, 1\ns_cmp_ge_u32 s0, {SPIN}\ns_cbranch_scc1 {name}_d\ns_nop 1\ns_cbranch_vccnz {name}_l\ns_branch {name}_d")
    def spin(name, cmp, reload):
        a(cmp + f"\ns_nop 3\ns_cbranch_vccnz {name}_s\n{name}_d:")
        spin_ool(name, cmp, reload)

    a("s_cmp_ge_u32 s2, 256\ns_cbranch_scc1 L_end")
    stamp("start")
    a(f"s_load_dwordx2 s[{SX}:{SX+1}], s[0:1], 0\ns_load_dwordx2 s[{SQ}:{SQ+1}], s[0:1], 8\ns_load_dwordx2 s[{SG}:{SG+1}], s[0:1], 32\ns_load_dwordx2 s[{SU}:{SU+1}], s[0:1], 40")
    a("v_lshrrev_b32 v1, 6, v0\nv_and_b32 v2, 63, v0\ns_lshr_b32 s58, s2, 3")
    n0 = 0
    if o["cpf"]:
        a("s_getpc_b64 s[72:73]\nL_pc:\nv_min_u32 v3, 15, v2\nv_mad_u32_u24 v4, v1, 9, v3\nv_mad_u32_u24 v5, v1, 7, v3\ns_mul_i32 s6, s58, 28\nv_cmp_ne_u32 vcc, 0, v1")
        a("s_bitcmp1_b32 s2, 5\ns_cselect_b32 s7, (L_tB-L_tA)/128-3, 0\nv_mov_b32 v6, s7\nv_add_u32 v5, s6, v5\nv_cndmask_b32 v6, 0, v6, vcc\nv_cmp_gt_u32 vcc, 7, v3\nv_add3_u32 v4, v4, v6, -7")
        a("v_cndmask_b32 v4, v4, v5, vcc\nv_lshlrev_b32 v4, 7, v4\nv_min_u32 v4, L_cend-L_pc-4, v4")
        a("global_load_dword v0, v4, s[72:73]")
    a("v_readfirstlane_b32 s3, v1\nv_lshlrev_b32 v1, 4, v2")
    a(f"s_load_dwordx2 s[{SW}:{SW+1}], s[0:1], 72\ns_load_dwordx2 s[{SD}:{SD+1}], s[0:1], 48\ns_load_dwordx2 s[{SO}:{SO+1}], s[0:1], 16")
    a(f"s_load_dwordx2 s[{SOUT}:{SOUT+1}], s[0:1], 56\ns_load_dwordx2 s[62:63], s[0:1], 64")
    a("s_bfe_u32 s60, s2, 0x20001\ns_lshr_b32 s6, s2, 5\ns_lshl3_add_u32 s4, s60, s6")
    a("s_and_b32 s23, s2, 1\ns_bfe_u32 s6, s2, 0x20003\ns_lshl2_add_u32 s5, s23, s6\ns_lshl_b32 s23, s23, 3")
    a("s_lshr_b32 s52, s3, 1\ns_and_b32 s53, s3, 1")
    a("s_cmp_eq_u32 s3, 0\ns_cbranch_scc1 L_pf0\ns_cmp_eq_u32 s3, 1\ns_cbranch_scc1 L_pf1")
    a(f"s_mov_b32 s{SP+2}, {1024*3584*2}\ns_mov_b32 s59, {64*7168}")
    a("v_min_u32 v3, 27, v2\nv_cmp_le_u32 vcc, 14, v3\ns_lshl_b32 s6, s58, 1\ns_mul_i32 s7, s60, 1792\nv_cndmask_b32 v4, 0, 1, vcc\nv_mul_u32_u24 v5, 14, v4\nv_sub_u32 v5, v3, v5")
    a("v_add_u32 v4, s6, v4\nv_lshl_add_u32 v5, v5, 7, s7\ns_movk_i32 s57, 7168")
    a(f"v_mad_u32_u24 v{V_PF}, v4, s57, v5\ns_waitcnt lgkmcnt(0)\ns_cmp_eq_u32 s3, 2\ns_cselect_b32 s{SP}, s{SG}, s{SU}\ns_cselect_b32 s{SP+1}, s{SG+1}, s{SU+1}\ns_branch L_pfd")
    a("L_pf1:")
    a(f"s_mov_b32 s{SP+2}, {1024*3072*2}\ns_mov_b32 s59, {64*6144}")
    a("v_min_u32 v3, 23, v2\nv_cmp_le_u32 vcc, 12, v3\ns_lshl_b32 s6, s58, 1\ns_lshl_b32 s7, s60, 9\nv_cndmask_b32 v4, 0, 1, vcc\nv_mul_u32_u24 v5, 12, v4\nv_sub_u32 v5, v3, v5")
    a("v_add_u32 v4, s6, v4\nv_lshrrev_b32 v6, 2, v5\nv_and_b32 v5, 3, v5\nv_lshl_add_u32 v5, v5, 7, s7\nv_lshl_add_u32 v5, v6, 11, v5\ns_movk_i32 s57, 6144")
    a(f"v_mad_u32_u24 v{V_PF}, v4, s57, v5\ns_waitcnt lgkmcnt(0)\ns_mov_b32 s{SP}, s{SQ}\ns_mov_b32 s{SP+1}, s{SQ+1}\ns_branch L_pfd")
    a("L_pf0:")
    a(f"s_mov_b32 s{SP+2}, {2048*1024*2}\ns_mov_b32 s59, 128")
    a(f"s_lshl2_add_u32 s6, s23, s58\ns_lshl_b32 s6, s6, 5\nv_min_u32 v4, 31, v2\nv_add_u32 v4, s6, v4\nv_lshlrev_b32 v{V_PF}, 11, v4")
    a(f"s_waitcnt lgkmcnt(0)\ns_mov_b32 s{SP}, s{SX}\ns_mov_b32 s{SP+1}, s{SX+1}")
    a("L_pfd:")
    a(f"s_mov_b32 s{SP+3}, 0x20000\ns_mul_i32 s58, s23, s59")
    stamp("karg", True)
    PFA = [f"s_add_u32 s58, s23, {o['pfd'] + 1}", f"s_and_b32 s58, s58, {o.get('kmask', 15)}", "s_mul_i32 s58, s58, s59"]
    PFI = f"buffer_load_dword v0, v{V_PF}, {S(SP)}, s58 offen"
    for i in range(o["npf0"]): a(PFI); a("s_add_u32 s58, s58, s59")
    def sload(lo, hi):
        for i in range(lo, hi):
            a(f"s_load_dword s73, s[{SP}:{SP+1}], s44")
            a(f"s_add_u32 s44, s44, s{45 if i % 4 < 3 else 46 if i % 16 < 15 else 47}")
    if o["spf"]:
        a(f"v_readfirstlane_b32 s44, v{V_PF}\ns_movk_i32 s47, 2048\ns_cmp_eq_u32 s3, 0\ns_cselect_b32 s45, s47, 128\ns_cselect_b32 s46, s47, 128\ns_cselect_b32 s47, s47, {7168 - 1920}\ns_cmp_eq_u32 s3, 1\ns_cselect_b32 s46, {2048 - 384}, s46\ns_cselect_b32 s47, {2048 - 384}, s47\ns_add_u32 s44, s44, s58")
        sload(0, o["spf"])
    fin(SG, 1024*3584*2); fin(SU, 1024*3584*2); fin(SX, 2048*1024*2); fin(SQ, 1024*3072*2)
    a(f"s_lshl_b32 s20, s23, 7\ns_mul_i32 s21, s23, {64*6144}\ns_mul_i32 s22, s23, {64*7168}")
    a(f"s_lshl_b32 s54, s3, 13\ns_lshl_b32 s55, s3, 11\ns_add_u32 s55, s55, {W_OFF}\ns_lshl_b32 s56, s3, 10\ns_add_u32 s56, s56, {W_OFF + 32768}")
    a("s_lshl_b32 s6, s5, 8\ns_lshl_b32 s7, s3, 6\ns_add_u32 s6, s6, s7")
    a("v_lshrrev_b32 v3, 3, v2\nv_add_u32 v7, s6, v3\nv_lshlrev_b32 v7, 11, v7\nv_lshrrev_b32 v4, 4, v2\nv_and_b32 v5, 7, v2")
    for c in range(2):
        a(f"v_add_u32 v6, {4*c}, v4\nv_xor_b32 v6, v6, v5\nv_lshl_add_u32 v6, v6, 4, v7")
        for cc in range(c, 8, 2): a(f"v_add_u32 v{V_XV+cc}, {cc*8*2048}, v6")
    a("s_lshl_b32 s6, s52, 5\ns_lshl2_add_u32 s61, s53, s6")
    a("v_and_b32 v3, 3, v3\nv_lshrrev_b32 v6, 5, v2\nv_lshl_add_u32 v3, v6, 3, v3\nv_add_u32 v3, s61, v3")
    a("v_lshlrev_b32 v6, 1, v4\nv_xor_b32 v5, v5, v6\nv_lshlrev_b32 v5, 4, v5")
    a("s_lshr_b32 s0, s4, 1\ns_and_b32 s1, s0, 1\ns_mul_i32 s6, s0, 448\ns_movk_i32 s57, 7168")
    a("s_bitcmp1_b32 s2, 5\ns_cbranch_scc1 L_tB")

    def dma_list(ty, stage):
        b = stage*STAGE
        xs = [(f"s_add_u32 m0, s54, {b + c*1024}", f"buffer_load_dwordx4 v{V_XV+c}, {S(SX)}, s20 offen lds") for c in range(8)]
        def w(u, c, reg, srd, so, off=0):
            return (f"s_add_u32 m0, s55, {b + u*8192 + c*1024 - off}", f"buffer_load_dwordx4 v{reg}, {S(srd)}, s{so} offen{f' offset:{off}' if off else ''} lds")
        if ty == 0:
            ws = [w(u, c, V_WV+c, (SG, SU)[u], 22) for u in range(2) for c in range(2)]
            ws += [w(2, c, V_WV+2+c, SQ, 21) for c in range(2)] + [w(3, c, V_WV+2+c, SQ, 21, 2048) for c in range(2)] + [w(4, c, V_WV+4+c, SQ, 21) for c in range(2)]
        else:
            ws = [w(2*h+u, c, V_WV+c, (SG, SU)[u], 22, 128*h) for u in range(2) for c in range(2) for h in range(2)]
            ws += [(f"s_add_u32 m0, s56, {b + u*4096}", f"buffer_load_dwordx4 v{V_WV+2}, {S((SG, SU)[u])}, s22 offen lds") for u in range(2)]
        od = o.get("od", 0)
        if od == 1: return xs + ws
        if od == 2: return [y for p in zip(xs, ws) for y in p] + ws[8:]
        return ws + xs
    adv = ["s_add_u32 s23, s23, 1", f"s_and_b32 s23, s23, {o.get('kmask', 15)}", f"s_mul_i32 s22, s23, {64*7168}", f"s_mul_i32 s21, s23, {64*6144}", "s_lshl_b32 s20, s23, 7"]
    EV, ST0 = o["ev"], o["dst"]
    dpos = [ST0 + EV*i for i in range(18)]
    dpos = [p + 1 if p == 80 else p for p in dpos]
    n3 = sum(1 for p in dpos if p < 80)
    BL = [[("g", 0, 0), ("u", 1, 0), ("g", 0, 1), ("u", 1, 1), ("q", 2, 0), ("q", 2, 1), ("k", 3, 0), ("k", 3, 1), ("v", 4, 0), ("v", 4, 1)],
          [("g", 0, 0), ("u", 1, 0), ("g", 0, 1), ("u", 1, 1), ("h", 0, 2), ("h", 1, 2), ("g", 2, 0), ("u", 3, 0), ("g", 2, 1), ("u", 3, 1)]]
    def xread(stage, tb, ks): return f"ds_read_b128 {xf(tb, ks)}, v{V_XR + stage*2 + ks} offset:{tb*2048}"
    def wread(ty, stage, cb):
        t, u, i = BL[ty][cb]; L = []
        for ks in range(2):
            for rd in range(2):
                row = 32*ks + 16*rd
                off = u*4096 + row*64 if t == "h" else u*8192 + row*128
                L.append(f"ds_read_b64_tr_b16 {ar(wfb(cb, ks)+2*rd, 2)}, v{V_WR + 2*i + stage} offset:{off}")
        return L
    def mfmas(ty, half, first=False):
        L = []
        for cb, (t, u, i) in enumerate(BL[ty]):
            for n, tb in enumerate(range(4*half, 4*half+4)):
                for ks in ((0, 1) if n % 2 == 0 else (1, 0)):
                    x, w = xf(tb, ks), ar(wfb(cb, ks), 4)
                    A, B = (x, w) if t in "kv" else (w, x)
                    L.append(f"v_mfma_f32_16x16x32_bf16 {acc(tb, cb)}, {A}, {B}, {0 if first and ks == n % 2 else acc(tb, cb)}")
        return L
    V_BV = 8
    def n0(T): return [0, 2, 12, 8][T & 3] + 14*(T >> 2) if T < 16 else 7*(T-16) + 4 - (T & 1) if T < 24 else 14*(T-24) + 6
    def bdma(slot, ph, base=0):
        s_, so = (S(SD) if ph == "f" else S(SO)), 15
        return [(f"s_add_u32 m0, s18, {base + slot*16384 + c*1024}", f"buffer_load_dwordx4 v{V_BV+c}, {s_}, s{so} offen lds") for c in range(4)]
    def put(slots, dm):
        for pre, m, d, p in dm:
            for k, x in enumerate(pre): slots[p - 1 - len(pre) + k].append(x)
            slots[p-1].append(m); slots[p].append(d)
    def atomic(off):
        return f"v_mov_b32 v{V_SEL}, {off}\nv_mov_b32 v{V_SEL+1}, 1\ns_mov_b64 exec, 1\nglobal_atomic_add v{V_SEL}, v{V_SEL+1}, s[62:63] sc1\ns_mov_b64 exec, -1"
    def fill(slots, items, lo, hi):
        p = lo
        for x in items:
            x = x if isinstance(x, list) else [x]
            while True:
                assert p <= hi, "no room"
                nv = sum(cls(y) > 0 for y in slots[p]); ns_ = sum(cls(y) == 0 for y in slots[p])
                if ns_ + len(x) <= (3 if nv == 0 else 1) and not any("m0" in y or "waitcnt" in y for y in slots[p]): break
                p += 1
            slots[p].extend(x)
    def putds(slots, items, pos, hi):
        last = -1
        for x, p in zip(items, pos):
            p = max(p, last + 1)
            q = p
            while q <= hi and any(cls(y) > 0 for y in slots[q]): q += 1
            if q > hi or q > p + 2: q = p
            slots[q].append(x); last = q
    uid = [0]
    def cond(cmp, body, neg=False):
        uid[0] += 1
        return cmp + [f"s_cbranch_scc{1 if neg else 0} L_c{uid[0]}"] + body + [f"L_c{uid[0]}:"]
    def phase1(ty, stage, kind, dm):
        slots = {i: [] for i in range(-1, 80)}
        slots[-1].append("s_waitcnt lgkmcnt(4)")
        put(slots, dm)
        if kind == "s14": slots[2].append("global_load_dword v3, v35, s[62:63] sc1")
        xb = [xread(stage, tb, ks) for tb in range(4, 8) for ks in range(2)]
        lastd = max([x[3] for x in dm] + [0])
        if kind == "s0":
            for cb in range(8):
                gp = sorted(sorted(range(8*cb, 8*cb+7), key=lambda q: any(cls(y) > 0 for y in slots[q]))[:5])
                for q, x in zip(gp, wread(ty, 0, cb+2) + [xb[cb]]): slots[q].append(x)
                assert len(gp) == 5
                slots[8*cb+7].append("s_waitcnt lgkmcnt(5)")
            slots[71].append("s_waitcnt lgkmcnt(0)")
        elif kind == "s8":
            putds(slots, wread(ty, stage, 9) + xb, [8 + 2*i for i in range(12)], 40)
            slots[63].append("s_waitcnt lgkmcnt(0)")
        else:
            putds(slots, wread(ty, stage, 9) + xb, [1 + 3*i for i in range(12)], 40)
            slots[63].append("s_waitcnt lgkmcnt(0)")
        if kind in ("s0", "la", "s8", "lb"):
            ax = {"s0": o["ax0"], "lb": o["axb"]}.get(kind, o["ax"])
            assert ax > lastd
            if o["pfb"] or kind in ("s0", "la"):
                fill(slots, PFA, 0, ax - 1)
                slots[ax].append(PFI)
            if kind in ("lb", "s8"):
                slots[ax+3].append(f"buffer_load_dword v0, v{V_PF2}, {S(SP2)}, s60 offen"); slots[ax+4].append("s_add_u32 s60, s60, 1664")
            elif kind == "s0" and o.get("nor0"): slots[ax+2].append(f"buffer_load_dword v0, v1, {S(SX)}, 0 offen")
            elif stage == 0:
                slots[ax+1].append("s_mov_b32 m0, s0"); slots[ax+2].append(f"buffer_load_dwordx4 v1, {S(SX)}, s1 offen lds")
                slots[ax+3].extend(["s_add_u32 s0, s0, 1024", "s_add_u32 s1, s1, 1024"])
            else:
                slots[ax+3].append(f"buffer_store_dwordx4 {vr(V_SENT, 4)}, v1, {S(SI)}, s61 offen sc1"); slots[ax+4].append("s_add_u32 s61, s61, 1024")
            fill(slots, adv, max(64, lastd + 1), 77)
        if kind in ("s0", "la"):
            for r in range(4): slots[66 + 2*r].append(f"v_mov_b32 v{V_SEL+r}, v35")
            ret = 1 if kind == "s0" else 2 + stage
            slots[62].append(f"s_mov_b32 s72, {ret}")
            slots[78].append("s_cmp_eq_u32 s57, s68")
            slots[79].extend([f"s_cbranch_scc1 L_cs{ty}", f"L_cs{ty}_d{ret}:"])
        if kind == "s8":
            slots[-1].extend([f"buffer_store_dwordx4 {vr(V_CSA, 4)}, v{V_CSO}, {S(SW)}, s69 offen sc1", "v_add_u32 v3, s0, v1"])
            DR = [V_T, V_SEL, V_CSA]
            for i in range(3): slots[i].append(f"ds_read_b128 {vr(DR[i], 4)}, v3 offset:{1024*i}")
            fill(slots, ["s_lshr_b32 s0, s2, 5", "s_mul_i32 s0, s0, 6144", f"s_add_u32 s0, s0, {WS_ST}", "s_and_b32 s7, s2, 31", "s_lshl2_add_u32 s7, s7, s3", "s_lshl3_add_u32 s1, s7, s0", "s_add_u32 s1, s1, 4096", "s_lshl_b32 s7, s7, 5", "s_add_u32 s0, s0, s7"], 8, 60)
            slots[7].append("s_waitcnt lgkmcnt(0)")
            def chunk(i):
                r = i >> 1; vv = []
                for q in range(4):
                    x = DR[i % 3] + q; f = (i & 1) == 0 and q == 0
                    vv += [f"v_lshlrev_b32 v34, 16, v{x}", f"v_and_b32 v{x}, 0xffff0000, v{x}"]
                    vv += [f"v_add_f32 v{4+r}, v34, v{x}", f"v_mul_f32 v{6+r}, v34, v34"] if f else [f"v_add_f32 v{4+r}, v{4+r}, v34", f"v_fmac_f32 v{6+r}, v34, v34", f"v_add_f32 v{4+r}, v{4+r}, v{x}"]
                    vv += [f"v_fmac_f32 v{6+r}, v{x}, v{x}"]
                return vv
            fillv([slots[i] for i in range(7, 19)], chunk(0))
            slots[19].append(f"ds_read_b128 {vr(DR[0], 4)}, v3 offset:3072")
            fillv([slots[i] for i in range(19, 42)], chunk(1) + chunk(2))
            slots[42].append("s_waitcnt lgkmcnt(0)")
            fillv([slots[i] for i in range(42, 53)], chunk(3))
            seq = [["v_lshrrev_b32 v46, 3, v2", "v_lshrrev_b32 v47, 1, v2"], ["v_permlane32_swap_b32 v4, v5", "v_permlane32_swap_b32 v6, v7"], ["v_add_f32 v4, v4, v5", "v_add_f32 v6, v6, v7"],
                   [f"v_mov_b32 v45, {f2u(1.0/1024)}"], ["v_permlane16_swap_b32 v4, v6", "v_add_f32 v4, v4, v6"]]
            seq += [["s_nop 0", f"v_add_f32_dpp v4, v4, v4 row_ror:{sh} row_mask:0xf bank_mask:0xf"] for sh in (8, 4, 2, 1)]
            seq += [["v_mov_b32 v6, v4"], ["s_nop 0", "v_permlane16_swap_b32 v4, v6", f"v_mul_f32 v36, {f2u(-1.0/1024)}, v4"], ["v_mul_f32 v44, v36, v36", "v_fma_f32 v44, v6, v45, -v44"],
                    ["v_max_f32 v44, 0, v44", f"v_add_f32 v39, {f2u(1e-5)}, v44"], ["v_rsq_f32 v44, v39"], [f"v_mul_f32 v37, {f2u(GA1)}, v44", "v_mul_f32 v45, v44, v44"],
                    [f"v_mul_f32 v38, {f2u(0.044715)}, v37", "v_mul_f32 v38, v38, v45"], ["v_mov_b64 v[4:5], -1", "v_mov_b64 v[6:7], -1"]]
            for i, x in enumerate(seq): slots[53 + i].extend(x)
            for i, x in enumerate([f"buffer_store_dwordx4 v[36:39], v47, {S(SW)}, s0 offen sc1", f"buffer_store_dword v36, v46, {S(SW)}, s1 offen sc1", f"buffer_store_dword v44, v46, {S(SW)}, s1 offen offset:1024 sc1"]):
                slots[72 + 3*i].extend(["s_mov_b64 exec, s[72:73]", x, "s_mov_b64 exec, -1"])
            slots[4].extend(["s_mov_b32 s72, 1", "s_mov_b32 s73, 1"])
        if kind == "s14":
            slots[0].extend(["v_and_b32 v35, 1, v2", "v_lshlrev_b32 v35, 7, v35"])
            nm = f"L_ini{ty}"; cmp = "v_cmp_gt_u32 vcc, 0x80, v3"
            slots[41].append(f"s_waitcnt vmcnt({sum(1 for x in dm if x[3] > 2)})"); slots[42].append(cmp)
            slots[44].extend([f"s_cbranch_vccnz {nm}_s", f"{nm}_d:"])
            spin_ool(nm, cmp, "global_load_dword v3, v35, s[62:63] sc1")
            ss = ["s_mul_i32 s6, s4, 10240", f"s_add_u32 s6, s6, {WS_CS}", "s_mul_i32 s7, s5, 6144", f"s_add_u32 s7, s7, {WS_ST - 10240}", "s_lshl_b32 s18, s3, 12", "s_add_u32 s6, s6, s18", "s_add_u32 s7, s7, s18",
                  ["s_cmp_lt_u32 s3, 3", "s_cselect_b32 s58, s6, s7"], ["s_cmp_lt_u32 s3, 2", "s_cselect_b32 s59, s6, s7"], f"s_mov_b32 s{SI+2}, 8192", "s_movk_i32 s61, 4096"]
            fill(slots, ss, lastd + 1, 43)
            slots[45].append(f"s_add_u32 m0, s18, {MB}")
            for c in range(4): slots[46 + 3*c].append(f"buffer_load_dwordx4 v1, {S(SW)}, s{58 + (c >> 1)} offen offset:{c*1024} sc1 lds")
            vv = ["v_lshrrev_b32 v12, 3, v2", "v_bfe_u32 v13, v2, 4, 2", "v_lshlrev_b32 v13, 1, v13", "v_and_b32 v14, 7, v2", "v_xor_b32 v14, v14, v13",
                  "v_lshlrev_b32 v14, 4, v14", f"v_lshl_add_u32 v{V_BV}, v12, 11, v14"] + [f"v_add_u32 v{V_BV+c}, {16384*c}, v{V_BV}" for c in range(1, 4)]
            for i, x in enumerate(vv): slots[66 + i].append(x)
            for c in range(4): slots[59 + 5*c].append(f"buffer_store_dwordx4 {vr(V_SENT, 4)}, v1, {S(SI)}, s61 offen offset:{c*1024} sc1")
            if o["cpf"] > 1:
                q = o["cpq"]
                slots[q].extend(["s_getpc_b64 s[72:73]", f"L_pd{ty}:", f"s_sub_u32 s72, s72, L_pd{ty}-L_pc", "s_subb_u32 s73, s73, 0"])
                slots[q+1].extend(["s_lshr_b32 s0, s2, 3", "s_lshl2_add_u32 s0, s0, s3", "s_mul_i32 s0, s0, 7"])
                slots[q+2].extend(["v_min_u32 v36, 6, v2", "v_add_lshl_u32 v36, v36, s0, 7"])
                slots[q+3].append("v_min_u32 v36, L_cend-L_pc-4, v36")
                slots[57].append("global_load_dword v0, v36, s[72:73]")
            ss = ["s_bfe_u32 s20, s2, 0x10002", "s_and_b32 s6, s2, 1", "s_bfe_u32 s7, s2, 0x10001", "s_lshl1_add_u32 s6, s6, s7", "s_lshr_b32 s7, s2, 6", "s_lshl2_add_u32 s21, s6, s7",
                  "s_bfe_u32 s22, s2, 0x20003", "s_bfe_u32 s7, s2, 0x10005", "s_lshl1_add_u32 s22, s22, s7", "s_lshl_b32 s22, s22, 8",
                  f"s_mul_i32 s14, s20, {1792*2048}", "s_add_u32 s14, s14, s22", "s_xor_b32 s6, s53, s20", "s_lshl_b32 s6, s6, 7", "s_add_u32 s14, s14, s6",
                  "s_lshl_b32 s15, s52, 16", "s_add_u32 s14, s15, s14", "s_mov_b32 s15, s14"]
            fill(slots, ss, 47, 78)
        if kind == "s15":
            slots[0].extend([f"s_waitcnt vmcnt({o['n14']})", "s_barrier"])
            slots[2].extend(["s_mul_i32 s6, s3, 320", "v_lshl_add_u32 v12, v2, 3, s6"])
            slots[5].append(f"v_add_u32 v13, {MB}, v12"); slots[6].append(f"v_add_u32 v12, {CSS}, v12")
            putds(slots, [f"ds_read_b64 v[{32+2*r}:{33+2*r}], v13 offset:{r*1280}" for r in range(8)], range(37, 45), 50)
            slots[54].append("s_waitcnt lgkmcnt(0)")
            fillv([slots[i] for i in range(54, 64)], [f"v_add_f32 v{32+i}, v{32+i}, v{32+stp+i}" for stp in (8, 4, 2) for i in range(stp)])
            slots[65].append("ds_write_b64 v12, v[32:33]")
            vv = ["v_and_b32 v44, 15, v2", "v_lshrrev_b32 v45, 4, v2", "v_lshlrev_b32 v4, 11, v44", "v_add_u32 v44, s7, v44", "v_lshlrev_b32 v44, 4, v44", f"v_add_u32 v44, {MB_AOS}, v44",
                  "v_lshl_add_u32 v4, v45, 4, v4", "v_lshl_add_u32 v45, v45, 4, s64", "v_add_u32 v5, 32768, v4",
                  "v_bfe_u32 v46, v2, 1, 3", "v_bfe_u32 v47, v2, 4, 1", "v_lshl_or_b32 v46, v46, 4, v47", "v_and_b32 v47, 1, v2", "v_lshl_or_b32 v46, v46, 2, v47", "v_lshlrev_b32 v46, 14, v46", "v_mov_b32 v3, 1",
                  "v_lshrrev_b32 v7, 2, v2", "v_lshlrev_b32 v7, 7, v7", "v_and_b32 v6, 3, v2", "v_lshl_add_u32 v7, v6, 3, v7", "v_bfe_u32 v6, v2, 3, 2", "v_lshl_add_u32 v7, v6, 5, v7"]
            fillv([slots[i] for i in range(66, 80)], vv)
            ss = ["s_lshl_b32 s7, s53, 7", "s_mul_i32 s64, s52, 640", f"s_add_u32 s64, s64, {CSS}",
                  "s_lshl1_add_u32 s0, s5, s53", f"s_mul_i32 s1, s0, {4*STRM}", "s_lshr_b32 s6, s4, 4", "s_mul_i32 s48, s6, 56", "s_add_u32 s48, s48, 32", "s_and_b32 s56, s4, 15",
                  "s_lshl1_add_u32 s41, s56, s52", "s_add_u32 s40, s41, s48", "s_lshl_b32 s40, s40, 11", "s_add_u32 s40, s40, s1"]
            if ty == 0:
                ss += ["s_add_u32 s41, s4, s52", "s_lshl_b32 s44, s41, 11", "s_add_u32 s44, s44, s1"]
            else:
                ss += ["s_add_u32 s41, s56, s52", "s_sub_u32 s41, s41, 1", "s_add_u32 s44, s41, s48", "s_add_u32 s44, s44, 32", "s_lshl_b32 s44, s44, 11", "s_add_u32 s44, s44, s1",
                       "s_lshl1_add_u32 s48, s48, s41", "s_add_u32 s48, s48, 96", "s_lshl_b32 s48, s48, 10", "s_add_u32 s48, s48, s1"]
            for b in (40, 44, 48)[:2+ty]:
                for i in range(1, 4): ss.append(f"s_add_u32 s{b+i}, s{b}, {i*STRM}")
            ss += ["s_bfe_u32 s58, s21, 0x20001", "s_lshr_b32 s59, s21, 3", "s_lshl3_add_u32 s58, s58, s59", "s_and_b32 s59, s21, 1", "s_lshl2_add_u32 s58, s58, s59",
                   "s_lshl4_add_u32 s59, s20, s58", "s_lshl3_add_u32 s69, s3, s58", "s_lshl_b32 s59, s59, 13", "s_lshl_b32 s69, s69, 13", f"s_add_u32 s59, s59, {WS_I}", f"s_add_u32 s69, s69, {WS_I}",
                   "s_lshl_b32 s60, s53, 22", "s_lshl_b32 s0, s52, 16", "s_add_u32 s60, s60, s0", "s_add_u32 s60, s60, s59", f"s_add_u32 s60, s60, {1 << 20}",
                   "s_lshl2_add_u32 s19, s21, s3", f"s_mul_i32 s13, s19, {STRM}", f"s_mul_i32 s12, s20, {56*2048}", "s_add_u32 s12, s12, s13", f"s_add_u32 s12, s12, {32*2048}",
                   "s_lshl_b32 s0, s20, 7", "s_add_u32 s0, s0, s22", "s_lshl_b32 s19, s19, 16", "s_add_u32 s19, s19, s0", "s_lshl_b32 s17, s3, 16", "s_add_u32 s17, s17, s0",
                   "s_lshl2_add_u32 s61, s2, s3", "s_lshl_b32 s61, s61, 13", f"s_xor_b32 s65, s61, {16*8192}", f"s_add_u32 s54, s61, {WS_I}", f"s_add_u32 s55, s65, {WS_I}", f"s_add_u32 s61, s61, {WS_I + 4096}", f"s_add_u32 s65, s65, {WS_I + 4096}",
                   f"s_mov_b32 s68, {f2u(1e-6)}", f"s_mov_b32 s56, {f2u(LOG2E)}"]
            fill(slots, ss, 3, 62)
        emit(a, mfmas(ty, 0, kind == "s0"), slots)
    CS, TK, Z, Z2 = 12, 28, 36, 240
    def geglu1(el):
        vv = [f"v_fmac_f32 v{g}, v{cg}, v{tk}" for g, u, cg, cu, tk, z in el] + [f"v_mul_f32 v{z}, v{g}, v{g}" for g, u, cg, cu, tk, z in el]
        vv += [f"v_fma_f32 v{z}, v{z}, v{tk+2}, v{tk+1}" for g, u, cg, cu, tk, z in el] + [f"v_mul_f32 v{z}, v{z}, v{g}" for g, u, cg, cu, tk, z in el]
        vv += [f"v_exp_f32 v{z}, v{z}" for g, u, cg, cu, tk, z in el] + [f"v_fmac_f32 v{u}, v{cu}, v{tk}" for g, u, cg, cu, tk, z in el]
        vv += [f"v_fma_f32 v{z}, v{z}, v{tk+3}, v{tk+3}" for g, u, cg, cu, tk, z in el]
        vv += [f"v_rcp_f32 v{z}, v{z}" for g, u, cg, cu, tk, z in el] + [f"v_mul_f32 v{u}, v{u}, v{g}" for g, u, cg, cu, tk, z in el]
        return vv + [f"v_mul_f32 v{u}, v{u}, v{z}" for g, u, cg, cu, tk, z in el]
    XLD = [f"buffer_load_dwordx4 {ar(4*i, 4)}, v{4 + (i>>1)}, {S(SX)}, s19 offen offset:{(i&1)*64}" for i in range(4)]
    def phase2(ty, stage, kind, dm, nwait):
        slots = {i: [] for i in range(-1, 80)}
        ms = mfmas(ty, 1, kind == "s0")
        lb = {"s0": o["lb0"], "la": o["lba"]}.get(kind, 0)
        if lb:
            slots[0].append("s_barrier")
            slots[lb].extend([f"s_waitcnt vmcnt({2 + sum(1 for x in dm if x[3] < lb)})", "s_barrier"])
        else: slots[0].extend([f"s_waitcnt {nwait}", "s_barrier"])
        if kind == "lb" and stage == 0: slots[0].append(f"L_lbm{ty}:")
        put(slots, dm)
        if kind == "lb":
            nm = f"L_at{ty}{stage}"
            slots[1].append(f"s_cmp_eq_u32 s57, s{70 + stage}"); slots[2].extend([f"s_cbranch_scc1 {nm}", f"{nm}_d:"])
            near(f"{nm}:\ns_and_b32 s6, s2, 1\ns_lshl_b32 s6, s6, 7\n{atomic('s6')}\ns_branch {nm}_d")
        if kind in ("la", "lb") and stage == 1:
            slots[76].append("s_add_u32 s57, s57, 1"); slots[78].append(f"s_cmp_lt_u32 s57, {4 if kind == 'la' else 7}")
            assert not any("m0" in y for y in slots[78] + slots[79])
        if kind != "s15":
            xr = [xread(stage ^ 1, tb, ks) for tb in range(4) for ks in range(2)]
            if lb:
                rd = [(0, x) for x in xr] + [(8*(cb+1) + 1, x) for cb in range(9) for x in wread(ty, stage ^ 1, cb)]
                for i, (e, x) in enumerate(rd): slots[max(e, lb + (i*(80 - lb))//44)].append(x)
            else:
                for cb in range(9): putds(slots, wread(ty, stage ^ 1, cb), [8*(cb+1) + q for q in (1, 3, 5, 7)], 79)
                putds(slots, xr, [4, 6, 14, 22, 30, 38, 46, 54], 70)
        else:
            for i in range(4): slots[1+i].append(f"ds_read_b128 v[{CS+4*i}:{CS+4*i+3}], v45 offset:{i*64}")
            for i in range(2): slots[5+i].append(f"ds_read_b128 v[{TK+4*i}:{TK+4*i+3}], v44 offset:{i*256}")
            if not o["xl"]:
                for i in range(4): slots[7 + 2*i].append(XLD[i])
            slots[14].append("s_waitcnt lgkmcnt(0)")
            ne = o["early"]
            for tb in range(ne):
                r = [accb(tb, i)[1] for i in range(4)]
                el = [(r[2*n]+i, r[2*n+1]+i, CS+8*n+i, CS+8*n+4+i, TK+4*tb, Z+4*n+i) for n in range(2) for i in range(4)]
                lo, hi = 14 + (65*tb)//ne, 14 + (65*(tb+1))//ne
                fillv([slots[i] for i in range(lo, hi)], geglu1(el) + [f"v_cvt_pk_bf16_f32 v{r[0]+i}, v{el[2*i][1]}, v{el[2*i+1][1]}" for i in range(4)])
                slots[hi].append(f"buffer_store_dwordx4 v[{r[0]}:{r[0]+3}], v1, {S(SW)}, s40 offen offset:{tb*1024} sc1")
                if tb == 1: slots[lo+1].append(f"ds_read_b128 v[{TK}:{TK+3}], v44 offset:512")
        emit(a, ms, slots)
    VF, VQ, VS = 144, 112, 176
    D = 3; R = 4; nf, ns = 28, 8; T = nf + ns; NU = 16
    V_BR, V_A2, V_AO, V_XO, V_P2, V_P3 = 36, 40, 41, 42, 24, 25
    PL, PK, XF, SE, SX0, G = 64, 80, 208, 12, 20, 48
    TP = nf + o['pl']; TC = TP + 2
    def af(slot, i): return ar((80 + slot*16 if i < 4 else 128 + slot*16 if slot else 0) + (i & 3)*4, 4)
    def bf(p, u, cb): return (192 if p else 16) + (u*4+cb)*4
    def facc(ch, cb, tb): return (VF, VQ, VS)[ch] + (cb*2+tb)*4
    def ph(t): return "f" if t < nf else ("s" if t < T else None)
    def al(t):
        slot = t % R
        if 24 <= t < nf and not o.get("fodd"):
            L = [f"buffer_load_dwordx2 {ar(80 + slot*16 + (ks*2+tb)*4 + 2*h, 2)}, v{V_AO}, {S(SW)}, s12 offen offset:{ks*2048 + h*1024 + tb*512} sc1 ;@A{t}" for ks in range(2) for h in range(2) for tb in range(2)]
            return L, "s_add_u32 s12, s12, 4096"
        n, so = (4, 12) if ph(t) == "f" else (8, 13)
        L = [f"buffer_load_dwordx4 {af(slot, i)}, v{1 if i < 4 else V_A2}, {S(SW)}, s{so} offen offset:{(i&3)*1024} sc1 ;@A{t}" for i in range(n)]
        return L, f"s_add_u32 s{so}, s{so}, {n*1024}"
    def rl(t):
        slot, p = t % R, t & 1
        od = [(ks*2+ch, cb) for ch in range(2) for cb in range(4) for ks in range(2)] if ph(t) == "f" else [(u, cb) for cb in range(4) for u in range(4)]
        return [f"ds_read_b64_tr_b16 {ar(bf(p, u, cb) + rd*2, 2)}, v{V_BR + cb} offset:{slot*16384 + u*4096 + rd*2048}" for u, cb in od for rd in range(2)]
    def ml(t):
        slot, p = t % R, t & 1; L = []
        if ph(t) == "f":
            for ch in range(2):
                for cb in range(4):
                    for tb in range(2):
                        for n, ks in enumerate((0, 1) if tb == 0 else (1, 0)):
                            c = vr(facc(ch, cb, tb), 4)
                            L.append(f"v_mfma_f32_16x16x32_bf16 {c}, {ar(bf(p, ks*2+ch, cb), 4)}, {af(slot, ks*2+tb)}, {0 if t == 0 and n == 0 else c}")
        else:
            for cb in range(4):
                for tb in range(2):
                    for n, ks in enumerate(range(4) if tb == 0 else (3, 2, 1, 0)):
                        c = vr(facc(2, cb, tb), 4)
                        L.append(f"v_mfma_f32_16x16x32_bf16 {c}, {ar(bf(p, ks, cb), 4)}, {af(slot, ks*2+tb)}, {0 if t == nf and n == 0 else c}")
        return L
    BS = {u - D - 1: u for u in range(4, T) if not nf <= u < nf + o["nw"]}
    if o["nw"] == 4:
        for u in range(32, 36): del BS[u - D - 1]
        BS.update(zip([[24, 26, 28, 30], [24, 25, 26, 27], [28, 29, 30, 31], [24, 27, 29, 31]][o["bs"]], range(32, 36)))
    def build(t, tags=(), first=(), xm=0):
        ms = ml(t); n = 32 + xm
        slots = {i: [] for i in range(-1, n)}
        slots[-1].append(f"s_waitcnt @{','.join([f'A{t}', f'B{t+1}'] + list(tags))} lgkmcnt(0)")
        if ph(t+1):
            slots[0].append("s_barrier")
            spread(slots, rl(t+1), 0, n - 5)
        b0 = len(first)
        for i, x in enumerate(first): slots[1+i].extend(x if isinstance(x, list) else [x])
        u = BS.get(t)
        if u is not None:
            st_ = 3 if b0 < 2 else 2
            slots[b0].append(f"s_add_u32 s15, s14, {n0(u)*65536}" if ph(u) == "f" else f"s_add_u32 s15, s17, {(u-nf)*128*2048}")
            for c, (m, d) in enumerate(bdma(u % R, ph(u))):
                slots[b0+1+st_*c].append(m); slots[b0+2+st_*c].append(d + f" ;@B{u}" + (f",F{t}" if c == 0 else ""))
        if o["nw"] and t in (nf - 2, nf + o["nw"] - 2):
            for cb in range(4): slots[n - 4 + cb].append(f"v_add_u32 v{V_BR+cb}, {RING2 if t == nf - 2 else hex(-RING2 & 0xffffffff)}, v{V_BR+cb}")
        if ph(t+D):
            L, ad = al(t+D)
            spread(slots, L, 14, n - 2); slots[n-1].append(ad)
        return ms, slots
    def check(slots, name, cmps, reload):
        for i, x in enumerate(cmps): slots[i].append(x)
        k = len(cmps) + 1
        slots[k].extend([f"s_cbranch_vccnz {name}_s", f"{name}_d:"])
        spin_ool(name, "\n".join(cmps), "\n".join(reload))
        return k
    def maxtree(b, n):
        return [f"v_max3_u32 v4, v{b}, v{b+1}, v{b+2}", f"v_max3_u32 v5, v{b+3}, v{b+4}, v{b+5}"] + [f"v_max3_u32 v{4+(i&1)}, v{4+(i&1)}, v{b+6+2*i}, v{b+7+2*i}" for i in range((n-6)//2)] + ["v_max_u32 v4, v4, v5", "v_cmp_eq_u32 vcc, -1, v4"]
    def FLG(sreg, off=0): return ["s_mov_b64 exec, 1", f"buffer_store_dword v3, off, {S(SW)}, s{sreg} offset:{off} sc1", "s_mov_b64 exec, -1"]
    def POLL(sreg, v, off=0): return f"buffer_load_dword v47, v{v}, {S(SW)}, s{sreg} offen offset:{off} sc1 ;@poll"
    CMP1 = ["v_cmp_ne_u32 vcc, 1, v47"]
    paths = [[], []]

    for ty in range(2):
        vm = VM(a)
        if ty == 0:
            a("L_tA:")
            a("s_mul_i32 s7, s1, 320\ns_add_u32 s6, s6, s7\nv_add_u32 v6, s6, v5")
            a(f"v_mad_u32_u24 v{V_WV}, v3, s57, v6\ns_movk_i32 s57, 6144\ns_lshl_b32 s6, s0, 7\nv_add_u32 v{V_WV+1}, {16*7168}, v{V_WV}\nv_add_u32 v6, s6, v5")
            a(f"v_mad_u32_u24 v{V_WV+2}, v3, s57, v6\nv_add_u32 v{V_WV+3}, {16*6144}, v{V_WV+2}\nv_add_u32 v{V_WV+4}, 4096, v{V_WV+2}\nv_add_u32 v{V_WV+5}, 4096, v{V_WV+3}")
        else:
            a("L_tB:")
            a("s_lshr_b32 s7, 128, s1\ns_add_u32 s7, s6, s7\nv_add_u32 v6, s7, v5")
            a(f"v_mad_u32_u24 v{V_WV}, v3, s57, v6\ns_xor_b32 s7, s1, 1\ns_mul_i32 s7, s7, 384\ns_add_u32 s7, s6, s7\nv_add_u32 v{V_WV+1}, {16*7168}, v{V_WV}")
            a("v_bfe_u32 v3, v2, 2, 2\nv_lshl_add_u32 v3, v4, 3, v3\nv_add_u32 v3, s61, v3\nv_and_b32 v5, 3, v2\nv_and_b32 v6, 1, v4\nv_lshlrev_b32 v6, 1, v6\nv_xor_b32 v5, v5, v6\nv_lshl_add_u32 v5, v5, 4, s7")
            a(f"v_mad_u32_u24 v{V_WV+2}, v3, s57, v5")
        stamp("addr", True)
        for m, d in dma_list(ty, 0)[:o["nd0"]]: a(m); vm(d)
        if o["spf"]: sload(o["spf"], 32)
        fin(SW, WS_SIZE); fin(SD, 3584*1024*2); fin(SO, 1024*1024*2); fin(SOUT, 2048*1024*2)
        a(f"s_lshl2_add_u32 s6, s2, s3\ns_lshl_b32 s6, s6, 13\ns_add_u32 s6, s6, {WS_I}\ns_add_u32 s{SI}, s{SW}, s6\ns_addc_u32 s{SI+1}, s{SW+1}, 0")
        fin(SI, 2048 if ty else 4096)
        a(f"s_mul_i32 s6, s2, 28672\ns_mul_i32 s7, s3, 9600\ns_add_u32 s6, s6, s7\ns_sub_u32 s7, 28672, s7\ns_min_u32 s7, s7, 9600\ns_lshl_b32 s0, s2, 13")
        a(f"s_cmp_eq_u32 s3, 3\ns_cselect_b32 s6, s0, s6\ns_cselect_b32 s{SP2+2}, 8192, s7\ns_cselect_b32 s0, s{SO}, s{SD}\ns_cselect_b32 s1, s{SO+1}, s{SD+1}")
        a(f"s_add_u32 s{SP2}, s0, s6\ns_addc_u32 s{SP2+1}, s1, 0\ns_mov_b32 s{SP2+3}, 0x20000")
        a("v_and_b32 v3, 15, v2\nv_bfe_u32 v5, v3, 1, 3\ns_lshl_b32 s6, s53, 7\nv_add_u32 v7, s6, v3\nv_lshlrev_b32 v7, 7, v7")
        for ks in range(2):
            a(f"v_add_u32 v6, {ks*4}, v4\nv_xor_b32 v6, v6, v5\nv_lshl_add_u32 v{V_XR+ks}, v6, 4, v7\nv_add_u32 v{V_XR+2+ks}, {STAGE}, v{V_XR+ks}")
        a(f"s_mul_i32 s6, s3, 320\nv_lshl_add_u32 v5, v3, 6, s6\nv_lshl_add_u32 v5, v4, 4, v5\nv_cmp_gt_u32 vcc, 5, v3\nv_mov_b32 v6, {BIG}\nv_lshlrev_b32 v{V_PF2}, 7, v2\nv_cndmask_b32 v{V_CSO}, v6, v5, vcc")
        a(f"v_cmp_gt_u32 vcc, 13, v2\nv_and_b32 v3, 3, v2\nv_lshlrev_b32 v3, 3, v3\nv_cndmask_b32 v{V_PF2}, v6, v{V_PF2}, vcc")
        a(f"v_lshrrev_b32 v5, 2, v2\nv_add_u32 v3, {W_OFF}, v3\nv_lshl_add_u32 v6, v5, 7, v3\nv_bfe_u32 v7, v2, 3, 2\ns_lshl_b32 s6, s52, 1\nv_xor_b32 v7, s6, v7")
        a(f"v_lshl_add_u32 v{V_WR}, v7, 5, v6\nv_xor_b32 v7, 1, v7\nv_lshl_add_u32 v{V_WR+2}, v7, 5, v6")
        if ty == 1:
            a(f"v_lshl_add_u32 v6, v5, 6, v3\nv_and_b32 v7, 1, v4\nv_xor_b32 v7, s52, v7\nv_lshl_add_u32 v6, v7, 5, v6\nv_add_u32 v{V_WR+4}, 32768, v6")
        for r in range(V_WR, V_WR + 4 + 2*ty, 2): a(f"v_add_u32 v{r+1}, {STAGE}, v{r}")
        a(f"s_bfe_u32 s68, s2, 0x20003\ns_lshl3_add_u32 s69, s4, s5\ns_mul_i32 s69, s69, 1280\ns_add_u32 s69, s69, {WS_CS}\ns_mov_b32 s57, 0\ns_min_u32 s71, s68, 2\ns_add_u32 s71, s71, 9\ns_lshr_b32 s70, s71, 1\ns_lshl4_add_u32 s70, s3, s70\ns_and_b32 s71, s71, 1\ns_lshl3_add_u32 s70, s71, s70\ns_xor_b32 s71, s70, 8")
        a(f"s_mov_b32 s60, 0\ns_mov_b32 s61, 0\ns_lshl_b32 s0, s3, 12\ns_lshl_b32 s1, s2, 14\ns_add_u32 s1, s1, s0\ns_add_u32 s0, s0, {MB}")
        a("v_and_b32 v3, 15, v2\nv_cmp_eq_u32 vcc, 0, v3\nv_mov_b32 v3, 0x3f803f80\nv_cndmask_b32 v35, 0, v3, vcc")
        a("v_mov_b64 v[4:5], -1\nv_mov_b64 v[6:7], -1")
        a(f"s_mov_b32 s72, 0\nL_cs{ty}:\ns_cmp_eq_u32 s53, 0\ns_cbranch_scc0 L_cs{ty}_1")
        for wr in range(2):
            if wr: a(f"L_cs{ty}_1:")
            for n in range(5):
                X, Y = (V_SEL, V_T) if n % 2 == 0 else (V_T, V_SEL)
                for ks in range(2):
                    a(f"v_mfma_f32_16x16x32_bf16 {vr(V_CSA, 4)}, {ar(wfb(5*wr+n, ks), 4)}, {vr(X, 4)}, {vr(V_CSA, 4)}")
                    if n < 4 and ks == 0: a.extend([f"v_mov_b32_dpp v{Y+r}, v{X+r} row_shr:1 row_mask:0xf bank_mask:0xf bound_ctrl:0" for r in range(2)] + [f"v_mov_b64 {P(Y+2)}, {P(Y)}"])
                    if n == 4 and ks == 0: a("s_cmp_eq_u32 s72, 3")
            a(f"s_cbranch_scc1 L_cs{ty}_d3\ns_cmp_eq_u32 s72, 2\ns_cbranch_scc1 L_cs{ty}_d2\ns_cmp_eq_u32 s72, 1\ns_cbranch_scc1 L_cs{ty}_d1")
            if wr == 0: a(f"s_branch L_cs{ty}_d0")
        a(f"L_cs{ty}_d0:")
        stamp("zero", True)
        for m, d in dma_list(ty, 0)[o["nd0"]:]: a(m); t_st0 = vm(d)
        a(f"v_mov_b64 {P(V_CSA)}, 0\nv_mov_b64 {P(V_CSA+2)}, 0")
        if o["spf"]: a("s_waitcnt lgkmcnt(0)")
        elif o["npf0"] < 2:
            a("s_barrier")
            if o["npf0"] == 0: a("s_add_u32 s58, s58, s59")
            vm(PFI)
        a.extend(adv)
        stamp("dma", True)
        vm.wait(t_st0)
        a("s_barrier")
        stamp("loop", True)
        if o.get("cnt"): a("s_mov_b32 s101, 0")
        xa = [xread(0, tb, ks) for tb in range(4) for ks in range(2)]
        a.extend(xa[:2] + wread(ty, 0, 0) + xa[2:] + wread(ty, 0, 1))
        def sched(b):
            dp = [(o["dsb"] + o["evb"]*i) if b else dpos[i] for i in range(18)]
            return [p + 1 if p == 80 else p - 1 if p == 79 else p for p in dp]
        def d1(stage, b=0): return [([], m, d, p-80) for (m, d), p in zip(dma_list(ty, stage ^ 1), sched(b)) if p >= 80]
        def d2(stage, b=0): return [([], m, d, p) for (m, d), p in zip(dma_list(ty, stage), sched(b)) if p < 80]
        def loop(kind):
            a(f".p2align 4\nL_{kind}{ty}:")
            b = kind == "lb"
            for stage in range(2):
                if kind == "la" and stage == 1: a(f"L_lam{ty}:")
                phase1(ty, stage, kind, d1(stage, b))
                phase2(ty, stage, kind, d2(stage, b), f"vmcnt({1 + o['pfb'] if b else 2})")
            if o["stamps"] and any(x[0] == "i" for x in sset):
                for it in (1, 2, 5, 6):
                    if f"i{it}" in sset and (it < 4) == (kind == "la"):
                        a(f"s_cmp_eq_u32 s57, {it}\ns_cbranch_scc0 L_st{ty}{it}"); stamp(f"i{it}", True); a(f"L_st{ty}{it}:")
                a(f"s_cmp_lt_u32 s57, {4 if kind == 'la' else 7}")
            a(f"s_cbranch_scc1 L_{kind}{ty}")
        phase1(ty, 0, "s0", [([], m, d, o["d0s"] + o["d0e"]*i) for i, (m, d) in enumerate(dma_list(ty, 1))])
        stamp("s0m", True)
        phase2(ty, 0, "s0", d2(0), "vmcnt(2)")
        stamp("s0e", True)
        a(f"s_branch L_lam{ty}")
        loop("la")
        stamp("i4", True)
        a("s_sub_u32 s0, s0, 4096")
        phase1(ty, 0, "s8", d1(0))
        stamp("s8m", True)
        a(mfmas(ty, 1)[0] + f"\ns_waitcnt vmcnt({4 + o['pfb']})\ns_barrier\ns_branch L_lbm{ty}")
        loop("lb")
        stamp("s14", True)
        phase1(ty, 0, "s14", d1(0, 1))
        tail = []
        for t in range(4):
            for c, (m, d) in enumerate(bdma(t, "f")):
                tail.append(([f"s_add_u32 s15, s14, {n0(t)*65536}"] if c == 0 and t else [], m, d))
        tp = [o["ts"] + o["te"]*i for i in range(16)]
        for t in range(o["nw"]):
            for c, (m, d) in enumerate(bdma(t, "s", RING2)):
                tail.append(([f"s_add_u32 s15, s17, {t*128*2048}"] if c == 0 else [], m, d))
                tp.append(max(tp[-1], 168) + o["tw"])
        tp = [p if p % 80 >= 4 or p < 80 else p - p % 80 + 4 for p in tp]
        def part(k): return [(pre, m, d, p - 80*k) for (pre, m, d), p in zip(tail, tp) if p//80 == k]
        rest = [x for x, p in zip(tail, tp) if p >= 240]
        stamp("s14m", True)
        phase2(ty, 0, "s14", part(0), f"vmcnt({7 + min(o['cpf'], 2)})")
        stamp("s15", True)
        o["n14"] = len(part(0)) + 3 + min(o["cpf"], 2)
        phase1(ty, 1, "s15", part(1))
        phase2(ty, 1, "s15", part(2), f"vmcnt({len(part(0)) + len(part(1)) - 4}) lgkmcnt(0)")
        stamp("e0", True)
        p0 = len(a.lines)
        def rd_cs(cb0, n):
            for i in range(n): a(f"ds_read_b128 v[{CS+4*i}:{CS+4*i+3}], v45 offset:{(cb0+i)*64}")
        def rd_tk(tb): a(f"ds_read_b128 v[{TK+4*(tb&1)}:{TK+4*(tb&1)+3}], v44 offset:{tb*256}")
        def getv(tb, cb, tmp):
            p, b = accb(tb, cb)
            if p == "v": return b
            for i in range(4): a(f"v_accvgpr_read_b32 v{tmp+i}, a{b+i}")
            return tmp
        def pack(d, ps):
            for i, p in enumerate(ps): a(f"v_cvt_pk_bf16_f32 v{d+i}, v{p}, v{p+1}")
        def fixm(b, cs, tk):
            for h in (0, 2): a(f"v_pk_fma_f32 {P(b+h)}, {P(cs+h)}, {P(tk)}, {P(b+h)} op_sel_hi:[1,0,1]")
        def geglu(items, d):
            el = [(g+h, u+h, tk, Z + 4*n + h) for n, (g, u, cg, cu, tk) in enumerate(items) for h in (0, 2)]
            for g, u, cg, cu, tk in items: fixm(g, cg, tk)
            for g, u, tk, z in el: a(f"v_pk_mul_f32 {P(z)}, {P(g)}, {P(g)}")
            for g, u, tk, z in el: a(f"v_pk_fma_f32 {P(z)}, {P(z)}, {P(tk+2)}, {P(tk)} op_sel:[0,0,1] op_sel_hi:[1,0,1]")
            for g, u, tk, z in el: a(f"v_pk_mul_f32 {P(z)}, {P(z)}, {P(g)}")
            for i in range(8): a(f"v_exp_f32 v{Z+i}, v{Z+i}")
            for g, u, cg, cu, tk in items: fixm(u, cu, tk)
            for g, u, tk, z in el: a(f"v_pk_fma_f32 {P(z)}, {P(z)}, {P(tk+2)}, {P(tk+2)} op_sel:[0,1,1] op_sel_hi:[1,1,1]")
            for i in range(8): a(f"v_rcp_f32 v{Z+i}, v{Z+i}")
            for g, u, tk, z in el: a(f"v_pk_mul_f32 {P(u)}, {P(u)}, {P(g)}")
            for g, u, tk, z in el: a(f"v_pk_mul_f32 {P(u)}, {P(u)}, {P(z)}")
            pack(d, [u for g, u, tk, z in el])
        def frag(tb, cb0, sb, nxt, bcb=None):
            r = [getv(tb, cb0+i, accb(tb, i)[1]) for i in range(4)]
            if bcb is not None: a(f"v_xor_b32 v6, {32*bcb}, v7")
            a("s_waitcnt lgkmcnt(0)")
            if nxt is not None: rd_tk(nxt)
            if bcb is not None: a.extend([x.replace(f"v{V_BR+bcb} ", "v6 ") for x in rl(0) if f"v{V_BR+bcb} " in x])
            tk = TK + 4*(tb & 1)
            geglu([(r[0], r[1], CS, CS+4, tk), (r[2], r[3], CS+8, CS+12, tk)], r[0])
            a(f"buffer_store_dwordx4 v[{r[0]}:{r[0]+3}], v1, {S(SW)}, s{sb+(tb>>1)} offen offset:{(tb&1)*1024} sc1 ;@h{sb}")
        ALD = [x for t in range(o["na"]) for x in al(t)[0] + [al(t)[1]]]
        def try_load():
            stamp("b2")
            a("s_waitcnt @poll"); a.extend(CMP1)
            a(f"s_mov_b32 s70, 0\ns_nop 2\ns_cbranch_vccz L_tl{ty}\n{POLL(59, 46)}\nL_tl{ty}_d:")
            ool(f"L_tl{ty}:\ns_mov_b32 s70, 1"); ool.extend(ALD); ool(f"s_branch L_tl{ty}_d")
        def must_load():
            stamp("chk")
            a(f"s_cmp_eq_u32 s70, 1\ns_cbranch_scc1 L_ml{ty}\ns_waitcnt @poll")
            spin(f"L_b1{ty}", CMP1[0], POLL(59, 46))
            a.extend(ALD)
            a(f"L_ml{ty}:")
            a.extend([x for t in range(o["na"], 3) for x in al(t)[0] + [al(t)[1]]])
            stamp("chkd")
        def set_b1():
            a("s_waitcnt @h40"); stamp("w1d"); a.extend(FLG(54))
        def phi_tail(ps, ts, scale):
            for i in range(8): a(f"v_exp_f32_e64 v{Z+i}, v{Z+i} clamp")
            for p in ps: a(f"v_max_f32 v{p}, 0, v{p}\nv_max_f32 v{p+1}, 0, v{p+1}")
            for p in ps:
                if scale is None: a(f"v_pk_add_f32 {P(p)}, {P(p)}, s[68:69] op_sel_hi:[1,0]")
                else: a(f"v_pk_fma_f32 {P(p)}, {P(p)}, {P(scale)}, s[68:69] op_sel_hi:[1,0,0]")
            for p, q in zip(ps, ts): a(f"v_pk_add_f32 {P(p)}, {P(p)}, {P(q)}")
            pack(ps[0], ps)
        more = [pre + [m, "s_nop 0", d] for pre, m, d in rest] + ([[x] for x in XLD] if o["xl"] else [])
        k2x = more[o["nm"]:]; more = more[:o["nm"]]
        for tb in range(o["early"], 8):
            for x in more[:2]: a.extend(x)
            more = more[2:]
            frag(tb, 0, 40, tb+1 if tb < 7 else (0 if ty else None), tb - 3 if 3 <= tb < 7 else None)
        assert not more
        if k2x: a("s_mov_b32 s16, s15")
        stamp("b1")
        if ty == 1:
            rd_cs(6, 4)
            for tb in range(8):
                frag(tb, 6, 44, tb+1 if tb < 7 else 0)
                if tb == o["fB"]: set_b1()
                if tb == o["pB"]: a(POLL(59, 46))
                if tb == o["cB"]: try_load()
            rd_cs(4, 2)
            must_load()
        else:
            a(f"v_and_b32 v4, 15, v2\nv_lshl_add_u32 v4, v4, 2, s64\ns_lshl_b32 s0, s53, 9\ns_add_u32 s0, s0, {MB_NM}\ns_sub_u32 s0, s0, s64\nv_add_u32 v5, s0, v45")
            for i in range(4): a(f"ds_read_b32 v{12+i}, v4 offset:{(6+i)*64}")
            KV, ONES = 112, 136
            for i in range(4): a(f"v_mov_b32 v{ONES+i}, 0x3f803f80")
            for tp in range(4):
                for h in range(2):
                    a(f"ds_read_b128 v[{16+8*h}:{19+8*h}], v5 offset:{(2*tp+h)*64}\nds_read_b128 v[{20+8*h}:{23+8*h}], v5 offset:{(2*tp+h)*64 + 1024}")
                r = [[getv(2*tp+h, 6+i, 48 + 32*(tp & 1) + 8*i + 4*h) for h in range(2)] for i in range(4)]
                a("s_waitcnt lgkmcnt(0)")
                for i in range(4):
                    sel = i & 1
                    for h in range(2):
                        for q in (0, 2):
                            a(f"v_pk_fma_f32 {P(r[i][h]+q)}, {P(16+8*h+q)}, {P(12+(i&2))}, {P(r[i][h]+q)} op_sel:[0,{sel},0] op_sel_hi:[1,{sel},1]")
                    for h in range(2):
                        for q in (0, 2): a(f"v_pk_mul_f32 {P(r[i][h]+q)}, {P(r[i][h]+q)}, {P(20+8*h+q)}")
                    ps = [r[i][0], r[i][0]+2, r[i][1], r[i][1]+2]; ts = [Z, Z+2, Z+4, Z+6]
                    if i < 2:
                        for p, q in zip(ps, ts): a(f"v_pk_mul_f32 {P(q)}, {P(p)}, s[56:57] op_sel_hi:[1,0]")
                        phi_tail(ps, ts, None)
                    else: pack(ps[0], ps)
                    if 4*tp + i == o["fA"]: set_b1()
                    if 4*tp + i == o["pA"]: a(POLL(59, 46))
                    if 4*tp + i == o["cA"]: try_load()
                for db in range(2):
                    for eb in range(3):
                        d = vr(KV + (db*3+eb)*4, 4)
                        B = vr(r[2+eb][0], 4) if eb < 2 else vr(ONES, 4)
                        a(f"v_mfma_f32_16x16x32_bf16 {d}, {vr(r[db][0], 4)}, {B}, {d if tp else 0}")
            rd_cs(4, 2); rd_tk(0)
            a(f"s_mul_i32 s0, s3, 3072\ns_add_u32 s0, s0, {KVX}\nv_add_u32 v4, s0, v1\ns_xor_b32 s1, s3, 1\ns_mul_i32 s1, s1, 3072\ns_add_u32 s1, s1, {KVX}\nv_add_u32 v5, s1, v1")
            must_load()
            a("s_cmp_eq_u32 s53, 0\ns_nop 3\ns_cbranch_scc1 L_kv0")
            for eb in range(3): a(f"ds_write_b128 v5, v[{KV+eb*4}:{KV+eb*4+3}] offset:{eb*1024}")
            for i in range(0, 12, 2): a(f"v_mov_b64 {P(48+i)}, {P(KV+12+i)}")
            a("s_branch L_kv1\nL_kv0:")
            for eb in range(3): a(f"ds_write_b128 v5, v[{KV+12+eb*4}:{KV+12+eb*4+3}] offset:{eb*1024}")
            for i in range(0, 12, 2): a(f"v_mov_b64 {P(48+i)}, {P(KV+i)}")
            a("L_kv1:")
        for cb in range(4): a(f"v_xor_b32 v{V_BR+cb}, {32*cb}, v7")
        stamp("k2")
        TJ, TG, TO = o["tj"], o["tg"], o["tg"] + 2
        KG = 100
        GLD = [f"buffer_load_dwordx4 {vr(KG+4*e, 4)}, v1, {S(SW)}, s{r} offen sc1 ;@gld" for e, r in enumerate((64, 66, 67))]
        def ob(tb, eb):
            i = tb*3 + eb
            return G + 4*i if i < 12 else 208 + 4*(i - 12)
        NS_ = o["nsA"] if ty == 0 else o["nsB"]
        TB3 = NS_ + 2
        st_ = []
        for t in range(NU):
            tags = []; first = []; xm = 0
            otb = {TO: range(0, 2), TO+1: range(2, 5), TO+2: range(5, 8)}.get(t, []) if ty == 0 else []
            if ty == 0:
                if t == TG: first = GLD
                if t == TO: tags = ["gld"]
                xm = 3*len(otb)
            else:
                if t == 2: tags = ["h44"]; first = [FLG(54, 128)]
                if t == TJ+3: tags = [f"F{TJ+1}"]
                if t == TB3: tags = ["late"]; first = [FLG(54, 256)]
            if t == 12: tags = tags + ["poll"]
            ms, slots = build(t, tags, first, xm)
            n = 32 + xm; lo = 0
            if t == 12: lo = check(slots, f"L_b2{ty}", CMP1, [POLL(60, V_P2, 128)])
            if t == 9: slots[n-1].append(POLL(60, V_P2, 128))
            if t >= 1 and k2x:
                x = k2x.pop(0)
                if len(x) > 1:
                    for y in x[:-2]: slots[13].append(y.replace("s15", "s16"))
                    slots[16].append(x[-1].replace("s15", "s16"))
                else:
                    if ", v5," in x[0] and "offset:0" in x[0]: slots[11].append("v_add_u32 v0, 32768, v0")
                    slots[16].append(x[0].replace(", v4,", ", v0,").replace(", v5,", ", v0,"))
            if t == o["cpt"]:
                fill(slots, ["s_lshr_b32 s0, s2, 3", "s_lshl2_add_u32 s0, s0, s3", "s_lshl_b32 s0, s0, 7", "s_add_u32 s0, s0, L_tail-L_pc", "s_min_u32 s0, s0, L_cend-L_pc-4"], 12, 24)
                slots[26].append("v_mov_b32 v0, s0"); slots[n-3].append("global_load_dword v0, v0, s[72:73]")
            if t == 14:
                vv = [f"v_add_u32 v{V_A2}, 4096, v1", "v_and_b32 v4, 15, v2", "v_lshlrev_b32 v4, 11, v4", "v_bfe_u32 v6, v2, 4, 1", "v_lshl_add_u32 v4, v6, 5, v4",
                      "v_lshrrev_b32 v6, 5, v2", f"v_lshl_add_u32 v{V_XO}, v6, 4, v4", f"v_add_u32 v{V_XO+1}, 32768, v{V_XO}", "v_and_b32 v4, 0x1f0, v1", f"v_lshl_add_u32 v{V_AO}, v6, 3, v4"]
                if o.get("fko"): vv += ["v_lshrrev_b32 v4, 3, v2", "v_lshlrev_b32 v4, 12, v4", "v_and_b32 v6, 7, v2", f"v_lshl_add_u32 v{V_XO}, v6, 4, v4", f"v_add_u32 v{V_XO+1}, 32768, v{V_XO}"]
                fillv([slots[i] for i in range(n)], vv)
                slots[20].append(f"s_add_u32 s66, s54, {256 + 128*ty}")
            if ty == 0 and t == TG - 1:
                fill(slots, ["s_and_b32 s64, s2, 0xc6", "s_or_b32 s64, s64, s52", "s_lshl_b32 s64, s64, 15", f"s_add_u32 s64, s64, {WS_I + 0x28*32768 + 1024}", f"s_add_u32 s66, s64, {16*32768}", "s_add_u32 s67, s64, 8192"], 13, 30)
            if otb:
                if t == TO: lo = check(slots, "L_kvf", maxtree(KG, 12), GLD)
                om = [f"v_mfma_f32_16x16x32_bf16 {vr(ob(tb, eb), 4)}, {vr(KG+4*eb, 4)}, v[{VS+4*tb}:{VS+3+4*tb}], 0" for tb in otb for eb in (2, 0, 1)]
                ms = ms[:lo+1] + om + ms[lo+1:]
                lo += 7
                per = (n - 1 - lo)//len(otb)
                for k, tb in enumerate(otb):
                    dn = ob(tb, 2); e8 = [ob(tb, 0)+i for i in range(4)] + [ob(tb, 1)+i for i in range(4)]
                    w = [f"v_add_f32 v{dn}, s68, v{dn}", f"v_rcp_f32 v{dn}, v{dn}"] + [f"v_mul_f32 v{e}, v{e}, v{dn}" for e in e8] + [f"v_cvt_pk_bf16_f32 v{e8[0]+i}, v{e8[2*i]}, v{e8[2*i+1]}" for i in range(4)]
                    fillv([slots[i] for i in range(lo + k*per, lo + (k+1)*per)], w)
                    slots[lo + (k+1)*per].append(f"buffer_store_dwordx4 {vr(e8[0], 4)}, v1, {S(SW)}, s{44+(tb>>1)} offen offset:{(tb&1)*1024} sc1 ;@late")
            if ty == 1 and t == 0:
                fill(slots, ["s_bfe_u32 s6, s2, 0x10004", "s_add_u32 s70, s6, s3", "s_min_u32 s7, s3, 1", "s_mul_i32 s70, s70, s7", "s_lshl1_add_u32 s6, s7, s6", "s_andn2_b32 s7, 8, s2", "s_add_u32 s70, s70, s7",
                             "s_and_b32 s64, s2, 0xc6", "s_and_b32 s7, s2, 1", "s_lshl1_add_u32 s64, s64, s7", "s_lshl4_add_u32 s64, s64, s6", "s_lshl_b32 s64, s64, 10", f"s_add_u32 s64, s64, {WS_I + 1024}"], 12, 30)
            if ty == 1 and t == TJ+3:
                slots[-1].extend(["s_cmp_lt_u32 s70, 2", "s_cbranch_scc1 L_red", "L_red_d:"])
            st_.append((ms, slots))
        gaps = [st_[t][1][i] for t in range(NS_) for i in range(32)]
        pre = [f"v_bfe_u32 v{V_P3}, v2, 1, 2", f"v_and_b32 v{V_P2}, 1, v2", f"v_lshl_or_b32 v{V_P3}, v{V_P3}, 7, v{V_P2}", f"v_lshlrev_b32 v{V_P3}, 14, v{V_P3}", f"v_and_b32 v{V_P2}, {0xffbfffff}, v{V_P3}"]
        g0 = 0
        if ty == 0:
            for eb in range(3): gaps[28+eb].append(f"ds_read_b128 v[{60+eb*4}:{63+eb*4}], v4 offset:{eb*1024}")
            fillv(gaps[32:40], [f"v_add_f32 v{48+i}, v{48+i}, v{60+i}" for i in range(12)])
            for eb in range(3): gaps[41+3*eb].append(f"buffer_store_dwordx4 v[{48+eb*4}:{51+eb*4}], v1, {S(SW)}, s54 offen offset:{(eb+1)*1024} sc1")
        per = (len(gaps) - g0)//8
        assert per >= 32
        for tb in range(8):
            tk = TK + 4*(tb & 1); b0, b1 = accb(tb, 4)[1], accb(tb, 5)[1]
            gg = gaps[g0 + tb*per:g0 + (tb+1)*per]
            if tb < 7: gg[0].append(f"ds_read_b128 v[{TK+4*((tb+1)&1)}:{TK+4*((tb+1)&1)+3}], v44 offset:{(tb+1)*256}")
            vv = list(pre) if tb == 0 else []
            if ty == 0:
                el = [(b0+i, CS+i, Z2+i) for i in range(4)] + [(b1+i, CS+4+i, Z2+4+i) for i in range(4)]
                vv += [f"v_mul_f32 v{tk+2}, {f2u(1.0/GA1)}, v{tk+1}", f"v_mul_f32 v{tk+3}, {f2u(LOG2E/GA1)}, v{tk+1}"]
                vv += [f"v_fmac_f32 v{q}, v{c}, v{tk}" for q, c, z in el] + [f"v_mul_f32 v{z}, v{q}, v{tk+3}" for q, c, z in el]
                for q, c, z in el: vv += [f"v_exp_f32_e64 v{z}, v{z} clamp", f"v_max_f32 v{q}, 0, v{q}", f"v_fma_f32 v{q}, v{q}, v{tk+2}, s68"]
                vv += [f"v_add_f32 v{q}, v{q}, v{z}" for q, c, z in el]
                vv += [f"v_cvt_pk_bf16_f32 v{b0+i}, v{el[2*i][0]}, v{el[2*i+1][0]}" for i in range(4)]
            else:
                el = [(b0+i, b1+i, CS+i, CS+4+i, Z2+i) for i in range(4)]
                d = accb(tb & ~1, 4)[1]
                vv += [f"v_fmac_f32 v{g}, v{cg}, v{tk}" for g, u, cg, cu, z in el] + [f"v_mul_f32 v{z}, v{g}, v{g}" for g, u, cg, cu, z in el]
                vv += [f"v_fma_f32 v{z}, v{z}, v{tk+2}, v{tk+1}" for g, u, cg, cu, z in el] + [f"v_mul_f32 v{z}, v{z}, v{g}" for g, u, cg, cu, z in el]
                for g, u, cg, cu, z in el: vv += [f"v_exp_f32 v{z}, v{z}", f"v_fmac_f32 v{u}, v{cu}, v{tk}"]
                vv += [f"v_fma_f32 v{z}, v{z}, v{tk+3}, v{tk+3}" for g, u, cg, cu, z in el]
                for g, u, cg, cu, z in el: vv += [f"v_rcp_f32 v{z}, v{z}", f"v_mul_f32 v{u}, v{u}, v{g}"]
                vv += [f"v_mul_f32 v{u}, v{u}, v{z}" for g, u, cg, cu, z in el]
                vv += [f"v_cvt_pk_bf16_f32 v{d+2*(tb&1)+i}, v{b1+2*i}, v{b1+2*i+1}" for i in range(2)]
                if tb & 1:
                    gg[-2].extend([f"v_permlane32_swap_b32 v{d}, v{d+2}", f"v_permlane32_swap_b32 v{d+1}, v{d+3}"])
                    gg[-1].append(f"buffer_store_dwordx4 v[{d}:{d+3}], v1, {S(SW)}, s{48+(tb>>1)} offen sc1 ;@late")
                    gg = gg[:-3]
            if o.get("ab", 0) & 32: vv = vv[:5]
            fillv(gg, vv)
        for t, (ms, slots) in enumerate(st_):
            stamp(f"t{t}")
            emit(a, ms, slots)
            if ty == 1 and t == TJ: a("s_cmp_lt_u32 s70, 2\ns_cbranch_scc1 L_gat\nL_gat_d:")
        a("s_branch L_tail")
        paths[ty] = list(range(p0, len(a.lines)))
        a.lines += near.lines + ool.lines; near.lines = []; ool.lines = []
    KLD = []
    for r in range(8):
        for db in range(2):
            KLD += [f"s_add_u32 s1, s64, {(8*(r&3) + (r>>2))*32768 + db*8192}", f"buffer_load_dwordx4 v[{G+(r*2+db)*4}:{G+(r*2+db)*4+3}], v1, {S(SW)}, s1 offen sc1"]
    main = a; hk = Asm(); a = hk
    a("L_gat:"); a.extend(KLD); a("s_branch L_gat_d\nL_red:")
    spin("L_kvg", "\n".join(maxtree(G, 64)), "\n".join(KLD))
    for stp in (32, 16, 8):
        for i in range(0, stp, 2): a(f"v_pk_add_f32 {P(G+i)}, {P(G+i)}, {P(G+stp+i)}")
    for i in range(4): a(f"v_cvt_pk_bf16_f32 v{G+i}, v{G+2*i}, v{G+2*i+1}")
    a(f"buffer_store_dwordx4 v[{G}:{G+3}], v1, {S(SW)}, s54 offen offset:1024 sc1\ns_branch L_red_d")
    a = main
    a("L_tail:")
    p0 = len(a.lines)
    PLD = [f"buffer_load_dwordx4 v[{PL+4*i}:{PL+4*i+3}], v1, {S(SW)}, s65 offen offset:{i*1024} sc1 ;@pld" for i in range(4)]
    OPOLL = [POLL(69, V_P3, 256), f"buffer_load_dword v35, off, {S(SW)}, s55 sc1 ;@poll"]
    def tail(t):
        tags = {NU: ["late"], 20: ["poll"], 24: ["poll"], TC: ["pld"]}.get(t, [])
        first = {NU: [FLG(66)], TP: PLD}.get(t, [])
        ms, slots = build(t, tags, first, 8 if t in (20, TC) else 0)
        if t == 17: slots[31].append(POLL(60, V_P2, 256))
        if t == 20: check(slots, "L_b3", CMP1, [POLL(60, V_P2, 256)])
        if t == o["opoll"]: slots[30].append(OPOLL[0]); slots[31].append(OPOLL[1])
        if t == 24: check(slots, "L_of", ["v_or_b32 v4, v35, v47", "v_cmp_ne_u32 vcc, 1, v4"], OPOLL)
        if t == nf:
            for q in range(4):
                tb, pp = q >> 1, q & 1
                for i in range(4):
                    r = facc(1, 2*pp + (i >> 1), tb) + 2*(i & 1)
                    slots[8 + 4*q + i].append(f"v_cvt_pk_bf16_f32 v{PK+4*q+i}, v{r}, v{r+1}")
                slots[[13, 19, 25, 31][q]].append(f"buffer_store_dwordx4 v[{PK+4*q}:{PK+4*q+3}], v1, {S(SW)}, s61 offen offset:{q*1024} sc1")
        if t == 18:
            vv = ["v_and_b32 v4, 1, v2", "v_lshlrev_b32 v4, 4, v4", "v_mov_b32 v5, 0x3f80", "v_lshlrev_b32 v4, v4, v5", "v_lshrrev_b32 v5, 4, v2", "v_bfe_u32 v6, v2, 1, 3", "v_lshlrev_b32 v7, 1, v5",
                  "v_sub_u32 v6, v6, v7", "v_sub_u32 v7, v6, v7"]
            for i in range(2): vv += [f"v_cmp_eq_u32 vcc, {i}, v6", f"v_mov_b32 v{SE+i}, 0", f"v_mov_b32 v{SE+4+i}, 0", f"v_cndmask_b32 v{SE+2+i}, 0, v4, vcc"]
            fillv([slots[i] for i in range(1, 32)], vv)
        if t == 19:
            for e in range(2):
                for i in range(4):
                    k = 4*e + i
                    slots[1+4*k].append(f"v_cmp_eq_u32 vcc, {i - 8*e}, v7"); slots[3+4*k].append(f"v_cndmask_b32 v{PK+k}, 0, v4, vcc")
        if t == 20:
            ms = ms + [f"v_mfma_f32_16x16x32_bf16 {vr(XF + (cb*2+tb)*4, 4)}, {vr(PK + 4*(cb&1), 4)}, {ar(4*(2*tb + (cb>>1)), 4)}, 0" for cb in range(4) for tb in range(2)]
        return ms, slots
    for t in range(NU, TC):
        if t == nf: stamp("s")
        stamp(f"t{t}")
        emit(a, *tail(t))
    last = [list(tail(t)) for t in range(TC, T)]
    m5, s5 = last[0]
    k = check(s5, "L_xb", maxtree(PL, 16), PLD)
    s5[1].append(f"s_mov_b32 s6, {f2u(-LOG2E)}")
    blocks = [(2*pp + e, tb) for pp in range(2) for tb in range(2) for e in range(2)]
    addm = [f"v_mfma_f32_16x16x32_bf16 {vr(facc(0, cb, tb), 4)}, {vr(SE + 2 - 2*(cb&1), 4)}, {vr(PL + 4*(2*tb + (cb>>1)), 4)}, {vr(facc(0, cb, tb), 4)}" for cb, tb in blocks]
    last[0][0] = m5[:k+1] + addm + m5[k+1:]
    silu = []
    for g in range(0, 8, 2):
        el = [(cb*2+tb)*4 + i for cb, tb in blocks[g:g+2] for i in range(4)]
        silu += [f"v_mul_f32 v{VQ+e}, s6, v{VF+e}" for e in el] + [f"v_exp_f32 v{VQ+e}, v{VQ+e}" for e in el] + [f"v_add_f32 v{VQ+e}, 1.0, v{VQ+e}" for e in el]
        silu += [f"v_rcp_f32 v{VQ+e}, v{VQ+e}" for e in el] + [f"v_mul_f32 v{VF+e}, v{VF+e}, v{VQ+e}" for e in el]
    def outp(pp, tb, pk):
        d = PK + (tb*2+pp)*4; L = []
        for e in range(2):
            off = ((2*pp+e)*2+tb)*4
            if pk: L += [f"v_pk_fma_f32 {P(VS+off+h)}, {P(VS+off+h)}, {P(VF+off+h)}, {P(XF+off+h)}" for h in (0, 2)]
            else: L += [f"v_fma_f32 v{VS+off+h}, v{VS+off+h}, v{VF+off+h}, v{XF+off+h}" for h in range(4)]
        for e in range(2):
            off = ((2*pp+e)*2+tb)*4
            L += [f"v_cvt_pk_bf16_f32 v{d+2*e+h}, v{VS+off+2*h}, v{VS+off+2*h+1}" for h in range(2)]
        return L, [f"v_permlane16_swap_b32 v{d}, v{d+2}", f"v_permlane16_swap_b32 v{d+1}, v{d+3}"], f"buffer_store_dwordx4 v[{d}:{d+3}], v{V_XO+tb}, {S(SOUT)}, s19 offen offset:{pp*(2048 if o.get('fko') else 64)}{[' sc1', '', ' nt', ' nt sc1', ' sc0 sc1'][o.get('op', 0)]}"
    nin = o["nin"]
    gaps = [sl[i] for ms, sl in last for i in range(len(ms))]
    e7 = len(gaps) - 32 + o["s7e"]
    fillv(gaps[k+9:e7], silu[:nin])
    (l0, w0, t0), (l1, w1, t1) = outp(0, 0, False), outp(0, 1, False)
    if o["s7e"] < 32:
        assert nin >= 80
        fillv(gaps[e7:-1], l0 + l1 + w0 + w1)
        gaps[-1].extend([t0, t1])
    for t, (ms, sl) in zip(range(TC, T), last):
        stamp(f"t{t}"); emit(a, ms, sl)
    stamp("fin")
    for g in range(nin//20, 8, 2):
        el = [(cb*2+tb)*4 + i for cb, tb in blocks[g:g+2] for i in range(4)]; ep = el[::2]
        a.extend([f"v_pk_mul_f32 {P(VQ+e)}, {P(VF+e)}, s[6:7] op_sel_hi:[1,0]" for e in ep] + [f"v_exp_f32 v{VQ+e}, v{VQ+e}" for e in el] + [f"v_pk_add_f32 {P(VQ+e)}, {P(VQ+e)}, 1.0 op_sel_hi:[1,0]" for e in ep])
        a.extend([f"v_rcp_f32 v{VQ+e}, v{VQ+e}" for e in el] + [f"v_pk_mul_f32 {P(VF+e)}, {P(VF+e)}, {P(VQ+e)}" for e in ep])
    for pp in range(0 if o["s7e"] == 32 else 1, 2):
        (l0, w0, t0), (l1, w1, t1) = outp(pp, 0, True), outp(pp, 1, True)
        a.extend(l0 + l1 + w0 + [t0] + w1 + [t1])
    if o.get("cnt"):
        a(f"s_lshl2_add_u32 s0, s2, s3\ns_lshl_b32 s0, s0, 2\ns_add_u32 s0, s0, {STAMP_OFF + 0x10000}\nv_mov_b32 v4, s0\nv_mov_b32 v5, s101\nglobal_store_dword v4, v5, s[{SW}:{SW+1}]")
    if o["stamps"]:
        stamp("fs")
        a("s_waitcnt vmcnt(0)")
        stamp("end")
        a(f"s_cmp_lg_u32 s3, {o['stw']}\ns_cbranch_scc1 L_end")
        st.n = len(sset)
        st.flush(a, SW, 2, 4)
    for ty in range(2): paths[ty] += list(range(p0, len(a.lines)))
    ab = o.get("ab", 0)
    k2lines = set(paths[0] + paths[1])
    for i in k2lines:
        l = a.lines[i]
        kill = False
        if ab & 1 and "buffer_store_dword v3, off" in l and "offset:0" not in l: kill = True
        if ab & 2 and ";@poll" in l and "s59" not in l: kill = True
        if ab & 3 and any(f"s_cbranch_vccnz {n}" in l for n in ("L_b2", "L_b3", "L_of")): kill = True
        if ab & 4 and (";@gld" in l or "L_kvf_s" in l or "scc1 L_gat" in l or "scc1 L_red" in l or ("s54 offen" in l and "store" in l)): kill = True
        if ab & 8 and ";@late" in l: kill = True
        if ab & 16 and (";@pld" in l or "L_xb_s" in l or ("s61 offen" in l and "store" in l)): kill = True
        if kill: a.lines[i] = "    s_nop 0"
    resolve(a.lines, paths)
    a("L_end:\ns_endpgm")
    a.lines += hk.lines + ool.lines + ["L_cend:"]
    a.lines, n = hazard.fix(a.lines, verbose=o.get("hv", 0))
    if o.get("cnt"): print(spn)
    ref = "cdna_kernels/" + NAME + ".s.ref"
    hdr = open(ref).read().split("; Override launch")[0] if os.path.exists(ref) else ""
    k = dict(name=NAME + "_kernel", grid=256, block=256, lds=163840, body=a, vgpr=256, agpr=256)
    if "pm" in o:
        pr = Asm(); pa, pb, M, pw = o.get("pa", 0), o.get("pb", 0), o["pm"], o.get("pw", 0)
        pr(f"""s_cmp_ge_u32 s2, 1
s_cbranch_scc1 Lp_end
s_load_dwordx2 s[4:5], s[0:1], 72
s_memrealtime s[8:9]
v_mov_b32 v1, {STAMP_OFF + pw*128 + pa*8 + 4}
v_mov_b32 v2, {STAMP_OFF + pw*128 + (pb % 10)*8 + 4}
s_waitcnt lgkmcnt(0)
global_load_dword v3, v1, s[4:5]
global_load_dword v4, v2, s[4:5]
s_waitcnt vmcnt(0)
{"v_mov_b32 v4, s8" if pb == 99 else ""}
v_sub_u32 v3, v4, v3
s_nop 1
v_readfirstlane_b32 s6, v3
s_nop 3
s_min_u32 s6, s6, 20000
s_mul_i32 s6, s6, {M}
Lp_loop:
s_memrealtime s[10:11]
s_waitcnt lgkmcnt(0)
s_sub_u32 s12, s10, s8
s_cmp_lt_u32 s12, s6
s_cbranch_scc1 Lp_loop
Lp_end:
s_endpgm""")
        return hdr + file_text([k, dict(name="probe_kernel", grid=1, block=64, lds=0, body=pr, vgpr=8, agpr=0)])
    txt = file_text([k]).replace(f"@launch kernel={NAME}_kernel ", "@launch ")
    return hdr + txt
if __name__ == "__main__":
    kw = {}
    for x in sys.argv[2:]:
        k, v = x.split("="); kw[k] = int(v)
    open(sys.argv[1], "w").write(gen(**kw))
```

```python
import sys, struct, math, os
from asmlib import *
import hazard

WS_A, WS_I, WS_CS, WS_ST, WS_SIZE = 0, 0x1400000, 0x1C00000, 0x1C80000, 0x1D00000
def f2u(x): return hex(struct.unpack("<I", struct.pack("<f", x))[0])
LOG2E = 1.4426950408889634
GA1 = -2.0*LOG2E*math.sqrt(2.0/math.pi); GA3 = GA1*0.044715
W_OFF = 32768
STAGE = 73728
MB = 2*STAGE
MB_AOS, MB_NM, MB_RS = MB + 10240, MB + 14336, MB + 15360
CSS = 65536
KVX = 67584
RING2 = 81920
KVF = STAGE + 16384
STRM = 144*2048
SPIN = 0x80000
BIG = 0x7ff00000

def cls(i):
    n = i.split()[0]
    if n.endswith(":"): return -1
    if n.startswith("s_"): return 0
    if n.startswith(("ds_", "buffer_", "global_")): return 1
    return 2
def emit(a, mfmas, slots):
    for i in range(-1, len(mfmas)):
        if i >= 0: a(mfmas[i])
        items = slots.get(i, [])
        if any(cls(x) < 0 or "exec" in x or "cbranch" in x for x in items): a.extend(items)
        else: a.extend(sorted(items, key=cls))
def spread(slots, items, lo, hi):
    n = len(items)
    for i, x in enumerate(items):
        p = lo + (i*(hi - lo + 1))//max(n, 1)
        slots[p].extend(x if isinstance(x, list) else [x])
def vcost(x): return 2 if x.startswith(("v_exp", "v_rcp", "v_rsq")) else 1
def fillv(gaps, items):
    used = [sum(vcost(y) for y in g if cls(y) > 0) for g in gaps]
    tot = sum(used) + sum(vcost(x) for x in items)
    if tot <= 1.8*len(gaps):
        p = 0
        for x in items:
            while p < len(gaps) - 1 and used[p] + vcost(x) > 2: p += 1
            used[p] += vcost(x); gaps[p].append(x)
        return
    rate = tot/len(gaps); cum = 0; k = 0
    for p, g in enumerate(gaps):
        cum += used[p]
        while k < len(items) and (cum + vcost(items[k])/2 <= rate*(p+1) or p == len(gaps) - 1):
            g.append(items[k]); cum += vcost(items[k]); k += 1
def resolve(lines, paths):
    best = {}
    for path in paths:
        n = 0; pos = {}
        for i in path:
            l = lines[i].strip()
            if l.startswith(("buffer_", "global_")):
                n += 1
                if ";@" in l:
                    for t in l.split(";@")[1].split(","): pos[t.strip()] = n
            elif l.startswith("s_waitcnt @"):
                tags = [t for t in l.split()[1][1:].split(",") if t in pos]
                c = n - max(pos[t] for t in tags) if tags else 63
                best[i] = min(best.get(i, 63), c)
    for i, c in best.items():
        w = lines[i].split()
        lines[i] = "    " + " ".join([w[0], f"vmcnt({c})"] + w[2:])
    assert not any("s_waitcnt @" in l for l in lines)
class VM:
    def __init__(self, a): self.a = a; self.n = 0
    def __call__(self, s):
        self.a(s); self.n += 1; return self.n
    def wait(self, tag): self.a(f"s_waitcnt vmcnt({self.n - tag})")
def P(r): return f"v[{r}:{r+1}]"
SETS = {0: ["start", "loop", "e0", "k2", "s", "fin", "end"],
        2: ["k2", "t4", "t8", "t12", "t16", "t25", "s"],
        3: ["start", "karg", "addr", "zero", "dma", "loop", "i1"],
        4: ["loop", "i1", "i2", "i4", "i6", "s14", "e0"],
        1: ["i5", "s14"], 10: ["loop", "s0m", "s0e", "i1", "i2"], 11: ["i4", "s8m", "i5", "s14", "s14m", "s15", "e0"],
        8: ["t7", "t8", "t9", "t10", "t11", "t12", "t13"],
        9: ["k2", "t1", "t2", "t3", "t4", "t5", "t6"],
        7: ["t16", "t20", "t22", "t24", "t26", "t28", "t30"],
        6: ["s", "t32", "t33", "t34", "fin", "fs", "end"],
        5: ["e0", "b1", "w1d", "b2", "chk", "chkd", "k2"]}

def gen(**kw):
    o = dict(stamps=0, stw=2, ev=5, dst=18, od=1, sq=0, cpf=2, npf0=1, nd0=2, d0s=16, d0e=3, ax0=72, lb0=40, spf=0, vo=3, rv=1, rh=5, unA=2, unB=4, snk=3, pfb=0, dsb=4, evb=5, axb=24, ts=10, te=10, xl=0, nm=8, lba=0, npf1=2, zper=12, slp=8, pfd=0, pfp=1, rp=2, pf2p=3, inp=4, csp=8, atp=6,
             pf2s=8, rs=2, sh=4, ctm=1, nin=80, s7e=20, pl=4, opoll=21, pro=1, ax=44, early=2, cpq=50, nw=4, tw=8, bs=0, na=2, cpt=99, tj=3, tg=10, nsA=12, nsB=13, fB=1, pf3=0, pB=4, cB=7, fA=3, pA=8, cA=15)
    o.update(kw)
    a = Asm(); ool = Asm(); near = Asm(); st = Stamps(o["stamps"], 74, 0)
    sset = SETS[o["sq"]]
    def stamp(tag, w=False):
        if tag in sset and o["stamps"]:
            st.n = sset.index(tag); st.stamp(a)
            if w: a("s_waitcnt lgkmcnt(0)")
    SX, SQ, SG, SW, SD, SO, SOUT, SP, SP2, SI, SU = 8, 12, 16, 24, 28, 32, 36, 40, 44, 48, 64
    V_XV, V_WV, V_XR, V_WR, V_PF, V_PF2, V_CSO = 8, 16, 22, 26, 32, 33, 34
    V_T, V_CSA, V_SEL, V_SENT = 36, 40, 44, 4
    V_ACC = 48; A_X = 0; A_W = 64; A_ACC = 144
    def S(d): return f"s[{d}:{d+3}]"
    def fin(d, size): a(f"s_mov_b32 s{d+2}, {size}\ns_mov_b32 s{d+3}, 0x20000")
    def accb(tb, cb):
        i = cb*8 + tb
        return ("v", V_ACC + 4*i) if i < 52 else ("a", A_ACC + 4*(i-52))
    def acc(tb, cb):
        p, b = accb(tb, cb); return vr(b, 4, p)
    def xf(tb, ks): return ar(A_X + (tb*2+ks)*4, 4)
    def wfb(cb, ks): return A_W + (cb*2+ks)*4
    spn = {}
    def spin_ool(name, cmp, reload):
        k = spn.setdefault(name[:4] if name[:4] in ("L_b1", "L_b2", "L_in") else name, len(spn) + 1)
        ool(f"{name}_s:")
        if o.get("cnt"):
            ool(f"s_bitset1_b32 s101, {k}")
        ool(f"s_mov_b32 s0, 0\n{name}_l:\ns_sleep {o['slp']}\n{reload}\ns_waitcnt vmcnt(0)\n{cmp}\ns_add_u32 s0, s0, 1\ns_cmp_ge_u32 s0, {SPIN}\ns_cbranch_scc1 {name}_d\ns_nop 1\ns_cbranch_vccnz {name}_l\ns_branch {name}_d")
    def spin(name, cmp, reload):
        a(cmp + f"\ns_nop 3\ns_cbranch_vccnz {name}_s\n{name}_d:")
        spin_ool(name, cmp, reload)

    a("s_cmp_ge_u32 s2, 256\ns_cbranch_scc1 L_end")
    stamp("start")
    a(f"s_load_dwordx2 s[{SX}:{SX+1}], s[0:1], 0\ns_load_dwordx2 s[{SQ}:{SQ+1}], s[0:1], 8\ns_load_dwordx2 s[{SG}:{SG+1}], s[0:1], 32\ns_load_dwordx2 s[{SU}:{SU+1}], s[0:1], 40")
    a("v_lshrrev_b32 v1, 6, v0\nv_and_b32 v2, 63, v0\ns_lshr_b32 s58, s2, 3")
    n0 = 0
    if o["cpf"]:
        a("s_getpc_b64 s[72:73]\nL_pc:\nv_min_u32 v3, 15, v2\nv_mad_u32_u24 v4, v1, 9, v3\nv_mad_u32_u24 v5, v1, 7, v3\ns_mul_i32 s6, s58, 28\nv_cmp_ne_u32 vcc, 0, v1")
        a("s_bitcmp1_b32 s2, 5\ns_cselect_b32 s7, (L_tB-L_tA)/128-3, 0\nv_mov_b32 v6, s7\nv_add_u32 v5, s6, v5\nv_cndmask_b32 v6, 0, v6, vcc\nv_cmp_gt_u32 vcc, 7, v3\nv_add3_u32 v4, v4, v6, -7")
        a("v_cndmask_b32 v4, v4, v5, vcc\nv_lshlrev_b32 v4, 7, v4\nv_min_u32 v4, L_cend-L_pc-4, v4")
        a("global_load_dword v0, v4, s[72:73]")
    a("v_readfirstlane_b32 s3, v1\nv_lshlrev_b32 v1, 4, v2")
    a(f"s_load_dwordx2 s[{SW}:{SW+1}], s[0:1], 72\ns_load_dwordx2 s[{SD}:{SD+1}], s[0:1], 48\ns_load_dwordx2 s[{SO}:{SO+1}], s[0:1], 16")
    a(f"s_load_dwordx2 s[{SOUT}:{SOUT+1}], s[0:1], 56\ns_load_dwordx2 s[62:63], s[0:1], 64")
    a("s_bfe_u32 s60, s2, 0x20001\ns_lshr_b32 s6, s2, 5\ns_lshl3_add_u32 s4, s60, s6")
    a("s_and_b32 s23, s2, 1\ns_bfe_u32 s6, s2, 0x20003\ns_lshl2_add_u32 s5, s23, s6\ns_lshl_b32 s23, s23, 3")
    a("s_lshr_b32 s52, s3, 1\ns_and_b32 s53, s3, 1")
    a("s_cmp_eq_u32 s3, 0\ns_cbranch_scc1 L_pf0\ns_cmp_eq_u32 s3, 1\ns_cbranch_scc1 L_pf1")
    a(f"s_mov_b32 s{SP+2}, {1024*3584*2}\ns_mov_b32 s59, {64*7168}")
    a("v_min_u32 v3, 27, v2\nv_cmp_le_u32 vcc, 14, v3\ns_lshl_b32 s6, s58, 1\ns_mul_i32 s7, s60, 1792\nv_cndmask_b32 v4, 0, 1, vcc\nv_mul_u32_u24 v5, 14, v4\nv_sub_u32 v5, v3, v5")
    a("v_add_u32 v4, s6, v4\nv_lshl_add_u32 v5, v5, 7, s7\ns_movk_i32 s57, 7168")
    a(f"v_mad_u32_u24 v{V_PF}, v4, s57, v5\ns_waitcnt lgkmcnt(0)\ns_cmp_eq_u32 s3, 2\ns_cselect_b32 s{SP}, s{SG}, s{SU}\ns_cselect_b32 s{SP+1}, s{SG+1}, s{SU+1}\ns_branch L_pfd")
    a("L_pf1:")
    a(f"s_mov_b32 s{SP+2}, {1024*3072*2}\ns_mov_b32 s59, {64*6144}")
    a("v_min_u32 v3, 23, v2\nv_cmp_le_u32 vcc, 12, v3\ns_lshl_b32 s6, s58, 1\ns_lshl_b32 s7, s60, 9\nv_cndmask_b32 v4, 0, 1, vcc\nv_mul_u32_u24 v5, 12, v4\nv_sub_u32 v5, v3, v5")
    a("v_add_u32 v4, s6, v4\nv_lshrrev_b32 v6, 2, v5\nv_and_b32 v5, 3, v5\nv_lshl_add_u32 v5, v5, 7, s7\nv_lshl_add_u32 v5, v6, 11, v5\ns_movk_i32 s57, 6144")
    a(f"v_mad_u32_u24 v{V_PF}, v4, s57, v5\ns_waitcnt lgkmcnt(0)\ns_mov_b32 s{SP}, s{SQ}\ns_mov_b32 s{SP+1}, s{SQ+1}\ns_branch L_pfd")
    a("L_pf0:")
    a(f"s_mov_b32 s{SP+2}, {2048*1024*2}\ns_mov_b32 s59, 128")
    a(f"s_lshl2_add_u32 s6, s23, s58\ns_lshl_b32 s6, s6, 5\nv_min_u32 v4, 31, v2\nv_add_u32 v4, s6, v4\nv_lshlrev_b32 v{V_PF}, 11, v4")
    a(f"s_waitcnt lgkmcnt(0)\ns_mov_b32 s{SP}, s{SX}\ns_mov_b32 s{SP+1}, s{SX+1}")
    a("L_pfd:")
    if o.get("norot"): a("s_mov_b32 s23, 0")
    a(f"s_mov_b32 s{SP+3}, 0x20000\ns_mul_i32 s58, s23, s59")
    stamp("karg", True)
    PFA = [f"s_add_u32 s58, s23, {o['pfd'] + 1}", f"s_and_b32 s58, s58, {o.get('kmask', 15)}", "s_mul_i32 s58, s58, s59"]
    PFI = f"buffer_load_dword v0, v{V_PF}, {S(SP)}, s58 offen"
    for i in range(o["npf0"]): a(PFI); a("s_add_u32 s58, s58, s59")
    def sload(lo, hi):
        for i in range(lo, hi):
            a(f"s_load_dword s73, s[{SP}:{SP+1}], s44")
            a(f"s_add_u32 s44, s44, s{45 if i % 4 < 3 else 46 if i % 16 < 15 else 47}")
    if o["spf"]:
        a(f"v_readfirstlane_b32 s44, v{V_PF}\ns_movk_i32 s47, 2048\ns_cmp_eq_u32 s3, 0\ns_cselect_b32 s45, s47, 128\ns_cselect_b32 s46, s47, 128\ns_cselect_b32 s47, s47, {7168 - 1920}\ns_cmp_eq_u32 s3, 1\ns_cselect_b32 s46, {2048 - 384}, s46\ns_cselect_b32 s47, {2048 - 384}, s47\ns_add_u32 s44, s44, s58")
        sload(0, o["spf"])
    fin(SG, 1024*3584*2); fin(SU, 1024*3584*2); fin(SX, 2048*1024*2); fin(SQ, 1024*3072*2)
    a(f"s_lshl_b32 s20, s23, 7\ns_mul_i32 s21, s23, {64*6144}\ns_mul_i32 s22, s23, {64*7168}")
    a(f"s_lshl_b32 s54, s3, 13\ns_lshl_b32 s55, s3, 11\ns_add_u32 s55, s55, {W_OFF}\ns_lshl_b32 s56, s3, 10\ns_add_u32 s56, s56, {W_OFF + 32768}")
    a("s_lshl_b32 s6, s5, 8\ns_lshl_b32 s7, s3, 6\ns_add_u32 s6, s6, s7")
    a("v_lshrrev_b32 v3, 3, v2\nv_add_u32 v7, s6, v3\nv_lshlrev_b32 v7, 11, v7\nv_lshrrev_b32 v4, 4, v2\nv_and_b32 v5, 7, v2")
    for c in range(2):
        a(f"v_add_u32 v6, {4*c}, v4\nv_xor_b32 v6, v6, v5\nv_lshl_add_u32 v6, v6, 4, v7")
        for cc in range(c, 8, 2): a(f"v_add_u32 v{V_XV+cc}, {cc*8*2048}, v6")
    a("s_lshl_b32 s6, s52, 5\ns_lshl2_add_u32 s61, s53, s6")
    a("v_and_b32 v3, 3, v3\nv_lshrrev_b32 v6, 5, v2\nv_lshl_add_u32 v3, v6, 3, v3\nv_add_u32 v3, s61, v3")
    a("v_lshlrev_b32 v6, 1, v4\nv_xor_b32 v5, v5, v6\nv_lshlrev_b32 v5, 4, v5")
    a("s_lshr_b32 s0, s4, 1\ns_and_b32 s1, s0, 1\ns_mul_i32 s6, s0, 448\ns_movk_i32 s57, 7168")
    a("s_bitcmp1_b32 s2, 5\ns_cbranch_scc1 L_tB")

    def dma_list(ty, stage):
        b = stage*STAGE
        xs = [(f"s_add_u32 m0, s54, {b + c*1024}", f"buffer_load_dwordx4 v{V_XV+c}, {S(SX)}, s20 offen lds") for c in range(8)]
        def w(u, c, reg, srd, so, off=0):
            return (f"s_add_u32 m0, s55, {b + u*8192 + c*1024 - off}", f"buffer_load_dwordx4 v{reg}, {S(srd)}, s{so} offen{f' offset:{off}' if off else ''} lds")
        if ty == 0:
            ws = [w(u, c, V_WV+c, (SG, SU)[u], 22) for u in range(2) for c in range(2)]
            ws += [w(2, c, V_WV+2+c, SQ, 21) for c in range(2)] + [w(3, c, V_WV+2+c, SQ, 21, 2048) for c in range(2)] + [w(4, c, V_WV+4+c, SQ, 21) for c in range(2)]
        else:
            ws = [w(2*h+u, c, V_WV+c, (SG, SU)[u], 22, 128*h) for u in range(2) for c in range(2) for h in range(2)]
            ws += [(f"s_add_u32 m0, s56, {b + u*4096}", f"buffer_load_dwordx4 v{V_WV+2}, {S((SG, SU)[u])}, s22 offen lds") for u in range(2)]
        od = o.get("od", 0)
        if od == 1: return xs + ws
        if od == 2: return [y for p in zip(xs, ws) for y in p] + ws[8:]
        return ws + xs
    adv = ["s_add_u32 s23, s23, 1", f"s_and_b32 s23, s23, {o.get('kmask', 15)}", f"s_mul_i32 s22, s23, {64*7168}", f"s_mul_i32 s21, s23, {64*6144}", "s_lshl_b32 s20, s23, 7"]
    EV, ST0 = o["ev"], o["dst"]
    dpos = [ST0 + EV*i for i in range(18)]
    dpos = [p + 1 if p == 80 else p for p in dpos]
    n3 = sum(1 for p in dpos if p < 80)
    BL = [[("g", 0, 0), ("u", 1, 0), ("g", 0, 1), ("u", 1, 1), ("q", 2, 0), ("q", 2, 1), ("k", 3, 0), ("k", 3, 1), ("v", 4, 0), ("v", 4, 1)],
          [("g", 0, 0), ("u", 1, 0), ("g", 0, 1), ("u", 1, 1), ("h", 0, 2), ("h", 1, 2), ("g", 2, 0), ("u", 3, 0), ("g", 2, 1), ("u", 3, 1)]]
    def xread(stage, tb, ks): return f"ds_read_b128 {xf(tb, ks)}, v{V_XR + stage*2 + ks} offset:{tb*2048}"
    def wread(ty, stage, cb):
        t, u, i = BL[ty][cb]; L = []
        for ks in range(2):
            for rd in range(2):
                row = 32*ks + 16*rd
                off = u*4096 + row*64 if t == "h" else u*8192 + row*128
                L.append(f"ds_read_b64_tr_b16 {ar(wfb(cb, ks)+2*rd, 2)}, v{V_WR + 2*i + stage} offset:{off}")
        return L
    def mfmas(ty, half, first=False):
        L = []
        for cb, (t, u, i) in enumerate(BL[ty]):
            for n, tb in enumerate(range(4*half, 4*half+4) if cb % 2 == 0 or not o["snk"] & 1 else range(4*half+3, 4*half-1, -1)):
                for ks in ((0, 1) if n % 2 == 0 else (1, 0)):
                    x, w = xf(tb, ks), ar(wfb(cb, ks), 4)
                    A, B = (x, w) if t in "kv" else (w, x)
                    L.append(f"v_mfma_f32_16x16x32_bf16 {acc(tb, cb)}, {A}, {B}, {0 if first and ks == n % 2 else acc(tb, cb)}")
        return L
    V_BV = 8
    def n0(T): return [0, 2, 12, 8][T & 3] + 14*(T >> 2) if T < 16 else 7*(T-16) + 4 - (T & 1) if T < 24 else 14*(T-24) + 6
    def bdma(slot, ph, base=0):
        s_, so = (S(SD) if ph == "f" else S(SO)), 15
        return [(f"s_add_u32 m0, s18, {base + slot*16384 + c*1024}", f"buffer_load_dwordx4 v{V_BV+c}, {s_}, s{so} offen lds") for c in range(4)]
    def put(slots, dm):
        for pre, m, d, p in dm:
            for k, x in enumerate(pre): slots[p - 1 - len(pre) + k].append(x)
            slots[p-1].append(m); slots[p].append(d)
    def atomic(off):
        return f"v_mov_b32 v{V_SEL}, {off}\nv_mov_b32 v{V_SEL+1}, 1\ns_mov_b64 exec, 1\nglobal_atomic_add v{V_SEL}, v{V_SEL+1}, s[62:63] sc1\ns_mov_b64 exec, -1"
    def fill(slots, items, lo, hi):
        p = lo
        for x in items:
            x = x if isinstance(x, list) else [x]
            while True:
                assert p <= hi, "no room"
                nv = sum(cls(y) > 0 for y in slots[p]); ns_ = sum(cls(y) == 0 for y in slots[p])
                if ns_ + len(x) <= (3 if nv == 0 else 1) and not any("m0" in y or "waitcnt" in y for y in slots[p]): break
                p += 1
            slots[p].extend(x)
    def putds(slots, items, pos, hi):
        last = -1
        for x, p in zip(items, pos):
            p = max(p, last + 1)
            q = p
            while q <= hi and any(cls(y) > 0 for y in slots[q]): q += 1
            if q > hi or q > p + 2: q = p
            slots[q].append(x); last = q
    uid = [0]
    def cond(cmp, body, neg=False):
        uid[0] += 1
        return cmp + [f"s_cbranch_scc{1 if neg else 0} L_c{uid[0]}"] + body + [f"L_c{uid[0]}:"]
    def phase1(ty, stage, kind, dm):
        slots = {i: [] for i in range(-1, 80)}
        slots[-1].append("s_waitcnt lgkmcnt(4)")
        put(slots, dm)
        if kind == "s14": slots[2].append("global_load_dword v3, v35, s[62:63] sc1")
        xb = [xread(stage, tb, ks) for tb in range(4, 8) for ks in range(2)]
        lastd = max([x[3] for x in dm] + [0])
        if kind == "s0":
            for cb in range(8):
                gp = sorted(sorted(range(8*cb, 8*cb+7), key=lambda q: any(cls(y) > 0 for y in slots[q]))[:5])
                for q, x in zip(gp, wread(ty, 0, cb+2) + [xb[cb]]): slots[q].append(x)
                assert len(gp) == 5
                slots[8*cb+7].append("s_waitcnt lgkmcnt(5)")
            slots[71].append("s_waitcnt lgkmcnt(0)")
        elif kind == "s8":
            putds(slots, wread(ty, stage, 9) + xb, [8 + 2*i for i in range(12)], 40)
            slots[63].append("s_waitcnt lgkmcnt(0)")
        else:
            putds(slots, wread(ty, stage, 9) + xb, [1 + 3*i for i in range(12)], 40)
            slots[63].append("s_waitcnt lgkmcnt(0)")
        if kind in ("s0", "la", "s8", "lb"):
            ax = {"s0": o["ax0"], "lb": o["axb"]}.get(kind, o["ax"])
            assert ax > lastd
            if o["pfb"] or kind in ("s0", "la"):
                fill(slots, PFA, 0, ax - 1)
                slots[ax].append(PFI)
            if kind in ("lb", "s8"):
                slots[ax+3].append(f"buffer_load_dword v0, v{V_PF2}, {S(SP2)}, s60 offen"); slots[ax+4].append("s_add_u32 s60, s60, 1664")
            elif kind == "s0" and o.get("nor0"): slots[ax+2].append(f"buffer_load_dword v0, v1, {S(SX)}, 0 offen")
            elif stage == 0:
                slots[ax+1].append("s_mov_b32 m0, s0"); slots[ax+2].append(f"buffer_load_dwordx4 v1, {S(SX)}, s1 offen lds")
                slots[ax+3].extend(["s_add_u32 s0, s0, 1024", "s_add_u32 s1, s1, 1024"])
            else:
                slots[ax+3].append(f"buffer_store_dwordx4 {vr(V_SENT, 4)}, v1, {S(SI)}, s61 offen sc1"); slots[ax+4].append("s_add_u32 s61, s61, 1024")
            fill(slots, adv, max(64, lastd + 1), 77)
        if kind in ("s0", "la"):
            for r in range(4): slots[66 + 2*r].append(f"v_mov_b32 v{V_SEL+r}, v35")
            ret = 1 if kind == "s0" else 2 + stage
            slots[62].append(f"s_mov_b32 s72, {ret}")
            slots[78].append("s_cmp_eq_u32 s57, s68")
            slots[79].extend([f"s_cbranch_scc1 L_cs{ty}", f"L_cs{ty}_d{ret}:"])
        if kind == "s8":
            slots[-1].extend([f"buffer_store_dwordx4 {vr(V_CSA, 4)}, v{V_CSO}, {S(SW)}, s69 offen sc1", "v_add_u32 v3, s0, v1"])
            DR = [V_T, V_SEL, V_CSA]
            for i in range(3): slots[i].append(f"ds_read_b128 {vr(DR[i], 4)}, v3 offset:{1024*i}")
            fill(slots, ["s_lshr_b32 s0, s2, 5", "s_mul_i32 s0, s0, 6144", f"s_add_u32 s0, s0, {WS_ST}", "s_and_b32 s7, s2, 31", "s_lshl2_add_u32 s7, s7, s3", "s_lshl3_add_u32 s1, s7, s0", "s_add_u32 s1, s1, 4096", "s_lshl_b32 s7, s7, 5", "s_add_u32 s0, s0, s7"], 8, 60)
            slots[7].append("s_waitcnt lgkmcnt(0)")
            def chunk(i):
                r = i >> 1; vv = []
                for q in range(4):
                    x = DR[i % 3] + q; f = (i & 1) == 0 and q == 0
                    vv += [f"v_lshlrev_b32 v34, 16, v{x}", f"v_and_b32 v{x}, 0xffff0000, v{x}"]
                    vv += [f"v_add_f32 v{4+r}, v34, v{x}", f"v_mul_f32 v{6+r}, v34, v34"] if f else [f"v_add_f32 v{4+r}, v{4+r}, v34", f"v_fmac_f32 v{6+r}, v34, v34", f"v_add_f32 v{4+r}, v{4+r}, v{x}"]
                    vv += [f"v_fmac_f32 v{6+r}, v{x}, v{x}"]
                return vv
            fillv([slots[i] for i in range(7, 19)], chunk(0))
            slots[19].append(f"ds_read_b128 {vr(DR[0], 4)}, v3 offset:3072")
            fillv([slots[i] for i in range(19, 42)], chunk(1) + chunk(2))
            slots[42].append("s_waitcnt lgkmcnt(0)")
            fillv([slots[i] for i in range(42, 53)], chunk(3))
            seq = [["v_lshrrev_b32 v46, 3, v2", "v_lshrrev_b32 v47, 1, v2"], ["v_permlane32_swap_b32 v4, v5", "v_permlane32_swap_b32 v6, v7"], ["v_add_f32 v4, v4, v5", "v_add_f32 v6, v6, v7"],
                   [f"v_mov_b32 v45, {f2u(1.0/1024)}"], ["v_permlane16_swap_b32 v4, v6", "v_add_f32 v4, v4, v6"]]
            seq += [["s_nop 0", f"v_add_f32_dpp v4, v4, v4 row_ror:{sh} row_mask:0xf bank_mask:0xf"] for sh in (8, 4, 2, 1)]
            seq += [["v_mov_b32 v6, v4"], ["s_nop 0", "v_permlane16_swap_b32 v4, v6", f"v_mul_f32 v36, {f2u(-1.0/1024)}, v4"], ["v_mul_f32 v44, v36, v36", "v_fma_f32 v44, v6, v45, -v44"],
                    ["v_max_f32 v44, 0, v44", f"v_add_f32 v39, {f2u(1e-5)}, v44"], ["v_rsq_f32 v44, v39"], [f"v_mul_f32 v37, {f2u(GA1)}, v44", "v_mul_f32 v45, v44, v44"],
                    [f"v_mul_f32 v38, {f2u(0.044715)}, v37", "v_mul_f32 v38, v38, v45"], ["v_mov_b64 v[4:5], -1", "v_mov_b64 v[6:7], -1"]]
            for i, x in enumerate(seq): slots[53 + i].extend(x)
            for i, x in enumerate([f"buffer_store_dwordx4 v[36:39], v47, {S(SW)}, s0 offen sc1", f"buffer_store_dword v36, v46, {S(SW)}, s1 offen sc1", f"buffer_store_dword v44, v46, {S(SW)}, s1 offen offset:1024 sc1"]):
                slots[72 + 3*i].extend(["s_mov_b64 exec, s[72:73]", x, "s_mov_b64 exec, -1"])
            slots[4].extend(["s_mov_b32 s72, 1", "s_mov_b32 s73, 1"])
        if kind == "s14":
            slots[0].extend(["v_and_b32 v35, 1, v2", "v_lshlrev_b32 v35, 7, v35"])
            nm = f"L_ini{ty}"; cmp = "v_cmp_gt_u32 vcc, 0x80, v3"
            slots[41].append(f"s_waitcnt vmcnt({sum(1 for x in dm if x[3] > 2)})"); slots[42].append(cmp)
            slots[44].extend([f"s_cbranch_vccnz {nm}_s", f"{nm}_d:"])
            spin_ool(nm, cmp, "global_load_dword v3, v35, s[62:63] sc1")
            ss = ["s_mul_i32 s6, s4, 10240", f"s_add_u32 s6, s6, {WS_CS}", "s_mul_i32 s7, s5, 6144", f"s_add_u32 s7, s7, {WS_ST - 10240}", "s_lshl_b32 s18, s3, 12", "s_add_u32 s6, s6, s18", "s_add_u32 s7, s7, s18",
                  ["s_cmp_lt_u32 s3, 3", "s_cselect_b32 s58, s6, s7"], ["s_cmp_lt_u32 s3, 2", "s_cselect_b32 s59, s6, s7"], f"s_mov_b32 s{SI+2}, 8192", "s_movk_i32 s61, 4096"]
            fill(slots, ss, lastd + 1, 43)
            slots[45].append(f"s_add_u32 m0, s18, {MB}")
            for c in range(4): slots[46 + 3*c].append(f"buffer_load_dwordx4 v1, {S(SW)}, s{58 + (c >> 1)} offen offset:{c*1024} sc1 lds")
            vv = ["v_lshrrev_b32 v12, 3, v2", "v_bfe_u32 v13, v2, 4, 2", "v_lshlrev_b32 v13, 1, v13", "v_and_b32 v14, 7, v2", "v_xor_b32 v14, v14, v13",
                  "v_lshlrev_b32 v14, 4, v14", f"v_lshl_add_u32 v{V_BV}, v12, 11, v14"] + [f"v_add_u32 v{V_BV+c}, {16384*c}, v{V_BV}" for c in range(1, 4)]
            for i, x in enumerate(vv): slots[66 + i].append(x)
            for c in range(4): slots[59 + 5*c].append(f"buffer_store_dwordx4 {vr(V_SENT, 4)}, v1, {S(SI)}, s61 offen offset:{c*1024} sc1")
            if o["cpf"] > 1:
                q = o["cpq"]
                slots[q].extend(["s_getpc_b64 s[72:73]", f"L_pd{ty}:", f"s_sub_u32 s72, s72, L_pd{ty}-L_pc", "s_subb_u32 s73, s73, 0"])
                slots[q+1].extend(["s_lshr_b32 s0, s2, 3", "s_lshl2_add_u32 s0, s0, s3", "s_mul_i32 s0, s0, 7"])
                slots[q+2].extend(["v_min_u32 v36, 6, v2", "v_add_lshl_u32 v36, v36, s0, 7"])
                slots[q+3].append("v_min_u32 v36, L_cend-L_pc-4, v36")
                slots[57].append("global_load_dword v0, v36, s[72:73]")
            ss = ["s_bfe_u32 s20, s2, 0x10002", "s_and_b32 s6, s2, 1", "s_bfe_u32 s7, s2, 0x10001", "s_lshl1_add_u32 s6, s6, s7", "s_lshr_b32 s7, s2, 6", "s_lshl2_add_u32 s21, s6, s7",
                  "s_bfe_u32 s22, s2, 0x20003", "s_bfe_u32 s7, s2, 0x10005", "s_lshl1_add_u32 s22, s22, s7", "s_lshl_b32 s22, s22, 8",
                  f"s_mul_i32 s14, s20, {1792*2048}", "s_add_u32 s14, s14, s22", "s_xor_b32 s6, s53, s20", "s_lshl_b32 s6, s6, 7", "s_add_u32 s14, s14, s6",
                  "s_lshl_b32 s15, s52, 16", "s_add_u32 s14, s15, s14", "s_mov_b32 s15, s14"]
            fill(slots, ss, 47, 78)
        if kind == "s15":
            slots[0].extend([f"s_waitcnt vmcnt({o['n14']})", "s_barrier"])
            slots[2].extend(["s_mul_i32 s6, s3, 320", "v_lshl_add_u32 v12, v2, 3, s6"])
            slots[5].append(f"v_add_u32 v13, {MB}, v12"); slots[6].append(f"v_add_u32 v12, {CSS}, v12")
            putds(slots, [f"ds_read_b64 v[{32+2*r}:{33+2*r}], v13 offset:{r*1280}" for r in range(8)], range(37, 45), 50)
            slots[54].append("s_waitcnt lgkmcnt(0)")
            fillv([slots[i] for i in range(54, 64)], [f"v_add_f32 v{32+i}, v{32+i}, v{32+stp+i}" for stp in (8, 4, 2) for i in range(stp)])
            slots[65].append("ds_write_b64 v12, v[32:33]")
            vv = ["v_and_b32 v44, 15, v2", "v_lshrrev_b32 v45, 4, v2", "v_lshlrev_b32 v4, 11, v44", "v_add_u32 v44, s7, v44", "v_lshlrev_b32 v44, 4, v44", f"v_add_u32 v44, {MB_AOS}, v44",
                  "v_lshl_add_u32 v4, v45, 4, v4", "v_lshl_add_u32 v45, v45, 4, s64", "v_add_u32 v5, 32768, v4",
                  "v_bfe_u32 v46, v2, 1, 3", "v_bfe_u32 v47, v2, 4, 1", "v_lshl_or_b32 v46, v46, 4, v47", "v_and_b32 v47, 1, v2", "v_lshl_or_b32 v46, v46, 2, v47", "v_lshlrev_b32 v46, 14, v46", "v_mov_b32 v3, 1",
                  "v_lshrrev_b32 v7, 2, v2", "v_lshlrev_b32 v7, 7, v7", "v_and_b32 v6, 3, v2", "v_lshl_add_u32 v7, v6, 3, v7", "v_bfe_u32 v6, v2, 3, 2", "v_lshl_add_u32 v7, v6, 5, v7"]
            fillv([slots[i] for i in range(66, 80)], vv)
            ss = ["s_lshl_b32 s7, s53, 7", "s_mul_i32 s64, s52, 640", f"s_add_u32 s64, s64, {CSS}",
                  "s_lshl1_add_u32 s0, s5, s53", f"s_mul_i32 s1, s0, {4*STRM}", "s_lshr_b32 s6, s4, 4", "s_mul_i32 s48, s6, 56", "s_add_u32 s48, s48, 32", "s_and_b32 s56, s4, 15",
                  "s_lshl1_add_u32 s41, s56, s52", "s_add_u32 s40, s41, s48", "s_lshl_b32 s40, s40, 11", "s_add_u32 s40, s40, s1"]
            if ty == 0:
                ss += ["s_add_u32 s41, s4, s52", "s_lshl_b32 s44, s41, 11", "s_add_u32 s44, s44, s1"]
            else:
                ss += ["s_add_u32 s41, s56, s52", "s_sub_u32 s41, s41, 1", "s_add_u32 s44, s41, s48", "s_add_u32 s44, s44, 32", "s_lshl_b32 s44, s44, 11", "s_add_u32 s44, s44, s1",
                       "s_lshl1_add_u32 s48, s48, s41", "s_add_u32 s48, s48, 96", "s_lshl_b32 s48, s48, 10", "s_add_u32 s48, s48, s1"]
            for b in (40, 44, 48)[:2+ty]:
                for i in range(1, 4): ss.append(f"s_add_u32 s{b+i}, s{b}, {i*STRM}")
            ss += ["s_bfe_u32 s58, s21, 0x20001", "s_lshr_b32 s59, s21, 3", "s_lshl3_add_u32 s58, s58, s59", "s_and_b32 s59, s21, 1", "s_lshl2_add_u32 s58, s58, s59",
                   "s_lshl4_add_u32 s59, s20, s58", "s_lshl3_add_u32 s69, s3, s58", "s_lshl_b32 s59, s59, 13", "s_lshl_b32 s69, s69, 13", f"s_add_u32 s59, s59, {WS_I}", f"s_add_u32 s69, s69, {WS_I}",
                   "s_lshl_b32 s60, s53, 22", "s_lshl_b32 s0, s52, 16", "s_add_u32 s60, s60, s0", "s_add_u32 s60, s60, s59", f"s_add_u32 s60, s60, {1 << 20}",
                   "s_lshl2_add_u32 s19, s21, s3", f"s_mul_i32 s13, s19, {STRM}", f"s_mul_i32 s12, s20, {56*2048}", "s_add_u32 s12, s12, s13", f"s_add_u32 s12, s12, {32*2048}",
                   "s_lshl_b32 s0, s20, 7", "s_add_u32 s0, s0, s22", "s_lshl_b32 s19, s19, 16", "s_add_u32 s19, s19, s0", "s_lshl_b32 s17, s3, 16", "s_add_u32 s17, s17, s0",
                   "s_lshl2_add_u32 s61, s2, s3", "s_lshl_b32 s61, s61, 13", f"s_xor_b32 s65, s61, {16*8192}", f"s_add_u32 s54, s61, {WS_I}", f"s_add_u32 s55, s65, {WS_I}", f"s_add_u32 s61, s61, {WS_I + 4096}", f"s_add_u32 s65, s65, {WS_I + 4096}",
                   f"s_mov_b32 s68, {f2u(1e-6)}", f"s_mov_b32 s56, {f2u(LOG2E)}"]
            fill(slots, ss, 3, 62)
        emit(a, mfmas(ty, 0, kind == "s0"), slots)
    CS, TK, Z, Z2 = 12, 28, 36, 240
    def geglu1(el):
        vv = [f"v_fmac_f32 v{g}, v{cg}, v{tk}" for g, u, cg, cu, tk, z in el] + [f"v_mul_f32 v{z}, v{g}, v{g}" for g, u, cg, cu, tk, z in el]
        vv += [f"v_fma_f32 v{z}, v{z}, v{tk+2}, v{tk+1}" for g, u, cg, cu, tk, z in el] + [f"v_mul_f32 v{z}, v{z}, v{g}" for g, u, cg, cu, tk, z in el]
        vv += [f"v_exp_f32 v{z}, v{z}" for g, u, cg, cu, tk, z in el] + [f"v_fmac_f32 v{u}, v{cu}, v{tk}" for g, u, cg, cu, tk, z in el]
        vv += [f"v_fma_f32 v{z}, v{z}, v{tk+3}, v{tk+3}" for g, u, cg, cu, tk, z in el]
        vv += [f"v_rcp_f32 v{z}, v{z}" for g, u, cg, cu, tk, z in el] + [f"v_mul_f32 v{u}, v{u}, v{g}" for g, u, cg, cu, tk, z in el]
        return vv + [f"v_mul_f32 v{u}, v{u}, v{z}" for g, u, cg, cu, tk, z in el]
    XLD = [f"buffer_load_dwordx4 {ar(4*i, 4)}, v{4 + (i>>1)}, {S(SX)}, s19 offen offset:{(i&1)*64}" for i in range(4)]
    def phase2(ty, stage, kind, dm, nwait):
        slots = {i: [] for i in range(-1, 80)}
        ms = mfmas(ty, 1, kind == "s0")
        lb = {"s0": o["lb0"], "la": o["lba"]}.get(kind, 0)
        if lb:
            slots[0].append("s_barrier")
            slots[lb].extend([f"s_waitcnt vmcnt({2 + sum(1 for x in dm if x[3] < lb)})", "s_barrier"])
        else: slots[0].extend([f"s_waitcnt {nwait}", "s_barrier"])
        if kind == "lb" and stage == 0: slots[0].append(f"L_lbm{ty}:")
        put(slots, dm)
        if kind == "lb":
            nm = f"L_at{ty}{stage}"
            slots[1].append(f"s_cmp_eq_u32 s57, s{70 + stage}"); slots[2].extend([f"s_cbranch_scc1 {nm}", f"{nm}_d:"])
            near(f"{nm}:\ns_and_b32 s6, s2, 1\ns_lshl_b32 s6, s6, 7\n{atomic('s6')}\ns_branch {nm}_d")
        if kind in ("la", "lb") and stage == 1:
            slots[76].append("s_add_u32 s57, s57, 1"); slots[78].append(f"s_cmp_lt_u32 s57, {4 if kind == 'la' else 7}")
            assert not any("m0" in y for y in slots[78] + slots[79])
        if kind != "s15":
            xr = [xread(stage ^ 1, tb, ks) for tb in range(4) for ks in range(2)]
            if lb:
                rd = [(0, x) for x in xr] + [(8*(cb+1) + 1, x) for cb in range(9) for x in wread(ty, stage ^ 1, cb)]
                for i, (e, x) in enumerate(rd): slots[max(e, lb + (i*(80 - lb))//44)].append(x)
            else:
                for cb in range(9): putds(slots, wread(ty, stage ^ 1, cb), [8*(cb+1) + q for q in (1, 3, 5, 7)], 79)
                putds(slots, xr, [4, 6, 14, 22, 30, 38, 46, 54], 70)
        else:
            for i in range(4): slots[1+i].append(f"ds_read_b128 v[{CS+4*i}:{CS+4*i+3}], v45 offset:{i*64}")
            for i in range(2): slots[5+i].append(f"ds_read_b128 v[{TK+4*i}:{TK+4*i+3}], v44 offset:{i*256}")
            if not o["xl"]:
                for i in range(4): slots[7 + 2*i].append(XLD[i])
            slots[14].append("s_waitcnt lgkmcnt(0)")
            ne = o["early"]
            for tb in range(ne):
                r = [accb(tb, i)[1] for i in range(4)]
                el = [(r[2*n]+i, r[2*n+1]+i, CS+8*n+i, CS+8*n+4+i, TK+4*tb, Z+4*n+i) for n in range(2) for i in range(4)]
                lo, hi = 14 + (65*tb)//ne, 14 + (65*(tb+1))//ne
                fillv([slots[i] for i in range(lo, hi)], geglu1(el) + [f"v_cvt_pk_bf16_f32 v{r[0]+i}, v{el[2*i][1]}, v{el[2*i+1][1]}" for i in range(4)])
                slots[hi].append(f"buffer_store_dwordx4 v[{r[0]}:{r[0]+3}], v1, {S(SW)}, s40 offen offset:{tb*1024} sc1")
                if tb == 1: slots[lo+1].append(f"ds_read_b128 v[{TK}:{TK+3}], v44 offset:512")
        emit(a, ms, slots)
    VF, VQ, VS = 144, 112, 176
    D = 3; R = 4; nf, ns = 28, 8; T = nf + ns; NU = 16
    V_BR, V_A2, V_AO, V_XO, V_P2, V_P3 = 36, 40, 41, 42, 24, 25
    PL, PK, XF, SE, SX0, G = 64, 80, 208, 12, 20, 48
    TP = nf + o['pl']; TC = TP + 2
    def af(slot, i): return ar((80 + slot*16 if i < 4 else 128 + slot*16 if slot else 0) + (i & 3)*4, 4)
    def bf(p, u, cb): return (192 if p else 16) + (u*4+cb)*4
    def facc(ch, cb, tb): return (VF, VQ, VS)[ch] + (cb*2+tb)*4
    def ph(t): return "f" if t < nf else ("s" if t < T else None)
    def al(t):
        slot = t % R
        if 24 <= t < nf and not o.get("fodd"):
            L = [f"buffer_load_dwordx2 {ar(80 + slot*16 + (ks*2+tb)*4 + 2*h, 2)}, v{V_AO}, {S(SW)}, s12 offen offset:{ks*2048 + h*1024 + tb*512} sc1 ;@A{t}" for ks in range(2) for h in range(2) for tb in range(2)]
            return L, "s_add_u32 s12, s12, 4096"
        n, so = (4, 12) if ph(t) == "f" else (8, 13)
        L = [f"buffer_load_dwordx4 {af(slot, i)}, v{1 if i < 4 else V_A2}, {S(SW)}, s{so} offen offset:{(i&3)*1024} sc1 ;@A{t}" for i in range(n)]
        return L, f"s_add_u32 s{so}, s{so}, {n*1024}"
    def rl(t):
        slot, p = t % R, t & 1
        od = [(ks*2+ch, cb) for ch in range(2) for cb in range(4) for ks in range(2)] if ph(t) == "f" else [(u, cb) for cb in range(4) for u in range(4)]
        return [f"ds_read_b64_tr_b16 {ar(bf(p, u, cb) + rd*2, 2)}, v{V_BR + cb} offset:{slot*16384 + u*4096 + rd*2048}" for u, cb in od for rd in range(2)]
    def ml(t):
        slot, p = t % R, t & 1; L = []
        if ph(t) == "f":
            for ch in range(2):
                for cb in range(4):
                    for m, tb in enumerate((0, 1) if cb % 2 == 0 or not o["snk"] & 2 else (1, 0)):
                        for n, ks in enumerate((0, 1) if m == 0 else (1, 0)):
                            c = vr(facc(ch, cb, tb), 4)
                            L.append(f"v_mfma_f32_16x16x32_bf16 {c}, {ar(bf(p, ks*2+ch, cb), 4)}, {af(slot, ks*2+tb)}, {0 if t == 0 and n == 0 else c}")
        else:
            for cb in range(4):
                for m, tb in enumerate((0, 1) if cb % 2 == 0 or not o["snk"] & 2 else (1, 0)):
                    for n, ks in enumerate(range(4) if m == 0 else (3, 2, 1, 0)):
                        c = vr(facc(2, cb, tb), 4)
                        L.append(f"v_mfma_f32_16x16x32_bf16 {c}, {ar(bf(p, ks, cb), 4)}, {af(slot, ks*2+tb)}, {0 if t == nf and n == 0 else c}")
        return L
    BS = {u - D - 1: u for u in range(4, T) if not nf <= u < nf + o["nw"]}
    if o["nw"] == 4:
        for u in range(32, 36): del BS[u - D - 1]
        BS.update(zip([[24, 26, 28, 30], [24, 25, 26, 27], [28, 29, 30, 31], [24, 27, 29, 31]][o["bs"]], range(32, 36)))
    def build(t, tags=(), first=(), xm=0):
        ms = ml(t); n = 32 + xm
        slots = {i: [] for i in range(-1, n)}
        slots[-1].append(f"s_waitcnt @{','.join([f'A{t}', f'B{t+1}'] + list(tags))} lgkmcnt(0)")
        if ph(t+1): slots[0].append("s_barrier")
        b0 = len(first)
        for i, x in enumerate(first): slots[1+i].extend(x if isinstance(x, list) else [x])
        u = BS.get(t)
        bo = []; ao = []
        if u is not None:
            slots[b0].append(f"s_add_u32 s15, s14, {n0(u)*65536}" if ph(u) == "f" else f"s_add_u32 s15, s17, {(u-nf)*128*2048}")
            bo = [(m, d + f" ;@B{u}") for m, d in bdma(u % R, ph(u))]
            if o.get("hb") and u < nf: bo = bo[:2]
        if ph(t+D):
            L, ad = al(t+D); ao = [(None, x) for x in L]; slots[n-1].append(ad)
        vo = o["vo"]
        if vo == 0:
            st_ = 3 if b0 < 2 else 2
            pos = [b0+2+st_*c for c in range(len(bo))] + [14 + (i*(n - 15))//max(len(ao), 1) for i in range(len(ao))]
            ops = bo + ao
        else:
            if vo == 1: ops = bo + ao
            elif vo == 2: ops = ao + bo
            else:
                k = max(len(ao)//4, 1); ops = []
                for i in range(4): ops += bo[i:i+1] + ao[k*i:k*i+k]
            pos = [b0 + 2 + (i*(n - 3 - b0))//max(len(ops), 1) for i in range(len(ops))]
        for i, ((m, d), p) in enumerate(zip(ops, pos)):
            if m: slots[p-1].append(m)
            slots[p].append(d + (f",F{t}" if i == 0 else ""))
        if ph(t+1):
            hi = n - o["rh"]
            if o["rv"]:
                free = [q for q in range(0, hi + 1) if not any(cls(y) > 0 for y in slots[q])]
                for i, x in enumerate(rl(t+1)):
                    if o.get("hk") and 2 <= t < nf - 1 and (i >> 1) % 2 == (t >> 1) % 2: continue
                    slots[free[(i*len(free))//32]].append(x)
            else: spread(slots, rl(t+1), 0, hi)
        if o["nw"] and t in (nf - 2, nf + o["nw"] - 2):
            slots[n-1].extend([f"v_add_u32 v{V_BR+cb}, {RING2 if t == nf - 2 else hex(-RING2 & 0xffffffff)}, v{V_BR+cb}" for cb in range(4)])
        return ms, slots
    def check(slots, name, cmps, reload):
        for i, x in enumerate(cmps): slots[i].append(x)
        k = len(cmps) + 1
        slots[k].extend([f"s_cbranch_vccnz {name}_s", f"{name}_d:"])
        spin_ool(name, "\n".join(cmps), "\n".join(reload))
        return k
    def maxtree(b, n):
        return [f"v_max3_u32 v4, v{b}, v{b+1}, v{b+2}", f"v_max3_u32 v5, v{b+3}, v{b+4}, v{b+5}"] + [f"v_max3_u32 v{4+(i&1)}, v{4+(i&1)}, v{b+6+2*i}, v{b+7+2*i}" for i in range((n-6)//2)] + ["v_max_u32 v4, v4, v5", "v_cmp_eq_u32 vcc, -1, v4"]
    def FLG(sreg, off=0): return ["s_mov_b64 exec, 1", f"buffer_store_dword v3, off, {S(SW)}, s{sreg} offset:{off} sc1", "s_mov_b64 exec, -1"]
    def POLL(sreg, v, off=0): return f"buffer_load_dword v47, v{v}, {S(SW)}, s{sreg} offen offset:{off} sc1 ;@poll"
    CMP1 = ["v_cmp_ne_u32 vcc, 1, v47"]
    paths = [[], []]

    for ty in range(2):
        vm = VM(a)
        if ty == 0:
            a("L_tA:")
            a("s_mul_i32 s7, s1, 320\ns_add_u32 s6, s6, s7\nv_add_u32 v6, s6, v5")
            a(f"v_mad_u32_u24 v{V_WV}, v3, s57, v6\ns_movk_i32 s57, 6144\ns_lshl_b32 s6, s0, 7\nv_add_u32 v{V_WV+1}, {16*7168}, v{V_WV}\nv_add_u32 v6, s6, v5")
            a(f"v_mad_u32_u24 v{V_WV+2}, v3, s57, v6\nv_add_u32 v{V_WV+3}, {16*6144}, v{V_WV+2}\nv_add_u32 v{V_WV+4}, 4096, v{V_WV+2}\nv_add_u32 v{V_WV+5}, 4096, v{V_WV+3}")
        else:
            a("L_tB:")
            a("s_lshr_b32 s7, 128, s1\ns_add_u32 s7, s6, s7\nv_add_u32 v6, s7, v5")
            a(f"v_mad_u32_u24 v{V_WV}, v3, s57, v6\ns_xor_b32 s7, s1, 1\ns_mul_i32 s7, s7, 384\ns_add_u32 s7, s6, s7\nv_add_u32 v{V_WV+1}, {16*7168}, v{V_WV}")
            a("v_bfe_u32 v3, v2, 2, 2\nv_lshl_add_u32 v3, v4, 3, v3\nv_add_u32 v3, s61, v3\nv_and_b32 v5, 3, v2\nv_and_b32 v6, 1, v4\nv_lshlrev_b32 v6, 1, v6\nv_xor_b32 v5, v5, v6\nv_lshl_add_u32 v5, v5, 4, s7")
            a(f"v_mad_u32_u24 v{V_WV+2}, v3, s57, v5")
        stamp("addr", True)
        for m, d in dma_list(ty, 0)[:o["nd0"]]: a(m); vm(d)
        if o["spf"]: sload(o["spf"], 32)
        fin(SW, WS_SIZE); fin(SD, 3584*1024*2); fin(SO, 1024*1024*2); fin(SOUT, 2048*1024*2)
        a(f"s_lshl2_add_u32 s6, s2, s3\ns_lshl_b32 s6, s6, 13\ns_add_u32 s6, s6, {WS_I}\ns_add_u32 s{SI}, s{SW}, s6\ns_addc_u32 s{SI+1}, s{SW+1}, 0")
        fin(SI, 2048 if ty else 4096)
        a(f"s_mul_i32 s6, s2, 28672\ns_mul_i32 s7, s3, 9600\ns_add_u32 s6, s6, s7\ns_sub_u32 s7, 28672, s7\ns_min_u32 s7, s7, 9600\ns_lshl_b32 s0, s2, 13")
        a(f"s_cmp_eq_u32 s3, 3\ns_cselect_b32 s6, s0, s6\ns_cselect_b32 s{SP2+2}, 8192, s7\ns_cselect_b32 s0, s{SO}, s{SD}\ns_cselect_b32 s1, s{SO+1}, s{SD+1}")
        a(f"s_add_u32 s{SP2}, s0, s6\ns_addc_u32 s{SP2+1}, s1, 0\ns_mov_b32 s{SP2+3}, 0x20000")
        a("v_and_b32 v3, 15, v2\nv_bfe_u32 v5, v3, 1, 3\ns_lshl_b32 s6, s53, 7\nv_add_u32 v7, s6, v3\nv_lshlrev_b32 v7, 7, v7")
        for ks in range(2):
            a(f"v_add_u32 v6, {ks*4}, v4\nv_xor_b32 v6, v6, v5\nv_lshl_add_u32 v{V_XR+ks}, v6, 4, v7\nv_add_u32 v{V_XR+2+ks}, {STAGE}, v{V_XR+ks}")
        a(f"s_mul_i32 s6, s3, 320\nv_lshl_add_u32 v5, v3, 6, s6\nv_lshl_add_u32 v5, v4, 4, v5\nv_cmp_gt_u32 vcc, 5, v3\nv_mov_b32 v6, {BIG}\nv_lshlrev_b32 v{V_PF2}, 7, v2\nv_cndmask_b32 v{V_CSO}, v6, v5, vcc")
        a(f"v_cmp_gt_u32 vcc, 13, v2\nv_and_b32 v3, 3, v2\nv_lshlrev_b32 v3, 3, v3\nv_cndmask_b32 v{V_PF2}, v6, v{V_PF2}, vcc")
        a(f"v_lshrrev_b32 v5, 2, v2\nv_add_u32 v3, {W_OFF}, v3\nv_lshl_add_u32 v6, v5, 7, v3\nv_bfe_u32 v7, v2, 3, 2\ns_lshl_b32 s6, s52, 1\nv_xor_b32 v7, s6, v7")
        a(f"v_lshl_add_u32 v{V_WR}, v7, 5, v6\nv_xor_b32 v7, 1, v7\nv_lshl_add_u32 v{V_WR+2}, v7, 5, v6")
        if ty == 1:
            a(f"v_lshl_add_u32 v6, v5, 6, v3\nv_and_b32 v7, 1, v4\nv_xor_b32 v7, s52, v7\nv_lshl_add_u32 v6, v7, 5, v6\nv_add_u32 v{V_WR+4}, 32768, v6")
        for r in range(V_WR, V_WR + 4 + 2*ty, 2): a(f"v_add_u32 v{r+1}, {STAGE}, v{r}")
        a(f"s_bfe_u32 s68, s2, 0x20003\ns_lshl3_add_u32 s69, s4, s5\ns_mul_i32 s69, s69, 1280\ns_add_u32 s69, s69, {WS_CS}\ns_mov_b32 s57, 0\ns_min_u32 s71, s68, 2\ns_add_u32 s71, s71, 9\ns_lshr_b32 s70, s71, 1\ns_lshl4_add_u32 s70, s3, s70\ns_and_b32 s71, s71, 1\ns_lshl3_add_u32 s70, s71, s70\ns_xor_b32 s71, s70, 8")
        a(f"s_mov_b32 s60, 0\ns_mov_b32 s61, 0\ns_lshl_b32 s0, s3, 12\ns_lshl_b32 s1, s2, 14\ns_add_u32 s1, s1, s0\ns_add_u32 s0, s0, {MB}")
        a("v_and_b32 v3, 15, v2\nv_cmp_eq_u32 vcc, 0, v3\nv_mov_b32 v3, 0x3f803f80\nv_cndmask_b32 v35, 0, v3, vcc")
        a("v_mov_b64 v[4:5], -1\nv_mov_b64 v[6:7], -1")
        a(f"s_mov_b32 s72, 0\nL_cs{ty}:\ns_cmp_eq_u32 s53, 0\ns_cbranch_scc0 L_cs{ty}_1")
        for wr in range(2):
            if wr: a(f"L_cs{ty}_1:")
            for n in range(5):
                X, Y = (V_SEL, V_T) if n % 2 == 0 else (V_T, V_SEL)
                for ks in range(2):
                    a(f"v_mfma_f32_16x16x32_bf16 {vr(V_CSA, 4)}, {ar(wfb(5*wr+n, ks), 4)}, {vr(X, 4)}, {vr(V_CSA, 4)}")
                    if n < 4 and ks == 0: a.extend([f"v_mov_b32_dpp v{Y+r}, v{X+r} row_shr:1 row_mask:0xf bank_mask:0xf bound_ctrl:0" for r in range(2)] + [f"v_mov_b64 {P(Y+2)}, {P(Y)}"])
                    if n == 4 and ks == 0: a("s_cmp_eq_u32 s72, 3")
            a(f"s_cbranch_scc1 L_cs{ty}_d3\ns_cmp_eq_u32 s72, 2\ns_cbranch_scc1 L_cs{ty}_d2\ns_cmp_eq_u32 s72, 1\ns_cbranch_scc1 L_cs{ty}_d1")
            if wr == 0: a(f"s_branch L_cs{ty}_d0")
        a(f"L_cs{ty}_d0:")
        stamp("zero", True)
        for m, d in dma_list(ty, 0)[o["nd0"]:]: a(m); t_st0 = vm(d)
        a(f"v_mov_b64 {P(V_CSA)}, 0\nv_mov_b64 {P(V_CSA+2)}, 0")
        if o["spf"]: a("s_waitcnt lgkmcnt(0)")
        elif o["npf0"] < 2:
            a("s_barrier")
            if o["npf0"] == 0: a("s_add_u32 s58, s58, s59")
            vm(PFI)
        a.extend(adv)
        stamp("dma", True)
        vm.wait(t_st0)
        a("s_barrier")
        stamp("loop", True)
        if o.get("cnt"): a("s_mov_b32 s101, 0")
        xa = [xread(0, tb, ks) for tb in range(4) for ks in range(2)]
        a.extend(xa[:2] + wread(ty, 0, 0) + xa[2:] + wread(ty, 0, 1))
        def sched(b):
            dp = [(o["dsb"] + o["evb"]*i) if b else dpos[i] for i in range(18)]
            return [p + 1 if p == 80 else p - 1 if p == 79 else p for p in dp]
        def d1(stage, b=0): return [([], m, d, p-80) for (m, d), p in zip(dma_list(ty, stage ^ 1), sched(b)) if p >= 80]
        def d2(stage, b=0): return [([], m, d, p) for (m, d), p in zip(dma_list(ty, stage), sched(b)) if p < 80]
        def loop(kind):
            a(f".p2align 4\nL_{kind}{ty}:")
            b = kind == "lb"
            for stage in range(2):
                if kind == "la" and stage == 1: a(f"L_lam{ty}:")
                phase1(ty, stage, kind, d1(stage, b))
                phase2(ty, stage, kind, d2(stage, b), f"vmcnt({1 + o['pfb'] if b else 2})")
            if o["stamps"] and any(x[0] == "i" for x in sset):
                for it in (1, 2, 5, 6):
                    if f"i{it}" in sset and (it < 4) == (kind == "la"):
                        a(f"s_cmp_eq_u32 s57, {it}\ns_cbranch_scc0 L_st{ty}{it}"); stamp(f"i{it}", True); a(f"L_st{ty}{it}:")
                a(f"s_cmp_lt_u32 s57, {4 if kind == 'la' else 7}")
            a(f"s_cbranch_scc1 L_{kind}{ty}")
        phase1(ty, 0, "s0", [([], m, d, o["d0s"] + o["d0e"]*i) for i, (m, d) in enumerate(dma_list(ty, 1))])
        stamp("s0m", True)
        phase2(ty, 0, "s0", d2(0), "vmcnt(2)")
        stamp("s0e", True)
        a(f"s_branch L_lam{ty}")
        loop("la")
        stamp("i4", True)
        a("s_sub_u32 s0, s0, 4096")
        phase1(ty, 0, "s8", d1(0))
        stamp("s8m", True)
        a(mfmas(ty, 1)[0] + f"\ns_waitcnt vmcnt({4 + o['pfb']})\ns_barrier\ns_branch L_lbm{ty}")
        loop("lb")
        stamp("s14", True)
        phase1(ty, 0, "s14", d1(0, 1))
        tail = []
        for t in range(4):
            for c, (m, d) in enumerate(bdma(t, "f")):
                tail.append(([f"s_add_u32 s15, s14, {n0(t)*65536}"] if c == 0 and t else [], m, d))
        tp = [o["ts"] + o["te"]*i for i in range(16)]
        for t in range(o["nw"]):
            for c, (m, d) in enumerate(bdma(t, "s", RING2)):
                tail.append(([f"s_add_u32 s15, s17, {t*128*2048}"] if c == 0 else [], m, d))
                tp.append(max(tp[-1], 168) + o["tw"])
        tp = [p if p % 80 >= 4 or p < 80 else p - p % 80 + 4 for p in tp]
        def part(k): return [(pre, m, d, p - 80*k) for (pre, m, d), p in zip(tail, tp) if p//80 == k]
        rest = [x for x, p in zip(tail, tp) if p >= 240]
        stamp("s14m", True)
        phase2(ty, 0, "s14", part(0), f"vmcnt({7 + min(o['cpf'], 2)})")
        stamp("s15", True)
        o["n14"] = len(part(0)) + 3 + min(o["cpf"], 2)
        phase1(ty, 1, "s15", part(1))
        phase2(ty, 1, "s15", part(2), f"vmcnt({len(part(0)) + len(part(1)) - 4}) lgkmcnt(0)")
        stamp("e0", True)
        p0 = len(a.lines)
        def rd_cs(cb0, n):
            for i in range(n): a(f"ds_read_b128 v[{CS+4*i}:{CS+4*i+3}], v45 offset:{(cb0+i)*64}")
        def rd_tk(tb): a(f"ds_read_b128 v[{TK+4*(tb&1)}:{TK+4*(tb&1)+3}], v44 offset:{tb*256}")
        def getv(tb, cb, tmp):
            p, b = accb(tb, cb)
            if p == "v": return b
            for i in range(4): a(f"v_accvgpr_read_b32 v{tmp+i}, a{b+i}")
            return tmp
        def pack(d, ps):
            for i, p in enumerate(ps): a(f"v_cvt_pk_bf16_f32 v{d+i}, v{p}, v{p+1}")
        def fixm(b, cs, tk):
            for h in (0, 2): a(f"v_pk_fma_f32 {P(b+h)}, {P(cs+h)}, {P(tk)}, {P(b+h)} op_sel_hi:[1,0,1]")
        def geglu(items, d):
            el = [(g+h, u+h, tk, Z + 4*n + h) for n, (g, u, cg, cu, tk) in enumerate(items) for h in (0, 2)]
            for g, u, cg, cu, tk in items: fixm(g, cg, tk)
            for g, u, tk, z in el: a(f"v_pk_mul_f32 {P(z)}, {P(g)}, {P(g)}")
            for g, u, tk, z in el: a(f"v_pk_fma_f32 {P(z)}, {P(z)}, {P(tk+2)}, {P(tk)} op_sel:[0,0,1] op_sel_hi:[1,0,1]")
            for g, u, tk, z in el: a(f"v_pk_mul_f32 {P(z)}, {P(z)}, {P(g)}")
            for i in range(8): a(f"v_exp_f32 v{Z+i}, v{Z+i}")
            for g, u, cg, cu, tk in items: fixm(u, cu, tk)
            for g, u, tk, z in el: a(f"v_pk_fma_f32 {P(z)}, {P(z)}, {P(tk+2)}, {P(tk+2)} op_sel:[0,1,1] op_sel_hi:[1,1,1]")
            for i in range(8): a(f"v_rcp_f32 v{Z+i}, v{Z+i}")
            for g, u, tk, z in el: a(f"v_pk_mul_f32 {P(u)}, {P(u)}, {P(g)}")
            for g, u, tk, z in el: a(f"v_pk_mul_f32 {P(u)}, {P(u)}, {P(z)}")
            pack(d, [u for g, u, tk, z in el])
        def frag(tb, cb0, sb, nxt, bcb=None):
            r = [getv(tb, cb0+i, accb(tb, i)[1]) for i in range(4)]
            if bcb is not None: a(f"v_xor_b32 v6, {32*bcb}, v7")
            a("s_waitcnt lgkmcnt(0)")
            if nxt is not None: rd_tk(nxt)
            if bcb is not None: a.extend([x.replace(f"v{V_BR+bcb} ", "v6 ") for x in rl(0) if f"v{V_BR+bcb} " in x])
            tk = TK + 4*(tb & 1)
            geglu([(r[0], r[1], CS, CS+4, tk), (r[2], r[3], CS+8, CS+12, tk)], r[0])
            a(f"buffer_store_dwordx4 v[{r[0]}:{r[0]+3}], v1, {S(SW)}, s{sb+(tb>>1)} offen offset:{(tb&1)*1024} sc1 ;@h{sb}")
        ALD = [x for t in range(o["na"]) for x in al(t)[0] + [al(t)[1]]]
        def try_load():
            stamp("b2")
            a("s_waitcnt @poll"); a.extend(CMP1)
            a(f"s_mov_b32 s70, 0\ns_nop 2\ns_cbranch_vccz L_tl{ty}\n{POLL(59, 46)}\nL_tl{ty}_d:")
            ool(f"L_tl{ty}:\ns_mov_b32 s70, 1"); ool.extend(ALD); ool(f"s_branch L_tl{ty}_d")
        def must_load():
            stamp("chk")
            a(f"s_cmp_eq_u32 s70, 1\ns_cbranch_scc1 L_ml{ty}\ns_waitcnt @poll")
            spin(f"L_b1{ty}", CMP1[0], POLL(59, 46))
            a.extend(ALD)
            a(f"L_ml{ty}:")
            a.extend([x for t in range(o["na"], 3) for x in al(t)[0] + [al(t)[1]]])
            stamp("chkd")
        def set_b1():
            a("s_waitcnt @h40"); stamp("w1d"); a.extend(FLG(54))
        def phi_tail(ps, ts, scale):
            for i in range(8): a(f"v_exp_f32_e64 v{Z+i}, v{Z+i} clamp")
            for p in ps: a(f"v_max_f32 v{p}, 0, v{p}\nv_max_f32 v{p+1}, 0, v{p+1}")
            for p in ps:
                if scale is None: a(f"v_pk_add_f32 {P(p)}, {P(p)}, s[68:69] op_sel_hi:[1,0]")
                else: a(f"v_pk_fma_f32 {P(p)}, {P(p)}, {P(scale)}, s[68:69] op_sel_hi:[1,0,0]")
            for p, q in zip(ps, ts): a(f"v_pk_add_f32 {P(p)}, {P(p)}, {P(q)}")
            pack(ps[0], ps)
        more = [pre + [m, "s_nop 0", d] for pre, m, d in rest] + ([[x] for x in XLD] if o["xl"] else [])
        k2x = more[o["nm"]:]; more = more[:o["nm"]]
        for tb in range(o["early"], 8):
            for x in more[:2]: a.extend(x)
            more = more[2:]
            frag(tb, 0, 40, tb+1 if tb < 7 else (0 if ty else None), tb - 3 if 3 <= tb < 7 else None)
        assert not more
        if k2x: a("s_mov_b32 s16, s15")
        stamp("b1")
        if ty == 1:
            rd_cs(6, 4)
            for tb in range(8):
                frag(tb, 6, 44, tb+1 if tb < 7 else 0)
                if tb == o["fB"]: set_b1()
                if tb == o["pB"]: a(POLL(59, 46))
                if tb == o["cB"]: try_load()
            rd_cs(4, 2)
            must_load()
        else:
            a(f"v_and_b32 v4, 15, v2\nv_lshl_add_u32 v4, v4, 2, s64\ns_lshl_b32 s0, s53, 9\ns_add_u32 s0, s0, {MB_NM}\ns_sub_u32 s0, s0, s64\nv_add_u32 v5, s0, v45")
            for i in range(4): a(f"ds_read_b32 v{12+i}, v4 offset:{(6+i)*64}")
            KV, ONES = 112, 136
            for i in range(4): a(f"v_mov_b32 v{ONES+i}, 0x3f803f80")
            for tp in range(4):
                for h in range(2):
                    a(f"ds_read_b128 v[{16+8*h}:{19+8*h}], v5 offset:{(2*tp+h)*64}\nds_read_b128 v[{20+8*h}:{23+8*h}], v5 offset:{(2*tp+h)*64 + 1024}")
                r = [[getv(2*tp+h, 6+i, 48 + 32*(tp & 1) + 8*i + 4*h) for h in range(2)] for i in range(4)]
                a("s_waitcnt lgkmcnt(0)")
                for i in range(4):
                    sel = i & 1
                    for h in range(2):
                        for q in (0, 2):
                            a(f"v_pk_fma_f32 {P(r[i][h]+q)}, {P(16+8*h+q)}, {P(12+(i&2))}, {P(r[i][h]+q)} op_sel:[0,{sel},0] op_sel_hi:[1,{sel},1]")
                    for h in range(2):
                        for q in (0, 2): a(f"v_pk_mul_f32 {P(r[i][h]+q)}, {P(r[i][h]+q)}, {P(20+8*h+q)}")
                    ps = [r[i][0], r[i][0]+2, r[i][1], r[i][1]+2]; ts = [Z, Z+2, Z+4, Z+6]
                    if i < 2:
                        for p, q in zip(ps, ts): a(f"v_pk_mul_f32 {P(q)}, {P(p)}, s[56:57] op_sel_hi:[1,0]")
                        phi_tail(ps, ts, None)
                    else: pack(ps[0], ps)
                    if 4*tp + i == o["fA"]: set_b1()
                    if 4*tp + i == o["pA"]: a(POLL(59, 46))
                    if 4*tp + i == o["cA"]: try_load()
                for db in range(2):
                    for eb in range(3):
                        d = vr(KV + (db*3+eb)*4, 4)
                        B = vr(r[2+eb][0], 4) if eb < 2 else vr(ONES, 4)
                        a(f"v_mfma_f32_16x16x32_bf16 {d}, {vr(r[db][0], 4)}, {B}, {d if tp else 0}")
            rd_cs(4, 2); rd_tk(0)
            a(f"s_mul_i32 s0, s3, 3072\ns_add_u32 s0, s0, {KVX}\nv_add_u32 v4, s0, v1\ns_xor_b32 s1, s3, 1\ns_mul_i32 s1, s1, 3072\ns_add_u32 s1, s1, {KVX}\nv_add_u32 v5, s1, v1")
            must_load()
            a("s_cmp_eq_u32 s53, 0\ns_nop 3\ns_cbranch_scc1 L_kv0")
            for eb in range(3): a(f"ds_write_b128 v5, v[{KV+eb*4}:{KV+eb*4+3}] offset:{eb*1024}")
            for i in range(0, 12, 2): a(f"v_mov_b64 {P(48+i)}, {P(KV+12+i)}")
            a("s_branch L_kv1\nL_kv0:")
            for eb in range(3): a(f"ds_write_b128 v5, v[{KV+12+eb*4}:{KV+12+eb*4+3}] offset:{eb*1024}")
            for i in range(0, 12, 2): a(f"v_mov_b64 {P(48+i)}, {P(KV+i)}")
            a("L_kv1:")
        UN = o["unB"] if ty else o["unA"]
        if ty == 1:
            for tp in range(UN//2):
                rd_tk(2*tp+1)
                a("s_waitcnt lgkmcnt(0)")
                g0, g1, u0, u1 = accb(2*tp, 4)[1], accb(2*tp+1, 4)[1], accb(2*tp, 5)[1], accb(2*tp+1, 5)[1]
                geglu([(g0, u0, CS, CS+4, TK), (g1, u1, CS, CS+4, TK+4)], g0)
                if tp < 3: rd_tk(2*tp+2)
                a(f"v_permlane32_swap_b32 v{g0}, v{g0+2}\nv_permlane32_swap_b32 v{g0+1}, v{g0+3}")
                a(f"buffer_store_dwordx4 v[{g0}:{g0+3}], v1, {S(SW)}, s{48+tp} offen sc1 ;@late")
        else:
            for tb in range(UN):
                a("s_waitcnt lgkmcnt(0)")
                if tb < 7: rd_tk(tb+1)
                tk = TK + 4*(tb & 1)
                b0, b1 = accb(tb, 4)[1], accb(tb, 5)[1]
                a(f"v_mul_f32 v{tk+2}, {f2u(1.0/GA1)}, v{tk+1}\nv_mul_f32 v{tk+3}, {f2u(LOG2E/GA1)}, v{tk+1}")
                fixm(b0, CS, tk); fixm(b1, CS+4, tk)
                ps = [b0, b0+2, b1, b1+2]; ts = [Z, Z+2, Z+4, Z+6]
                for p, q in zip(ps, ts): a(f"v_pk_mul_f32 {P(q)}, {P(p)}, {P(tk+2)} op_sel:[0,1] op_sel_hi:[1,1]")
                phi_tail(ps, ts, tk+2)
        for cb in range(4): a(f"v_xor_b32 v{V_BR+cb}, {32*cb}, v7")
        stamp("k2")
        TJ, TG, TO = o["tj"], o["tg"], o["tg"] + 2
        KG = 100
        GLD = [f"buffer_load_dwordx4 {vr(KG+4*e, 4)}, v1, {S(SW)}, s{r} offen sc1 ;@gld" for e, r in enumerate((64, 66, 67))]
        def ob(tb, eb):
            i = tb*3 + eb
            return G + 4*i if i < 12 else 208 + 4*(i - 12)
        NS_ = o["nsA"] if ty == 0 else o["nsB"]
        TB3 = NS_ + 2
        st_ = []
        for t in range(NU):
            tags = []; first = []; xm = 0
            otb = {TO: range(0, 2), TO+1: range(2, 5), TO+2: range(5, 8)}.get(t, []) if ty == 0 else []
            if ty == 0:
                if t == TG: first = GLD
                if t == TO: tags = ["gld"]
                xm = 3*len(otb)
            else:
                if t == 2: tags = ["h44"]; first = [FLG(54, 128)]
                if t == TJ+3: tags = [f"F{TJ+1}"]
                if t == TB3: tags = ["late"]; first = [FLG(54, 256)]
            if t == 12: tags = tags + ["poll"]
            ms, slots = build(t, tags, first, xm)
            n = 32 + xm; lo = 0
            if t == 12: lo = check(slots, f"L_b2{ty}", CMP1, [POLL(60, V_P2, 128)])
            if t == 9: slots[n-1].append(POLL(60, V_P2, 128))
            if t >= 1 and k2x:
                x = k2x.pop(0)
                if len(x) > 1:
                    for y in x[:-2]: slots[13].append(y.replace("s15", "s16"))
                    slots[16].append(x[-1].replace("s15", "s16"))
                else:
                    if ", v5," in x[0] and "offset:0" in x[0]: slots[11].append("v_add_u32 v0, 32768, v0")
                    slots[16].append(x[0].replace(", v4,", ", v0,").replace(", v5,", ", v0,"))
            if t == o["cpt"]:
                fill(slots, ["s_lshr_b32 s0, s2, 3", "s_lshl2_add_u32 s0, s0, s3", "s_lshl_b32 s0, s0, 7", "s_add_u32 s0, s0, L_tail-L_pc", "s_min_u32 s0, s0, L_cend-L_pc-4"], 12, 24)
                slots[26].append("v_mov_b32 v0, s0"); slots[n-3].append("global_load_dword v0, v0, s[72:73]")
            if t == 14:
                vv = [f"v_add_u32 v{V_A2}, 4096, v1", "v_and_b32 v4, 15, v2", "v_lshlrev_b32 v4, 11, v4", "v_bfe_u32 v6, v2, 4, 1", "v_lshl_add_u32 v4, v6, 5, v4",
                      "v_lshrrev_b32 v6, 5, v2", f"v_lshl_add_u32 v{V_XO}, v6, 4, v4", f"v_add_u32 v{V_XO+1}, 32768, v{V_XO}", "v_and_b32 v4, 0x1f0, v1", f"v_lshl_add_u32 v{V_AO}, v6, 3, v4"]
                if o.get("fko"): vv += ["v_lshrrev_b32 v4, 3, v2", "v_lshlrev_b32 v4, 12, v4", "v_and_b32 v6, 7, v2", f"v_lshl_add_u32 v{V_XO}, v6, 4, v4", f"v_add_u32 v{V_XO+1}, 32768, v{V_XO}"]
                fillv([slots[i] for i in range(n)], vv)
                slots[20].append(f"s_add_u32 s66, s54, {256 + 128*ty}")
            if ty == 0 and t == TG - 1:
                fill(slots, ["s_and_b32 s64, s2, 0xc6", "s_or_b32 s64, s64, s52", "s_lshl_b32 s64, s64, 15", f"s_add_u32 s64, s64, {WS_I + 0x28*32768 + 1024}", f"s_add_u32 s66, s64, {16*32768}", "s_add_u32 s67, s64, 8192"], 13, 30)
            if otb:
                if t == TO: lo = check(slots, "L_kvf", maxtree(KG, 12), GLD)
                om = [f"v_mfma_f32_16x16x32_bf16 {vr(ob(tb, eb), 4)}, {vr(KG+4*eb, 4)}, v[{VS+4*tb}:{VS+3+4*tb}], 0" for tb in otb for eb in (2, 0, 1)]
                ms = ms[:lo+1] + om + ms[lo+1:]
                lo += 7
                per = (n - 1 - lo)//len(otb)
                for k, tb in enumerate(otb):
                    dn = ob(tb, 2); e8 = [ob(tb, 0)+i for i in range(4)] + [ob(tb, 1)+i for i in range(4)]
                    w = [f"v_add_f32 v{dn}, s68, v{dn}", f"v_rcp_f32 v{dn}, v{dn}"] + [f"v_mul_f32 v{e}, v{e}, v{dn}" for e in e8] + [f"v_cvt_pk_bf16_f32 v{e8[0]+i}, v{e8[2*i]}, v{e8[2*i+1]}" for i in range(4)]
                    fillv([slots[i] for i in range(lo + k*per, lo + (k+1)*per)], w)
                    slots[lo + (k+1)*per].append(f"buffer_store_dwordx4 {vr(e8[0], 4)}, v1, {S(SW)}, s{44+(tb>>1)} offen offset:{(tb&1)*1024} sc1 ;@late")
            if ty == 1 and t == 0:
                fill(slots, ["s_bfe_u32 s6, s2, 0x10004", "s_add_u32 s70, s6, s3", "s_min_u32 s7, s3, 1", "s_mul_i32 s70, s70, s7", "s_lshl1_add_u32 s6, s7, s6", "s_andn2_b32 s7, 8, s2", "s_add_u32 s70, s70, s7",
                             "s_and_b32 s64, s2, 0xc6", "s_and_b32 s7, s2, 1", "s_lshl1_add_u32 s64, s64, s7", "s_lshl4_add_u32 s64, s64, s6", "s_lshl_b32 s64, s64, 10", f"s_add_u32 s64, s64, {WS_I + 1024}"], 12, 30)
            if ty == 1 and t == TJ+3:
                slots[-1].extend(["s_cmp_lt_u32 s70, 2", "s_cbranch_scc1 L_red", "L_red_d:"])
            st_.append((ms, slots))
        gaps = [st_[t][1][i] for t in range(NS_) for i in range(32)]
        pre = [f"v_bfe_u32 v{V_P3}, v2, 1, 2", f"v_and_b32 v{V_P2}, 1, v2", f"v_lshl_or_b32 v{V_P3}, v{V_P3}, 7, v{V_P2}", f"v_lshlrev_b32 v{V_P3}, 14, v{V_P3}", f"v_and_b32 v{V_P2}, {0xffbfffff}, v{V_P3}"]
        g0 = 0
        if ty == 0:
            for eb in range(3): gaps[28+eb].append(f"ds_read_b128 v[{60+eb*4}:{63+eb*4}], v4 offset:{eb*1024}")
            fillv(gaps[32:40], [f"v_add_f32 v{48+i}, v{48+i}, v{60+i}" for i in range(12)])
            for eb in range(3): gaps[41+3*eb].append(f"buffer_store_dwordx4 v[{48+eb*4}:{51+eb*4}], v1, {S(SW)}, s54 offen offset:{(eb+1)*1024} sc1")
        per = (len(gaps) - g0)//max(8 - UN, 1)
        assert per >= 32
        if UN == 8: fillv(gaps[:32], pre)
        for tb in range(UN, 8):
            tk = TK + 4*(tb & 1); b0, b1 = accb(tb, 4)[1], accb(tb, 5)[1]
            gg = gaps[g0 + (tb-UN)*per:g0 + (tb-UN+1)*per]
            if tb < 7: gg[0].append(f"ds_read_b128 v[{TK+4*((tb+1)&1)}:{TK+4*((tb+1)&1)+3}], v44 offset:{(tb+1)*256}")
            vv = list(pre) if tb == UN else []
            if ty == 0:
                el = [(b0+i, CS+i, Z2+i) for i in range(4)] + [(b1+i, CS+4+i, Z2+4+i) for i in range(4)]
                vv += [f"v_mul_f32 v{tk+2}, {f2u(1.0/GA1)}, v{tk+1}", f"v_mul_f32 v{tk+3}, {f2u(LOG2E/GA1)}, v{tk+1}"]
                vv += [f"v_fmac_f32 v{q}, v{c}, v{tk}" for q, c, z in el] + [f"v_mul_f32 v{z}, v{q}, v{tk+3}" for q, c, z in el]
                for q, c, z in el: vv += [f"v_exp_f32_e64 v{z}, v{z} clamp", f"v_max_f32 v{q}, 0, v{q}", f"v_fma_f32 v{q}, v{q}, v{tk+2}, s68"]
                vv += [f"v_add_f32 v{q}, v{q}, v{z}" for q, c, z in el]
                vv += [f"v_cvt_pk_bf16_f32 v{b0+i}, v{el[2*i][0]}, v{el[2*i+1][0]}" for i in range(4)]
            else:
                el = [(b0+i, b1+i, CS+i, CS+4+i, Z2+i) for i in range(4)]
                d = accb(tb & ~1, 4)[1]
                vv += [f"v_fmac_f32 v{g}, v{cg}, v{tk}" for g, u, cg, cu, z in el] + [f"v_mul_f32 v{z}, v{g}, v{g}" for g, u, cg, cu, z in el]
                vv += [f"v_fma_f32 v{z}, v{z}, v{tk+2}, v{tk+1}" for g, u, cg, cu, z in el] + [f"v_mul_f32 v{z}, v{z}, v{g}" for g, u, cg, cu, z in el]
                for g, u, cg, cu, z in el: vv += [f"v_exp_f32 v{z}, v{z}", f"v_fmac_f32 v{u}, v{cu}, v{tk}"]
                vv += [f"v_fma_f32 v{z}, v{z}, v{tk+3}, v{tk+3}" for g, u, cg, cu, z in el]
                for g, u, cg, cu, z in el: vv += [f"v_rcp_f32 v{z}, v{z}", f"v_mul_f32 v{u}, v{u}, v{g}"]
                vv += [f"v_mul_f32 v{u}, v{u}, v{z}" for g, u, cg, cu, z in el]
                vv += [f"v_cvt_pk_bf16_f32 v{d+2*(tb&1)+i}, v{b1+2*i}, v{b1+2*i+1}" for i in range(2)]
                if tb & 1:
                    gg[-2].extend([f"v_permlane32_swap_b32 v{d}, v{d+2}", f"v_permlane32_swap_b32 v{d+1}, v{d+3}"])
                    gg[-1].append(f"buffer_store_dwordx4 v[{d}:{d+3}], v1, {S(SW)}, s{48+(tb>>1)} offen sc1 ;@late")
                    gg = gg[:-3]
            if o.get("ab", 0) & 32: vv = vv[:5]
            fillv(gg, vv)
        for t, (ms, slots) in enumerate(st_):
            stamp(f"t{t}")
            emit(a, ms, slots)
            if ty == 1 and t == TJ: a("s_cmp_lt_u32 s70, 2\ns_cbranch_scc1 L_gat\nL_gat_d:")
        a("s_branch L_tail")
        paths[ty] = list(range(p0, len(a.lines)))
        a.lines += near.lines + ool.lines; near.lines = []; ool.lines = []
    KLD = []
    for r in range(8):
        for db in range(2):
            KLD += [f"s_add_u32 s1, s64, {(8*(r&3) + (r>>2))*32768 + db*8192}", f"buffer_load_dwordx4 v[{G+(r*2+db)*4}:{G+(r*2+db)*4+3}], v1, {S(SW)}, s1 offen sc1"]
    main = a; hk = Asm(); a = hk
    a("L_gat:"); a.extend(KLD); a("s_branch L_gat_d\nL_red:")
    spin("L_kvg", "\n".join(maxtree(G, 64)), "\n".join(KLD))
    for stp in (32, 16, 8):
        for i in range(0, stp, 2): a(f"v_pk_add_f32 {P(G+i)}, {P(G+i)}, {P(G+stp+i)}")
    for i in range(4): a(f"v_cvt_pk_bf16_f32 v{G+i}, v{G+2*i}, v{G+2*i+1}")
    a(f"buffer_store_dwordx4 v[{G}:{G+3}], v1, {S(SW)}, s54 offen offset:1024 sc1\ns_branch L_red_d")
    a = main
    a("L_tail:")
    p0 = len(a.lines)
    PLD = [f"buffer_load_dwordx4 v[{PL+4*i}:{PL+4*i+3}], v1, {S(SW)}, s65 offen offset:{i*1024} sc1 ;@pld" for i in range(4)]
    OPOLL = [POLL(69, V_P3, 256), f"buffer_load_dword v35, off, {S(SW)}, s55 sc1 ;@poll"]
    def tail(t):
        tags = {NU: ["late"], 20: ["poll"], 24: ["poll"], TC: ["pld"]}.get(t, [])
        first = {NU: [FLG(66)], TP: PLD}.get(t, [])
        ms, slots = build(t, tags, first, 8 if t in (20, TC) else 0)
        if t == 17: slots[31].append(POLL(60, V_P2, 256))
        if t == 20: check(slots, "L_b3", CMP1, [POLL(60, V_P2, 256)])
        if t == o["opoll"]: slots[30].append(OPOLL[0]); slots[31].append(OPOLL[1])
        if t == 24: check(slots, "L_of", ["v_or_b32 v4, v35, v47", "v_cmp_ne_u32 vcc, 1, v4"], OPOLL)
        if t == nf:
            for q in range(4):
                tb, pp = q >> 1, q & 1
                for i in range(4):
                    r = facc(1, 2*pp + (i >> 1), tb) + 2*(i & 1)
                    slots[8 + 4*q + i].append(f"v_cvt_pk_bf16_f32 v{PK+4*q+i}, v{r}, v{r+1}")
                slots[[13, 19, 25, 31][q]].append(f"buffer_store_dwordx4 v[{PK+4*q}:{PK+4*q+3}], v1, {S(SW)}, s61 offen offset:{q*1024} sc1")
        if t == 18:
            vv = ["v_and_b32 v4, 1, v2", "v_lshlrev_b32 v4, 4, v4", "v_mov_b32 v5, 0x3f80", "v_lshlrev_b32 v4, v4, v5", "v_lshrrev_b32 v5, 4, v2", "v_bfe_u32 v6, v2, 1, 3", "v_lshlrev_b32 v7, 1, v5",
                  "v_sub_u32 v6, v6, v7", "v_sub_u32 v7, v6, v7"]
            for i in range(2): vv += [f"v_cmp_eq_u32 vcc, {i}, v6", f"v_mov_b32 v{SE+i}, 0", f"v_mov_b32 v{SE+4+i}, 0", f"v_cndmask_b32 v{SE+2+i}, 0, v4, vcc"]
            fillv([slots[i] for i in range(1, 32)], vv)
        if t == 19:
            for e in range(2):
                for i in range(4):
                    k = 4*e + i
                    slots[1+4*k].append(f"v_cmp_eq_u32 vcc, {i - 8*e}, v7"); slots[3+4*k].append(f"v_cndmask_b32 v{PK+k}, 0, v4, vcc")
        if t == 20:
            ms = ms + [f"v_mfma_f32_16x16x32_bf16 {vr(XF + (cb*2+tb)*4, 4)}, {vr(PK + 4*(cb&1), 4)}, {ar(4*(2*tb + (cb>>1)), 4)}, 0" for cb in range(4) for tb in range(2)]
        return ms, slots
    for t in range(NU, TC):
        if t == nf: stamp("s")
        stamp(f"t{t}")
        emit(a, *tail(t))
    last = [list(tail(t)) for t in range(TC, T)]
    m5, s5 = last[0]
    k = check(s5, "L_xb", maxtree(PL, 16), PLD)
    s5[1].append(f"s_mov_b32 s6, {f2u(-LOG2E)}")
    blocks = [(2*pp + e, tb) for pp in range(2) for tb in range(2) for e in range(2)]
    addm = [f"v_mfma_f32_16x16x32_bf16 {vr(facc(0, cb, tb), 4)}, {vr(SE + 2 - 2*(cb&1), 4)}, {vr(PL + 4*(2*tb + (cb>>1)), 4)}, {vr(facc(0, cb, tb), 4)}" for cb, tb in blocks]
    last[0][0] = m5[:k+1] + addm + m5[k+1:]
    silu = []
    for g in range(0, 8, 2):
        el = [(cb*2+tb)*4 + i for cb, tb in blocks[g:g+2] for i in range(4)]
        silu += [f"v_mul_f32 v{VQ+e}, s6, v{VF+e}" for e in el] + [f"v_exp_f32 v{VQ+e}, v{VQ+e}" for e in el] + [f"v_add_f32 v{VQ+e}, 1.0, v{VQ+e}" for e in el]
        silu += [f"v_rcp_f32 v{VQ+e}, v{VQ+e}" for e in el] + [f"v_mul_f32 v{VF+e}, v{VF+e}, v{VQ+e}" for e in el]
    def outp(pp, tb, pk):
        d = PK + (tb*2+pp)*4; L = []
        for e in range(2):
            off = ((2*pp+e)*2+tb)*4
            if pk: L += [f"v_pk_fma_f32 {P(VS+off+h)}, {P(VS+off+h)}, {P(VF+off+h)}, {P(XF+off+h)}" for h in (0, 2)]
            else: L += [f"v_fma_f32 v{VS+off+h}, v{VS+off+h}, v{VF+off+h}, v{XF+off+h}" for h in range(4)]
        for e in range(2):
            off = ((2*pp+e)*2+tb)*4
            L += [f"v_cvt_pk_bf16_f32 v{d+2*e+h}, v{VS+off+2*h}, v{VS+off+2*h+1}" for h in range(2)]
        return L, [f"v_permlane16_swap_b32 v{d}, v{d+2}", f"v_permlane16_swap_b32 v{d+1}, v{d+3}"], f"buffer_store_dwordx4 v[{d}:{d+3}], v{V_XO+tb}, {S(SOUT)}, s19 offen offset:{pp*(2048 if o.get('fko') else 64)}{[' sc1', '', ' nt', ' nt sc1', ' sc0 sc1'][o.get('op', 0)]}"
    nin = o["nin"]
    gaps = [sl[i] for ms, sl in last for i in range(len(ms))]
    e7 = len(gaps) - 32 + o["s7e"]
    fillv(gaps[k+9:e7], silu[:nin])
    (l0, w0, t0), (l1, w1, t1) = outp(0, 0, False), outp(0, 1, False)
    if o["s7e"] < 32:
        assert nin >= 80
        fillv(gaps[e7:-1], l0 + l1 + w0 + w1)
        gaps[-1].extend([t0, t1])
    for t, (ms, sl) in zip(range(TC, T), last):
        stamp(f"t{t}"); emit(a, ms, sl)
    stamp("fin")
    for g in range(nin//20, 8, 2):
        el = [(cb*2+tb)*4 + i for cb, tb in blocks[g:g+2] for i in range(4)]; ep = el[::2]
        a.extend([f"v_pk_mul_f32 {P(VQ+e)}, {P(VF+e)}, s[6:7] op_sel_hi:[1,0]" for e in ep] + [f"v_exp_f32 v{VQ+e}, v{VQ+e}" for e in el] + [f"v_pk_add_f32 {P(VQ+e)}, {P(VQ+e)}, 1.0 op_sel_hi:[1,0]" for e in ep])
        a.extend([f"v_rcp_f32 v{VQ+e}, v{VQ+e}" for e in el] + [f"v_pk_mul_f32 {P(VF+e)}, {P(VF+e)}, {P(VQ+e)}" for e in ep])
    for pp in range(0 if o["s7e"] == 32 else 1, 2):
        (l0, w0, t0), (l1, w1, t1) = outp(pp, 0, True), outp(pp, 1, True)
        a.extend(l0 + l1 + w0 + [t0] + w1 + [t1])
    if o.get("cnt"):
        a(f"s_lshl2_add_u32 s0, s2, s3\ns_lshl_b32 s0, s0, 2\ns_add_u32 s0, s0, {STAMP_OFF + 0x10000}\nv_mov_b32 v4, s0\nv_mov_b32 v5, s101\nglobal_store_dword v4, v5, s[{SW}:{SW+1}]")
    if o["stamps"]:
        stamp("fs")
        a("s_waitcnt vmcnt(0)")
        stamp("end")
        a(f"s_cmp_lg_u32 s3, {o['stw']}\ns_cbranch_scc1 L_end")
        st.n = len(sset)
        st.flush(a, SW, 2, 4)
    for ty in range(2): paths[ty] += list(range(p0, len(a.lines)))
    ab = o.get("ab", 0)
    k2lines = set(paths[0] + paths[1])
    for i in k2lines:
        l = a.lines[i]
        kill = False
        if ab & 1 and "buffer_store_dword v3, off" in l and "offset:0" not in l: kill = True
        if ab & 2 and ";@poll" in l and "s59" not in l: kill = True
        if ab & 3 and any(f"s_cbranch_vccnz {n}" in l for n in ("L_b2", "L_b3", "L_of")): kill = True
        if ab & 4 and (";@gld" in l or "L_kvf_s" in l or "scc1 L_gat" in l or "scc1 L_red" in l or ("s54 offen" in l and "store" in l)): kill = True
        if ab & 8 and ";@late" in l: kill = True
        if ab & 16 and (";@pld" in l or "L_xb_s" in l or ("s61 offen" in l and "store" in l)): kill = True
        if kill: a.lines[i] = "    s_nop 0"
    resolve(a.lines, paths)
    a("L_end:\ns_endpgm")
    a.lines += hk.lines + ool.lines + ["L_cend:"]
    a.lines = [l.split(" ;@")[0].replace(" offset:0 ", " ").replace("    ", " ") for l in a.lines]
    a.lines, n = hazard.fix(a.lines, verbose=o.get("hv", 0))
    if o.get("cnt"): print(spn)
    ref = "cdna_kernels/" + NAME + ".s.ref"
    hdr = open(ref).read().split("; Override launch")[0] if os.path.exists(ref) else ""
    k = dict(name=NAME + "_kernel", grid=256, block=256, lds=163840, body=a, vgpr=256, agpr=256)
    if "pm" in o:
        pr = Asm(); pa, pb, M, pw = o.get("pa", 0), o.get("pb", 0), o["pm"], o.get("pw", 0)
        pr(f"""s_cmp_ge_u32 s2, 1
s_cbranch_scc1 Lp_end
s_load_dwordx2 s[4:5], s[0:1], 72
s_memrealtime s[8:9]
v_mov_b32 v1, {STAMP_OFF + pw*128 + pa*8 + 4}
v_mov_b32 v2, {STAMP_OFF + pw*128 + (pb % 10)*8 + 4}
s_waitcnt lgkmcnt(0)
global_load_dword v3, v1, s[4:5]
global_load_dword v4, v2, s[4:5]
s_waitcnt vmcnt(0)
{"v_mov_b32 v4, s8" if pb == 99 else ""}
v_sub_u32 v3, v4, v3
s_nop 1
v_readfirstlane_b32 s6, v3
s_nop 3
s_min_u32 s6, s6, 20000
s_mul_i32 s6, s6, {M}
Lp_loop:
s_memrealtime s[10:11]
s_waitcnt lgkmcnt(0)
s_sub_u32 s12, s10, s8
s_cmp_lt_u32 s12, s6
s_cbranch_scc1 Lp_loop
Lp_end:
s_endpgm""")
        return hdr + file_text([k, dict(name="probe_kernel", grid=1, block=64, lds=0, body=pr, vgpr=8, agpr=0)])
    txt = file_text([k]).replace(f"@launch kernel={NAME}_kernel ", "@launch ")
    return hdr + txt
if __name__ == "__main__":
    kw = {}
    for x in sys.argv[2:]:
        k, v = x.split("="); kw[k] = int(v)
    open(sys.argv[1], "w").write(gen(**kw))
```

```python
import sys, struct, math, os
from asmlib import *
import hazard, align

WS_A, WS_I, WS_CS, WS_ST, WS_SIZE = 0, 0x1400000, 0x1C00000, 0x1C80000, 0x1D00000
def f2u(x): return hex(struct.unpack("<I", struct.pack("<f", x))[0])
LOG2E = 1.4426950408889634
GA1 = -2.0*LOG2E*math.sqrt(2.0/math.pi); GA3 = GA1*0.044715
W_OFF = 32768
STAGE = 73728
MB = 2*STAGE
MB_AOS, MB_NM, MB_RS = MB + 10240, MB + 14336, MB + 15360
CSS = 65536
KVX = 67584
RING2 = 81920
KVF = STAGE + 16384
STRM = 144*2048
SPIN = 0x80000
BIG = 0x7ff00000

def cls(i):
    n = i.split()[0]
    if n.endswith(":"): return -1
    if n.startswith("s_"): return 0
    if n.startswith(("ds_", "buffer_", "global_")): return 1
    return 2
def emit(a, mfmas, slots):
    for i in range(-1, len(mfmas)):
        if i >= 0: a(mfmas[i])
        items = slots.get(i, [])
        if any(cls(x) < 0 or "exec" in x or "cbranch" in x for x in items): a.extend(items)
        else: a.extend(sorted(items, key=cls))
def spread(slots, items, lo, hi):
    n = len(items)
    for i, x in enumerate(items):
        p = lo + (i*(hi - lo + 1))//max(n, 1)
        slots[p].extend(x if isinstance(x, list) else [x])
def vcost(x): return 2 if x.startswith(("v_exp", "v_rcp", "v_rsq")) else 1
def fillv(gaps, items):
    used = [sum(vcost(y) for y in g if cls(y) > 0) for g in gaps]
    tot = sum(used) + sum(vcost(x) for x in items)
    if tot <= 1.8*len(gaps):
        p = 0
        for x in items:
            while p < len(gaps) - 1 and used[p] + vcost(x) > 2: p += 1
            used[p] += vcost(x); gaps[p].append(x)
        return
    rate = tot/len(gaps); cum = 0; k = 0
    for p, g in enumerate(gaps):
        cum += used[p]
        while k < len(items) and (cum + vcost(items[k])/2 <= rate*(p+1) or p == len(gaps) - 1):
            g.append(items[k]); cum += vcost(items[k]); k += 1
def resolve(lines, paths):
    best = {}
    for path in paths:
        n = 0; pos = {}
        for i in path:
            l = lines[i].strip()
            if l.startswith(("buffer_", "global_")):
                n += 1
                if ";@" in l:
                    for t in l.split(";@")[1].split(","): pos[t.strip()] = n
            elif l.startswith("s_waitcnt @"):
                tags = [t for t in l.split()[1][1:].split(",") if t in pos]
                c = n - max(pos[t] for t in tags) if tags else 63
                best[i] = min(best.get(i, 63), c)
    for i, c in best.items():
        w = lines[i].split()
        lines[i] = "    " + " ".join([w[0], f"vmcnt({c})"] + w[2:])
    assert not any("s_waitcnt @" in l for l in lines)
class VM:
    def __init__(self, a): self.a = a; self.n = 0
    def __call__(self, s):
        self.a(s); self.n += 1; return self.n
    def wait(self, tag): self.a(f"s_waitcnt vmcnt({self.n - tag})")
def P(r): return f"v[{r}:{r+1}]"
SETS = {0: ["start", "loop", "e0", "k2", "s", "fin", "end"],
        2: ["k2", "t4", "t8", "t12", "t16", "t25", "s"],
        3: ["start", "karg", "addr", "zero", "dma", "loop", "i1"],
        4: ["loop", "i1", "i2", "i4", "i6", "s14", "e0"],
        1: ["i5", "s14"], 10: ["loop", "s0m", "s0e", "i1", "i2"], 11: ["i4", "s8m", "i5", "s14", "s14m", "s15", "e0"],
        8: ["t7", "t8", "t9", "t10", "t11", "t12", "t13"],
        9: ["k2", "t1", "t2", "t3", "t4", "t5", "t6"],
        7: ["t16", "t20", "t22", "t24", "t26", "t28", "t30"],
        6: ["s", "t32", "t33", "t34", "fin", "fs", "end"],
        5: ["e0", "b1", "w1d", "b2", "chk", "chkd", "k2"]}

def gen(**kw):
    o = dict(stamps=0, stw=2, ev=5, dst=18, od=1, sq=0, cpf=2, npf0=1, nd0=2, d0s=16, d0e=3, ax0=72, lb0=40, spf=0, swp=1, mv=1, flip=0, x0=8, xd=6, sf=1, mB=7, mA=16, nb=8, bl=0, aln=1, vo=3, rv=1, rh=5, unA=2, unB=4, snk=3, pfb=0, dsb=4, evb=5, axb=24, ts=10, te=10, xl=0, nm=8, lba=0, npf1=2, zper=12, slp=8, pfd=0, pfp=1, rp=2, pf2p=3, inp=4, csp=8, atp=6,
             pf2s=8, rs=2, sh=4, ctm=1, nin=80, s7e=20, pl=4, opoll=21, pro=1, ax=44, early=2, cpq=50, nw=4, tw=8, bs=0, na=2, cpt=99, tj=3, tg=10, nsA=12, nsB=13, fB=1, pf3=0, pB=5, cB=99, fA=3, pA=9, cA=99)
    o.update(kw)
    a = Asm(); ool = Asm(); near = Asm(); st = Stamps(o["stamps"], 74, 0)
    sset = SETS[o["sq"]]
    def stamp(tag, w=False):
        if tag in sset and o["stamps"]:
            st.n = sset.index(tag); st.stamp(a)
            if w: a("s_waitcnt lgkmcnt(0)")
    SX, SQ, SG, SW, SD, SO, SOUT, SP, SP2, SI, SU = 8, 12, 16, 24, 28, 32, 36, 40, 44, 48, 64
    V_XV, V_WV, V_XR, V_WR, V_PF, V_PF2, V_CSO = 8, 16, 22, 26, 32, 33, 34
    V_T, V_CSA, V_SEL, V_SENT = 36, 40, 44, 4
    V_ACC = 48; A_X = 0; A_W = 64; A_ACC = 144
    def S(d): return f"s[{d}:{d+3}]"
    def fin(d, size): a(f"s_mov_b32 s{d+2}, {size}\ns_mov_b32 s{d+3}, 0x20000")
    def accb(tb, cb):
        i = cb*8 + tb
        return ("v", V_ACC + 4*i) if i < 52 else ("a", A_ACC + 4*(i-52))
    def acc(tb, cb):
        p, b = accb(tb, cb); return vr(b, 4, p)
    def xf(tb, ks): return ar(A_X + (tb*2+ks)*4, 4)
    def wfb(cb, ks): return A_W + (cb*2+ks)*4
    spn = {}
    def spin_ool(name, cmp, reload):
        k = spn.setdefault(name[:4] if name[:4] in ("L_b1", "L_b2", "L_in", "L_b3", "L_of", "L_xb") else name, len(spn) + 1)
        ool(f"{name}_s:")
        if o.get("cnt"):
            ool(f"s_bitset1_b32 s101, {k}")
        ool(f"s_mov_b32 s0, 0\n{f's_branch {name}_r' if o['sf'] else ''}\n{name}_l:\ns_sleep {o['slp']}\n{name}_r:\n{reload}\ns_waitcnt vmcnt(0)\n{cmp}\ns_add_u32 s0, s0, 1\ns_cmp_ge_u32 s0, {SPIN}\ns_cbranch_scc1 {name}_d\ns_nop 1\ns_cbranch_vccnz {name}_l\ns_branch {name}_d")
    def spin(name, cmp, reload):
        a(cmp + f"\ns_nop 3\ns_cbranch_vccnz {name}_s\n{name}_d:")
        spin_ool(name, cmp, reload)

    a("s_cmp_lt_u32 s2, 256\ns_cbranch_scc1 L_go\ns_endpgm\nL_go:")
    stamp("start")
    a(f"s_load_dwordx2 s[{SX}:{SX+1}], s[0:1], 0\ns_load_dwordx2 s[{SQ}:{SQ+1}], s[0:1], 8\ns_load_dwordx2 s[{SG}:{SG+1}], s[0:1], 32\ns_load_dwordx2 s[{SU}:{SU+1}], s[0:1], 40")
    a("v_lshrrev_b32 v1, 6, v0\nv_and_b32 v2, 63, v0\ns_lshr_b32 s58, s2, 3")
    if o["swp"]: a("s_lshr_b32 s6, s2, 2\ns_xor_b32 s6, s6, s2\ns_and_b32 s6, s6, 1\ns_mul_i32 s6, s6, 5\ns_xor_b32 s2, s2, s6")
    n0 = 0
    if o["cpf"]:
        a("s_getpc_b64 s[72:73]\nL_pc:\nv_min_u32 v3, 15, v2\nv_mad_u32_u24 v4, v1, 9, v3\nv_mad_u32_u24 v5, v1, 7, v3\ns_mul_i32 s6, s58, 28\nv_cmp_ne_u32 vcc, 0, v1")
        a("s_bitcmp1_b32 s2, 5\ns_cselect_b32 s7, (L_tB-L_tA)/128-3, 0\nv_mov_b32 v6, s7\nv_add_u32 v5, s6, v5\nv_cndmask_b32 v6, 0, v6, vcc\nv_cmp_gt_u32 vcc, 7, v3\nv_add3_u32 v4, v4, v6, -7")
        a("v_cndmask_b32 v4, v4, v5, vcc\nv_lshlrev_b32 v4, 7, v4\nv_min_u32 v4, L_cend-L_pc-4, v4")
        a("global_load_dword v0, v4, s[72:73]")
    a("v_readfirstlane_b32 s3, v1\nv_lshlrev_b32 v1, 4, v2")
    a(f"s_load_dwordx2 s[{SW}:{SW+1}], s[0:1], 72\ns_load_dwordx2 s[{SD}:{SD+1}], s[0:1], 48\ns_load_dwordx2 s[{SO}:{SO+1}], s[0:1], 16")
    a(f"s_load_dwordx2 s[{SOUT}:{SOUT+1}], s[0:1], 56\ns_load_dwordx2 s[62:63], s[0:1], 64")
    a("s_bfe_u32 s60, s2, 0x20001\ns_lshr_b32 s6, s2, 5\ns_lshl3_add_u32 s4, s60, s6")
    a("s_and_b32 s23, s2, 1\ns_bfe_u32 s6, s2, 0x20003\ns_lshl2_add_u32 s5, s23, s6\ns_lshl_b32 s23, s23, 3")
    a("s_lshr_b32 s52, s3, 1\ns_and_b32 s53, s3, 1")
    a("s_cmp_eq_u32 s3, 0\ns_cbranch_scc1 L_pf0\ns_cmp_eq_u32 s3, 1\ns_cbranch_scc1 L_pf1")
    a(f"s_mov_b32 s{SP+2}, {1024*3584*2}\ns_mov_b32 s59, {64*7168}")
    a("v_min_u32 v3, 27, v2\nv_cmp_le_u32 vcc, 14, v3\ns_lshl_b32 s6, s58, 1\ns_mul_i32 s7, s60, 1792\nv_cndmask_b32 v4, 0, 1, vcc\nv_mul_u32_u24 v5, 14, v4\nv_sub_u32 v5, v3, v5")
    a("v_add_u32 v4, s6, v4\nv_lshl_add_u32 v5, v5, 7, s7\ns_movk_i32 s57, 7168")
    a(f"v_mad_u32_u24 v{V_PF}, v4, s57, v5\ns_waitcnt lgkmcnt(0)\ns_cmp_eq_u32 s3, 2\ns_cselect_b32 s{SP}, s{SG}, s{SU}\ns_cselect_b32 s{SP+1}, s{SG+1}, s{SU+1}\ns_branch L_pfd")
    a("L_pf1:")
    a(f"s_mov_b32 s{SP+2}, {1024*3072*2}\ns_mov_b32 s59, {64*6144}")
    a("v_min_u32 v3, 23, v2\nv_cmp_le_u32 vcc, 12, v3\ns_lshl_b32 s6, s58, 1\ns_lshl_b32 s7, s60, 9\nv_cndmask_b32 v4, 0, 1, vcc\nv_mul_u32_u24 v5, 12, v4\nv_sub_u32 v5, v3, v5")
    a("v_add_u32 v4, s6, v4\nv_lshrrev_b32 v6, 2, v5\nv_and_b32 v5, 3, v5\nv_lshl_add_u32 v5, v5, 7, s7\nv_lshl_add_u32 v5, v6, 11, v5\ns_movk_i32 s57, 6144")
    a(f"v_mad_u32_u24 v{V_PF}, v4, s57, v5\ns_waitcnt lgkmcnt(0)\ns_mov_b32 s{SP}, s{SQ}\ns_mov_b32 s{SP+1}, s{SQ+1}\ns_branch L_pfd")
    a("L_pf0:")
    a(f"s_mov_b32 s{SP+2}, {2048*1024*2}\ns_mov_b32 s59, 128")
    a(f"s_lshl2_add_u32 s6, s23, s58\ns_lshl_b32 s6, s6, 5\nv_min_u32 v4, 31, v2\nv_add_u32 v4, s6, v4\nv_lshlrev_b32 v{V_PF}, 11, v4")
    a(f"s_waitcnt lgkmcnt(0)\ns_mov_b32 s{SP}, s{SX}\ns_mov_b32 s{SP+1}, s{SX+1}")
    a("L_pfd:")
    if o.get("norot"): a("s_mov_b32 s23, 0")
    a(f"s_mov_b32 s{SP+3}, 0x20000\ns_mul_i32 s58, s23, s59")
    stamp("karg", True)
    PFA = [f"s_add_u32 s58, s23, {o['pfd'] + 1}", f"s_and_b32 s58, s58, {o.get('kmask', 15)}", "s_mul_i32 s58, s58, s59"]
    POL = ["", " sc1", " nt", " sc0", " sc0 sc1"]
    PFI = f"buffer_load_{['dword', 'ubyte'][o.get('pb8', 0)]} v0, v{V_PF}, {S(SP)}, s58 offen{POL[o.get('pp1', 0)]}"
    for i in range(o["npf0"]): a(PFI); a("s_add_u32 s58, s58, s59")
    def sload(lo, hi):
        for i in range(lo, hi):
            a(f"s_load_dword s73, s[{SP}:{SP+1}], s44")
            a(f"s_add_u32 s44, s44, s{45 if i % 4 < 3 else 46 if i % 16 < 15 else 47}")
    if o["spf"]:
        a(f"v_readfirstlane_b32 s44, v{V_PF}\ns_movk_i32 s47, 2048\ns_cmp_eq_u32 s3, 0\ns_cselect_b32 s45, s47, 128\ns_cselect_b32 s46, s47, 128\ns_cselect_b32 s47, s47, {7168 - 1920}\ns_cmp_eq_u32 s3, 1\ns_cselect_b32 s46, {2048 - 384}, s46\ns_cselect_b32 s47, {2048 - 384}, s47\ns_add_u32 s44, s44, s58")
        sload(0, o["spf"])
    fin(SG, 1024*3584*2); fin(SU, 1024*3584*2); fin(SX, 2048*1024*2); fin(SQ, 1024*3072*2)
    a(f"s_lshl_b32 s20, s23, 7\ns_mul_i32 s21, s23, {64*6144}\ns_mul_i32 s22, s23, {64*7168}")
    a(f"s_lshl_b32 s54, s3, 13\ns_lshl_b32 s55, s3, 11\ns_add_u32 s55, s55, {W_OFF}\ns_lshl_b32 s56, s3, 10\ns_add_u32 s56, s56, {W_OFF + 32768}")
    a("s_lshl_b32 s6, s5, 8\ns_lshl_b32 s7, s3, 6\ns_add_u32 s6, s6, s7")
    a("v_lshrrev_b32 v3, 3, v2\nv_add_u32 v7, s6, v3\nv_lshlrev_b32 v7, 11, v7\nv_lshrrev_b32 v4, 4, v2\nv_and_b32 v5, 7, v2")
    for c in range(2):
        a(f"v_add_u32 v6, {4*c}, v4\nv_xor_b32 v6, v6, v5\nv_lshl_add_u32 v6, v6, 4, v7")
        for cc in range(c, 8, 2): a(f"v_add_u32 v{V_XV+cc}, {cc*8*2048}, v6")
    a("s_lshl_b32 s6, s52, 5\ns_lshl2_add_u32 s61, s53, s6")
    a("v_and_b32 v3, 3, v3\nv_lshrrev_b32 v6, 5, v2\nv_lshl_add_u32 v3, v6, 3, v3\nv_add_u32 v3, s61, v3")
    a("v_lshlrev_b32 v6, 1, v4\nv_xor_b32 v5, v5, v6\nv_lshlrev_b32 v5, 4, v5")
    a("s_lshr_b32 s0, s4, 1\ns_and_b32 s1, s0, 1\ns_mul_i32 s6, s0, 448\ns_movk_i32 s57, 7168")
    a("s_bitcmp1_b32 s2, 5\ns_cbranch_scc1 L_tB")

    def dma_list(ty, stage):
        b = stage*STAGE
        xs = [(f"s_add_u32 m0, s54, {b + c*1024}", f"buffer_load_dwordx4 v{V_XV+c}, {S(SX)}, s20 offen{POL[o.get('pd', 0)]} lds") for c in range(8)]
        def w(u, c, reg, srd, so, off=0):
            return (f"s_add_u32 m0, s55, {b + u*8192 + c*1024 - off}", f"buffer_load_dwordx4 v{reg}, {S(srd)}, s{so} offen{f' offset:{off}' if off else ''}{POL[o.get('pd', 0)]} lds")
        if ty == 0:
            ws = [w(u, c, V_WV+c, (SG, SU)[u], 22) for u in range(2) for c in range(2)]
            ws += [w(2, c, V_WV+2+c, SQ, 21) for c in range(2)] + [w(3, c, V_WV+2+c, SQ, 21, 2048) for c in range(2)] + [w(4, c, V_WV+4+c, SQ, 21) for c in range(2)]
        else:
            ws = [w(2*h+u, c, V_WV+c, (SG, SU)[u], 22, 128*h) for u in range(2) for c in range(2) for h in range(2)]
            ws += [(f"s_add_u32 m0, s56, {b + u*4096}", f"buffer_load_dwordx4 v{V_WV+2}, {S((SG, SU)[u])}, s22 offen{POL[o.get('ph', 0)]} lds") for u in range(2)]
        od = o.get("od", 0)
        if od == 1: return xs + ws
        if od == 2: return [y for p in zip(xs, ws) for y in p] + ws[8:]
        return ws + xs
    adv = ["s_add_u32 s23, s23, 1", f"s_and_b32 s23, s23, {o.get('kmask', 15)}", f"s_mul_i32 s22, s23, {64*7168}", f"s_mul_i32 s21, s23, {64*6144}", "s_lshl_b32 s20, s23, 7"]
    EV, ST0 = o["ev"], o["dst"]
    dpos = [ST0 + EV*i for i in range(18)]
    dpos = [p + 1 if p == 80 else p for p in dpos]
    n3 = sum(1 for p in dpos if p < 80)
    BL = [[("g", 0, 0), ("u", 1, 0), ("g", 0, 1), ("u", 1, 1), ("q", 2, 0), ("q", 2, 1), ("k", 3, 0), ("k", 3, 1), ("v", 4, 0), ("v", 4, 1)],
          [("g", 0, 0), ("u", 1, 0), ("g", 0, 1), ("u", 1, 1), ("h", 0, 2), ("h", 1, 2), ("g", 2, 0), ("u", 3, 0), ("g", 2, 1), ("u", 3, 1)]]
    def xread(stage, tb, ks): return f"ds_read_b128 {xf(tb, ks)}, v{V_XR + stage*2 + ks} offset:{tb*2048}"
    def wread(ty, stage, cb):
        t, u, i = BL[ty][cb]; L = []
        for ks in range(2):
            for rd in range(2):
                row = 32*ks + 16*rd
                off = u*4096 + row*64 if t == "h" else u*8192 + row*128
                L.append(f"ds_read_b64_tr_b16 {ar(wfb(cb, ks)+2*rd, 2)}, v{V_WR + 2*i + stage} offset:{off}")
        return L
    def mfmas(ty, half, first=False):
        L = []
        for cb, (t, u, i) in enumerate(BL[ty]):
            for n, tb in enumerate(range(4*half, 4*half+4) if cb % 2 == 0 or not o["snk"] & 1 else range(4*half+3, 4*half-1, -1)):
                for ks in ((0, 1) if n % 2 == 0 else (1, 0)):
                    x, w = xf(tb, ks), ar(wfb(cb, ks), 4)
                    A, B = (x, w) if t in "kv" else (w, x)
                    L.append(f"v_mfma_f32_16x16x32_bf16 {acc(tb, cb)}, {A}, {B}, {0 if first and ks == n % 2 else acc(tb, cb)}")
        return L
    V_BV = 8
    def n0(T): return 56 + n0(T - o["mv"]) if T >= 28 else [0, 2, 12, 8][T & 3] + 14*(T >> 2) if T < 16 else 7*(T-16) + 4 - (T & 1) if T < 24 else 14*(T-24) + 6
    def bdma(slot, ph, base=0):
        s_, so = (S(SD) if ph == "f" else S(SO)), 15
        return [(f"s_add_u32 m0, s18, {base + slot*16384 + c*1024}", f"buffer_load_dwordx4 v{V_BV+c}, {s_}, s{so} offen{POL[o.get('pk', 0)]} lds") for c in range(4)]
    def put(slots, dm):
        for pre, m, d, p in dm:
            for k, x in enumerate(pre): slots[p - 1 - len(pre) + k].append(x)
            slots[p-1].append(m); slots[p].append(d)
    def atomic(off):
        return f"v_mov_b32 v{V_SEL}, {off}\nv_mov_b32 v{V_SEL+1}, 1\ns_mov_b64 exec, 1\nglobal_atomic_add v{V_SEL}, v{V_SEL+1}, s[62:63] sc1\ns_mov_b64 exec, -1"
    def fill(slots, items, lo, hi):
        p = lo
        for x in items:
            x = x if isinstance(x, list) else [x]
            while True:
                assert p <= hi, "no room"
                nv = sum(cls(y) > 0 for y in slots[p]); ns_ = sum(cls(y) == 0 for y in slots[p])
                if ns_ + len(x) <= (3 if nv == 0 else 1) and not any("m0" in y or "waitcnt" in y for y in slots[p]): break
                p += 1
            slots[p].extend(x)
    def putds(slots, items, pos, hi):
        last = -1
        for x, p in zip(items, pos):
            p = max(p, last + 1)
            q = p
            while q <= hi and any(cls(y) > 0 for y in slots[q]): q += 1
            if q > hi or q > p + 2: q = p
            slots[q].append(x); last = q
    uid = [0]
    def cond(cmp, body, neg=False):
        uid[0] += 1
        return cmp + [f"s_cbranch_scc{1 if neg else 0} L_c{uid[0]}"] + body + [f"L_c{uid[0]}:"]
    def phase1(ty, stage, kind, dm):
        slots = {i: [] for i in range(-1, 80)}
        slots[-1].append("s_waitcnt lgkmcnt(4)")
        put(slots, dm)
        if kind == "s14": slots[2].append("global_load_dword v3, v35, s[62:63] sc1")
        xb = [xread(stage, tb, ks) for tb in range(4, 8) for ks in range(2)]
        lastd = max([x[3] for x in dm] + [0])
        if kind == "s0":
            for cb in range(8):
                gp = sorted(sorted(range(8*cb, 8*cb+7), key=lambda q: any(cls(y) > 0 for y in slots[q]))[:5])
                for q, x in zip(gp, wread(ty, 0, cb+2) + [xb[cb]]): slots[q].append(x)
                assert len(gp) == 5
                slots[8*cb+7].append("s_waitcnt lgkmcnt(5)")
            slots[71].append("s_waitcnt lgkmcnt(0)")
        elif kind == "s8":
            putds(slots, wread(ty, stage, 9) + xb, [8 + 2*i for i in range(12)], 40)
            slots[63].append("s_waitcnt lgkmcnt(0)")
        else:
            putds(slots, wread(ty, stage, 9) + xb, [1 + 3*i for i in range(12)], 40)
            slots[63].append("s_waitcnt lgkmcnt(0)")
        if kind in ("s0", "la", "s8", "lb"):
            ax = {"s0": o["ax0"], "lb": o["axb"]}.get(kind, o["ax"])
            assert ax > lastd
            if o["pfb"] or kind in ("s0", "la"):
                fill(slots, PFA, 0, ax - 1)
                slots[ax].append(PFI)
            if kind in ("lb", "s8"):
                slots[ax+3].append(f"buffer_load_dword v0, v{V_PF2}, {S(SP2)}, s60 offen{POL[o.get('pp2', 0)]}"); slots[ax+4].append("s_add_u32 s60, s60, 1664")
            elif kind == "s0" and o.get("nor0"): slots[ax+2].append(f"buffer_load_dword v0, v1, {S(SX)}, 0 offen")
            elif stage == 0:
                slots[ax+1].append("s_mov_b32 m0, s0"); slots[ax+2].append(f"buffer_load_dwordx4 v1, {S(SX)}, s1 offen lds")
                slots[ax+3].extend(["s_add_u32 s0, s0, 1024", "s_add_u32 s1, s1, 1024"])
            else:
                slots[ax+3].append(f"buffer_store_dwordx4 {vr(V_SENT, 4)}, v1, {S(SI)}, s61 offen sc1"); slots[ax+4].append("s_add_u32 s61, s61, 1024")
            fill(slots, adv, max(64, lastd + 1), 77)
        if kind in ("s0", "la"):
            for r in range(4): slots[66 + 2*r].append(f"v_mov_b32 v{V_SEL+r}, v35")
            ret = 1 if kind == "s0" else 2 + stage
            slots[62].append(f"s_mov_b32 s72, {ret}")
            slots[78].append("s_cmp_eq_u32 s57, s68")
            slots[79].extend([f"s_cbranch_scc1 L_cs{ty}", f"L_cs{ty}_d{ret}:"])
        if kind == "s8":
            slots[-1].extend([f"buffer_store_dwordx4 {vr(V_CSA, 4)}, v{V_CSO}, {S(SW)}, s69 offen sc1", "v_add_u32 v3, s0, v1"])
            DR = [V_T, V_SEL, V_CSA]
            for i in range(3): slots[i].append(f"ds_read_b128 {vr(DR[i], 4)}, v3 offset:{1024*i}")
            fill(slots, ["s_lshr_b32 s0, s2, 5", "s_mul_i32 s0, s0, 6144", f"s_add_u32 s0, s0, {WS_ST}", "s_and_b32 s7, s2, 31", "s_lshl2_add_u32 s7, s7, s3", "s_lshl3_add_u32 s1, s7, s0", "s_add_u32 s1, s1, 4096", "s_lshl_b32 s7, s7, 5", "s_add_u32 s0, s0, s7"], 8, 60)
            slots[7].append("s_waitcnt lgkmcnt(0)")
            def chunk(i):
                r = i >> 1; vv = []
                for q in range(4):
                    x = DR[i % 3] + q; f = (i & 1) == 0 and q == 0
                    vv += [f"v_lshlrev_b32 v34, 16, v{x}", f"v_and_b32 v{x}, 0xffff0000, v{x}"]
                    vv += [f"v_add_f32 v{4+r}, v34, v{x}", f"v_mul_f32 v{6+r}, v34, v34"] if f else [f"v_add_f32 v{4+r}, v{4+r}, v34", f"v_fmac_f32 v{6+r}, v34, v34", f"v_add_f32 v{4+r}, v{4+r}, v{x}"]
                    vv += [f"v_fmac_f32 v{6+r}, v{x}, v{x}"]
                return vv
            fillv([slots[i] for i in range(7, 19)], chunk(0))
            slots[19].append(f"ds_read_b128 {vr(DR[0], 4)}, v3 offset:3072")
            fillv([slots[i] for i in range(19, 42)], chunk(1) + chunk(2))
            slots[42].append("s_waitcnt lgkmcnt(0)")
            fillv([slots[i] for i in range(42, 53)], chunk(3))
            seq = [["v_lshrrev_b32 v46, 3, v2", "v_lshrrev_b32 v47, 1, v2"], ["v_permlane32_swap_b32 v4, v5", "v_permlane32_swap_b32 v6, v7"], ["v_add_f32 v4, v4, v5", "v_add_f32 v6, v6, v7"],
                   [f"v_mov_b32 v45, {f2u(1.0/1024)}"], ["v_permlane16_swap_b32 v4, v6", "v_add_f32 v4, v4, v6"]]
            seq += [["s_nop 0", f"v_add_f32_dpp v4, v4, v4 row_ror:{sh} row_mask:0xf bank_mask:0xf"] for sh in (8, 4, 2, 1)]
            seq += [["v_mov_b32 v6, v4"], ["s_nop 0", "v_permlane16_swap_b32 v4, v6", f"v_mul_f32 v36, {f2u(-1.0/1024)}, v4"], ["v_mul_f32 v44, v36, v36", "v_fma_f32 v44, v6, v45, -v44"],
                    ["v_max_f32 v44, 0, v44", "v_cvt_pk_bf16_f32 v44, v36, v44"], ["v_lshlrev_b32 v36, 16, v44", "v_and_b32 v44, 0xffff0000, v44"],
                    [f"v_add_f32 v44, {f2u(1e-5)}, v44", "v_cvt_pk_bf16_f32 v44, 0, v44"], ["v_sqrt_f32 v44, v44"], ["v_cvt_pk_bf16_f32 v44, 0, v44", "v_mul_f32 v39, v44, v44"],
                    ["v_rcp_f32 v44, v44"], [f"v_mul_f32 v37, {f2u(GA1)}, v44", "v_mul_f32 v45, v44, v44"],
                    [f"v_mul_f32 v38, {f2u(0.044715)}, v37", "v_mul_f32 v38, v38, v45"], ["v_mov_b64 v[4:5], -1", "v_mov_b64 v[6:7], -1"]]
            assert len(seq) <= 21
            for i, x in enumerate(seq): slots[53 + i].extend(x)
            for i, x in enumerate([f"buffer_store_dwordx4 v[36:39], v47, {S(SW)}, s0 offen sc1", f"buffer_store_dword v36, v46, {S(SW)}, s1 offen sc1", f"buffer_store_dword v44, v46, {S(SW)}, s1 offen offset:1024 sc1"]):
                slots[74 + 2*i].extend(["s_mov_b64 exec, s[72:73]", x, "s_mov_b64 exec, -1"])
            slots[4].extend(["s_mov_b32 s72, 1", "s_mov_b32 s73, 1"])
        if kind == "s14":
            slots[0].extend(["v_and_b32 v35, 1, v2", "v_lshlrev_b32 v35, 7, v35"])
            nm = f"L_ini{ty}"; cmp = "v_cmp_gt_u32 vcc, 0x80, v3"
            slots[41].append(f"s_waitcnt vmcnt({sum(1 for x in dm if x[3] > 2)})"); slots[42].append(cmp)
            slots[44].extend([f"s_cbranch_vccnz {nm}_s", f"{nm}_d:"])
            spin_ool(nm, cmp, "global_load_dword v3, v35, s[62:63] sc1")
            ss = ["s_mul_i32 s6, s4, 10240", f"s_add_u32 s6, s6, {WS_CS}", "s_mul_i32 s7, s5, 6144", f"s_add_u32 s7, s7, {WS_ST - 10240}", "s_lshl_b32 s18, s3, 12", "s_add_u32 s6, s6, s18", "s_add_u32 s7, s7, s18",
                  ["s_cmp_lt_u32 s3, 3", "s_cselect_b32 s58, s6, s7"], ["s_cmp_lt_u32 s3, 2", "s_cselect_b32 s59, s6, s7"], f"s_mov_b32 s{SI+2}, 8192", "s_movk_i32 s61, 4096"]
            fill(slots, ss, lastd + 1, 43)
            slots[45].append(f"s_add_u32 m0, s18, {MB}")
            for c in range(4): slots[46 + 3*c].append(f"buffer_load_dwordx4 v1, {S(SW)}, s{58 + (c >> 1)} offen offset:{c*1024} sc1 lds")
            vv = ["v_lshrrev_b32 v12, 3, v2", "v_bfe_u32 v13, v2, 4, 2", "v_lshlrev_b32 v13, 1, v13", "v_and_b32 v14, 7, v2", "v_xor_b32 v14, v14, v13",
                  "v_lshlrev_b32 v14, 4, v14", f"v_lshl_add_u32 v{V_BV}, v12, 11, v14"] + [f"v_add_u32 v{V_BV+c}, {16384*c}, v{V_BV}" for c in range(1, 4)]
            for i, x in enumerate(vv): slots[66 + i].append(x)
            for c in range(4): slots[59 + 5*c].append(f"buffer_store_dwordx4 {vr(V_SENT, 4)}, v1, {S(SI)}, s61 offen offset:{c*1024} sc1")
            if o["cpf"] > 1:
                q = o["cpq"]
                slots[q].extend(["s_getpc_b64 s[72:73]", f"L_pd{ty}:", f"s_sub_u32 s72, s72, L_pd{ty}-L_pc", "s_subb_u32 s73, s73, 0"])
                slots[q+1].extend(["s_lshr_b32 s0, s2, 3", "s_lshl2_add_u32 s0, s0, s3", "s_mul_i32 s0, s0, 7"])
                slots[q+2].extend(["v_min_u32 v36, 6, v2", "v_add_lshl_u32 v36, v36, s0, 7"])
                slots[q+3].append("v_min_u32 v36, L_cend-L_pc-4, v36")
                slots[57].append("global_load_dword v0, v36, s[72:73]")
            ss = ["s_bfe_u32 s20, s2, 0x10002", "s_and_b32 s6, s2, 1", "s_bfe_u32 s7, s2, 0x10001", "s_lshl1_add_u32 s6, s6, s7", "s_lshr_b32 s7, s2, 6", "s_lshl2_add_u32 s21, s6, s7",
                  "s_bfe_u32 s22, s2, 0x20003", "s_bfe_u32 s7, s2, 0x10005", "s_lshl1_add_u32 s22, s22, s7", "s_lshl_b32 s22, s22, 8",
                  f"s_mul_i32 s14, s20, {1792*2048}", "s_add_u32 s14, s14, s22", "s_xor_b32 s6, s53, s20", f"s_xor_b32 s6, s6, {o['flip']}", "s_lshl_b32 s6, s6, 7", "s_add_u32 s14, s14, s6",
                  "s_lshl_b32 s15, s52, 16", "s_add_u32 s14, s15, s14", "s_mov_b32 s15, s14"]
            fill(slots, ss, 47, 78)
        if kind == "s15":
            slots[0].extend([f"s_waitcnt vmcnt({o['n14']})", "s_barrier"])
            slots[2].extend(["s_mul_i32 s6, s3, 320", "v_lshl_add_u32 v12, v2, 3, s6"])
            slots[5].append(f"v_add_u32 v13, {MB}, v12"); slots[6].append(f"v_add_u32 v12, {CSS}, v12")
            putds(slots, [f"ds_read_b64 v[{32+2*r}:{33+2*r}], v13 offset:{r*1280}" for r in range(8)], range(37, 45), 50)
            slots[54].append("s_waitcnt lgkmcnt(0)")
            fillv([slots[i] for i in range(54, 64)], [f"v_add_f32 v{32+i}, v{32+i}, v{32+stp+i}" for stp in (8, 4, 2) for i in range(stp)])
            slots[65].append("ds_write_b64 v12, v[32:33]")
            vv = ["v_and_b32 v44, 15, v2", "v_lshrrev_b32 v45, 4, v2", "v_lshlrev_b32 v4, 11, v44", "v_add_u32 v44, s7, v44", "v_lshlrev_b32 v44, 4, v44", f"v_add_u32 v44, {MB_AOS}, v44",
                  "v_lshl_add_u32 v4, v45, 4, v4", "v_lshl_add_u32 v45, v45, 4, s64", "v_add_u32 v5, 32768, v4",
                  "v_bfe_u32 v46, v2, 1, 3", "v_bfe_u32 v47, v2, 4, 1", "v_lshl_or_b32 v46, v46, 4, v47", "v_and_b32 v47, 1, v2", "v_lshl_or_b32 v46, v46, 2, v47", "v_lshlrev_b32 v46, 14, v46", "v_mov_b32 v3, 1",
                  "v_lshrrev_b32 v7, 2, v2", "v_lshlrev_b32 v7, 7, v7", "v_and_b32 v6, 3, v2", "v_lshl_add_u32 v7, v6, 3, v7", "v_bfe_u32 v6, v2, 3, 2", "v_lshl_add_u32 v7, v6, 5, v7"]
            fillv([slots[i] for i in range(66, 80)], vv)
            ss = ["s_lshl_b32 s7, s53, 7", "s_mul_i32 s64, s52, 640", f"s_add_u32 s64, s64, {CSS}",
                  "s_lshl1_add_u32 s0, s5, s53", f"s_mul_i32 s1, s0, {4*STRM}", "s_lshr_b32 s6, s4, 4", "s_mul_i32 s48, s6, 56", "s_add_u32 s48, s48, 32", "s_and_b32 s56, s4, 15",
                  "s_lshl1_add_u32 s41, s56, s52", "s_add_u32 s40, s41, s48", "s_lshl_b32 s40, s40, 11", "s_add_u32 s40, s40, s1"]
            if ty == 0:
                ss += ["s_add_u32 s41, s4, s52", "s_lshl_b32 s44, s41, 11", "s_add_u32 s44, s44, s1"]
            else:
                ss += ["s_add_u32 s41, s56, s52", "s_sub_u32 s41, s41, 1", "s_add_u32 s44, s41, s48", "s_add_u32 s44, s44, 32", "s_lshl_b32 s44, s44, 11", "s_add_u32 s44, s44, s1",
                       "s_lshl1_add_u32 s48, s48, s41", "s_add_u32 s48, s48, 96", "s_lshl_b32 s48, s48, 10", "s_add_u32 s48, s48, s1"]
            for b in (40, 44, 48)[:2+ty]:
                for i in range(1, 4): ss.append(f"s_add_u32 s{b+i}, s{b}, {i*STRM}")
            ss += ["s_bfe_u32 s58, s21, 0x20001", "s_lshr_b32 s59, s21, 3", "s_lshl3_add_u32 s58, s58, s59", "s_and_b32 s59, s21, 1", "s_lshl2_add_u32 s58, s58, s59",
                   "s_lshl4_add_u32 s59, s20, s58", "s_lshl3_add_u32 s69, s3, s58", "s_lshl_b32 s59, s59, 13", "s_lshl_b32 s69, s69, 13", f"s_add_u32 s59, s59, {WS_I}", f"s_add_u32 s69, s69, {WS_I}",
                   "s_lshl_b32 s60, s53, 22", "s_lshl_b32 s0, s52, 16", "s_add_u32 s60, s60, s0", "s_add_u32 s60, s60, s59", f"s_add_u32 s60, s60, {1 << 20}",
                   "s_lshl2_add_u32 s19, s21, s3", f"s_mul_i32 s13, s19, {STRM}", f"s_mul_i32 s12, s20, {56*2048}", "s_add_u32 s12, s12, s13", f"s_add_u32 s12, s12, {32*2048}",
                   f"s_xor_b32 s0, s20, {o['flip']}", "s_lshl_b32 s0, s0, 7", "s_add_u32 s0, s0, s22", "s_lshl_b32 s19, s19, 16", "s_add_u32 s19, s19, s0", "s_lshl_b32 s17, s3, 16", "s_add_u32 s17, s17, s0",
                   "s_lshl2_add_u32 s61, s2, s3", "s_lshl_b32 s61, s61, 13", f"s_xor_b32 s65, s61, {16*8192}", f"s_add_u32 s54, s61, {WS_I}", f"s_add_u32 s55, s65, {WS_I}", f"s_add_u32 s61, s61, {WS_I + 4096}", f"s_add_u32 s65, s65, {WS_I + 4096}",
                   f"s_mov_b32 s68, {f2u(1e-6)}", f"s_mov_b32 s56, {f2u(LOG2E)}"]
            fill(slots, ss, 3, 62)
        emit(a, mfmas(ty, 0, kind == "s0"), slots)
    CS, TK, Z, Z2 = 12, 28, 36, 240
    def geglu1(el):
        vv = [f"v_fmac_f32 v{g}, v{cg}, v{tk}" for g, u, cg, cu, tk, z in el] + [f"v_mul_f32 v{z}, v{g}, v{g}" for g, u, cg, cu, tk, z in el]
        vv += [f"v_fma_f32 v{z}, v{z}, v{tk+2}, v{tk+1}" for g, u, cg, cu, tk, z in el] + [f"v_mul_f32 v{z}, v{z}, v{g}" for g, u, cg, cu, tk, z in el]
        vv += [f"v_exp_f32 v{z}, v{z}" for g, u, cg, cu, tk, z in el] + [f"v_fmac_f32 v{u}, v{cu}, v{tk}" for g, u, cg, cu, tk, z in el]
        vv += [f"v_fma_f32 v{z}, v{z}, v{tk+3}, v{tk+3}" for g, u, cg, cu, tk, z in el]
        vv += [f"v_rcp_f32 v{z}, v{z}" for g, u, cg, cu, tk, z in el] + [f"v_mul_f32 v{u}, v{u}, v{g}" for g, u, cg, cu, tk, z in el]
        return vv + [f"v_mul_f32 v{u}, v{u}, v{z}" for g, u, cg, cu, tk, z in el]
    XLD = [f"buffer_load_dwordx4 {ar(4*i, 4)}, v{4 + (i>>1)}, {S(SX)}, s19 offen offset:{(i&1)*64}" for i in range(4)]
    def phase2(ty, stage, kind, dm, nwait):
        slots = {i: [] for i in range(-1, 80)}
        ms = mfmas(ty, 1, kind == "s0")
        lb = {"s0": o["lb0"], "la": o["lba"]}.get(kind, 0)
        if lb:
            slots[0].append("s_barrier")
            slots[lb].extend([f"s_waitcnt vmcnt({2 + sum(1 for x in dm if x[3] < lb)})", "s_barrier"])
        else: slots[0].extend([f"s_waitcnt {nwait}", "s_barrier"])
        if kind == "lb" and stage == 0: slots[0].append(f"L_lbm{ty}:")
        put(slots, dm)
        if kind == "lb":
            nm = f"L_at{ty}{stage}"
            slots[1].append(f"s_cmp_eq_u32 s57, s{70 + stage}"); slots[2].extend([f"s_cbranch_scc1 {nm}", f"{nm}_d:"])
            near(f"{nm}:\ns_and_b32 s6, s2, 1\ns_lshl_b32 s6, s6, 7\n{atomic('s6')}\ns_branch {nm}_d")
        if kind in ("la", "lb") and stage == 1:
            slots[76].append("s_add_u32 s57, s57, 1"); slots[78].append(f"s_cmp_lt_u32 s57, {4 if kind == 'la' else 7}")
            assert not any("m0" in y for y in slots[78] + slots[79])
        if kind != "s15":
            xr = [xread(stage ^ 1, tb, ks) for tb in range(4) for ks in range(2)]
            if lb:
                rd = [(0, x) for x in xr] + [(8*(cb+1) + 1, x) for cb in range(9) for x in wread(ty, stage ^ 1, cb)]
                for i, (e, x) in enumerate(rd): slots[max(e, lb + (i*(80 - lb))//44)].append(x)
            else:
                for cb in range(9): putds(slots, wread(ty, stage ^ 1, cb), [8*(cb+1) + q for q in (1, 3, 5, 7)], 79)
                putds(slots, xr, [4, 6, 14, 22, 30, 38, 46, 54], 70)
        else:
            for i in range(4): slots[1+i].append(f"ds_read_b128 v[{CS+4*i}:{CS+4*i+3}], v45 offset:{i*64}")
            for i in range(2): slots[5+i].append(f"ds_read_b128 v[{TK+4*i}:{TK+4*i+3}], v44 offset:{i*256}")
            if not o["xl"]:
                for i in range(4): slots[7 + 2*i].append(XLD[i])
            slots[14].append("s_waitcnt lgkmcnt(0)")
            ne = o["early"]
            for tb in range(ne):
                r = [accb(tb, i)[1] for i in range(4)]
                el = [(r[2*n]+i, r[2*n+1]+i, CS+8*n+i, CS+8*n+4+i, TK+4*tb, Z+4*n+i) for n in range(2) for i in range(4)]
                lo, hi = 14 + (65*tb)//ne, 14 + (65*(tb+1))//ne
                fillv([slots[i] for i in range(lo, hi)], geglu1(el) + [f"v_cvt_pk_bf16_f32 v{r[0]+i}, v{el[2*i][1]}, v{el[2*i+1][1]}" for i in range(4)])
                slots[hi].append(f"buffer_store_dwordx4 v[{r[0]}:{r[0]+3}], v1, {S(SW)}, s40 offen offset:{tb*1024} sc1")
                if tb == 1: slots[lo+1].append(f"ds_read_b128 v[{TK}:{TK+3}], v44 offset:512")
        emit(a, ms, slots)
    VF, VQ, VS = 144, 112, 176
    D = 3; R = 4; nf, ns = 28, 8; T = nf + ns; NU = 16
    V_BR, V_A2, V_AO, V_XO, V_P2, V_P3 = 36, 40, 41, 42, 24, 25
    PL, PK, XF, SE, SX0, G = 64, 80, 208, 12, 20, 48
    TP = nf + o['pl']; TC = TP + 2
    def af(slot, i): return ar((80 + slot*16 if i < 4 else 128 + slot*16 if slot else 0) + (i & 3)*4, 4)
    def bf(p, u, cb): return (192 if p else 16) + (u*4+cb)*4
    def facc(ch, cb, tb): return (VF, VQ, VS)[ch] + (cb*2+tb)*4
    def ph(t): return "f" if t < nf else ("s" if t < T else None)
    def al(t):
        slot = t % R
        if 24 <= t < nf and not o.get("fodd"):
            L = [f"buffer_load_dwordx2 {ar(80 + slot*16 + (ks*2+tb)*4 + 2*h, 2)}, v{V_AO}, {S(SW)}, s12 offen offset:{ks*2048 + h*1024 + tb*512} sc1 ;@A{t}" for ks in range(2) for h in range(2) for tb in range(2)]
            return L, f"s_add_u32 s12, s12, {4096 + ((56 - 2*o['mv'])*2048 if t == 27 else 0)}"
        n, so = (4, 12) if ph(t) == "f" else (8, 13)
        L = [f"buffer_load_dwordx4 {af(slot, i)}, v{1 if i < 4 else V_A2}, {S(SW)}, s{so} offen offset:{(i&3)*1024} sc1 ;@A{t}" for i in range(n)]
        return L, f"s_add_u32 s{so}, s{so}, {n*1024}"
    def rl(t):
        slot, p = (t - nf if nf <= t < nf + o["nw"] else t % R), t & 1
        od = [(ks*2+ch, cb) for ch in range(2) for cb in range(4) for ks in range(2)] if ph(t) == "f" else [(u, cb) for cb in range(4) for u in range(4)]
        return [f"ds_read_b64_tr_b16 {ar(bf(p, u, cb) + rd*2, 2)}, v{V_BR + cb} offset:{slot*16384 + u*4096 + rd*2048}" for u, cb in od for rd in range(2)]
    def ml(t):
        slot, p = t % R, t & 1; L = []
        if ph(t) == "f":
            for ch in ((1, 0) if t == nf - 1 and o["x0"] < 8 else (0, 1)):
                for cb in range(4):
                    for m, tb in enumerate((0, 1) if cb % 2 == 0 or not o["snk"] & 2 else (1, 0)):
                        for n, ks in enumerate((0, 1) if m == 0 else (1, 0)):
                            c = vr(facc(ch, cb, tb), 4)
                            L.append(f"v_mfma_f32_16x16x32_bf16 {c}, {ar(bf(p, ks*2+ch, cb), 4)}, {af(slot, ks*2+tb)}, {0 if t == 0 and n == 0 else c}")
        else:
            for cb in range(4):
                for m, tb in enumerate((0, 1) if cb % 2 == 0 or not o["snk"] & 2 else (1, 0)):
                    for n, ks in enumerate(range(4) if m == 0 else (3, 2, 1, 0)):
                        c = vr(facc(2, cb, tb), 4)
                        L.append(f"v_mfma_f32_16x16x32_bf16 {c}, {ar(bf(p, ks, cb), 4)}, {af(slot, ks*2+tb)}, {0 if t == nf and n == 0 else c}")
        return L
    def mkbs():
        b = {u - D - 1: u for u in range(4, nf)}
        b.update({nf + d: nf + 4 + i for i, d in enumerate([[-4, -2, 0, 2], [-4, -3, -2, -1], [0, 1, 2, 3], [-4, -1, 1, 3]][o["bs"]])})
        return b
    assert o["nw"] == 4
    BS = mkbs()
    def build(t, tags=(), first=(), xm=0):
        ms = ml(t); n = 32 + xm
        slots = {i: [] for i in range(-1, n)}
        slots[-1].append(f"s_waitcnt @{','.join([f'A{t}', f'B{t+1}'] + list(tags))} lgkmcnt(0)")
        if ph(t+1): slots[0].append("s_barrier")
        b0 = len(first)
        for i, x in enumerate(first): slots[1+i].extend(x if isinstance(x, list) else [x])
        u = BS.get(t)
        bo = []; ao = []
        if u is not None:
            slots[b0].append(f"s_add_u32 s15, s14, {n0(u)*65536}" if ph(u) == "f" else f"s_add_u32 s15, s17, {(u-nf)*128*2048}")
            bo = [(m, d + f" ;@B{u}") for m, d in bdma(u % R, ph(u))]
            if o.get("hb") and u < nf: bo = bo[:2]
        if ph(t+D):
            L, ad = al(t+D); ao = [(None, x) for x in L]; slots[n-1].append(ad)
        vo = o["vo"]
        if vo == 0:
            st_ = 3 if b0 < 2 else 2
            pos = [b0+2+st_*c for c in range(len(bo))] + [14 + (i*(n - 15))//max(len(ao), 1) for i in range(len(ao))]
            ops = bo + ao
        else:
            if vo == 1: ops = bo + ao
            elif vo == 2: ops = ao + bo
            else:
                k = max(len(ao)//4, 1); ops = []
                for i in range(4): ops += bo[i:i+1] + ao[k*i:k*i+k]
            pos = [b0 + 2 + (i*(n - 3 - b0))//max(len(ops), 1) for i in range(len(ops))]
        for i, ((m, d), p) in enumerate(zip(ops, pos)):
            if m: slots[p-1].append(m)
            slots[p].append(d + (f",F{t}" if i == 0 else ""))
        if ph(t+1):
            hi = n - o["rh"]
            if o["rv"]:
                free = [q for q in range(0, hi + 1) if not any(cls(y) > 0 for y in slots[q])]
                for i, x in enumerate(rl(t+1)):
                    if o.get("hk") and 2 <= t < nf - 1 and (i >> 1) % 2 == (t >> 1) % 2: continue
                    slots[free[(i*len(free))//32]].append(x)
            else: spread(slots, rl(t+1), 0, hi)
        if o["nw"] and t in (nf - 2, nf + o["nw"] - 2):
            slots[n-1].extend([f"v_add_u32 v{V_BR+cb}, {RING2 if t == nf - 2 else hex(-RING2 & 0xffffffff)}, v{V_BR+cb}" for cb in range(4)])
        return ms, slots
    def check(slots, name, cmps, reload):
        for i, x in enumerate(cmps): slots[i].append(x)
        k = len(cmps) + 1
        slots[k].extend([f"s_cbranch_vccnz {name}_s", f"{name}_d:"])
        spin_ool(name, "\n".join(cmps), "\n".join(reload))
        return k
    def maxtree(b, n):
        return [f"v_max3_u32 v4, v{b}, v{b+1}, v{b+2}", f"v_max3_u32 v5, v{b+3}, v{b+4}, v{b+5}"] + [f"v_max3_u32 v{4+(i&1)}, v{4+(i&1)}, v{b+6+2*i}, v{b+7+2*i}" for i in range((n-6)//2)] + ["v_max_u32 v4, v4, v5", "v_cmp_eq_u32 vcc, -1, v4"]
    def FLG(sreg, off=0): return ["s_mov_b64 exec, 1", f"buffer_store_dword v3, off, {S(SW)}, s{sreg} offset:{off} sc1", "s_mov_b64 exec, -1"]
    def POLL(sreg, v, off=0, d=47, tag="poll"): return f"buffer_load_dword v{d}, v{v}, {S(SW)}, s{sreg} offen offset:{off} sc1 ;@{tag}"
    CMP1 = ["v_cmp_ne_u32 vcc, 1, v47"]
    paths = [[], []]

    for ty in range(2):
        vm = VM(a)
        if ty == 0:
            a("L_tA:")
            a("s_mul_i32 s7, s1, 320\ns_add_u32 s6, s6, s7\nv_add_u32 v6, s6, v5")
            a(f"v_mad_u32_u24 v{V_WV}, v3, s57, v6\ns_movk_i32 s57, 6144\ns_lshl_b32 s6, s0, 7\nv_add_u32 v{V_WV+1}, {16*7168}, v{V_WV}\nv_add_u32 v6, s6, v5")
            a(f"v_mad_u32_u24 v{V_WV+2}, v3, s57, v6\nv_add_u32 v{V_WV+3}, {16*6144}, v{V_WV+2}\nv_add_u32 v{V_WV+4}, 4096, v{V_WV+2}\nv_add_u32 v{V_WV+5}, 4096, v{V_WV+3}")
        else:
            a("L_tB:")
            a("s_lshr_b32 s7, 128, s1\ns_add_u32 s7, s6, s7\nv_add_u32 v6, s7, v5")
            a(f"v_mad_u32_u24 v{V_WV}, v3, s57, v6\ns_xor_b32 s7, s1, 1\ns_mul_i32 s7, s7, 384\ns_add_u32 s7, s6, s7\nv_add_u32 v{V_WV+1}, {16*7168}, v{V_WV}")
            a("v_bfe_u32 v3, v2, 2, 2\nv_lshl_add_u32 v3, v4, 3, v3\nv_add_u32 v3, s61, v3\nv_and_b32 v5, 3, v2\nv_and_b32 v6, 1, v4\nv_lshlrev_b32 v6, 1, v6\nv_xor_b32 v5, v5, v6\nv_lshl_add_u32 v5, v5, 4, s7")
            a(f"v_mad_u32_u24 v{V_WV+2}, v3, s57, v5")
        stamp("addr", True)
        for m, d in dma_list(ty, 0)[:o["nd0"]]: a(m); vm(d)
        if o["spf"]: sload(o["spf"], 32)
        fin(SW, WS_SIZE); fin(SD, 3584*1024*2); fin(SO, 1024*1024*2); fin(SOUT, 2048*1024*2)
        a(f"s_lshl2_add_u32 s6, s2, s3\ns_lshl_b32 s6, s6, 13\ns_add_u32 s6, s6, {WS_I}\ns_add_u32 s{SI}, s{SW}, s6\ns_addc_u32 s{SI+1}, s{SW+1}, 0")
        fin(SI, 2048 if ty else 4096)
        a(f"s_mul_i32 s6, s2, 28672\ns_mul_i32 s7, s3, 9600\ns_add_u32 s6, s6, s7\ns_sub_u32 s7, 28672, s7\ns_min_u32 s7, s7, 9600\ns_lshl_b32 s0, s2, 13")
        a(f"s_cmp_eq_u32 s3, 3\ns_cselect_b32 s6, s0, s6\ns_cselect_b32 s{SP2+2}, 8192, s7\ns_cselect_b32 s0, s{SO}, s{SD}\ns_cselect_b32 s1, s{SO+1}, s{SD+1}")
        a(f"s_add_u32 s{SP2}, s0, s6\ns_addc_u32 s{SP2+1}, s1, 0\ns_mov_b32 s{SP2+3}, 0x20000")
        a("v_and_b32 v3, 15, v2\nv_bfe_u32 v5, v3, 1, 3\ns_lshl_b32 s6, s53, 7\nv_add_u32 v7, s6, v3\nv_lshlrev_b32 v7, 7, v7")
        for ks in range(2):
            a(f"v_add_u32 v6, {ks*4}, v4\nv_xor_b32 v6, v6, v5\nv_lshl_add_u32 v{V_XR+ks}, v6, 4, v7\nv_add_u32 v{V_XR+2+ks}, {STAGE}, v{V_XR+ks}")
        a(f"s_mul_i32 s6, s3, 320\nv_lshl_add_u32 v5, v3, 6, s6\nv_lshl_add_u32 v5, v4, 4, v5\nv_cmp_gt_u32 vcc, 5, v3\nv_mov_b32 v6, {BIG}\nv_lshlrev_b32 v{V_PF2}, 7, v2\nv_cndmask_b32 v{V_CSO}, v6, v5, vcc")
        a(f"v_cmp_gt_u32 vcc, 13, v2\nv_and_b32 v3, 3, v2\nv_lshlrev_b32 v3, 3, v3\nv_cndmask_b32 v{V_PF2}, v6, v{V_PF2}, vcc")
        a(f"v_lshrrev_b32 v5, 2, v2\nv_add_u32 v3, {W_OFF}, v3\nv_lshl_add_u32 v6, v5, 7, v3\nv_bfe_u32 v7, v2, 3, 2\ns_lshl_b32 s6, s52, 1\nv_xor_b32 v7, s6, v7")
        a(f"v_lshl_add_u32 v{V_WR}, v7, 5, v6\nv_xor_b32 v7, 1, v7\nv_lshl_add_u32 v{V_WR+2}, v7, 5, v6")
        if ty == 1:
            a(f"v_lshl_add_u32 v6, v5, 6, v3\nv_and_b32 v7, 1, v4\nv_xor_b32 v7, s52, v7\nv_lshl_add_u32 v6, v7, 5, v6\nv_add_u32 v{V_WR+4}, 32768, v6")
        for r in range(V_WR, V_WR + 4 + 2*ty, 2): a(f"v_add_u32 v{r+1}, {STAGE}, v{r}")
        a(f"s_bfe_u32 s68, s2, 0x20003\ns_lshl3_add_u32 s69, s4, s5\ns_mul_i32 s69, s69, 1280\ns_add_u32 s69, s69, {WS_CS}\ns_mov_b32 s57, 0\ns_min_u32 s71, s68, 2\ns_add_u32 s71, s71, 9\ns_lshr_b32 s70, s71, 1\ns_lshl4_add_u32 s70, s3, s70\ns_and_b32 s71, s71, 1\ns_lshl3_add_u32 s70, s71, s70\ns_xor_b32 s71, s70, 8")
        a(f"s_mov_b32 s60, 0\ns_mov_b32 s61, 0\ns_lshl_b32 s0, s3, 12\ns_lshl_b32 s1, s2, 14\ns_add_u32 s1, s1, s0\ns_add_u32 s0, s0, {MB}")
        a("v_and_b32 v3, 15, v2\nv_cmp_eq_u32 vcc, 0, v3\nv_mov_b32 v3, 0x3f803f80\nv_cndmask_b32 v35, 0, v3, vcc")
        a("v_mov_b64 v[4:5], -1\nv_mov_b64 v[6:7], -1")
        a(f"s_mov_b32 s72, 0\nL_cs{ty}:\ns_cmp_eq_u32 s53, 0\ns_cbranch_scc0 L_cs{ty}_1")
        for wr in range(2):
            if wr: a(f"L_cs{ty}_1:")
            for n in range(5):
                X, Y = (V_SEL, V_T) if n % 2 == 0 else (V_T, V_SEL)
                for ks in range(2):
                    a(f"v_mfma_f32_16x16x32_bf16 {vr(V_CSA, 4)}, {ar(wfb(5*wr+n, ks), 4)}, {vr(X, 4)}, {vr(V_CSA, 4)}")
                    if n < 4 and ks == 0: a.extend([f"v_mov_b32_dpp v{Y+r}, v{X+r} row_shr:1 row_mask:0xf bank_mask:0xf bound_ctrl:0" for r in range(2)] + [f"v_mov_b64 {P(Y+2)}, {P(Y)}"])
                    if n == 4 and ks == 0: a("s_cmp_eq_u32 s72, 3")
            a(f"s_cbranch_scc1 L_cs{ty}_d3\ns_cmp_eq_u32 s72, 2\ns_cbranch_scc1 L_cs{ty}_d2\ns_cmp_eq_u32 s72, 1\ns_cbranch_scc1 L_cs{ty}_d1")
            if wr == 0: a(f"s_branch L_cs{ty}_d0")
        a(f"L_cs{ty}_d0:")
        stamp("zero", True)
        for m, d in dma_list(ty, 0)[o["nd0"]:]: a(m); t_st0 = vm(d)
        a(f"v_mov_b64 {P(V_CSA)}, 0\nv_mov_b64 {P(V_CSA+2)}, 0")
        if o["spf"]: a("s_waitcnt lgkmcnt(0)")
        elif o["npf0"] < 2:
            a("s_barrier")
            if o["npf0"] == 0: a("s_add_u32 s58, s58, s59")
            vm(PFI)
        a.extend(adv)
        stamp("dma", True)
        vm.wait(t_st0)
        a("s_barrier")
        stamp("loop", True)
        if o.get("cnt"): a("s_mov_b32 s101, 0")
        xa = [xread(0, tb, ks) for tb in range(4) for ks in range(2)]
        a.extend(xa[:2] + wread(ty, 0, 0) + xa[2:] + wread(ty, 0, 1))
        def sched(b):
            dp = [(o["dsb"] + o["evb"]*i) if b else dpos[i] for i in range(18)]
            return [p + 1 if p == 80 else p - 1 if p == 79 else p for p in dp]
        def d1(stage, b=0): return [([], m, d, p-80) for (m, d), p in zip(dma_list(ty, stage ^ 1), sched(b)) if p >= 80]
        def d2(stage, b=0): return [([], m, d, p) for (m, d), p in zip(dma_list(ty, stage), sched(b)) if p < 80]
        def loop(kind):
            a(f".p2align 4\nL_{kind}{ty}:")
            b = kind == "lb"
            for stage in range(2):
                if kind == "la" and stage == 1: a(f"L_lam{ty}:")
                phase1(ty, stage, kind, d1(stage, b))
                phase2(ty, stage, kind, d2(stage, b), f"vmcnt({1 + o['pfb'] if b else 2})")
            if o["stamps"] and any(x[0] == "i" for x in sset):
                for it in (1, 2, 5, 6):
                    if f"i{it}" in sset and (it < 4) == (kind == "la"):
                        a(f"s_cmp_eq_u32 s57, {it}\ns_cbranch_scc0 L_st{ty}{it}"); stamp(f"i{it}", True); a(f"L_st{ty}{it}:")
                a(f"s_cmp_lt_u32 s57, {4 if kind == 'la' else 7}")
            a(f"s_cbranch_scc1 L_{kind}{ty}")
        phase1(ty, 0, "s0", [([], m, d, o["d0s"] + o["d0e"]*i) for i, (m, d) in enumerate(dma_list(ty, 1))])
        stamp("s0m", True)
        phase2(ty, 0, "s0", d2(0), "vmcnt(2)")
        stamp("s0e", True)
        a(f"s_branch L_lam{ty}")
        loop("la")
        stamp("i4", True)
        a("s_sub_u32 s0, s0, 4096")
        phase1(ty, 0, "s8", d1(0))
        stamp("s8m", True)
        a(mfmas(ty, 1)[0] + f"\ns_waitcnt vmcnt({4 + o['pfb']})\ns_barrier\ns_branch L_lbm{ty}")
        loop("lb")
        stamp("s14", True)
        phase1(ty, 0, "s14", d1(0, 1))
        tail = []
        for t in range(4):
            for c, (m, d) in enumerate(bdma(t, "f")):
                tail.append(([f"s_add_u32 s15, s14, {n0(t)*65536}"] if c == 0 and t else [], m, d))
        tp = [o["ts"] + o["te"]*i for i in range(16)]
        for t in range(o["nw"]):
            for c, (m, d) in enumerate(bdma(t, "s", RING2)):
                tail.append(([f"s_add_u32 s15, s17, {t*128*2048}"] if c == 0 else [], m, d))
                tp.append(max(tp[-1], 168) + o["tw"])
        tp = [p if p % 80 >= 4 or p < 80 else p - p % 80 + 4 for p in tp]
        def part(k): return [(pre, m, d, p - 80*k) for (pre, m, d), p in zip(tail, tp) if p//80 == k]
        rest = [x for x, p in zip(tail, tp) if p >= 240]
        stamp("s14m", True)
        phase2(ty, 0, "s14", part(0), f"vmcnt({7 + min(o['cpf'], 2)})")
        stamp("s15", True)
        o["n14"] = len(part(0)) + 3 + min(o["cpf"], 2)
        phase1(ty, 1, "s15", part(1))
        phase2(ty, 1, "s15", part(2), f"vmcnt({len(part(0)) + len(part(1)) - 4}) lgkmcnt(0)")
        stamp("e0", True)
        p0 = len(a.lines)
        def rd_cs(cb0, n):
            for i in range(n): a(f"ds_read_b128 v[{CS+4*i}:{CS+4*i+3}], v45 offset:{(cb0+i)*64}")
        def rd_tk(tb): a(f"ds_read_b128 v[{TK+4*(tb&1)}:{TK+4*(tb&1)+3}], v44 offset:{tb*256}")
        def getv(tb, cb, tmp):
            p, b = accb(tb, cb)
            if p == "v": return b
            for i in range(4): a(f"v_accvgpr_read_b32 v{tmp+i}, a{b+i}")
            return tmp
        def pack(d, ps):
            for i, p in enumerate(ps): a(f"v_cvt_pk_bf16_f32 v{d+i}, v{p}, v{p+1}")
        def fixm(b, cs, tk):
            for h in (0, 2): a(f"v_pk_fma_f32 {P(b+h)}, {P(cs+h)}, {P(tk)}, {P(b+h)} op_sel_hi:[1,0,1]")
        def geglu(items, d):
            el = [(g+h, u+h, tk, Z + 4*n + h) for n, (g, u, cg, cu, tk) in enumerate(items) for h in (0, 2)]
            for g, u, cg, cu, tk in items: fixm(g, cg, tk)
            for g, u, tk, z in el: a(f"v_pk_mul_f32 {P(z)}, {P(g)}, {P(g)}")
            for g, u, tk, z in el: a(f"v_pk_fma_f32 {P(z)}, {P(z)}, {P(tk+2)}, {P(tk)} op_sel:[0,0,1] op_sel_hi:[1,0,1]")
            for g, u, tk, z in el: a(f"v_pk_mul_f32 {P(z)}, {P(z)}, {P(g)}")
            for i in range(8): a(f"v_exp_f32 v{Z+i}, v{Z+i}")
            for g, u, cg, cu, tk in items: fixm(u, cu, tk)
            for g, u, tk, z in el: a(f"v_pk_fma_f32 {P(z)}, {P(z)}, {P(tk+2)}, {P(tk+2)} op_sel:[0,1,1] op_sel_hi:[1,1,1]")
            for i in range(8): a(f"v_rcp_f32 v{Z+i}, v{Z+i}")
            for g, u, tk, z in el: a(f"v_pk_mul_f32 {P(u)}, {P(u)}, {P(g)}")
            for g, u, tk, z in el: a(f"v_pk_mul_f32 {P(u)}, {P(u)}, {P(z)}")
            pack(d, [u for g, u, tk, z in el])
        def frag(tb, cb0, sb, nxt, bcb=None):
            r = [getv(tb, cb0+i, accb(tb, i)[1]) for i in range(4)]
            if bcb is not None: a(f"v_xor_b32 v6, {32*bcb}, v7")
            a("s_waitcnt lgkmcnt(0)")
            if nxt is not None: rd_tk(nxt)
            if bcb is not None: a.extend([x.replace(f"v{V_BR+bcb} ", "v6 ") for x in rl(0) if f"v{V_BR+bcb} " in x])
            tk = TK + 4*(tb & 1)
            geglu([(r[0], r[1], CS, CS+4, tk), (r[2], r[3], CS+8, CS+12, tk)], r[0])
            a(f"buffer_store_dwordx4 v[{r[0]}:{r[0]+3}], v1, {S(SW)}, s{sb+(tb>>1)} offen offset:{(tb&1)*1024} sc1 ;@h{sb}")
        ALD = [x for t in range(o["na"]) for x in al(t)[0] + [al(t)[1]]]
        def try_load():
            stamp("b2")
            a("s_waitcnt @poll"); a.extend(CMP1)
            a(f"s_mov_b32 s70, 0\ns_nop 2\ns_cbranch_vccz L_tl{ty}\n{POLL(59, 46)}\nL_tl{ty}_d:")
            ool(f"L_tl{ty}:\ns_mov_b32 s70, 1"); ool.extend(ALD); ool(f"s_branch L_tl{ty}_d")
        def must_load():
            stamp("chk")
            if o["cB" if ty else "cA"] < 50: a(f"s_cmp_eq_u32 s70, 1\ns_cbranch_scc1 L_ml{ty}")
            a("s_waitcnt @poll")
            spin(f"L_b1{ty}", CMP1[0], POLL(59, 46))
            a.extend(ALD)
            a(f"L_ml{ty}:")
            a.extend([x for t in range(o["na"], 3) for x in al(t)[0] + [al(t)[1]]])
            stamp("chkd")
        def set_b1():
            a("s_waitcnt @h40"); stamp("w1d"); a.extend(FLG(54))
        def phi_tail(ps, ts, scale):
            for i in range(8): a(f"v_exp_f32_e64 v{Z+i}, v{Z+i} clamp")
            for p in ps: a(f"v_max_f32 v{p}, 0, v{p}\nv_max_f32 v{p+1}, 0, v{p+1}")
            for p in ps:
                if scale is None: a(f"v_pk_add_f32 {P(p)}, {P(p)}, s[68:69] op_sel_hi:[1,0]")
                else: a(f"v_pk_fma_f32 {P(p)}, {P(p)}, {P(scale)}, s[68:69] op_sel_hi:[1,0,0]")
            for p, q in zip(ps, ts): a(f"v_pk_add_f32 {P(p)}, {P(p)}, {P(q)}")
            pack(ps[0], ps)
        more = [pre + [m, "s_nop 0", d] for pre, m, d in rest] + ([[x] for x in XLD] if o["xl"] else [])
        k2x = more[o["nm"]:]; more = more[:o["nm"]]
        aft = more[o["nb"]:]; more = more[:o["nb"]]
        def after(n):
            for x in aft[:n]: a.extend(x)
            del aft[:n]
        def bread(cb):
            a(f"v_xor_b32 v6, {32*cb}, v7")
            a.extend([x.replace(f"v{V_BR+cb} ", "v6 ") for x in rl(0) if f"v{V_BR+cb} " in x])
        for tb in range(o["early"], 8):
            for x in more[:2]: a.extend(x)
            more = more[2:]
            frag(tb, 0, 40, tb+1 if tb < 7 else (0 if ty else None), tb - 3 if 3 <= tb < 7 and not o["bl"] else None)
        assert not more
        if k2x: a("s_mov_b32 s16, s15")
        stamp("b1")
        if ty == 1:
            rd_cs(6, 4)
            for tb in range(8):
                frag(tb, 6, 44, tb+1 if tb < 7 else 0, tb if tb < 4 and o["bl"] else None)
                if tb == o["fB"]: set_b1()
                if tb >= o["fB"]: after(4)
                if tb == o["pB"]: a(POLL(59, 46))
                if tb == o["cB"]: try_load()
                if tb == o["mB"]: must_load()
            rd_cs(4, 2)
        else:
            a(f"v_and_b32 v4, 15, v2\nv_lshl_add_u32 v4, v4, 2, s64\ns_lshl_b32 s0, s53, 9\ns_add_u32 s0, s0, {MB_NM}\ns_sub_u32 s0, s0, s64\nv_add_u32 v5, s0, v45")
            for i in range(4): a(f"ds_read_b32 v{12+i}, v4 offset:{(6+i)*64}")
            KV, ONES = 112, 136
            for i in range(4): a(f"v_mov_b32 v{ONES+i}, 0x3f803f80")
            for tp in range(4):
                for h in range(2):
                    a(f"ds_read_b128 v[{16+8*h}:{19+8*h}], v5 offset:{(2*tp+h)*64}\nds_read_b128 v[{20+8*h}:{23+8*h}], v5 offset:{(2*tp+h)*64 + 1024}")
                r = [[getv(2*tp+h, 6+i, 48 + 32*(tp & 1) + 8*i + 4*h) for h in range(2)] for i in range(4)]
                a("s_waitcnt lgkmcnt(0)")
                if o["bl"]: bread(tp)
                for i in range(4):
                    sel = i & 1
                    for h in range(2):
                        for q in (0, 2):
                            a(f"v_pk_fma_f32 {P(r[i][h]+q)}, {P(16+8*h+q)}, {P(12+(i&2))}, {P(r[i][h]+q)} op_sel:[0,{sel},0] op_sel_hi:[1,{sel},1]")
                    for h in range(2):
                        for q in (0, 2): a(f"v_pk_mul_f32 {P(r[i][h]+q)}, {P(r[i][h]+q)}, {P(20+8*h+q)}")
                    ps = [r[i][0], r[i][0]+2, r[i][1], r[i][1]+2]; ts = [Z, Z+2, Z+4, Z+6]
                    if i < 2:
                        for p, q in zip(ps, ts): a(f"v_pk_mul_f32 {P(q)}, {P(p)}, s[56:57] op_sel_hi:[1,0]")
                        phi_tail(ps, ts, None)
                    else: pack(ps[0], ps)
                    if 4*tp + i == o["fA"]: set_b1()
                    if 4*tp + i >= o["fA"]: after(4)
                    if 4*tp + i == o["pA"]: a(POLL(59, 46))
                    if 4*tp + i == o["cA"]: try_load()
                    if 4*tp + i == o["mA"]: must_load()
                for db in range(2):
                    for eb in range(3):
                        d = vr(KV + (db*3+eb)*4, 4)
                        B = vr(r[2+eb][0], 4) if eb < 2 else vr(ONES, 4)
                        a(f"v_mfma_f32_16x16x32_bf16 {d}, {vr(r[db][0], 4)}, {B}, {d if tp else 0}")
            rd_cs(4, 2); rd_tk(0)
            a(f"s_mul_i32 s0, s3, 3072\ns_add_u32 s0, s0, {KVX}\nv_add_u32 v4, s0, v1\ns_xor_b32 s1, s3, 1\ns_mul_i32 s1, s1, 3072\ns_add_u32 s1, s1, {KVX}\nv_add_u32 v5, s1, v1")
            if o["mA"] > 15: must_load()
            a("s_cmp_eq_u32 s53, 0\ns_nop 3\ns_cbranch_scc1 L_kv0")
            for eb in range(3): a(f"ds_write_b128 v5, v[{KV+eb*4}:{KV+eb*4+3}] offset:{eb*1024}")
            for i in range(0, 12, 2): a(f"v_mov_b64 {P(48+i)}, {P(KV+12+i)}")
            a("s_branch L_kv1\nL_kv0:")
            for eb in range(3): a(f"ds_write_b128 v5, v[{KV+12+eb*4}:{KV+12+eb*4+3}] offset:{eb*1024}")
            for i in range(0, 12, 2): a(f"v_mov_b64 {P(48+i)}, {P(KV+i)}")
            a("L_kv1:")
        UN = o["unB"] if ty else o["unA"]
        if ty == 1:
            for tp in range(UN//2):
                rd_tk(2*tp+1)
                a("s_waitcnt lgkmcnt(0)")
                g0, g1, u0, u1 = accb(2*tp, 4)[1], accb(2*tp+1, 4)[1], accb(2*tp, 5)[1], accb(2*tp+1, 5)[1]
                geglu([(g0, u0, CS, CS+4, TK), (g1, u1, CS, CS+4, TK+4)], g0)
                if tp < 3: rd_tk(2*tp+2)
                a(f"v_permlane32_swap_b32 v{g0}, v{g0+2}\nv_permlane32_swap_b32 v{g0+1}, v{g0+3}")
                a(f"buffer_store_dwordx4 v[{g0}:{g0+3}], v1, {S(SW)}, s{48+tp} offen sc1 ;@late")
        else:
            for tb in range(UN):
                a("s_waitcnt lgkmcnt(0)")
                if tb < 7: rd_tk(tb+1)
                tk = TK + 4*(tb & 1)
                b0, b1 = accb(tb, 4)[1], accb(tb, 5)[1]
                a(f"v_mul_f32 v{tk+2}, {f2u(1.0/GA1)}, v{tk+1}\nv_mul_f32 v{tk+3}, {f2u(LOG2E/GA1)}, v{tk+1}")
                fixm(b0, CS, tk); fixm(b1, CS+4, tk)
                ps = [b0, b0+2, b1, b1+2]; ts = [Z, Z+2, Z+4, Z+6]
                for p, q in zip(ps, ts): a(f"v_pk_mul_f32 {P(q)}, {P(p)}, {P(tk+2)} op_sel:[0,1] op_sel_hi:[1,1]")
                phi_tail(ps, ts, tk+2)
        for cb in range(4): a(f"v_xor_b32 v{V_BR+cb}, {32*cb}, v7")
        stamp("k2")
        TJ, TG, TO = o["tj"], o["tg"], o["tg"] + 2
        KG = 100
        GLD = [f"buffer_load_dwordx4 {vr(KG+4*e, 4)}, v1, {S(SW)}, s{r} offen sc1 ;@gld" for e, r in enumerate((64, 66, 67))]
        def ob(tb, eb):
            i = tb*3 + eb
            return G + 4*i if i < 12 else 208 + 4*(i - 12)
        NS_ = o["nsA"] if ty == 0 else o["nsB"]
        TB3 = NS_ + 2
        st_ = []
        for t in range(NU):
            tags = []; first = []; xm = 0
            otb = {TO: range(0, 2), TO+1: range(2, 5), TO+2: range(5, 8)}.get(t, []) if ty == 0 else []
            if ty == 0:
                if t == TG: first = GLD
                if t == TO: tags = ["gld"]
                xm = 3*len(otb)
            else:
                if t == 2: tags = ["h44"]; first = [FLG(54, 128)]
                if t == TJ+3: tags = [f"F{TJ+1}"]
                if t == TB3: tags = ["late"]; first = [FLG(54, 256)]
            if t == 12: tags = tags + ["poll"]
            ms, slots = build(t, tags, first, xm)
            n = 32 + xm; lo = 0
            if t == 12: lo = check(slots, f"L_b2{ty}", CMP1, [POLL(60, V_P2, 128)])
            if t == 9: slots[n-1].append(POLL(60, V_P2, 128))
            if t >= 1 and k2x:
                x = k2x.pop(0)
                if len(x) > 1:
                    for y in x[:-2]: slots[13].append(y.replace("s15", "s16"))
                    slots[16].append(x[-1].replace("s15", "s16"))
                else:
                    if ", v5," in x[0] and "offset:0" in x[0]: slots[11].append("v_add_u32 v0, 32768, v0")
                    slots[16].append(x[0].replace(", v4,", ", v0,").replace(", v5,", ", v0,"))
            if t == o["cpt"]:
                fill(slots, ["s_lshr_b32 s0, s2, 3", "s_lshl2_add_u32 s0, s0, s3", "s_lshl_b32 s0, s0, 7", "s_add_u32 s0, s0, L_tail0-L_pc", "s_min_u32 s0, s0, L_cend-L_pc-4"], 12, 24)
                slots[26].append("v_mov_b32 v0, s0"); slots[n-3].append("global_load_dword v0, v0, s[72:73]")
            if t == 14:
                vv = [f"v_add_u32 v{V_A2}, 4096, v1", "v_and_b32 v4, 15, v2", "v_lshlrev_b32 v4, 11, v4", "v_bfe_u32 v6, v2, 4, 1", "v_lshl_add_u32 v4, v6, 5, v4",
                      "v_lshrrev_b32 v6, 5, v2", f"v_lshl_add_u32 v{V_XO}, v6, 4, v4", f"v_add_u32 v{V_XO+1}, 32768, v{V_XO}", "v_and_b32 v4, 0x1f0, v1", f"v_lshl_add_u32 v{V_AO}, v6, 3, v4"]
                if o.get("fko"): vv += ["v_lshrrev_b32 v4, 3, v2", "v_lshlrev_b32 v4, 12, v4", "v_and_b32 v6, 7, v2", f"v_lshl_add_u32 v{V_XO}, v6, 4, v4", f"v_add_u32 v{V_XO+1}, 32768, v{V_XO}"]
                fillv([slots[i] for i in range(n)], vv)
                slots[20].append(f"s_add_u32 s66, s54, {256 + 128*ty}")
            if ty == 0 and t == TG - 1:
                fill(slots, ["s_and_b32 s64, s2, 0xc6", "s_or_b32 s64, s64, s52", "s_lshl_b32 s64, s64, 15", f"s_add_u32 s64, s64, {WS_I + 0x28*32768 + 1024}", f"s_add_u32 s66, s64, {16*32768}", "s_add_u32 s67, s64, 8192"], 13, 30)
            if otb:
                if t == TO: lo = check(slots, "L_kvf", maxtree(KG, 12), GLD)
                om = [f"v_mfma_f32_16x16x32_bf16 {vr(ob(tb, eb), 4)}, {vr(KG+4*eb, 4)}, v[{VS+4*tb}:{VS+3+4*tb}], 0" for tb in otb for eb in (2, 0, 1)]
                ms = ms[:lo+1] + om + ms[lo+1:]
                lo += 7
                per = (n - 1 - lo)//len(otb)
                for k, tb in enumerate(otb):
                    dn = ob(tb, 2); e8 = [ob(tb, 0)+i for i in range(4)] + [ob(tb, 1)+i for i in range(4)]
                    w = [f"v_add_f32 v{dn}, s68, v{dn}", f"v_rcp_f32 v{dn}, v{dn}"] + [f"v_mul_f32 v{e}, v{e}, v{dn}" for e in e8] + [f"v_cvt_pk_bf16_f32 v{e8[0]+i}, v{e8[2*i]}, v{e8[2*i+1]}" for i in range(4)]
                    fillv([slots[i] for i in range(lo + k*per, lo + (k+1)*per)], w)
                    slots[lo + (k+1)*per].append(f"buffer_store_dwordx4 {vr(e8[0], 4)}, v1, {S(SW)}, s{44+(tb>>1)} offen offset:{(tb&1)*1024} sc1 ;@late")
            if ty == 1 and t == 0:
                fill(slots, ["s_bfe_u32 s6, s2, 0x10004", "s_add_u32 s70, s6, s3", "s_min_u32 s7, s3, 1", "s_mul_i32 s70, s70, s7", "s_lshl1_add_u32 s6, s7, s6", "s_andn2_b32 s7, 8, s2", "s_add_u32 s70, s70, s7",
                             "s_and_b32 s64, s2, 0xc6", "s_and_b32 s7, s2, 1", "s_lshl1_add_u32 s64, s64, s7", "s_lshl4_add_u32 s64, s64, s6", "s_lshl_b32 s64, s64, 10", f"s_add_u32 s64, s64, {WS_I + 1024}"], 12, 30)
            if ty == 1 and t == TJ+3:
                slots[-1].extend(["s_cmp_lt_u32 s70, 2", "s_cbranch_scc1 L_red", "L_red_d:"])
            st_.append((ms, slots))
        gaps = [st_[t][1][i] for t in range(NS_) for i in range(32)]
        pre = [f"v_bfe_u32 v{V_P3}, v2, 1, 2", f"v_and_b32 v{V_P2}, 1, v2", f"v_lshl_or_b32 v{V_P3}, v{V_P3}, 7, v{V_P2}", f"v_lshlrev_b32 v{V_P3}, 14, v{V_P3}", f"v_and_b32 v{V_P2}, {0xffbfffff}, v{V_P3}"]
        g0 = 0
        if ty == 0:
            for eb in range(3): gaps[28+eb].append(f"ds_read_b128 v[{60+eb*4}:{63+eb*4}], v4 offset:{eb*1024}")
            fillv(gaps[32:40], [f"v_add_f32 v{48+i}, v{48+i}, v{60+i}" for i in range(12)])
            for eb in range(3): gaps[41+3*eb].append(f"buffer_store_dwordx4 v[{48+eb*4}:{51+eb*4}], v1, {S(SW)}, s54 offen offset:{(eb+1)*1024} sc1")
        per = (len(gaps) - g0)//max(8 - UN, 1)
        assert per >= 32
        if UN == 8: fillv(gaps[:32], pre)
        for tb in range(UN, 8):
            tk = TK + 4*(tb & 1); b0, b1 = accb(tb, 4)[1], accb(tb, 5)[1]
            gg = gaps[g0 + (tb-UN)*per:g0 + (tb-UN+1)*per]
            if tb < 7: gg[0].append(f"ds_read_b128 v[{TK+4*((tb+1)&1)}:{TK+4*((tb+1)&1)+3}], v44 offset:{(tb+1)*256}")
            vv = list(pre) if tb == UN else []
            if ty == 0:
                el = [(b0+i, CS+i, Z2+i) for i in range(4)] + [(b1+i, CS+4+i, Z2+4+i) for i in range(4)]
                vv += [f"v_mul_f32 v{tk+2}, {f2u(1.0/GA1)}, v{tk+1}", f"v_mul_f32 v{tk+3}, {f2u(LOG2E/GA1)}, v{tk+1}"]
                vv += [f"v_fmac_f32 v{q}, v{c}, v{tk}" for q, c, z in el] + [f"v_mul_f32 v{z}, v{q}, v{tk+3}" for q, c, z in el]
                for q, c, z in el: vv += [f"v_exp_f32_e64 v{z}, v{z} clamp", f"v_max_f32 v{q}, 0, v{q}", f"v_fma_f32 v{q}, v{q}, v{tk+2}, s68"]
                vv += [f"v_add_f32 v{q}, v{q}, v{z}" for q, c, z in el]
                vv += [f"v_cvt_pk_bf16_f32 v{b0+i}, v{el[2*i][0]}, v{el[2*i+1][0]}" for i in range(4)]
            else:
                el = [(b0+i, b1+i, CS+i, CS+4+i, Z2+i) for i in range(4)]
                d = accb(tb & ~1, 4)[1]
                vv += [f"v_fmac_f32 v{g}, v{cg}, v{tk}" for g, u, cg, cu, z in el] + [f"v_mul_f32 v{z}, v{g}, v{g}" for g, u, cg, cu, z in el]
                vv += [f"v_fma_f32 v{z}, v{z}, v{tk+2}, v{tk+1}" for g, u, cg, cu, z in el] + [f"v_mul_f32 v{z}, v{z}, v{g}" for g, u, cg, cu, z in el]
                for g, u, cg, cu, z in el: vv += [f"v_exp_f32 v{z}, v{z}", f"v_fmac_f32 v{u}, v{cu}, v{tk}"]
                vv += [f"v_fma_f32 v{z}, v{z}, v{tk+3}, v{tk+3}" for g, u, cg, cu, z in el]
                for g, u, cg, cu, z in el: vv += [f"v_rcp_f32 v{z}, v{z}", f"v_mul_f32 v{u}, v{u}, v{g}"]
                vv += [f"v_mul_f32 v{u}, v{u}, v{z}" for g, u, cg, cu, z in el]
                vv += [f"v_cvt_pk_bf16_f32 v{d+2*(tb&1)+i}, v{b1+2*i}, v{b1+2*i+1}" for i in range(2)]
                if tb & 1:
                    gg[-2].extend([f"v_permlane32_swap_b32 v{d}, v{d+2}", f"v_permlane32_swap_b32 v{d+1}, v{d+3}"])
                    gg[-1].append(f"buffer_store_dwordx4 v[{d}:{d+3}], v1, {S(SW)}, s{48+(tb>>1)} offen sc1 ;@late")
                    gg = gg[:-3]
            if o.get("ab", 0) & 32: vv = vv[:5]
            fillv(gg, vv)
        for t, (ms, slots) in enumerate(st_):
            stamp(f"t{t}")
            emit(a, ms, slots)
            if ty == 1 and t == TJ: a("s_cmp_lt_u32 s70, 2\ns_cbranch_scc1 L_gat\nL_gat_d:")
        a("s_cmp_eq_u32 s20, 0\ns_cbranch_scc1 L_tail0\ns_branch L_tail1" if o["mv"] else "s_branch L_tail0")
        paths[ty] = list(range(p0, len(a.lines)))
        a.lines += near.lines + ool.lines; near.lines = []; ool.lines = []
    KLD = []
    for r in range(8):
        for db in range(2):
            KLD += [f"s_add_u32 s1, s64, {(8*(r&3) + (r>>2))*32768 + db*8192}", f"buffer_load_dwordx4 v[{G+(r*2+db)*4}:{G+(r*2+db)*4+3}], v1, {S(SW)}, s1 offen sc1"]
    main = a; hk = Asm(); a = hk
    a("L_gat:"); a.extend(KLD); a("s_branch L_gat_d\nL_red:")
    spin("L_kvg", "\n".join(maxtree(G, 64)), "\n".join(KLD))
    for stp in (32, 16, 8):
        for i in range(0, stp, 2): a(f"v_pk_add_f32 {P(G+i)}, {P(G+i)}, {P(G+stp+i)}")
    for i in range(4): a(f"v_cvt_pk_bf16_f32 v{G+i}, v{G+2*i}, v{G+2*i+1}")
    a(f"buffer_store_dwordx4 v[{G}:{G+3}], v1, {S(SW)}, s54 offen offset:1024 sc1\ns_branch L_red_d")
    a = main
    heads = [list(p) for p in paths]; paths = []
    for pv in range(2 if o["mv"] else 1):
        nf = 28 + o["mv"]*(1 - 2*pv); T = nf + ns; TP = nf + o['pl']; TC = TP + 2; BS = mkbs()
        a(f"L_tail{pv}:")
        p0 = len(a.lines)
        PLD = [f"buffer_load_dwordx4 v[{PL+4*i}:{PL+4*i+3}], v1, {S(SW)}, s65 offen offset:{i*1024} sc1 ;@pld" for i in range(4)]
        OPOLL = [POLL(69, V_P3, 256, 34, "opoll"), f"buffer_load_dword v35, off, {S(SW)}, s55 sc1 ;@opoll"]
        def tail(t):
            tags = {NU: ["late"], 20: ["poll"], 24: ["poll"], TC: ["pld"]}.get(t, []) + (["opoll"] if t == nf - 4 else [])
            first = {NU: [FLG(66)], TP: PLD}.get(t, [])
            ms, slots = build(t, tags, first, 8 if t in (20, TC) else 0)
            if t == 17: slots[31].append(POLL(60, V_P2, 256))
            if t == 20: check(slots, f"L_b3{pv}", CMP1, [POLL(60, V_P2, 256)])
            if nf > 28:
                if t == 19: fill(slots, [f"s_lshl_b32 s67, {'s53' if o['mv'] > 1 else 1}, 22", "s_add_u32 s67, s67, s59", f"s_add_u32 s67, s67, {(1 << 20) + (1 << 17) + (1 << 16)}"], 12, 30)
                if t == 21: slots[31].append(POLL(67, V_P2, 256))
                if t == 24: check(slots, "L_fx", CMP1, [POLL(67, V_P2, 256)])
            if t == nf - 28 + o["opoll"]: slots[29].append(OPOLL[0]); slots[30].append(OPOLL[1])
            if t == nf - 4: check(slots, f"L_of{pv}", ["v_or_b32 v4, v35, v34", "v_cmp_ne_u32 vcc, 1, v4"], OPOLL)
            for q in range(4):
                g = o["x0"] + o["xd"]*q
                tb, pp = q >> 1, q & 1
                for i in range(4):
                    r = facc(1, 2*pp + (i >> 1), tb) + 2*(i & 1)
                    if (g + i)//32 == t - nf: slots[(g + i) % 32].append(f"v_cvt_pk_bf16_f32 v{PK+4*q+i}, v{r}, v{r+1}")
                if (g + 5)//32 == t - nf: slots[(g + 5) % 32].append(f"buffer_store_dwordx4 v[{PK+4*q}:{PK+4*q+3}], v1, {S(SW)}, s61 offen offset:{q*1024} sc1")
            if t == 18:
                vv = ["v_and_b32 v4, 1, v2", "v_lshlrev_b32 v4, 4, v4", "v_mov_b32 v5, 0x3f80", "v_lshlrev_b32 v4, v4, v5", "v_lshrrev_b32 v5, 4, v2", "v_bfe_u32 v6, v2, 1, 3", "v_lshlrev_b32 v7, 1, v5",
                      "v_sub_u32 v6, v6, v7", "v_sub_u32 v7, v6, v7"]
                for i in range(2): vv += [f"v_cmp_eq_u32 vcc, {i}, v6", f"v_mov_b32 v{SE+i}, 0", f"v_mov_b32 v{SE+4+i}, 0", f"v_cndmask_b32 v{SE+2+i}, 0, v4, vcc"]
                fillv([slots[i] for i in range(1, 32)], vv)
            if t == 19:
                for e in range(2):
                    for i in range(4):
                        k = 4*e + i
                        slots[1+4*k].append(f"v_cmp_eq_u32 vcc, {i - 8*e}, v7"); slots[3+4*k].append(f"v_cndmask_b32 v{PK+k}, 0, v4, vcc")
            if t == 20:
                ms = ms + [f"v_mfma_f32_16x16x32_bf16 {vr(XF + (cb*2+tb)*4, 4)}, {vr(PK + 4*(cb&1), 4)}, {ar(4*(2*tb + (cb>>1)), 4)}, 0" for cb in range(4) for tb in range(2)]
            return ms, slots
        for t in range(NU, TC):
            if t == nf: stamp("s")
            stamp(f"t{t}")
            emit(a, *tail(t))
        last = [list(tail(t)) for t in range(TC, T)]
        m5, s5 = last[0]
        k = check(s5, f"L_xb{pv}", maxtree(PL, 16), PLD)
        s5[1].append(f"s_mov_b32 s6, {f2u(-LOG2E)}")
        blocks = [(2*pp + e, tb) for pp in range(2) for tb in range(2) for e in range(2)]
        addm = [f"v_mfma_f32_16x16x32_bf16 {vr(facc(0, cb, tb), 4)}, {vr(SE + 2 - 2*(cb&1), 4)}, {vr(PL + 4*(2*tb + (cb>>1)), 4)}, {vr(facc(0, cb, tb), 4)}" for cb, tb in blocks]
        last[0][0] = m5[:k+1] + addm + m5[k+1:]
        silu = []
        for g in range(0, 8, 2):
            el = [(cb*2+tb)*4 + i for cb, tb in blocks[g:g+2] for i in range(4)]
            silu += [f"v_mul_f32 v{VQ+e}, s6, v{VF+e}" for e in el] + [f"v_exp_f32 v{VQ+e}, v{VQ+e}" for e in el] + [f"v_add_f32 v{VQ+e}, 1.0, v{VQ+e}" for e in el]
            silu += [f"v_rcp_f32 v{VQ+e}, v{VQ+e}" for e in el] + [f"v_mul_f32 v{VF+e}, v{VF+e}, v{VQ+e}" for e in el]
        def outp(pp, tb, pk):
            d = PK + (tb*2+pp)*4; L = []
            for e in range(2):
                off = ((2*pp+e)*2+tb)*4
                if pk: L += [f"v_pk_fma_f32 {P(VS+off+h)}, {P(VS+off+h)}, {P(VF+off+h)}, {P(XF+off+h)}" for h in (0, 2)]
                else: L += [f"v_fma_f32 v{VS+off+h}, v{VS+off+h}, v{VF+off+h}, v{XF+off+h}" for h in range(4)]
            for e in range(2):
                off = ((2*pp+e)*2+tb)*4
                L += [f"v_cvt_pk_bf16_f32 v{d+2*e+h}, v{VS+off+2*h}, v{VS+off+2*h+1}" for h in range(2)]
            return L, [f"v_permlane16_swap_b32 v{d}, v{d+2}", f"v_permlane16_swap_b32 v{d+1}, v{d+3}"], f"buffer_store_dwordx4 v[{d}:{d+3}], v{V_XO+tb}, {S(SOUT)}, s19 offen offset:{pp*(2048 if o.get('fko') else 64)}{[' sc1', '', ' nt', ' nt sc1', ' sc0 sc1'][o.get('op', 0)]}"
        nin = o["nin"]
        gaps = [sl[i] for ms, sl in last for i in range(len(ms))]
        e7 = len(gaps) - 32 + o["s7e"]
        fillv(gaps[k+9:e7], silu[:nin])
        (l0, w0, t0), (l1, w1, t1) = outp(0, 0, False), outp(0, 1, False)
        if o["s7e"] < 32:
            assert nin >= 80
            fillv(gaps[e7:-1], l0 + l1 + w0 + w1)
            gaps[-1].extend([t0, t1])
        for t, (ms, sl) in zip(range(TC, T), last):
            stamp(f"t{t}"); emit(a, ms, sl)
        stamp("fin")
        for g in range(nin//20, 8, 2):
            el = [(cb*2+tb)*4 + i for cb, tb in blocks[g:g+2] for i in range(4)]; ep = el[::2]
            a.extend([f"v_pk_mul_f32 {P(VQ+e)}, {P(VF+e)}, s[6:7] op_sel_hi:[1,0]" for e in ep] + [f"v_exp_f32 v{VQ+e}, v{VQ+e}" for e in el] + [f"v_pk_add_f32 {P(VQ+e)}, {P(VQ+e)}, 1.0 op_sel_hi:[1,0]" for e in ep])
            a.extend([f"v_rcp_f32 v{VQ+e}, v{VQ+e}" for e in el] + [f"v_pk_mul_f32 {P(VF+e)}, {P(VF+e)}, {P(VQ+e)}" for e in ep])
        for pp in range(0 if o["s7e"] == 32 else 1, 2):
            (l0, w0, t0), (l1, w1, t1) = outp(pp, 0, True), outp(pp, 1, True)
            a.extend(l0 + l1 + w0 + [t0] + w1 + [t1])
        if o.get("cnt"):
            a(f"s_lshl2_add_u32 s0, s2, s3\ns_lshl_b32 s0, s0, 2\ns_add_u32 s0, s0, {STAMP_OFF + 0x10000}\nv_mov_b32 v4, s0\nv_mov_b32 v5, s101\nglobal_store_dword v4, v5, s[{SW}:{SW+1}]")
        if o["stamps"]:
            stamp("fs")
            a("s_waitcnt vmcnt(0)")
            stamp("end")
            a(f"s_cmp_lg_u32 s3, {o['stw']}\ns_cbranch_scc1 L_end{pv}")
            st.n = len(sset)
            st.flush(a, SW, 2, 4)
        paths += [h + list(range(p0, len(a.lines))) for h in heads]
        a(f"L_end{pv}:\ns_endpgm")
    ab = o.get("ab", 0)
    k2lines = set(sum(paths, []))
    for i in k2lines:
        l = a.lines[i]
        kill = False
        if ab & 1 and "buffer_store_dword v3, off" in l and "offset:0" not in l: kill = True
        if ab & 2 and ";@poll" in l and "s59" not in l: kill = True
        if ab & 3 and any(f"s_cbranch_vccnz {n}" in l for n in ("L_b2", "L_b3", "L_of")): kill = True
        if ab & 4 and (";@gld" in l or "L_kvf_s" in l or "scc1 L_gat" in l or "scc1 L_red" in l or ("s54 offen" in l and "store" in l)): kill = True
        if ab & 8 and ";@late" in l: kill = True
        if ab & 16 and (";@pld" in l or "L_xb_s" in l or ("s61 offen" in l and "store" in l)): kill = True
        if kill: a.lines[i] = "    s_nop 0"
    resolve(a.lines, paths)
    a.lines += hk.lines + ool.lines + ["L_cend:"]
    a.lines = [l.split(" ;@")[0].replace(" offset:0 ", " ").replace("    ", " ") for l in a.lines]
    a.lines, n = hazard.fix(a.lines, verbose=o.get("hv", 0))
    if o["aln"]:
        a.lines, n1, n2 = align.fix(a.lines)
        if o.get("hv"): print("aligned", n1, n2)
    if o.get("cnt"): print(spn)
    ref = "cdna_kernels/" + NAME + ".s.ref"
    hdr = open(ref).read().split("; Override launch")[0] if os.path.exists(ref) else ""
    k = dict(name=NAME + "_kernel", grid=256, block=256, lds=163840, body=a, vgpr=256, agpr=256)
    if "pm" in o:
        pr = Asm(); pa, pb, M, pw = o.get("pa", 0), o.get("pb", 0), o["pm"], o.get("pw", 0)
        pr(f"""s_cmp_ge_u32 s2, 1
s_cbranch_scc1 Lp_end
s_load_dwordx2 s[4:5], s[0:1], 72
s_memrealtime s[8:9]
v_mov_b32 v1, {STAMP_OFF + pw*128 + pa*8 + 4}
v_mov_b32 v2, {STAMP_OFF + pw*128 + (pb % 10)*8 + 4}
s_waitcnt lgkmcnt(0)
global_load_dword v3, v1, s[4:5]
global_load_dword v4, v2, s[4:5]
s_waitcnt vmcnt(0)
{"v_mov_b32 v4, s8" if pb == 99 else ""}
v_sub_u32 v3, v4, v3
s_nop 1
v_readfirstlane_b32 s6, v3
s_nop 3
s_min_u32 s6, s6, 20000
s_mul_i32 s6, s6, {M}
Lp_loop:
s_memrealtime s[10:11]
s_waitcnt lgkmcnt(0)
s_sub_u32 s12, s10, s8
s_cmp_lt_u32 s12, s6
s_cbranch_scc1 Lp_loop
Lp_end:
s_endpgm""")
        return hdr + file_text([k, dict(name="probe_kernel", grid=1, block=64, lds=0, body=pr, vgpr=8, agpr=0)])
    txt = file_text([k]).replace(f"@launch kernel={NAME}_kernel ", "@launch ")
    return hdr + txt
if __name__ == "__main__":
    kw = {}
    for x in sys.argv[2:]:
        k, v = x.split("="); kw[k] = int(v)
    open(sys.argv[1], "w").write(gen(**kw))
```

```python
import sys, struct, math, os
from asmlib import *
import hazard, align

WS_A, WS_I, WS_CS, WS_ST, WS_SIZE = 0, 0x1400000, 0x1C00000, 0x1C80000, 0x1D00000
def f2u(x): return hex(struct.unpack("<I", struct.pack("<f", x))[0])
LOG2E = 1.4426950408889634
GA1 = -2.0*LOG2E*math.sqrt(2.0/math.pi); GA3 = GA1*0.044715
W_OFF = 32768
STAGE = 73728
MB = 2*STAGE
MB_AOS, MB_NM, MB_RS = MB + 10240, MB + 14336, MB + 15360
CSS = 65536
KVX = 67584
RING2 = 81920
KVF = STAGE + 16384
STRM = 144*2048
SPIN = 0x80000
BIG = 0x7ff00000

def cls(i):
    n = i.split()[0]
    if n.endswith(":"): return -1
    if n.startswith("s_"): return 0
    if n.startswith(("ds_", "buffer_", "global_")): return 1
    return 2
def emit(a, mfmas, slots):
    for i in range(-1, len(mfmas)):
        if i >= 0: a(mfmas[i])
        items = slots.get(i, [])
        if any(cls(x) < 0 or "exec" in x or "cbranch" in x for x in items): a.extend(items)
        else: a.extend(sorted(items, key=cls))
def spread(slots, items, lo, hi):
    n = len(items)
    for i, x in enumerate(items):
        p = lo + (i*(hi - lo + 1))//max(n, 1)
        slots[p].extend(x if isinstance(x, list) else [x])
def vcost(x): return 2 if x.startswith(("v_exp", "v_rcp", "v_rsq")) else 1
def fillv(gaps, items):
    used = [sum(vcost(y) for y in g if cls(y) > 0) for g in gaps]
    tot = sum(used) + sum(vcost(x) for x in items)
    if tot <= 1.8*len(gaps):
        p = 0
        for x in items:
            while p < len(gaps) - 1 and used[p] + vcost(x) > 2: p += 1
            used[p] += vcost(x); gaps[p].append(x)
        return
    rate = tot/len(gaps); cum = 0; k = 0
    for p, g in enumerate(gaps):
        cum += used[p]
        while k < len(items) and (cum + vcost(items[k])/2 <= rate*(p+1) or p == len(gaps) - 1):
            g.append(items[k]); cum += vcost(items[k]); k += 1
def resolve(lines, paths):
    best = {}
    for path in paths:
        n = 0; pos = {}
        for i in path:
            l = lines[i].strip()
            if l.startswith(("buffer_", "global_")):
                n += 1
                if ";@" in l:
                    for t in l.split(";@")[1].split(","): pos[t.strip()] = n
            elif l.startswith("s_waitcnt @"):
                tags = [t for t in l.split()[1][1:].split(",") if t in pos]
                c = n - max(pos[t] for t in tags) if tags else 63
                best[i] = min(best.get(i, 63), c)
    for i, c in best.items():
        w = lines[i].split()
        lines[i] = "    " + " ".join([w[0], f"vmcnt({c})"] + w[2:])
    assert not any("s_waitcnt @" in l for l in lines)
class VM:
    def __init__(self, a): self.a = a; self.n = 0
    def __call__(self, s):
        self.a(s); self.n += 1; return self.n
    def wait(self, tag): self.a(f"s_waitcnt vmcnt({self.n - tag})")
def P(r): return f"v[{r}:{r+1}]"
SETS = {0: ["start", "loop", "e0", "k2", "s", "fin", "end"],
        2: ["k2", "t4", "t8", "t12", "t16", "t25", "s"],
        3: ["start", "karg", "addr", "zero", "dma", "loop", "i1"],
        4: ["loop", "i1", "i2", "i4", "i6", "s14", "e0"],
        1: ["i5", "s14"], 10: ["loop", "s0m", "s0e", "i1", "i2"], 11: ["i4", "s8m", "i5", "s14", "s14m", "s15", "e0"],
        8: ["t7", "t8", "t9", "t10", "t11", "t12", "t13"],
        9: ["k2", "t1", "t2", "t3", "t4", "t5", "t6"],
        7: ["t16", "t20", "t22", "t24", "t26", "t28", "t30"],
        6: ["s", "t32", "t33", "t34", "fin", "fs", "end"],
        5: ["e0", "b1", "w1d", "b2", "chk", "chkd", "k2"]}

def gen(**kw):
    o = dict(stamps=0, stw=2, ev=5, dst=18, od=1, sq=0, cpf=2, npf0=1, nd0=2, d0s=16, d0e=3, ax0=72, lb0=40, spf=0, swp=1, mv=2, flip=0, x0=-12, xd=6, sf=1, mB=7, mA=16, nb=8, bl=0, aln=1, vo=3, rv=1, rh=5, unA=3, unB=6, snk=3, pfb=0, dsb=4, evb=5, axb=24, ts=10, te=10, xl=0, nm=8, lba=0, npf1=2, zper=12, slp=8, pfd=0, pfp=1, rp=2, pf2p=3, inp=4, csp=8, atp=6,
             pf2s=8, rs=2, sh=4, ctm=1, nin=80, s7e=20, pl=4, opoll=21, pro=1, ax=44, early=2, cpq=50, nw=4, tw=8, bs=0, na=2, cpt=99, tj=3, tg=10, nsA=12, nsB=6, fB=1, pf3=0, pB=5, cB=99, fA=3, pA=9, cA=99)
    o.update(kw)
    a = Asm(); ool = Asm(); near = Asm(); st = Stamps(o["stamps"], 74, 0)
    sset = SETS[o["sq"]]
    def stamp(tag, w=False):
        if tag in sset and o["stamps"]:
            st.n = sset.index(tag); st.stamp(a)
            if w: a("s_waitcnt lgkmcnt(0)")
    SX, SQ, SG, SW, SD, SO, SOUT, SP, SP2, SI, SU = 8, 12, 16, 24, 28, 32, 36, 40, 44, 48, 64
    V_XV, V_WV, V_XR, V_WR, V_PF, V_PF2, V_CSO = 8, 16, 22, 26, 32, 33, 34
    V_T, V_CSA, V_SEL, V_SENT = 36, 40, 44, 4
    V_ACC = 48; A_X = 0; A_W = 64; A_ACC = 144
    def S(d): return f"s[{d}:{d+3}]"
    def fin(d, size): a(f"s_mov_b32 s{d+2}, {size}\ns_mov_b32 s{d+3}, 0x20000")
    def accb(tb, cb):
        i = cb*8 + tb
        return ("v", V_ACC + 4*i) if i < 52 else ("a", A_ACC + 4*(i-52))
    def acc(tb, cb):
        p, b = accb(tb, cb); return vr(b, 4, p)
    def xf(tb, ks): return ar(A_X + (tb*2+ks)*4, 4)
    def wfb(cb, ks): return A_W + (cb*2+ks)*4
    spn = {}
    def spin_ool(name, cmp, reload):
        k = spn.setdefault(name[:4] if name[:4] in ("L_b1", "L_b2", "L_in", "L_b3", "L_of", "L_xb") else name, len(spn) + 1)
        ool(f"{name}_s:")
        if o.get("cnt"):
            ool(f"s_bitset1_b32 s101, {k}")
        ool(f"s_mov_b32 s0, 0\n{f's_branch {name}_r' if o['sf'] else ''}\n{name}_l:\ns_sleep {o['slp']}\n{name}_r:\n{reload}\ns_waitcnt vmcnt(0)\n{cmp}\ns_add_u32 s0, s0, 1\ns_cmp_ge_u32 s0, {SPIN}\ns_cbranch_scc1 {name}_d\ns_nop 1\ns_cbranch_vccnz {name}_l\ns_branch {name}_d")
    def spin(name, cmp, reload):
        a(cmp + f"\ns_nop 3\ns_cbranch_vccnz {name}_s\n{name}_d:")
        spin_ool(name, cmp, reload)

    a("s_cmp_lt_u32 s2, 256\ns_cbranch_scc1 L_go\ns_endpgm\nL_go:")
    stamp("start")
    a(f"s_load_dwordx2 s[{SX}:{SX+1}], s[0:1], 0\ns_load_dwordx2 s[{SQ}:{SQ+1}], s[0:1], 8\ns_load_dwordx2 s[{SG}:{SG+1}], s[0:1], 32\ns_load_dwordx2 s[{SU}:{SU+1}], s[0:1], 40")
    a("v_lshrrev_b32 v1, 6, v0\nv_and_b32 v2, 63, v0\ns_lshr_b32 s58, s2, 3")
    if o["swp"]: a("s_lshr_b32 s6, s2, 2\ns_xor_b32 s6, s6, s2\ns_and_b32 s6, s6, 1\ns_mul_i32 s6, s6, 5\ns_xor_b32 s2, s2, s6")
    n0 = 0
    if o["cpf"]:
        a("s_getpc_b64 s[72:73]\nL_pc:\nv_min_u32 v3, 15, v2\nv_mad_u32_u24 v4, v1, 9, v3\nv_mad_u32_u24 v5, v1, 7, v3\ns_mul_i32 s6, s58, 28\nv_cmp_ne_u32 vcc, 0, v1")
        a("s_bitcmp1_b32 s2, 5\ns_cselect_b32 s7, (L_tB-L_tA)/128-3, 0\nv_mov_b32 v6, s7\nv_add_u32 v5, s6, v5\nv_cndmask_b32 v6, 0, v6, vcc\nv_cmp_gt_u32 vcc, 7, v3\nv_add3_u32 v4, v4, v6, -7")
        a("v_cndmask_b32 v4, v4, v5, vcc\nv_lshlrev_b32 v4, 7, v4\nv_min_u32 v4, L_cend-L_pc-4, v4")
        a("global_load_dword v0, v4, s[72:73]")
    a("v_readfirstlane_b32 s3, v1\nv_lshlrev_b32 v1, 4, v2")
    a(f"s_load_dwordx2 s[{SW}:{SW+1}], s[0:1], 72\ns_load_dwordx2 s[{SD}:{SD+1}], s[0:1], 48\ns_load_dwordx2 s[{SO}:{SO+1}], s[0:1], 16")
    a(f"s_load_dwordx2 s[{SOUT}:{SOUT+1}], s[0:1], 56\ns_load_dwordx2 s[62:63], s[0:1], 64")
    a("s_bfe_u32 s60, s2, 0x20001\ns_lshr_b32 s6, s2, 5\ns_lshl3_add_u32 s4, s60, s6")
    a("s_and_b32 s23, s2, 1\ns_bfe_u32 s6, s2, 0x20003\ns_lshl2_add_u32 s5, s23, s6\ns_lshl_b32 s23, s23, 3")
    a("s_lshr_b32 s52, s3, 1\ns_and_b32 s53, s3, 1")
    a("s_cmp_eq_u32 s3, 0\ns_cbranch_scc1 L_pf0\ns_cmp_eq_u32 s3, 1\ns_cbranch_scc1 L_pf1")
    a(f"s_mov_b32 s{SP+2}, {1024*3584*2}\ns_mov_b32 s59, {64*7168}")
    a("v_min_u32 v3, 27, v2\nv_cmp_le_u32 vcc, 14, v3\ns_lshl_b32 s6, s58, 1\ns_mul_i32 s7, s60, 1792\nv_cndmask_b32 v4, 0, 1, vcc\nv_mul_u32_u24 v5, 14, v4\nv_sub_u32 v5, v3, v5")
    a("v_add_u32 v4, s6, v4\nv_lshl_add_u32 v5, v5, 7, s7\ns_movk_i32 s57, 7168")
    a(f"v_mad_u32_u24 v{V_PF}, v4, s57, v5\ns_waitcnt lgkmcnt(0)\ns_cmp_eq_u32 s3, 2\ns_cselect_b32 s{SP}, s{SG}, s{SU}\ns_cselect_b32 s{SP+1}, s{SG+1}, s{SU+1}\ns_branch L_pfd")
    a("L_pf1:")
    a(f"s_mov_b32 s{SP+2}, {1024*3072*2}\ns_mov_b32 s59, {64*6144}")
    a("v_min_u32 v3, 23, v2\nv_cmp_le_u32 vcc, 12, v3\ns_lshl_b32 s6, s58, 1\ns_lshl_b32 s7, s60, 9\nv_cndmask_b32 v4, 0, 1, vcc\nv_mul_u32_u24 v5, 12, v4\nv_sub_u32 v5, v3, v5")
    a("v_add_u32 v4, s6, v4\nv_lshrrev_b32 v6, 2, v5\nv_and_b32 v5, 3, v5\nv_lshl_add_u32 v5, v5, 7, s7\nv_lshl_add_u32 v5, v6, 11, v5\ns_movk_i32 s57, 6144")
    a(f"v_mad_u32_u24 v{V_PF}, v4, s57, v5\ns_waitcnt lgkmcnt(0)\ns_mov_b32 s{SP}, s{SQ}\ns_mov_b32 s{SP+1}, s{SQ+1}\ns_branch L_pfd")
    a("L_pf0:")
    a(f"s_mov_b32 s{SP+2}, {2048*1024*2}\ns_mov_b32 s59, 128")
    a(f"s_lshl2_add_u32 s6, s23, s58\ns_lshl_b32 s6, s6, 5\nv_min_u32 v4, 31, v2\nv_add_u32 v4, s6, v4\nv_lshlrev_b32 v{V_PF}, 11, v4")
    a(f"s_waitcnt lgkmcnt(0)\ns_mov_b32 s{SP}, s{SX}\ns_mov_b32 s{SP+1}, s{SX+1}")
    a("L_pfd:")
    if o.get("norot"): a("s_mov_b32 s23, 0")
    a(f"s_mov_b32 s{SP+3}, 0x20000\ns_mul_i32 s58, s23, s59")
    stamp("karg", True)
    PFA = [f"s_add_u32 s58, s23, {o['pfd'] + 1}", f"s_and_b32 s58, s58, {o.get('kmask', 15)}", "s_mul_i32 s58, s58, s59"]
    POL = ["", " sc1", " nt", " sc0", " sc0 sc1"]
    PFI = f"buffer_load_{['dword', 'ubyte'][o.get('pb8', 0)]} v0, v{V_PF}, {S(SP)}, s58 offen{POL[o.get('pp1', 0)]}"
    for i in range(o["npf0"]): a(PFI); a("s_add_u32 s58, s58, s59")
    def sload(lo, hi):
        for i in range(lo, hi):
            a(f"s_load_dword s73, s[{SP}:{SP+1}], s44")
            a(f"s_add_u32 s44, s44, s{45 if i % 4 < 3 else 46 if i % 16 < 15 else 47}")
    if o["spf"]:
        a(f"v_readfirstlane_b32 s44, v{V_PF}\ns_movk_i32 s47, 2048\ns_cmp_eq_u32 s3, 0\ns_cselect_b32 s45, s47, 128\ns_cselect_b32 s46, s47, 128\ns_cselect_b32 s47, s47, {7168 - 1920}\ns_cmp_eq_u32 s3, 1\ns_cselect_b32 s46, {2048 - 384}, s46\ns_cselect_b32 s47, {2048 - 384}, s47\ns_add_u32 s44, s44, s58")
        sload(0, o["spf"])
    fin(SG, 1024*3584*2); fin(SU, 1024*3584*2); fin(SX, 2048*1024*2); fin(SQ, 1024*3072*2)
    a(f"s_lshl_b32 s20, s23, 7\ns_mul_i32 s21, s23, {64*6144}\ns_mul_i32 s22, s23, {64*7168}")
    a(f"s_lshl_b32 s54, s3, 13\ns_lshl_b32 s55, s3, 11\ns_add_u32 s55, s55, {W_OFF}\ns_lshl_b32 s56, s3, 10\ns_add_u32 s56, s56, {W_OFF + 32768}")
    a("s_lshl_b32 s6, s5, 8\ns_lshl_b32 s7, s3, 6\ns_add_u32 s6, s6, s7")
    a("v_lshrrev_b32 v3, 3, v2\nv_add_u32 v7, s6, v3\nv_lshlrev_b32 v7, 11, v7\nv_lshrrev_b32 v4, 4, v2\nv_and_b32 v5, 7, v2")
    for c in range(2):
        a(f"v_add_u32 v6, {4*c}, v4\nv_xor_b32 v6, v6, v5\nv_lshl_add_u32 v6, v6, 4, v7")
        for cc in range(c, 8, 2): a(f"v_add_u32 v{V_XV+cc}, {cc*8*2048}, v6")
    a("s_lshl_b32 s6, s52, 5\ns_lshl2_add_u32 s61, s53, s6")
    a("v_and_b32 v3, 3, v3\nv_lshrrev_b32 v6, 5, v2\nv_lshl_add_u32 v3, v6, 3, v3\nv_add_u32 v3, s61, v3")
    a("v_lshlrev_b32 v6, 1, v4\nv_xor_b32 v5, v5, v6\nv_lshlrev_b32 v5, 4, v5")
    a("s_lshr_b32 s0, s4, 1\ns_and_b32 s1, s0, 1\ns_mul_i32 s6, s0, 448\ns_movk_i32 s57, 7168")
    a("s_bitcmp1_b32 s2, 5\ns_cbranch_scc1 L_tB")

    def dma_list(ty, stage):
        b = stage*STAGE
        xs = [(f"s_add_u32 m0, s54, {b + c*1024}", f"buffer_load_dwordx4 v{V_XV+c}, {S(SX)}, s20 offen{POL[o.get('pd', 0)]} lds") for c in range(8)]
        def w(u, c, reg, srd, so, off=0):
            return (f"s_add_u32 m0, s55, {b + u*8192 + c*1024 - off}", f"buffer_load_dwordx4 v{reg}, {S(srd)}, s{so} offen{f' offset:{off}' if off else ''}{POL[o.get('pd', 0)]} lds")
        if ty == 0:
            ws = [w(u, c, V_WV+c, (SG, SU)[u], 22) for u in range(2) for c in range(2)]
            ws += [w(2, c, V_WV+2+c, SQ, 21) for c in range(2)] + [w(3, c, V_WV+2+c, SQ, 21, 2048) for c in range(2)] + [w(4, c, V_WV+4+c, SQ, 21) for c in range(2)]
        else:
            ws = [w(2*h+u, c, V_WV+c, (SG, SU)[u], 22, 128*h) for u in range(2) for c in range(2) for h in range(2)]
            ws += [(f"s_add_u32 m0, s56, {b + u*4096}", f"buffer_load_dwordx4 v{V_WV+2}, {S((SG, SU)[u])}, s22 offen{POL[o.get('ph', 0)]} lds") for u in range(2)]
        od = o.get("od", 0)
        if od == 1: return xs + ws
        if od == 2: return [y for p in zip(xs, ws) for y in p] + ws[8:]
        return ws + xs
    adv = ["s_add_u32 s23, s23, 1", f"s_and_b32 s23, s23, {o.get('kmask', 15)}", f"s_mul_i32 s22, s23, {64*7168}", f"s_mul_i32 s21, s23, {64*6144}", "s_lshl_b32 s20, s23, 7"]
    EV, ST0 = o["ev"], o["dst"]
    dpos = [ST0 + EV*i for i in range(18)]
    dpos = [p + 1 if p == 80 else p for p in dpos]
    n3 = sum(1 for p in dpos if p < 80)
    BL = [[("g", 0, 0), ("u", 1, 0), ("g", 0, 1), ("u", 1, 1), ("q", 2, 0), ("q", 2, 1), ("k", 3, 0), ("k", 3, 1), ("v", 4, 0), ("v", 4, 1)],
          [("g", 0, 0), ("u", 1, 0), ("g", 0, 1), ("u", 1, 1), ("h", 0, 2), ("h", 1, 2), ("g", 2, 0), ("u", 3, 0), ("g", 2, 1), ("u", 3, 1)]]
    def xread(stage, tb, ks): return f"ds_read_b128 {xf(tb, ks)}, v{V_XR + stage*2 + ks} offset:{tb*2048}"
    def wread(ty, stage, cb):
        t, u, i = BL[ty][cb]; L = []
        for ks in range(2):
            for rd in range(2):
                row = 32*ks + 16*rd
                off = u*4096 + row*64 if t == "h" else u*8192 + row*128
                L.append(f"ds_read_b64_tr_b16 {ar(wfb(cb, ks)+2*rd, 2)}, v{V_WR + 2*i + stage} offset:{off}")
        return L
    def mfmas(ty, half, first=False):
        L = []
        for cb, (t, u, i) in enumerate(BL[ty]):
            for n, tb in enumerate(range(4*half, 4*half+4) if cb % 2 == 0 or not o["snk"] & 1 else range(4*half+3, 4*half-1, -1)):
                for ks in ((0, 1) if n % 2 == 0 else (1, 0)):
                    x, w = xf(tb, ks), ar(wfb(cb, ks), 4)
                    A, B = (x, w) if t in "kv" else (w, x)
                    L.append(f"v_mfma_f32_16x16x32_bf16 {acc(tb, cb)}, {A}, {B}, {0 if first and ks == n % 2 else acc(tb, cb)}")
        return L
    V_BV = 8
    def n0(T): return 56 + n0(T - o["mv"]) if T >= 28 else [0, 2, 12, 8][T & 3] + 14*(T >> 2) if T < 16 else 7*(T-16) + 4 - (T & 1) if T < 24 else 14*(T-24) + 6
    def bdma(slot, ph, base=0):
        s_, so = (S(SD) if ph == "f" else S(SO)), 15
        return [(f"s_add_u32 m0, s18, {base + slot*16384 + c*1024}", f"buffer_load_dwordx4 v{V_BV+c}, {s_}, s{so} offen{POL[o.get('pk', 0)]} lds") for c in range(4)]
    def put(slots, dm):
        for pre, m, d, p in dm:
            for k, x in enumerate(pre): slots[p - 1 - len(pre) + k].append(x)
            slots[p-1].append(m); slots[p].append(d)
    def atomic(off):
        return f"v_mov_b32 v{V_SEL}, {off}\nv_mov_b32 v{V_SEL+1}, 1\ns_mov_b64 exec, 1\nglobal_atomic_add v{V_SEL}, v{V_SEL+1}, s[62:63] sc1\ns_mov_b64 exec, -1"
    def fill(slots, items, lo, hi):
        p = lo
        for x in items:
            x = x if isinstance(x, list) else [x]
            while True:
                assert p <= hi, "no room"
                nv = sum(cls(y) > 0 for y in slots[p]); ns_ = sum(cls(y) == 0 for y in slots[p])
                if ns_ + len(x) <= (3 if nv == 0 else 1) and not any("m0" in y or "waitcnt" in y for y in slots[p]): break
                p += 1
            slots[p].extend(x)
    def putds(slots, items, pos, hi):
        last = -1
        for x, p in zip(items, pos):
            p = max(p, last + 1)
            q = p
            while q <= hi and any(cls(y) > 0 for y in slots[q]): q += 1
            if q > hi or q > p + 2: q = p
            slots[q].append(x); last = q
    uid = [0]
    def cond(cmp, body, neg=False):
        uid[0] += 1
        return cmp + [f"s_cbranch_scc{1 if neg else 0} L_c{uid[0]}"] + body + [f"L_c{uid[0]}:"]
    def phase1(ty, stage, kind, dm):
        slots = {i: [] for i in range(-1, 80)}
        slots[-1].append("s_waitcnt lgkmcnt(4)")
        put(slots, dm)
        if kind == "s14": slots[2].append("global_load_dword v3, v35, s[62:63] sc1")
        xb = [xread(stage, tb, ks) for tb in range(4, 8) for ks in range(2)]
        lastd = max([x[3] for x in dm] + [0])
        if kind == "s0":
            for cb in range(8):
                gp = sorted(sorted(range(8*cb, 8*cb+7), key=lambda q: any(cls(y) > 0 for y in slots[q]))[:5])
                for q, x in zip(gp, wread(ty, 0, cb+2) + [xb[cb]]): slots[q].append(x)
                assert len(gp) == 5
                slots[8*cb+7].append("s_waitcnt lgkmcnt(5)")
            slots[71].append("s_waitcnt lgkmcnt(0)")
        elif kind == "s8":
            putds(slots, wread(ty, stage, 9) + xb, [8 + 2*i for i in range(12)], 40)
            slots[63].append("s_waitcnt lgkmcnt(0)")
        else:
            putds(slots, wread(ty, stage, 9) + xb, [1 + 3*i for i in range(12)], 40)
            slots[63].append("s_waitcnt lgkmcnt(0)")
        if kind in ("s0", "la", "s8", "lb"):
            ax = {"s0": o["ax0"], "lb": o["axb"]}.get(kind, o["ax"])
            assert ax > lastd
            if o["pfb"] or kind in ("s0", "la"):
                fill(slots, PFA, 0, ax - 1)
                slots[ax].append(PFI)
            if kind in ("lb", "s8"):
                slots[ax+3].append(f"buffer_load_dword v0, v{V_PF2}, {S(SP2)}, s60 offen{POL[o.get('pp2', 0)]}"); slots[ax+4].append("s_add_u32 s60, s60, 1664")
            elif kind == "s0" and o.get("nor0"): slots[ax+2].append(f"buffer_load_dword v0, v1, {S(SX)}, 0 offen")
            elif stage == 0:
                slots[ax+1].append("s_mov_b32 m0, s0"); slots[ax+2].append(f"buffer_load_dwordx4 v1, {S(SX)}, s1 offen lds")
                slots[ax+3].extend(["s_add_u32 s0, s0, 1024", "s_add_u32 s1, s1, 1024"])
            else:
                slots[ax+3].append(f"buffer_store_dwordx4 {vr(V_SENT, 4)}, v1, {S(SI)}, s61 offen sc1"); slots[ax+4].append("s_add_u32 s61, s61, 1024")
            fill(slots, adv, max(64, lastd + 1), 77)
        if kind in ("s0", "la"):
            for r in range(4): slots[66 + 2*r].append(f"v_mov_b32 v{V_SEL+r}, v35")
            ret = 1 if kind == "s0" else 2 + stage
            slots[62].append(f"s_mov_b32 s72, {ret}")
            slots[78].append("s_cmp_eq_u32 s57, s68")
            slots[79].extend([f"s_cbranch_scc1 L_cs{ty}", f"L_cs{ty}_d{ret}:"])
        if kind == "s8":
            slots[-1].extend([f"buffer_store_dwordx4 {vr(V_CSA, 4)}, v{V_CSO}, {S(SW)}, s69 offen sc1", "v_add_u32 v3, s0, v1"])
            DR = [V_T, V_SEL, V_CSA]
            for i in range(3): slots[i].append(f"ds_read_b128 {vr(DR[i], 4)}, v3 offset:{1024*i}")
            fill(slots, ["s_lshr_b32 s0, s2, 5", "s_mul_i32 s0, s0, 6144", f"s_add_u32 s0, s0, {WS_ST}", "s_and_b32 s7, s2, 31", "s_lshl2_add_u32 s7, s7, s3", "s_lshl3_add_u32 s1, s7, s0", "s_add_u32 s1, s1, 4096", "s_lshl_b32 s7, s7, 5", "s_add_u32 s0, s0, s7"], 8, 60)
            slots[7].append("s_waitcnt lgkmcnt(0)")
            def chunk(i):
                r = i >> 1; vv = []
                for q in range(4):
                    x = DR[i % 3] + q; f = (i & 1) == 0 and q == 0
                    vv += [f"v_lshlrev_b32 v34, 16, v{x}", f"v_and_b32 v{x}, 0xffff0000, v{x}"]
                    vv += [f"v_add_f32 v{4+r}, v34, v{x}", f"v_mul_f32 v{6+r}, v34, v34"] if f else [f"v_add_f32 v{4+r}, v{4+r}, v34", f"v_fmac_f32 v{6+r}, v34, v34", f"v_add_f32 v{4+r}, v{4+r}, v{x}"]
                    vv += [f"v_fmac_f32 v{6+r}, v{x}, v{x}"]
                return vv
            fillv([slots[i] for i in range(7, 19)], chunk(0))
            slots[19].append(f"ds_read_b128 {vr(DR[0], 4)}, v3 offset:3072")
            fillv([slots[i] for i in range(19, 42)], chunk(1) + chunk(2))
            slots[42].append("s_waitcnt lgkmcnt(0)")
            fillv([slots[i] for i in range(42, 53)], chunk(3))
            seq = [["v_lshrrev_b32 v46, 3, v2", "v_lshrrev_b32 v47, 1, v2"], ["v_permlane32_swap_b32 v4, v5", "v_permlane32_swap_b32 v6, v7"], ["v_add_f32 v4, v4, v5", "v_add_f32 v6, v6, v7"],
                   [f"v_mov_b32 v45, {f2u(1.0/1024)}"], ["v_permlane16_swap_b32 v4, v6", "v_add_f32 v4, v4, v6"]]
            seq += [["s_nop 0", f"v_add_f32_dpp v4, v4, v4 row_ror:{sh} row_mask:0xf bank_mask:0xf"] for sh in (8, 4, 2, 1)]
            seq += [["v_mov_b32 v6, v4"], ["s_nop 0", "v_permlane16_swap_b32 v4, v6", f"v_mul_f32 v36, {f2u(-1.0/1024)}, v4"], ["v_mul_f32 v44, v36, v36", "v_fma_f32 v44, v6, v45, -v44"],
                    ["v_max_f32 v44, 0, v44", "v_cvt_pk_bf16_f32 v44, v36, v44"], ["v_lshlrev_b32 v36, 16, v44", "v_and_b32 v44, 0xffff0000, v44"],
                    [f"v_add_f32 v44, {f2u(1e-5)}, v44", "v_cvt_pk_bf16_f32 v44, 0, v44"], ["v_sqrt_f32 v44, v44"], ["v_cvt_pk_bf16_f32 v44, 0, v44", "v_mul_f32 v39, v44, v44"],
                    ["v_rcp_f32 v44, v44"], [f"v_mul_f32 v37, {f2u(GA1)}, v44", "v_mul_f32 v45, v44, v44"],
                    [f"v_mul_f32 v38, {f2u(0.044715)}, v37", "v_mul_f32 v38, v38, v45"], ["v_mov_b64 v[4:5], -1", "v_mov_b64 v[6:7], -1"]]
            assert len(seq) <= 21
            for i, x in enumerate(seq): slots[53 + i].extend(x)
            for i, x in enumerate([f"buffer_store_dwordx4 v[36:39], v47, {S(SW)}, s0 offen sc1", f"buffer_store_dword v36, v46, {S(SW)}, s1 offen sc1", f"buffer_store_dword v44, v46, {S(SW)}, s1 offen offset:1024 sc1"]):
                slots[74 + 2*i].extend(["s_mov_b64 exec, s[72:73]", x, "s_mov_b64 exec, -1"])
            slots[4].extend(["s_mov_b32 s72, 1", "s_mov_b32 s73, 1"])
        if kind == "s14":
            slots[0].extend(["v_and_b32 v35, 1, v2", "v_lshlrev_b32 v35, 7, v35"])
            nm = f"L_ini{ty}"; cmp = "v_cmp_gt_u32 vcc, 0x80, v3"
            slots[41].append(f"s_waitcnt vmcnt({sum(1 for x in dm if x[3] > 2)})"); slots[42].append(cmp)
            slots[44].extend([f"s_cbranch_vccnz {nm}_s", f"{nm}_d:"])
            spin_ool(nm, cmp, "global_load_dword v3, v35, s[62:63] sc1")
            ss = ["s_mul_i32 s6, s4, 10240", f"s_add_u32 s6, s6, {WS_CS}", "s_mul_i32 s7, s5, 6144", f"s_add_u32 s7, s7, {WS_ST - 10240}", "s_lshl_b32 s18, s3, 12", "s_add_u32 s6, s6, s18", "s_add_u32 s7, s7, s18",
                  ["s_cmp_lt_u32 s3, 3", "s_cselect_b32 s58, s6, s7"], ["s_cmp_lt_u32 s3, 2", "s_cselect_b32 s59, s6, s7"], f"s_mov_b32 s{SI+2}, 8192", "s_movk_i32 s61, 4096"]
            fill(slots, ss, lastd + 1, 43)
            slots[45].append(f"s_add_u32 m0, s18, {MB}")
            for c in range(4): slots[46 + 3*c].append(f"buffer_load_dwordx4 v1, {S(SW)}, s{58 + (c >> 1)} offen offset:{c*1024} sc1 lds")
            vv = ["v_lshrrev_b32 v12, 3, v2", "v_bfe_u32 v13, v2, 4, 2", "v_lshlrev_b32 v13, 1, v13", "v_and_b32 v14, 7, v2", "v_xor_b32 v14, v14, v13",
                  "v_lshlrev_b32 v14, 4, v14", f"v_lshl_add_u32 v{V_BV}, v12, 11, v14"] + [f"v_add_u32 v{V_BV+c}, {16384*c}, v{V_BV}" for c in range(1, 4)]
            for i, x in enumerate(vv): slots[66 + i].append(x)
            for c in range(4): slots[59 + 5*c].append(f"buffer_store_dwordx4 {vr(V_SENT, 4)}, v1, {S(SI)}, s61 offen offset:{c*1024} sc1")
            if o["cpf"] > 1:
                q = o["cpq"]
                slots[q].extend(["s_getpc_b64 s[72:73]", f"L_pd{ty}:", f"s_sub_u32 s72, s72, L_pd{ty}-L_pc", "s_subb_u32 s73, s73, 0"])
                slots[q+1].extend(["s_lshr_b32 s0, s2, 3", "s_lshl2_add_u32 s0, s0, s3", "s_mul_i32 s0, s0, 7"])
                slots[q+2].extend(["v_min_u32 v36, 6, v2", "v_add_lshl_u32 v36, v36, s0, 7"])
                slots[q+3].append("v_min_u32 v36, L_cend-L_pc-4, v36")
                slots[57].append("global_load_dword v0, v36, s[72:73]")
            ss = ["s_bfe_u32 s20, s2, 0x10002", "s_and_b32 s6, s2, 1", "s_bfe_u32 s7, s2, 0x10001", "s_lshl1_add_u32 s6, s6, s7", "s_lshr_b32 s7, s2, 6", "s_lshl2_add_u32 s21, s6, s7",
                  "s_bfe_u32 s22, s2, 0x20003", "s_bfe_u32 s7, s2, 0x10005", "s_lshl1_add_u32 s22, s22, s7", "s_lshl_b32 s22, s22, 8",
                  f"s_mul_i32 s14, s20, {1792*2048}", "s_add_u32 s14, s14, s22", "s_xor_b32 s6, s53, s20", f"s_xor_b32 s6, s6, {o['flip']}", "s_lshl_b32 s6, s6, 7", "s_add_u32 s14, s14, s6",
                  "s_lshl_b32 s15, s52, 16", "s_add_u32 s14, s15, s14", "s_mov_b32 s15, s14"]
            fill(slots, ss, 47, 78)
        if kind == "s15":
            slots[0].extend([f"s_waitcnt vmcnt({o['n14']})", "s_barrier"])
            slots[2].extend(["s_mul_i32 s6, s3, 320", "v_lshl_add_u32 v12, v2, 3, s6"])
            slots[5].append(f"v_add_u32 v13, {MB}, v12"); slots[6].append(f"v_add_u32 v12, {CSS}, v12")
            putds(slots, [f"ds_read_b64 v[{32+2*r}:{33+2*r}], v13 offset:{r*1280}" for r in range(8)], range(37, 45), 50)
            slots[54].append("s_waitcnt lgkmcnt(0)")
            fillv([slots[i] for i in range(54, 64)], [f"v_add_f32 v{32+i}, v{32+i}, v{32+stp+i}" for stp in (8, 4, 2) for i in range(stp)])
            slots[65].append("ds_write_b64 v12, v[32:33]")
            vv = ["v_and_b32 v44, 15, v2", "v_lshrrev_b32 v45, 4, v2", "v_lshlrev_b32 v4, 11, v44", "v_add_u32 v44, s7, v44", "v_lshlrev_b32 v44, 4, v44", f"v_add_u32 v44, {MB_AOS}, v44",
                  "v_lshl_add_u32 v4, v45, 4, v4", "v_lshl_add_u32 v45, v45, 4, s64", "v_add_u32 v5, 32768, v4",
                  "v_bfe_u32 v46, v2, 1, 3", "v_bfe_u32 v47, v2, 4, 1", "v_lshl_or_b32 v46, v46, 4, v47", "v_and_b32 v47, 1, v2", "v_lshl_or_b32 v46, v46, 2, v47", "v_lshlrev_b32 v46, 14, v46", "v_mov_b32 v3, 1",
                  "v_lshrrev_b32 v7, 2, v2", "v_lshlrev_b32 v7, 7, v7", "v_and_b32 v6, 3, v2", "v_lshl_add_u32 v7, v6, 3, v7", "v_bfe_u32 v6, v2, 3, 2", "v_lshl_add_u32 v7, v6, 5, v7"]
            fillv([slots[i] for i in range(66, 80)], vv)
            ss = ["s_lshl_b32 s7, s53, 7", "s_mul_i32 s64, s52, 640", f"s_add_u32 s64, s64, {CSS}",
                  "s_lshl1_add_u32 s0, s5, s53", f"s_mul_i32 s1, s0, {4*STRM}", "s_lshr_b32 s6, s4, 4", "s_mul_i32 s48, s6, 56", "s_add_u32 s48, s48, 32", "s_and_b32 s56, s4, 15",
                  "s_lshl1_add_u32 s41, s56, s52", "s_add_u32 s40, s41, s48", "s_lshl_b32 s40, s40, 11", "s_add_u32 s40, s40, s1"]
            if ty == 0:
                ss += ["s_add_u32 s41, s4, s52", "s_lshl_b32 s44, s41, 11", "s_add_u32 s44, s44, s1"]
            else:
                ss += ["s_add_u32 s41, s56, s52", "s_sub_u32 s41, s41, 1", "s_add_u32 s44, s41, s48", "s_add_u32 s44, s44, 32", "s_lshl_b32 s44, s44, 11", "s_add_u32 s44, s44, s1",
                       "s_lshl1_add_u32 s48, s48, s41", "s_add_u32 s48, s48, 96", "s_lshl_b32 s48, s48, 10", "s_add_u32 s48, s48, s1"]
            for b in (40, 44, 48)[:2+ty]:
                for i in range(1, 4): ss.append(f"s_add_u32 s{b+i}, s{b}, {i*STRM}")
            ss += ["s_bfe_u32 s58, s21, 0x20001", "s_lshr_b32 s59, s21, 3", "s_lshl3_add_u32 s58, s58, s59", "s_and_b32 s59, s21, 1", "s_lshl2_add_u32 s58, s58, s59",
                   "s_lshl4_add_u32 s59, s20, s58", "s_lshl3_add_u32 s69, s3, s58", "s_lshl_b32 s59, s59, 13", "s_lshl_b32 s69, s69, 13", f"s_add_u32 s59, s59, {WS_I}", f"s_add_u32 s69, s69, {WS_I}",
                   "s_lshl_b32 s60, s53, 22", "s_lshl_b32 s0, s52, 16", "s_add_u32 s60, s60, s0", "s_add_u32 s60, s60, s59", f"s_add_u32 s60, s60, {1 << 20}",
                   "s_lshl2_add_u32 s19, s21, s3", f"s_mul_i32 s13, s19, {STRM}", f"s_mul_i32 s12, s20, {56*2048}", "s_add_u32 s12, s12, s13", f"s_add_u32 s12, s12, {32*2048}",
                   f"s_xor_b32 s0, s20, {o['flip']}", "s_lshl_b32 s0, s0, 7", "s_add_u32 s0, s0, s22", "s_lshl_b32 s19, s19, 16", "s_add_u32 s19, s19, s0", "s_lshl_b32 s17, s3, 16", "s_add_u32 s17, s17, s0",
                   "s_lshl2_add_u32 s61, s2, s3", "s_lshl_b32 s61, s61, 13", f"s_xor_b32 s65, s61, {16*8192}", f"s_add_u32 s54, s61, {WS_I}", f"s_add_u32 s55, s65, {WS_I}", f"s_add_u32 s61, s61, {WS_I + 4096}", f"s_add_u32 s65, s65, {WS_I + 4096}",
                   f"s_mov_b32 s68, {f2u(1e-6)}", f"s_mov_b32 s56, {f2u(LOG2E)}"]
            fill(slots, ss, 3, 62)
        emit(a, mfmas(ty, 0, kind == "s0"), slots)
    CS, TK, Z, Z2 = 12, 28, 36, 240
    def geglu1(el):
        vv = [f"v_fmac_f32 v{g}, v{cg}, v{tk}" for g, u, cg, cu, tk, z in el] + [f"v_mul_f32 v{z}, v{g}, v{g}" for g, u, cg, cu, tk, z in el]
        vv += [f"v_fma_f32 v{z}, v{z}, v{tk+2}, v{tk+1}" for g, u, cg, cu, tk, z in el] + [f"v_mul_f32 v{z}, v{z}, v{g}" for g, u, cg, cu, tk, z in el]
        vv += [f"v_exp_f32 v{z}, v{z}" for g, u, cg, cu, tk, z in el] + [f"v_fmac_f32 v{u}, v{cu}, v{tk}" for g, u, cg, cu, tk, z in el]
        vv += [f"v_fma_f32 v{z}, v{z}, v{tk+3}, v{tk+3}" for g, u, cg, cu, tk, z in el]
        vv += [f"v_rcp_f32 v{z}, v{z}" for g, u, cg, cu, tk, z in el] + [f"v_mul_f32 v{u}, v{u}, v{g}" for g, u, cg, cu, tk, z in el]
        return vv + [f"v_mul_f32 v{u}, v{u}, v{z}" for g, u, cg, cu, tk, z in el]
    XLD = [f"buffer_load_dwordx4 {ar(4*i, 4)}, v{4 + (i>>1)}, {S(SX)}, s19 offen offset:{(i&1)*64}" for i in range(4)]
    def phase2(ty, stage, kind, dm, nwait):
        slots = {i: [] for i in range(-1, 80)}
        ms = mfmas(ty, 1, kind == "s0")
        lb = {"s0": o["lb0"], "la": o["lba"]}.get(kind, 0)
        if lb:
            slots[0].append("s_barrier")
            slots[lb].extend([f"s_waitcnt vmcnt({2 + sum(1 for x in dm if x[3] < lb)})", "s_barrier"])
        else: slots[0].extend([f"s_waitcnt {nwait}", "s_barrier"])
        if kind == "lb" and stage == 0: slots[0].append(f"L_lbm{ty}:")
        put(slots, dm)
        if kind == "lb":
            nm = f"L_at{ty}{stage}"
            slots[1].append(f"s_cmp_eq_u32 s57, s{70 + stage}"); slots[2].extend([f"s_cbranch_scc1 {nm}", f"{nm}_d:"])
            near(f"{nm}:\ns_and_b32 s6, s2, 1\ns_lshl_b32 s6, s6, 7\n{atomic('s6')}\ns_branch {nm}_d")
        if kind in ("la", "lb") and stage == 1:
            slots[76].append("s_add_u32 s57, s57, 1"); slots[78].append(f"s_cmp_lt_u32 s57, {4 if kind == 'la' else 7}")
            assert not any("m0" in y for y in slots[78] + slots[79])
        if kind != "s15":
            xr = [xread(stage ^ 1, tb, ks) for tb in range(4) for ks in range(2)]
            if lb:
                rd = [(0, x) for x in xr] + [(8*(cb+1) + 1, x) for cb in range(9) for x in wread(ty, stage ^ 1, cb)]
                for i, (e, x) in enumerate(rd): slots[max(e, lb + (i*(80 - lb))//44)].append(x)
            else:
                for cb in range(9): putds(slots, wread(ty, stage ^ 1, cb), [8*(cb+1) + q for q in (1, 3, 5, 7)], 79)
                putds(slots, xr, [4, 6, 14, 22, 30, 38, 46, 54], 70)
        else:
            for i in range(4): slots[1+i].append(f"ds_read_b128 v[{CS+4*i}:{CS+4*i+3}], v45 offset:{i*64}")
            for i in range(2): slots[5+i].append(f"ds_read_b128 v[{TK+4*i}:{TK+4*i+3}], v44 offset:{i*256}")
            if not o["xl"]:
                for i in range(4): slots[7 + 2*i].append(XLD[i])
            slots[14].append("s_waitcnt lgkmcnt(0)")
            ne = o["early"]
            for tb in range(ne):
                r = [accb(tb, i)[1] for i in range(4)]
                el = [(r[2*n]+i, r[2*n+1]+i, CS+8*n+i, CS+8*n+4+i, TK+4*tb, Z+4*n+i) for n in range(2) for i in range(4)]
                lo, hi = 14 + (65*tb)//ne, 14 + (65*(tb+1))//ne
                fillv([slots[i] for i in range(lo, hi)], geglu1(el) + [f"v_cvt_pk_bf16_f32 v{r[0]+i}, v{el[2*i][1]}, v{el[2*i+1][1]}" for i in range(4)])
                slots[hi].append(f"buffer_store_dwordx4 v[{r[0]}:{r[0]+3}], v1, {S(SW)}, s40 offen offset:{tb*1024} sc1")
                if tb == 1: slots[lo+1].append(f"ds_read_b128 v[{TK}:{TK+3}], v44 offset:512")
        emit(a, ms, slots)
    VF, VQ, VS = 144, 112, 176
    D = 3; R = 4; nf, ns = 28, 8; T = nf + ns; NU = 16
    V_BR, V_A2, V_AO, V_XO, V_P2, V_P3 = 36, 40, 41, 42, 24, 25
    PL, PK, XF, SE, SX0, G = 64, 80, 208, 12, 20, 48
    TP = nf + o['pl']; TC = TP + 2
    def af(slot, i): return ar((80 + slot*16 if i < 4 else 128 + slot*16 if slot else 0) + (i & 3)*4, 4)
    def bf(p, u, cb): return (192 if p else 16) + (u*4+cb)*4
    def facc(ch, cb, tb): return (VF, VQ, VS)[ch] + (cb*2+tb)*4
    def ph(t): return "f" if t < nf else ("s" if t < T else None)
    def al(t):
        slot = t % R
        if 24 <= t < nf and not o.get("fodd"):
            L = [f"buffer_load_dwordx2 {ar(80 + slot*16 + (ks*2+tb)*4 + 2*h, 2)}, v{V_AO}, {S(SW)}, s12 offen offset:{ks*2048 + h*1024 + tb*512} sc1 ;@A{t}" for ks in range(2) for h in range(2) for tb in range(2)]
            return L, f"s_add_u32 s12, s12, {4096 + ((56 - 2*o['mv'])*2048 if t == 27 else 0)}"
        n, so = (4, 12) if ph(t) == "f" else (8, 13)
        L = [f"buffer_load_dwordx4 {af(slot, i)}, v{1 if i < 4 else V_A2}, {S(SW)}, s{so} offen offset:{(i&3)*1024} sc1 ;@A{t}" for i in range(n)]
        return L, f"s_add_u32 s{so}, s{so}, {n*1024}"
    def rl(t):
        slot, p = (t - nf if nf <= t < nf + o["nw"] else t % R), t & 1
        od = [(ks*2+ch, cb) for ch in range(2) for cb in range(4) for ks in range(2)] if ph(t) == "f" else [(u, cb) for cb in range(4) for u in range(4)]
        return [f"ds_read_b64_tr_b16 {ar(bf(p, u, cb) + rd*2, 2)}, v{V_BR + cb} offset:{slot*16384 + u*4096 + rd*2048}" for u, cb in od for rd in range(2)]
    def ml(t):
        slot, p = t % R, t & 1; L = []
        if ph(t) == "f":
            for ch in ((1, 0) if t == nf - 1 and o["x0"] < 8 else (0, 1)):
                for cb in range(4):
                    for m, tb in enumerate((0, 1) if cb % 2 == 0 or not o["snk"] & 2 else (1, 0)):
                        for n, ks in enumerate((0, 1) if m == 0 else (1, 0)):
                            c = vr(facc(ch, cb, tb), 4)
                            L.append(f"v_mfma_f32_16x16x32_bf16 {c}, {ar(bf(p, ks*2+ch, cb), 4)}, {af(slot, ks*2+tb)}, {0 if t == 0 and n == 0 else c}")
        else:
            for cb in range(4):
                for m, tb in enumerate((0, 1) if cb % 2 == 0 or not o["snk"] & 2 else (1, 0)):
                    for n, ks in enumerate(range(4) if m == 0 else (3, 2, 1, 0)):
                        c = vr(facc(2, cb, tb), 4)
                        L.append(f"v_mfma_f32_16x16x32_bf16 {c}, {ar(bf(p, ks, cb), 4)}, {af(slot, ks*2+tb)}, {0 if t == nf and n == 0 else c}")
        return L
    def mkbs():
        b = {u - D - 1: u for u in range(4, nf)}
        b.update({nf + d: nf + 4 + i for i, d in enumerate([[-4, -2, 0, 2], [-4, -3, -2, -1], [0, 1, 2, 3], [-4, -1, 1, 3]][o["bs"]])})
        return b
    assert o["nw"] == 4
    BS = mkbs()
    def build(t, tags=(), first=(), xm=0):
        ms = ml(t); n = 32 + xm
        slots = {i: [] for i in range(-1, n)}
        slots[-1].append(f"s_waitcnt @{','.join([f'A{t}', f'B{t+1}'] + list(tags))} lgkmcnt(0)")
        if ph(t+1): slots[0].append("s_barrier")
        b0 = len(first)
        for i, x in enumerate(first): slots[1+i].extend(x if isinstance(x, list) else [x])
        u = BS.get(t)
        bo = []; ao = []
        if u is not None:
            slots[b0].append(f"s_add_u32 s15, s14, {n0(u)*65536}" if ph(u) == "f" else f"s_add_u32 s15, s17, {(u-nf)*128*2048}")
            bo = [(m, d + f" ;@B{u}") for m, d in bdma(u % R, ph(u))]
            if o.get("hb") and u < nf: bo = bo[:2]
        if ph(t+D):
            L, ad = al(t+D); ao = [(None, x) for x in L]; slots[n-1].append(ad)
        vo = o["vo"]
        if vo == 0:
            st_ = 3 if b0 < 2 else 2
            pos = [b0+2+st_*c for c in range(len(bo))] + [14 + (i*(n - 15))//max(len(ao), 1) for i in range(len(ao))]
            ops = bo + ao
        else:
            if vo == 1: ops = bo + ao
            elif vo == 2: ops = ao + bo
            else:
                k = max(len(ao)//4, 1); ops = []
                for i in range(4): ops += bo[i:i+1] + ao[k*i:k*i+k]
            pos = [b0 + 2 + (i*(n - 3 - b0))//max(len(ops), 1) for i in range(len(ops))]
        for i, ((m, d), p) in enumerate(zip(ops, pos)):
            if m: slots[p-1].append(m)
            slots[p].append(d + (f",F{t}" if i == 0 else ""))
        if ph(t+1):
            hi = n - o["rh"]
            if o["rv"]:
                free = [q for q in range(0, hi + 1) if not any(cls(y) > 0 for y in slots[q])]
                for i, x in enumerate(rl(t+1)):
                    if o.get("hk") and 2 <= t < nf - 1 and (i >> 1) % 2 == (t >> 1) % 2: continue
                    slots[free[(i*len(free))//32]].append(x)
            else: spread(slots, rl(t+1), 0, hi)
        if o["nw"] and t in (nf - 2, nf + o["nw"] - 2):
            slots[n-1].extend([f"v_add_u32 v{V_BR+cb}, {RING2 if t == nf - 2 else hex(-RING2 & 0xffffffff)}, v{V_BR+cb}" for cb in range(4)])
        return ms, slots
    def check(slots, name, cmps, reload):
        for i, x in enumerate(cmps): slots[i].append(x)
        k = len(cmps) + 1
        slots[k].extend([f"s_cbranch_vccnz {name}_s", f"{name}_d:"])
        spin_ool(name, "\n".join(cmps), "\n".join(reload))
        return k
    def maxtree(b, n):
        return [f"v_max3_u32 v4, v{b}, v{b+1}, v{b+2}", f"v_max3_u32 v5, v{b+3}, v{b+4}, v{b+5}"] + [f"v_max3_u32 v{4+(i&1)}, v{4+(i&1)}, v{b+6+2*i}, v{b+7+2*i}" for i in range((n-6)//2)] + ["v_max_u32 v4, v4, v5", "v_cmp_eq_u32 vcc, -1, v4"]
    def FLG(sreg, off=0): return ["s_mov_b64 exec, 1", f"buffer_store_dword v3, off, {S(SW)}, s{sreg} offset:{off} sc1", "s_mov_b64 exec, -1"]
    def POLL(sreg, v, off=0, d=47, tag="poll"): return f"buffer_load_dword v{d}, v{v}, {S(SW)}, s{sreg} offen offset:{off} sc1 ;@{tag}"
    CMP1 = ["v_cmp_ne_u32 vcc, 1, v47"]
    paths = [[], []]

    for ty in range(2):
        vm = VM(a)
        if ty == 0:
            a("L_tA:")
            a("s_mul_i32 s7, s1, 320\ns_add_u32 s6, s6, s7\nv_add_u32 v6, s6, v5")
            a(f"v_mad_u32_u24 v{V_WV}, v3, s57, v6\ns_movk_i32 s57, 6144\ns_lshl_b32 s6, s0, 7\nv_add_u32 v{V_WV+1}, {16*7168}, v{V_WV}\nv_add_u32 v6, s6, v5")
            a(f"v_mad_u32_u24 v{V_WV+2}, v3, s57, v6\nv_add_u32 v{V_WV+3}, {16*6144}, v{V_WV+2}\nv_add_u32 v{V_WV+4}, 4096, v{V_WV+2}\nv_add_u32 v{V_WV+5}, 4096, v{V_WV+3}")
        else:
            a("L_tB:")
            a("s_lshr_b32 s7, 128, s1\ns_add_u32 s7, s6, s7\nv_add_u32 v6, s7, v5")
            a(f"v_mad_u32_u24 v{V_WV}, v3, s57, v6\ns_xor_b32 s7, s1, 1\ns_mul_i32 s7, s7, 384\ns_add_u32 s7, s6, s7\nv_add_u32 v{V_WV+1}, {16*7168}, v{V_WV}")
            a("v_bfe_u32 v3, v2, 2, 2\nv_lshl_add_u32 v3, v4, 3, v3\nv_add_u32 v3, s61, v3\nv_and_b32 v5, 3, v2\nv_and_b32 v6, 1, v4\nv_lshlrev_b32 v6, 1, v6\nv_xor_b32 v5, v5, v6\nv_lshl_add_u32 v5, v5, 4, s7")
            a(f"v_mad_u32_u24 v{V_WV+2}, v3, s57, v5")
        stamp("addr", True)
        for m, d in dma_list(ty, 0)[:o["nd0"]]: a(m); vm(d)
        if o["spf"]: sload(o["spf"], 32)
        fin(SW, WS_SIZE); fin(SD, 3584*1024*2); fin(SO, 1024*1024*2); fin(SOUT, 2048*1024*2)
        a(f"s_lshl2_add_u32 s6, s2, s3\ns_lshl_b32 s6, s6, 13\ns_add_u32 s6, s6, {WS_I}\ns_add_u32 s{SI}, s{SW}, s6\ns_addc_u32 s{SI+1}, s{SW+1}, 0")
        fin(SI, 2048 if ty else 4096)
        a(f"s_mul_i32 s6, s2, 28672\ns_mul_i32 s7, s3, 9600\ns_add_u32 s6, s6, s7\ns_sub_u32 s7, 28672, s7\ns_min_u32 s7, s7, 9600\ns_lshl_b32 s0, s2, 13")
        a(f"s_cmp_eq_u32 s3, 3\ns_cselect_b32 s6, s0, s6\ns_cselect_b32 s{SP2+2}, 8192, s7\ns_cselect_b32 s0, s{SO}, s{SD}\ns_cselect_b32 s1, s{SO+1}, s{SD+1}")
        a(f"s_add_u32 s{SP2}, s0, s6\ns_addc_u32 s{SP2+1}, s1, 0\ns_mov_b32 s{SP2+3}, 0x20000")
        a("v_and_b32 v3, 15, v2\nv_bfe_u32 v5, v3, 1, 3\ns_lshl_b32 s6, s53, 7\nv_add_u32 v7, s6, v3\nv_lshlrev_b32 v7, 7, v7")
        for ks in range(2):
            a(f"v_add_u32 v6, {ks*4}, v4\nv_xor_b32 v6, v6, v5\nv_lshl_add_u32 v{V_XR+ks}, v6, 4, v7\nv_add_u32 v{V_XR+2+ks}, {STAGE}, v{V_XR+ks}")
        a(f"s_mul_i32 s6, s3, 320\nv_lshl_add_u32 v5, v3, 6, s6\nv_lshl_add_u32 v5, v4, 4, v5\nv_cmp_gt_u32 vcc, 5, v3\nv_mov_b32 v6, {BIG}\nv_lshlrev_b32 v{V_PF2}, 7, v2\nv_cndmask_b32 v{V_CSO}, v6, v5, vcc")
        a(f"v_cmp_gt_u32 vcc, 13, v2\nv_and_b32 v3, 3, v2\nv_lshlrev_b32 v3, 3, v3\nv_cndmask_b32 v{V_PF2}, v6, v{V_PF2}, vcc")
        a(f"v_lshrrev_b32 v5, 2, v2\nv_add_u32 v3, {W_OFF}, v3\nv_lshl_add_u32 v6, v5, 7, v3\nv_bfe_u32 v7, v2, 3, 2\ns_lshl_b32 s6, s52, 1\nv_xor_b32 v7, s6, v7")
        a(f"v_lshl_add_u32 v{V_WR}, v7, 5, v6\nv_xor_b32 v7, 1, v7\nv_lshl_add_u32 v{V_WR+2}, v7, 5, v6")
        if ty == 1:
            a(f"v_lshl_add_u32 v6, v5, 6, v3\nv_and_b32 v7, 1, v4\nv_xor_b32 v7, s52, v7\nv_lshl_add_u32 v6, v7, 5, v6\nv_add_u32 v{V_WR+4}, 32768, v6")
        for r in range(V_WR, V_WR + 4 + 2*ty, 2): a(f"v_add_u32 v{r+1}, {STAGE}, v{r}")
        a(f"s_bfe_u32 s68, s2, 0x20003\ns_lshl3_add_u32 s69, s4, s5\ns_mul_i32 s69, s69, 1280\ns_add_u32 s69, s69, {WS_CS}\ns_mov_b32 s57, 0\ns_min_u32 s71, s68, 2\ns_add_u32 s71, s71, 9\ns_lshr_b32 s70, s71, 1\ns_lshl4_add_u32 s70, s3, s70\ns_and_b32 s71, s71, 1\ns_lshl3_add_u32 s70, s71, s70\ns_xor_b32 s71, s70, 8")
        a(f"s_mov_b32 s60, 0\ns_mov_b32 s61, 0\ns_lshl_b32 s0, s3, 12\ns_lshl_b32 s1, s2, 14\ns_add_u32 s1, s1, s0\ns_add_u32 s0, s0, {MB}")
        a("v_and_b32 v3, 15, v2\nv_cmp_eq_u32 vcc, 0, v3\nv_mov_b32 v3, 0x3f803f80\nv_cndmask_b32 v35, 0, v3, vcc")
        a("v_mov_b64 v[4:5], -1\nv_mov_b64 v[6:7], -1")
        a(f"s_mov_b32 s72, 0\nL_cs{ty}:\ns_cmp_eq_u32 s53, 0\ns_cbranch_scc0 L_cs{ty}_1")
        for wr in range(2):
            if wr: a(f"L_cs{ty}_1:")
            for n in range(5):
                X, Y = (V_SEL, V_T) if n % 2 == 0 else (V_T, V_SEL)
                for ks in range(2):
                    a(f"v_mfma_f32_16x16x32_bf16 {vr(V_CSA, 4)}, {ar(wfb(5*wr+n, ks), 4)}, {vr(X, 4)}, {vr(V_CSA, 4)}")
                    if n < 4 and ks == 0: a.extend([f"v_mov_b32_dpp v{Y+r}, v{X+r} row_shr:1 row_mask:0xf bank_mask:0xf bound_ctrl:0" for r in range(2)] + [f"v_mov_b64 {P(Y+2)}, {P(Y)}"])
                    if n == 4 and ks == 0: a("s_cmp_eq_u32 s72, 3")
            a(f"s_cbranch_scc1 L_cs{ty}_d3\ns_cmp_eq_u32 s72, 2\ns_cbranch_scc1 L_cs{ty}_d2\ns_cmp_eq_u32 s72, 1\ns_cbranch_scc1 L_cs{ty}_d1")
            if wr == 0: a(f"s_branch L_cs{ty}_d0")
        a(f"L_cs{ty}_d0:")
        stamp("zero", True)
        for m, d in dma_list(ty, 0)[o["nd0"]:]: a(m); t_st0 = vm(d)
        a(f"v_mov_b64 {P(V_CSA)}, 0\nv_mov_b64 {P(V_CSA+2)}, 0")
        if o["spf"]: a("s_waitcnt lgkmcnt(0)")
        elif o["npf0"] < 2:
            a("s_barrier")
            if o["npf0"] == 0: a("s_add_u32 s58, s58, s59")
            vm(PFI)
        a.extend(adv)
        stamp("dma", True)
        vm.wait(t_st0)
        a("s_barrier")
        stamp("loop", True)
        if o.get("cnt"): a("s_mov_b32 s101, 0")
        xa = [xread(0, tb, ks) for tb in range(4) for ks in range(2)]
        a.extend(xa[:2] + wread(ty, 0, 0) + xa[2:] + wread(ty, 0, 1))
        def sched(b):
            dp = [(o["dsb"] + o["evb"]*i) if b else dpos[i] for i in range(18)]
            return [p + 1 if p == 80 else p - 1 if p == 79 else p for p in dp]
        def d1(stage, b=0): return [([], m, d, p-80) for (m, d), p in zip(dma_list(ty, stage ^ 1), sched(b)) if p >= 80]
        def d2(stage, b=0): return [([], m, d, p) for (m, d), p in zip(dma_list(ty, stage), sched(b)) if p < 80]
        def loop(kind):
            a(f".p2align 4\nL_{kind}{ty}:")
            b = kind == "lb"
            for stage in range(2):
                if kind == "la" and stage == 1: a(f"L_lam{ty}:")
                phase1(ty, stage, kind, d1(stage, b))
                phase2(ty, stage, kind, d2(stage, b), f"vmcnt({1 + o['pfb'] if b else 2})")
            if o["stamps"] and any(x[0] == "i" for x in sset):
                for it in (1, 2, 5, 6):
                    if f"i{it}" in sset and (it < 4) == (kind == "la"):
                        a(f"s_cmp_eq_u32 s57, {it}\ns_cbranch_scc0 L_st{ty}{it}"); stamp(f"i{it}", True); a(f"L_st{ty}{it}:")
                a(f"s_cmp_lt_u32 s57, {4 if kind == 'la' else 7}")
            a(f"s_cbranch_scc1 L_{kind}{ty}")
        phase1(ty, 0, "s0", [([], m, d, o["d0s"] + o["d0e"]*i) for i, (m, d) in enumerate(dma_list(ty, 1))])
        stamp("s0m", True)
        phase2(ty, 0, "s0", d2(0), "vmcnt(2)")
        stamp("s0e", True)
        a(f"s_branch L_lam{ty}")
        loop("la")
        stamp("i4", True)
        a("s_sub_u32 s0, s0, 4096")
        phase1(ty, 0, "s8", d1(0))
        stamp("s8m", True)
        a(mfmas(ty, 1)[0] + f"\ns_waitcnt vmcnt({4 + o['pfb']})\ns_barrier\ns_branch L_lbm{ty}")
        loop("lb")
        stamp("s14", True)
        phase1(ty, 0, "s14", d1(0, 1))
        tail = []
        for t in range(4):
            for c, (m, d) in enumerate(bdma(t, "f")):
                tail.append(([f"s_add_u32 s15, s14, {n0(t)*65536}"] if c == 0 and t else [], m, d))
        tp = [o["ts"] + o["te"]*i for i in range(16)]
        for t in range(o["nw"]):
            for c, (m, d) in enumerate(bdma(t, "s", RING2)):
                tail.append(([f"s_add_u32 s15, s17, {t*128*2048}"] if c == 0 else [], m, d))
                tp.append(max(tp[-1], 168) + o["tw"])
        tp = [p if p % 80 >= 4 or p < 80 else p - p % 80 + 4 for p in tp]
        def part(k): return [(pre, m, d, p - 80*k) for (pre, m, d), p in zip(tail, tp) if p//80 == k]
        rest = [x for x, p in zip(tail, tp) if p >= 240]
        stamp("s14m", True)
        phase2(ty, 0, "s14", part(0), f"vmcnt({7 + min(o['cpf'], 2)})")
        stamp("s15", True)
        o["n14"] = len(part(0)) + 3 + min(o["cpf"], 2)
        phase1(ty, 1, "s15", part(1))
        phase2(ty, 1, "s15", part(2), f"vmcnt({len(part(0)) + len(part(1)) - 4}) lgkmcnt(0)")
        stamp("e0", True)
        p0 = len(a.lines)
        def rd_cs(cb0, n):
            for i in range(n): a(f"ds_read_b128 v[{CS+4*i}:{CS+4*i+3}], v45 offset:{(cb0+i)*64}")
        def rd_tk(tb): a(f"ds_read_b128 v[{TK+4*(tb&1)}:{TK+4*(tb&1)+3}], v44 offset:{tb*256}")
        def getv(tb, cb, tmp):
            p, b = accb(tb, cb)
            if p == "v": return b
            for i in range(4): a(f"v_accvgpr_read_b32 v{tmp+i}, a{b+i}")
            return tmp
        def pack(d, ps):
            for i, p in enumerate(ps): a(f"v_cvt_pk_bf16_f32 v{d+i}, v{p}, v{p+1}")
        def fixm(b, cs, tk):
            for h in (0, 2): a(f"v_pk_fma_f32 {P(b+h)}, {P(cs+h)}, {P(tk)}, {P(b+h)} op_sel_hi:[1,0,1]")
        def geglu(items, d):
            el = [(g+h, u+h, tk, Z + 4*n + h) for n, (g, u, cg, cu, tk) in enumerate(items) for h in (0, 2)]
            for g, u, cg, cu, tk in items: fixm(g, cg, tk)
            for g, u, tk, z in el: a(f"v_pk_mul_f32 {P(z)}, {P(g)}, {P(g)}")
            for g, u, tk, z in el: a(f"v_pk_fma_f32 {P(z)}, {P(z)}, {P(tk+2)}, {P(tk)} op_sel:[0,0,1] op_sel_hi:[1,0,1]")
            for g, u, tk, z in el: a(f"v_pk_mul_f32 {P(z)}, {P(z)}, {P(g)}")
            for i in range(8): a(f"v_exp_f32 v{Z+i}, v{Z+i}")
            for g, u, cg, cu, tk in items: fixm(u, cu, tk)
            for g, u, tk, z in el: a(f"v_pk_fma_f32 {P(z)}, {P(z)}, {P(tk+2)}, {P(tk+2)} op_sel:[0,1,1] op_sel_hi:[1,1,1]")
            for i in range(8): a(f"v_rcp_f32 v{Z+i}, v{Z+i}")
            for g, u, tk, z in el: a(f"v_pk_mul_f32 {P(u)}, {P(u)}, {P(g)}")
            for g, u, tk, z in el: a(f"v_pk_mul_f32 {P(u)}, {P(u)}, {P(z)}")
            pack(d, [u for g, u, tk, z in el])
        def frag(tb, cb0, sb, nxt, bcb=None):
            r = [getv(tb, cb0+i, accb(tb, i)[1]) for i in range(4)]
            if bcb is not None: a(f"v_xor_b32 v6, {32*bcb}, v7")
            a("s_waitcnt lgkmcnt(0)")
            if nxt is not None: rd_tk(nxt)
            if bcb is not None: a.extend([x.replace(f"v{V_BR+bcb} ", "v6 ") for x in rl(0) if f"v{V_BR+bcb} " in x])
            tk = TK + 4*(tb & 1)
            geglu([(r[0], r[1], CS, CS+4, tk), (r[2], r[3], CS+8, CS+12, tk)], r[0])
            a(f"buffer_store_dwordx4 v[{r[0]}:{r[0]+3}], v1, {S(SW)}, s{sb+(tb>>1)} offen offset:{(tb&1)*1024} sc1 ;@h{sb}")
        ALD = [x for t in range(o["na"]) for x in al(t)[0] + [al(t)[1]]]
        def try_load():
            stamp("b2")
            a("s_waitcnt @poll"); a.extend(CMP1)
            a(f"s_mov_b32 s70, 0\ns_nop 2\ns_cbranch_vccz L_tl{ty}\n{POLL(59, 46)}\nL_tl{ty}_d:")
            ool(f"L_tl{ty}:\ns_mov_b32 s70, 1"); ool.extend(ALD); ool(f"s_branch L_tl{ty}_d")
        def must_load():
            stamp("chk")
            if o["cB" if ty else "cA"] < 50: a(f"s_cmp_eq_u32 s70, 1\ns_cbranch_scc1 L_ml{ty}")
            a("s_waitcnt @poll")
            spin(f"L_b1{ty}", CMP1[0], POLL(59, 46))
            a.extend(ALD)
            a(f"L_ml{ty}:")
            a.extend([x for t in range(o["na"], 3) for x in al(t)[0] + [al(t)[1]]])
            stamp("chkd")
        def set_b1():
            a("s_waitcnt @h40"); stamp("w1d"); a.extend(FLG(54))
        def phi_tail(ps, ts, scale):
            for i in range(8): a(f"v_exp_f32_e64 v{Z+i}, v{Z+i} clamp")
            for p in ps: a(f"v_max_f32 v{p}, 0, v{p}\nv_max_f32 v{p+1}, 0, v{p+1}")
            for p in ps:
                if scale is None: a(f"v_pk_add_f32 {P(p)}, {P(p)}, s[68:69] op_sel_hi:[1,0]")
                else: a(f"v_pk_fma_f32 {P(p)}, {P(p)}, {P(scale)}, s[68:69] op_sel_hi:[1,0,0]")
            for p, q in zip(ps, ts): a(f"v_pk_add_f32 {P(p)}, {P(p)}, {P(q)}")
            pack(ps[0], ps)
        more = [pre + [m, "s_nop 0", d] for pre, m, d in rest] + ([[x] for x in XLD] if o["xl"] else [])
        k2x = more[o["nm"]:]; more = more[:o["nm"]]
        aft = more[o["nb"]:]; more = more[:o["nb"]]
        def after(n):
            for x in aft[:n]: a.extend(x)
            del aft[:n]
        def bread(cb):
            a(f"v_xor_b32 v6, {32*cb}, v7")
            a.extend([x.replace(f"v{V_BR+cb} ", "v6 ") for x in rl(0) if f"v{V_BR+cb} " in x])
        for tb in range(o["early"], 8):
            for x in more[:2]: a.extend(x)
            more = more[2:]
            frag(tb, 0, 40, tb+1 if tb < 7 else (0 if ty else None), tb - 3 if 3 <= tb < 7 and not o["bl"] else None)
        assert not more
        if k2x: a("s_mov_b32 s16, s15")
        stamp("b1")
        if ty == 1:
            rd_cs(6, 4)
            for tb in range(8):
                frag(tb, 6, 44, tb+1 if tb < 7 else 0, tb if tb < 4 and o["bl"] else None)
                if tb == o["fB"]: set_b1()
                if tb >= o["fB"]: after(4)
                if tb == o["pB"]: a(POLL(59, 46))
                if tb == o["cB"]: try_load()
                if tb == o["mB"]: must_load()
            rd_cs(4, 2)
        else:
            a(f"v_and_b32 v4, 15, v2\nv_lshl_add_u32 v4, v4, 2, s64\ns_lshl_b32 s0, s53, 9\ns_add_u32 s0, s0, {MB_NM}\ns_sub_u32 s0, s0, s64\nv_add_u32 v5, s0, v45")
            for i in range(4): a(f"ds_read_b32 v{12+i}, v4 offset:{(6+i)*64}")
            KV, ONES = 112, 136
            for i in range(4): a(f"v_mov_b32 v{ONES+i}, 0x3f803f80")
            for tp in range(4):
                for h in range(2):
                    a(f"ds_read_b128 v[{16+8*h}:{19+8*h}], v5 offset:{(2*tp+h)*64}\nds_read_b128 v[{20+8*h}:{23+8*h}], v5 offset:{(2*tp+h)*64 + 1024}")
                r = [[getv(2*tp+h, 6+i, 48 + 32*(tp & 1) + 8*i + 4*h) for h in range(2)] for i in range(4)]
                a("s_waitcnt lgkmcnt(0)")
                if o["bl"]: bread(tp)
                for i in range(4):
                    sel = i & 1
                    for h in range(2):
                        for q in (0, 2):
                            a(f"v_pk_fma_f32 {P(r[i][h]+q)}, {P(16+8*h+q)}, {P(12+(i&2))}, {P(r[i][h]+q)} op_sel:[0,{sel},0] op_sel_hi:[1,{sel},1]")
                    for h in range(2):
                        for q in (0, 2): a(f"v_pk_mul_f32 {P(r[i][h]+q)}, {P(r[i][h]+q)}, {P(20+8*h+q)}")
                    ps = [r[i][0], r[i][0]+2, r[i][1], r[i][1]+2]; ts = [Z, Z+2, Z+4, Z+6]
                    if i < 2:
                        for p, q in zip(ps, ts): a(f"v_pk_mul_f32 {P(q)}, {P(p)}, s[56:57] op_sel_hi:[1,0]")
                        phi_tail(ps, ts, None)
                    else: pack(ps[0], ps)
                    if 4*tp + i == o["fA"]: set_b1()
                    if 4*tp + i >= o["fA"]: after(4)
                    if 4*tp + i == o["pA"]: a(POLL(59, 46))
                    if 4*tp + i == o["cA"]: try_load()
                    if 4*tp + i == o["mA"]: must_load()
                for db in range(2):
                    for eb in range(3):
                        d = vr(KV + (db*3+eb)*4, 4)
                        B = vr(r[2+eb][0], 4) if eb < 2 else vr(ONES, 4)
                        a(f"v_mfma_f32_16x16x32_bf16 {d}, {vr(r[db][0], 4)}, {B}, {d if tp else 0}")
            rd_cs(4, 2); rd_tk(0)
            a(f"s_mul_i32 s0, s3, 3072\ns_add_u32 s0, s0, {KVX}\nv_add_u32 v4, s0, v1\ns_xor_b32 s1, s3, 1\ns_mul_i32 s1, s1, 3072\ns_add_u32 s1, s1, {KVX}\nv_add_u32 v5, s1, v1")
            if o["mA"] > 15: must_load()
            a("s_cmp_eq_u32 s53, 0\ns_nop 3\ns_cbranch_scc1 L_kv0")
            for eb in range(3): a(f"ds_write_b128 v5, v[{KV+eb*4}:{KV+eb*4+3}] offset:{eb*1024}")
            for i in range(0, 12, 2): a(f"v_mov_b64 {P(48+i)}, {P(KV+12+i)}")
            a("s_branch L_kv1\nL_kv0:")
            for eb in range(3): a(f"ds_write_b128 v5, v[{KV+12+eb*4}:{KV+12+eb*4+3}] offset:{eb*1024}")
            for i in range(0, 12, 2): a(f"v_mov_b64 {P(48+i)}, {P(KV+i)}")
            a("L_kv1:")
        UN = o["unB"] if ty else o["unA"]
        if ty == 1:
            for tp in range(UN//2):
                rd_tk(2*tp+1)
                a("s_waitcnt lgkmcnt(0)")
                g0, g1, u0, u1 = accb(2*tp, 4)[1], accb(2*tp+1, 4)[1], accb(2*tp, 5)[1], accb(2*tp+1, 5)[1]
                geglu([(g0, u0, CS, CS+4, TK), (g1, u1, CS, CS+4, TK+4)], g0)
                if tp < 3: rd_tk(2*tp+2)
                a(f"v_permlane32_swap_b32 v{g0}, v{g0+2}\nv_permlane32_swap_b32 v{g0+1}, v{g0+3}")
                a(f"buffer_store_dwordx4 v[{g0}:{g0+3}], v1, {S(SW)}, s{48+tp} offen sc1 ;@late")
        else:
            for tb in range(UN):
                a("s_waitcnt lgkmcnt(0)")
                if tb < 7: rd_tk(tb+1)
                tk = TK + 4*(tb & 1)
                b0, b1 = accb(tb, 4)[1], accb(tb, 5)[1]
                a(f"v_mul_f32 v{tk+2}, {f2u(1.0/GA1)}, v{tk+1}\nv_mul_f32 v{tk+3}, {f2u(LOG2E/GA1)}, v{tk+1}")
                fixm(b0, CS, tk); fixm(b1, CS+4, tk)
                ps = [b0, b0+2, b1, b1+2]; ts = [Z, Z+2, Z+4, Z+6]
                for p, q in zip(ps, ts): a(f"v_pk_mul_f32 {P(q)}, {P(p)}, {P(tk+2)} op_sel:[0,1] op_sel_hi:[1,1]")
                phi_tail(ps, ts, tk+2)
        for cb in range(4): a(f"v_xor_b32 v{V_BR+cb}, {32*cb}, v7")
        stamp("k2")
        TJ, TG, TO = o["tj"], o["tg"], o["tg"] + 2
        KG = 100
        GLD = [f"buffer_load_dwordx4 {vr(KG+4*e, 4)}, v1, {S(SW)}, s{r} offen sc1 ;@gld" for e, r in enumerate((64, 66, 67))]
        def ob(tb, eb):
            i = tb*3 + eb
            return G + 4*i if i < 12 else 208 + 4*(i - 12)
        NS_ = o["nsA"] if ty == 0 else o["nsB"]
        TB3 = NS_ + 2
        st_ = []
        for t in range(NU):
            tags = []; first = []; xm = 0
            otb = {TO: range(0, 2), TO+1: range(2, 5), TO+2: range(5, 8)}.get(t, []) if ty == 0 else []
            if ty == 0:
                if t == TG: first = GLD
                if t == TO: tags = ["gld"]
                xm = 3*len(otb)
            else:
                if t == 2: tags = ["h44"]; first = [FLG(54, 128)]
                if t == TJ+3: tags = [f"F{TJ+1}"]
                if t == TB3: tags = ["late"]; first = [FLG(54, 256)]
            if t == 12: tags = tags + ["poll"]
            ms, slots = build(t, tags, first, xm)
            n = 32 + xm; lo = 0
            if t == 12: lo = check(slots, f"L_b2{ty}", CMP1, [POLL(60, V_P2, 128)])
            if t == 9: slots[n-1].append(POLL(60, V_P2, 128))
            if t >= 1 and k2x:
                x = k2x.pop(0)
                if len(x) > 1:
                    for y in x[:-2]: slots[13].append(y.replace("s15", "s16"))
                    slots[16].append(x[-1].replace("s15", "s16"))
                else:
                    if ", v5," in x[0] and "offset:0" in x[0]: slots[11].append("v_add_u32 v0, 32768, v0")
                    slots[16].append(x[0].replace(", v4,", ", v0,").replace(", v5,", ", v0,"))
            if t == o["cpt"]:
                fill(slots, ["s_lshr_b32 s0, s2, 3", "s_lshl2_add_u32 s0, s0, s3", "s_lshl_b32 s0, s0, 7", "s_add_u32 s0, s0, L_tail0-L_pc", "s_min_u32 s0, s0, L_cend-L_pc-4"], 12, 24)
                slots[26].append("v_mov_b32 v0, s0"); slots[n-3].append("global_load_dword v0, v0, s[72:73]")
            if t == 14:
                vv = [f"v_add_u32 v{V_A2}, 4096, v1", "v_and_b32 v4, 15, v2", "v_lshlrev_b32 v4, 11, v4", "v_bfe_u32 v6, v2, 4, 1", "v_lshl_add_u32 v4, v6, 5, v4",
                      "v_lshrrev_b32 v6, 5, v2", f"v_lshl_add_u32 v{V_XO}, v6, 4, v4", f"v_add_u32 v{V_XO+1}, 32768, v{V_XO}", "v_and_b32 v4, 0x1f0, v1", f"v_lshl_add_u32 v{V_AO}, v6, 3, v4"]
                if o.get("fko"): vv += ["v_lshrrev_b32 v4, 3, v2", "v_lshlrev_b32 v4, 12, v4", "v_and_b32 v6, 7, v2", f"v_lshl_add_u32 v{V_XO}, v6, 4, v4", f"v_add_u32 v{V_XO+1}, 32768, v{V_XO}"]
                fillv([slots[i] for i in range(n)], vv)
                slots[20].append(f"s_add_u32 s66, s54, {256 + 128*ty}")
            if ty == 0 and t == TG - 1:
                fill(slots, ["s_and_b32 s64, s2, 0xc6", "s_or_b32 s64, s64, s52", "s_lshl_b32 s64, s64, 15", f"s_add_u32 s64, s64, {WS_I + 0x28*32768 + 1024}", f"s_add_u32 s66, s64, {16*32768}", "s_add_u32 s67, s64, 8192"], 13, 30)
            if otb:
                if t == TO: lo = check(slots, "L_kvf", maxtree(KG, 12), GLD)
                om = [f"v_mfma_f32_16x16x32_bf16 {vr(ob(tb, eb), 4)}, {vr(KG+4*eb, 4)}, v[{VS+4*tb}:{VS+3+4*tb}], 0" for tb in otb for eb in (2, 0, 1)]
                ms = ms[:lo+1] + om + ms[lo+1:]
                lo += 7
                per = (n - 1 - lo)//len(otb)
                for k, tb in enumerate(otb):
                    dn = ob(tb, 2); e8 = [ob(tb, 0)+i for i in range(4)] + [ob(tb, 1)+i for i in range(4)]
                    w = [f"v_add_f32 v{dn}, s68, v{dn}", f"v_rcp_f32 v{dn}, v{dn}"] + [f"v_mul_f32 v{e}, v{e}, v{dn}" for e in e8] + [f"v_cvt_pk_bf16_f32 v{e8[0]+i}, v{e8[2*i]}, v{e8[2*i+1]}" for i in range(4)]
                    fillv([slots[i] for i in range(lo + k*per, lo + (k+1)*per)], w)
                    slots[lo + (k+1)*per].append(f"buffer_store_dwordx4 {vr(e8[0], 4)}, v1, {S(SW)}, s{44+(tb>>1)} offen offset:{(tb&1)*1024} sc1 ;@late")
            if ty == 1 and t == 0:
                fill(slots, ["s_bfe_u32 s6, s2, 0x10004", "s_add_u32 s70, s6, s3", "s_min_u32 s7, s3, 1", "s_mul_i32 s70, s70, s7", "s_lshl1_add_u32 s6, s7, s6", "s_andn2_b32 s7, 8, s2", "s_add_u32 s70, s70, s7",
                             "s_and_b32 s64, s2, 0xc6", "s_and_b32 s7, s2, 1", "s_lshl1_add_u32 s64, s64, s7", "s_lshl4_add_u32 s64, s64, s6", "s_lshl_b32 s64, s64, 10", f"s_add_u32 s64, s64, {WS_I + 1024}"], 12, 30)
            if ty == 1 and t == TJ+3:
                slots[-1].extend(["s_cmp_lt_u32 s70, 2", "s_cbranch_scc1 L_red", "L_red_d:"])
            st_.append((ms, slots))
        gaps = [st_[t][1][i] for t in range(NS_) for i in range(32)]
        pre = [f"v_bfe_u32 v{V_P3}, v2, 1, 2", f"v_and_b32 v{V_P2}, 1, v2", f"v_lshl_or_b32 v{V_P3}, v{V_P3}, 7, v{V_P2}", f"v_lshlrev_b32 v{V_P3}, 14, v{V_P3}", f"v_and_b32 v{V_P2}, {0xffbfffff}, v{V_P3}"]
        g0 = 0
        if ty == 0:
            for eb in range(3): gaps[28+eb].append(f"ds_read_b128 v[{60+eb*4}:{63+eb*4}], v4 offset:{eb*1024}")
            fillv(gaps[32:40], [f"v_add_f32 v{48+i}, v{48+i}, v{60+i}" for i in range(12)])
            for eb in range(3): gaps[41+3*eb].append(f"buffer_store_dwordx4 v[{48+eb*4}:{51+eb*4}], v1, {S(SW)}, s54 offen offset:{(eb+1)*1024} sc1")
        per = (len(gaps) - g0)//max(8 - UN, 1)
        assert per >= 32
        if UN == 8: fillv(gaps[:32], pre)
        for tb in range(UN, 8):
            tk = TK + 4*(tb & 1); b0, b1 = accb(tb, 4)[1], accb(tb, 5)[1]
            gg = gaps[g0 + (tb-UN)*per:g0 + (tb-UN+1)*per]
            if tb < 7: gg[0].append(f"ds_read_b128 v[{TK+4*((tb+1)&1)}:{TK+4*((tb+1)&1)+3}], v44 offset:{(tb+1)*256}")
            vv = list(pre) if tb == UN else []
            if ty == 0:
                el = [(b0+i, CS+i, Z2+i) for i in range(4)] + [(b1+i, CS+4+i, Z2+4+i) for i in range(4)]
                vv += [f"v_mul_f32 v{tk+2}, {f2u(1.0/GA1)}, v{tk+1}", f"v_mul_f32 v{tk+3}, {f2u(LOG2E/GA1)}, v{tk+1}"]
                vv += [f"v_fmac_f32 v{q}, v{c}, v{tk}" for q, c, z in el] + [f"v_mul_f32 v{z}, v{q}, v{tk+3}" for q, c, z in el]
                for q, c, z in el: vv += [f"v_exp_f32_e64 v{z}, v{z} clamp", f"v_max_f32 v{q}, 0, v{q}", f"v_fma_f32 v{q}, v{q}, v{tk+2}, s68"]
                vv += [f"v_add_f32 v{q}, v{q}, v{z}" for q, c, z in el]
                vv += [f"v_cvt_pk_bf16_f32 v{b0+i}, v{el[2*i][0]}, v{el[2*i+1][0]}" for i in range(4)]
            else:
                el = [(b0+i, b1+i, CS+i, CS+4+i, Z2+i) for i in range(4)]
                d = accb(tb & ~1, 4)[1]
                vv += [f"v_fmac_f32 v{g}, v{cg}, v{tk}" for g, u, cg, cu, z in el] + [f"v_mul_f32 v{z}, v{g}, v{g}" for g, u, cg, cu, z in el]
                vv += [f"v_fma_f32 v{z}, v{z}, v{tk+2}, v{tk+1}" for g, u, cg, cu, z in el] + [f"v_mul_f32 v{z}, v{z}, v{g}" for g, u, cg, cu, z in el]
                for g, u, cg, cu, z in el: vv += [f"v_exp_f32 v{z}, v{z}", f"v_fmac_f32 v{u}, v{cu}, v{tk}"]
                vv += [f"v_fma_f32 v{z}, v{z}, v{tk+3}, v{tk+3}" for g, u, cg, cu, z in el]
                for g, u, cg, cu, z in el: vv += [f"v_rcp_f32 v{z}, v{z}", f"v_mul_f32 v{u}, v{u}, v{g}"]
                vv += [f"v_mul_f32 v{u}, v{u}, v{z}" for g, u, cg, cu, z in el]
                vv += [f"v_cvt_pk_bf16_f32 v{d+2*(tb&1)+i}, v{b1+2*i}, v{b1+2*i+1}" for i in range(2)]
                if tb & 1:
                    gg[-2].extend([f"v_permlane32_swap_b32 v{d}, v{d+2}", f"v_permlane32_swap_b32 v{d+1}, v{d+3}"])
                    gg[-1].append(f"buffer_store_dwordx4 v[{d}:{d+3}], v1, {S(SW)}, s{48+(tb>>1)} offen sc1 ;@late")
                    gg = gg[:-3]
            if o.get("ab", 0) & 32: vv = vv[:5]
            fillv(gg, vv)
        for t, (ms, slots) in enumerate(st_):
            stamp(f"t{t}")
            emit(a, ms, slots)
            if ty == 1 and t == TJ: a("s_cmp_lt_u32 s70, 2\ns_cbranch_scc1 L_gat\nL_gat_d:")
        a("s_cmp_eq_u32 s20, 0\ns_cbranch_scc1 L_tail0\ns_branch L_tail1" if o["mv"] else "s_branch L_tail0")
        paths[ty] = list(range(p0, len(a.lines)))
        a.lines += near.lines + ool.lines; near.lines = []; ool.lines = []
    KLD = []
    for r in range(8):
        for db in range(2):
            KLD += [f"s_add_u32 s1, s64, {(8*(r&3) + (r>>2))*32768 + db*8192}", f"buffer_load_dwordx4 v[{G+(r*2+db)*4}:{G+(r*2+db)*4+3}], v1, {S(SW)}, s1 offen sc1"]
    main = a; hk = Asm(); a = hk
    a("L_gat:"); a.extend(KLD); a("s_branch L_gat_d\nL_red:")
    spin("L_kvg", "\n".join(maxtree(G, 64)), "\n".join(KLD))
    for stp in (32, 16, 8):
        for i in range(0, stp, 2): a(f"v_pk_add_f32 {P(G+i)}, {P(G+i)}, {P(G+stp+i)}")
    for i in range(4): a(f"v_cvt_pk_bf16_f32 v{G+i}, v{G+2*i}, v{G+2*i+1}")
    a(f"buffer_store_dwordx4 v[{G}:{G+3}], v1, {S(SW)}, s54 offen offset:1024 sc1\ns_branch L_red_d")
    a = main
    heads = [list(p) for p in paths]; paths = []
    for pv in range(2 if o["mv"] else 1):
        nf = 28 + o["mv"]*(1 - 2*pv); T = nf + ns; TP = nf + o['pl']; TC = TP + 2; BS = mkbs()
        a(f"L_tail{pv}:")
        p0 = len(a.lines)
        PLD = [f"buffer_load_dwordx4 v[{PL+4*i}:{PL+4*i+3}], v1, {S(SW)}, s65 offen offset:{i*1024} sc1 ;@pld" for i in range(4)]
        OPOLL = [POLL(69, V_P3, 256, 34, "opoll"), f"buffer_load_dword v35, off, {S(SW)}, s55 sc1 ;@opoll"]
        def tail(t):
            tags = {NU: ["late"], 20: ["poll"], 24: ["poll"], TC: ["pld"]}.get(t, []) + (["opoll"] if t == nf - 4 else [])
            first = {NU: [FLG(66)], TP: PLD}.get(t, [])
            ms, slots = build(t, tags, first, 8 if t in (20, TC) else 0)
            if t == 17: slots[31].append(POLL(60, V_P2, 256))
            if t == 20: check(slots, f"L_b3{pv}", CMP1, [POLL(60, V_P2, 256)])
            if nf > 28:
                if t == 19 and o["mv"] > 2: fill(slots, [f"s_add_u32 s67, s60, {1 << 17}"], 12, 30)
                elif t == 19: fill(slots, [f"s_lshl_b32 s67, {'s53' if o['mv'] > 1 else 1}, 22", "s_add_u32 s67, s67, s59", f"s_add_u32 s67, s67, {(1 << 20) + (1 << 17) + (1 << 16)}"], 12, 30)
                if t == 21: slots[31].append(POLL(67, V_P2, 256))
                if t == 24: check(slots, "L_fx", CMP1, [POLL(67, V_P2, 256)])
            if t == nf - 28 + o["opoll"]: slots[29].append(OPOLL[0]); slots[30].append(OPOLL[1])
            if t == nf - 4: check(slots, f"L_of{pv}", ["v_or_b32 v4, v35, v34", "v_cmp_ne_u32 vcc, 1, v4"], OPOLL)
            for q in range(4):
                g = o["x0"] + o["xd"]*q
                tb, pp = q >> 1, q & 1
                for i in range(4):
                    r = facc(1, 2*pp + (i >> 1), tb) + 2*(i & 1)
                    if (g + i)//32 == t - nf: slots[(g + i) % 32].append(f"v_cvt_pk_bf16_f32 v{PK+4*q+i}, v{r}, v{r+1}")
                if (g + 5)//32 == t - nf: slots[(g + 5) % 32].append(f"buffer_store_dwordx4 v[{PK+4*q}:{PK+4*q+3}], v1, {S(SW)}, s61 offen offset:{q*1024} sc1")
            if t == 18:
                vv = ["v_and_b32 v4, 1, v2", "v_lshlrev_b32 v4, 4, v4", "v_mov_b32 v5, 0x3f80", "v_lshlrev_b32 v4, v4, v5", "v_lshrrev_b32 v5, 4, v2", "v_bfe_u32 v6, v2, 1, 3", "v_lshlrev_b32 v7, 1, v5",
                      "v_sub_u32 v6, v6, v7", "v_sub_u32 v7, v6, v7"]
                for i in range(2): vv += [f"v_cmp_eq_u32 vcc, {i}, v6", f"v_mov_b32 v{SE+i}, 0", f"v_mov_b32 v{SE+4+i}, 0", f"v_cndmask_b32 v{SE+2+i}, 0, v4, vcc"]
                fillv([slots[i] for i in range(1, 32)], vv)
            if t == 19:
                for e in range(2):
                    for i in range(4):
                        k = 4*e + i
                        slots[1+4*k].append(f"v_cmp_eq_u32 vcc, {i - 8*e}, v7"); slots[3+4*k].append(f"v_cndmask_b32 v{PK+k}, 0, v4, vcc")
            if t == 20:
                ms = ms + [f"v_mfma_f32_16x16x32_bf16 {vr(XF + (cb*2+tb)*4, 4)}, {vr(PK + 4*(cb&1), 4)}, {ar(4*(2*tb + (cb>>1)), 4)}, 0" for cb in range(4) for tb in range(2)]
            return ms, slots
        for t in range(NU, TC):
            if t == nf: stamp("s")
            stamp(f"t{t}")
            emit(a, *tail(t))
        last = [list(tail(t)) for t in range(TC, T)]
        m5, s5 = last[0]
        k = check(s5, f"L_xb{pv}", maxtree(PL, 16), PLD)
        s5[1].append(f"s_mov_b32 s6, {f2u(-LOG2E)}")
        blocks = [(2*pp + e, tb) for pp in range(2) for tb in range(2) for e in range(2)]
        addm = [f"v_mfma_f32_16x16x32_bf16 {vr(facc(0, cb, tb), 4)}, {vr(SE + 2 - 2*(cb&1), 4)}, {vr(PL + 4*(2*tb + (cb>>1)), 4)}, {vr(facc(0, cb, tb), 4)}" for cb, tb in blocks]
        last[0][0] = m5[:k+1] + addm + m5[k+1:]
        silu = []
        for g in range(0, 8, 2):
            el = [(cb*2+tb)*4 + i for cb, tb in blocks[g:g+2] for i in range(4)]
            silu += [f"v_mul_f32 v{VQ+e}, s6, v{VF+e}" for e in el] + [f"v_exp_f32 v{VQ+e}, v{VQ+e}" for e in el] + [f"v_add_f32 v{VQ+e}, 1.0, v{VQ+e}" for e in el]
            silu += [f"v_rcp_f32 v{VQ+e}, v{VQ+e}" for e in el] + [f"v_mul_f32 v{VF+e}, v{VF+e}, v{VQ+e}" for e in el]
        def outp(pp, tb, pk):
            d = PK + (tb*2+pp)*4; L = []
            for e in range(2):
                off = ((2*pp+e)*2+tb)*4
                if pk: L += [f"v_pk_fma_f32 {P(VS+off+h)}, {P(VS+off+h)}, {P(VF+off+h)}, {P(XF+off+h)}" for h in (0, 2)]
                else: L += [f"v_fma_f32 v{VS+off+h}, v{VS+off+h}, v{VF+off+h}, v{XF+off+h}" for h in range(4)]
            for e in range(2):
                off = ((2*pp+e)*2+tb)*4
                L += [f"v_cvt_pk_bf16_f32 v{d+2*e+h}, v{VS+off+2*h}, v{VS+off+2*h+1}" for h in range(2)]
            return L, [f"v_permlane16_swap_b32 v{d}, v{d+2}", f"v_permlane16_swap_b32 v{d+1}, v{d+3}"], f"buffer_store_dwordx4 v[{d}:{d+3}], v{V_XO+tb}, {S(SOUT)}, s19 offen offset:{pp*(2048 if o.get('fko') else 64)}{[' sc1', '', ' nt', ' nt sc1', ' sc0 sc1'][o.get('op', 0)]}"
        nin = o["nin"]
        gaps = [sl[i] for ms, sl in last for i in range(len(ms))]
        e7 = len(gaps) - 32 + o["s7e"]
        fillv(gaps[k+9:e7], silu[:nin])
        (l0, w0, t0), (l1, w1, t1) = outp(0, 0, False), outp(0, 1, False)
        if o["s7e"] < 32:
            assert nin >= 80
            fillv(gaps[e7:-1], l0 + l1 + w0 + w1)
            gaps[-1].extend([t0, t1])
        for t, (ms, sl) in zip(range(TC, T), last):
            stamp(f"t{t}"); emit(a, ms, sl)
        stamp("fin")
        for g in range(nin//20, 8, 2):
            el = [(cb*2+tb)*4 + i for cb, tb in blocks[g:g+2] for i in range(4)]; ep = el[::2]
            a.extend([f"v_pk_mul_f32 {P(VQ+e)}, {P(VF+e)}, s[6:7] op_sel_hi:[1,0]" for e in ep] + [f"v_exp_f32 v{VQ+e}, v{VQ+e}" for e in el] + [f"v_pk_add_f32 {P(VQ+e)}, {P(VQ+e)}, 1.0 op_sel_hi:[1,0]" for e in ep])
            a.extend([f"v_rcp_f32 v{VQ+e}, v{VQ+e}" for e in el] + [f"v_pk_mul_f32 {P(VF+e)}, {P(VF+e)}, {P(VQ+e)}" for e in ep])
        for pp in range(0 if o["s7e"] == 32 else 1, 2):
            (l0, w0, t0), (l1, w1, t1) = outp(pp, 0, True), outp(pp, 1, True)
            a.extend(l0 + l1 + w0 + [t0] + w1 + [t1])
        if o.get("cnt"):
            a(f"s_lshl2_add_u32 s0, s2, s3\ns_lshl_b32 s0, s0, 2\ns_add_u32 s0, s0, {STAMP_OFF + 0x10000}\nv_mov_b32 v4, s0\nv_mov_b32 v5, s101\nglobal_store_dword v4, v5, s[{SW}:{SW+1}]")
        if o["stamps"]:
            stamp("fs")
            a("s_waitcnt vmcnt(0)")
            stamp("end")
            a(f"s_cmp_lg_u32 s3, {o['stw']}\ns_cbranch_scc1 L_end{pv}")
            st.n = len(sset)
            st.flush(a, SW, 2, 4)
        paths += [h + list(range(p0, len(a.lines))) for h in heads]
        if o.get("xcc"):
            a(f"s_cmp_eq_u32 s2, 0\ns_cbranch_scc0 L_end{pv}\ns_getreg_b32 s6, hwreg(HW_REG_XCC_ID)\nv_mov_b32 v4, 16\nv_mov_b32 v5, s6\nglobal_store_dword v4, v5, s[62:63]\ns_and_b32 s6, s6, {o['xcc']}\ns_mul_i32 s6, s6, 2000\ns_memrealtime s[8:9]\nL_xs{pv}:\ns_memrealtime s[10:11]\ns_waitcnt lgkmcnt(0)\ns_sub_u32 s12, s10, s8\ns_cmp_lt_u32 s12, s6\ns_cbranch_scc1 L_xs{pv}")
        a(f"L_end{pv}:\ns_endpgm")
    ab = o.get("ab", 0)
    k2lines = set(sum(paths, []))
    for i in k2lines:
        l = a.lines[i]
        kill = False
        if ab & 1 and "buffer_store_dword v3, off" in l and "offset:0" not in l: kill = True
        if ab & 2 and ";@poll" in l and "s59" not in l: kill = True
        if ab & 3 and any(f"s_cbranch_vccnz {n}" in l for n in ("L_b2", "L_b3", "L_of")): kill = True
        if ab & 4 and (";@gld" in l or "L_kvf_s" in l or "scc1 L_gat" in l or "scc1 L_red" in l or ("s54 offen" in l and "store" in l)): kill = True
        if ab & 8 and ";@late" in l: kill = True
        if ab & 16 and (";@pld" in l or "L_xb_s" in l or ("s61 offen" in l and "store" in l)): kill = True
        if kill: a.lines[i] = "    s_nop 0"
    resolve(a.lines, paths)
    a.lines += hk.lines + ool.lines + ["L_cend:"]
    a.lines = [l.split(" ;@")[0].replace(" offset:0 ", " ").replace("    ", " ") for l in a.lines]
    a.lines, n = hazard.fix(a.lines, verbose=o.get("hv", 0))
    if o["aln"]:
        a.lines, n1, n2 = align.fix(a.lines)
        if o.get("hv"): print("aligned", n1, n2)
    if o.get("cnt"): print(spn)
    ref = "cdna_kernels/" + NAME + ".s.ref"
    hdr = open(ref).read().split("; Override launch")[0] if os.path.exists(ref) else ""
    k = dict(name=NAME + "_kernel", grid=256, block=256, lds=163840, body=a, vgpr=256, agpr=256)
    if "pm" in o:
        pr = Asm(); pa, pb, M, pw = o.get("pa", 0), o.get("pb", 0), o["pm"], o.get("pw", 0)
        pr(f"""s_cmp_ge_u32 s2, 1
s_cbranch_scc1 Lp_end
s_load_dwordx2 s[4:5], s[0:1], 72
s_memrealtime s[8:9]
v_mov_b32 v1, {STAMP_OFF + o.get("pwa", pw)*128 + pa*8 + 4}
v_mov_b32 v2, {STAMP_OFF + pw*128 + (pb % 10)*8 + 4}
s_waitcnt lgkmcnt(0)
global_load_dword v3, v1, s[4:5]
global_load_dword v4, v2, s[4:5]
s_waitcnt vmcnt(0)
{"v_mov_b32 v4, s8" if pb == 99 else ""}
v_sub_u32 v3, v4, v3
s_nop 1
v_readfirstlane_b32 s6, v3
s_nop 3
s_min_u32 s6, s6, 20000
s_mul_i32 s6, s6, {M}
Lp_loop:
s_memrealtime s[10:11]
s_waitcnt lgkmcnt(0)
s_sub_u32 s12, s10, s8
s_cmp_lt_u32 s12, s6
s_cbranch_scc1 Lp_loop
Lp_end:
s_endpgm""")
        return hdr + file_text([k, dict(name="probe_kernel", grid=1, block=64, lds=0, body=pr, vgpr=8, agpr=0)])
    txt = file_text([k]).replace(f"@launch kernel={NAME}_kernel ", "@launch ")
    return hdr + txt
if __name__ == "__main__":
    kw = {}
    for x in sys.argv[2:]:
        k, v = x.split("="); kw[k] = int(v)
    open(sys.argv[1], "w").write(gen(**kw))
```
